```python
import torch

def _softmax(x, axis=-1):
    return torch.softmax(x, dim=axis)
def _gelu(x):
    return torch.nn.functional.gelu(x, approximate="tanh")
def _silu(x):
    return torch.nn.functional.silu(x)
def _sigmoid(x):
    return torch.sigmoid(x)
def _layernorm(x, axis=-1, eps=1e-5):
    m = x.mean(dim=axis, keepdim=True)
    v = x.var(dim=axis, keepdim=True, unbiased=False)
    return (x - m) / torch.sqrt(v + eps)
def _scatter_add(tgt, idx, src, axis=0):
    return tgt.clone().index_add_(axis, idx, src)
def _segment_sum(src, seg, n):
    out = torch.zeros((n,) + src.shape[1:], dtype=src.dtype)
    return out.index_add_(0, seg, src)
def _pad(x, pw):
    flat = tuple(v for pair in reversed(pw) for v in pair)
    return torch.nn.functional.pad(x, flat)

kernel_name = 'sequential_preLN__linear_attn_block__glu_gated_geglu__prompt'

def setup_inputs():

    _w = (lambda a: (lambda t: t.to(torch.bfloat16) if t.is_floating_point() else t)(torch.as_tensor(a)))
    def _A_setup():
        B, S, D = 1, 2048, 1024
        return {
            "x": _w((lambda *s: torch.randn(*s, dtype=torch.bfloat16) * 0.05)(B, S, D)),
            "wqkv": _w((lambda *s: torch.randn(*s, dtype=torch.bfloat16) * 0.05)(D, 3 * D)),
            "wo": _w((lambda *s: torch.randn(*s, dtype=torch.bfloat16) * 0.05)(D, D)),
        }
    _A_in = _A_setup()

    def _B_setup():
        B, S, Dm, Df = 1, 2048, 1024, 3584
        return {
            "x": _w((lambda *s: torch.randn(*s, dtype=torch.bfloat16) * 0.05)(B, S, Dm)),
            "w_gate": _w((lambda *s: torch.randn(*s, dtype=torch.bfloat16) * 0.4)(Dm, Df) * (Dm ** -0.5)),
            "w_up": _w((lambda *s: torch.randn(*s, dtype=torch.bfloat16) * 0.4)(Dm, Df) * (Dm ** -0.5)),
            "w_down": _w((lambda *s: torch.randn(*s, dtype=torch.bfloat16) * 0.4)(Df, Dm) * (Df ** -0.5)),
        }
    _B_in = _B_setup()

    return {
        "A_x": _A_in["x"],
        "A_wqkv": _A_in["wqkv"],
        "A_wo": _A_in["wo"],
        "B_x": _B_in["x"],
        "B_w_gate": _B_in["w_gate"],
        "B_w_up": _B_in["w_up"],
        "B_w_down": _B_in["w_down"],
    }

def reference(A_x, A_wqkv, A_wo, B_x, B_w_gate, B_w_up, B_w_down):
    def _A_ref(x, wqkv, wo):
        B, S, D = x.shape
        H = 32; Dh = D // H
        qkv = (lambda x, *d: x.permute(*d))((x @ wqkv).reshape(B, S, 3, H, Dh), 2, 0, 3, 1, 4)
        q, k, v = qkv[0], qkv[1], qkv[2]
        phi = lambda t: torch.where(t > 0, t + 1, torch.exp(t)) + 1e-6
        pq, pk = phi(q), phi(k)
        kv = torch.einsum("bhsd,bhse->bhde", pk, v)
        z = torch.einsum("bhsd->bhd", pk)
        num = torch.einsum("bhqd,bhde->bhqe", pq, kv)
        den = torch.einsum("bhqd,bhd->bhq", pq, z)[..., None] + 1e-6
        o = num / den
        return (lambda x, *d: x.permute(*d))(o, 0, 2, 1, 3).reshape(B, S, D) @ wo

    def _B_ref(x, w_gate, w_up, w_down):
        g = torch.einsum("bsd,df->bsf", x, w_gate)
        u = torch.einsum("bsd,df->bsf", x, w_up)
        h = _gelu(g) * u
        return torch.einsum("bsf,fd->bsd", h, w_down)

    x = A_x
    h = x + _A_ref(_layernorm(x, axis=-1), A_wqkv, A_wo)
    h2 = h + _B_ref(_layernorm(h, axis=-1), B_w_gate, B_w_up, B_w_down)
    return h2
```

```python
import sys

NAME = "sequential_preLN__linear_attn_block__glu_gated_geglu__prompt"
OUT = "cdna_kernels/%s.s" % NAME

MB = 1 << 20
WS_XN = 0 * MB
WS_PQ = 4 * MB
WS_KVP = 8 * MB
WS_ZP = 10 * MB
WS_CS = 11 * MB
WS_ST = 12 * MB
WS_O = 16 * MB
WS_H = 20 * MB
WS_HH = 24 * MB
WS_SIZE = 268435456

KA_X, KA_WQKV, KA_WO, KA_BX, KA_WG, KA_WU, KA_WD, KA_OUT, KA_DBG, KA_WS = [8 * i for i in range(10)]


class KB:
    def __init__(self, name):
        self.name = name
        self.lines = []
        self.nlab = 0

    def e(self, s):
        self.lines.append("    " + s)

    def c(self, s):
        self.lines.append("    ; " + s)

    def lab(self, s):
        self.lines.append(s + ":")

    def newlab(self, s):
        self.nlab += 1
        return "L_%s_%s_%d" % (self.name, s, self.nlab)

    def srd(self, sd, sbase, nbytes, off=0):
        if off:
            self.e("s_add_u32 s%d, s%d, 0x%x" % (sd, sbase, off))
            self.e("s_addc_u32 s%d, s%d, 0" % (sd + 1, sbase + 1))
            self.e("s_and_b32 s%d, s%d, 0xffff" % (sd + 1, sd + 1))
        else:
            self.e("s_mov_b32 s%d, s%d" % (sd, sbase))
            self.e("s_and_b32 s%d, s%d, 0xffff" % (sd + 1, sbase + 1))
        self.e("s_mov_b32 s%d, 0x%x" % (sd + 2, nbytes))
        self.e("s_mov_b32 s%d, 0x00020000" % (sd + 3))

    def text(self, vgprs, sgprs=102):
        acc = (vgprs + 3) // 4 * 4
        out = []
        out.append(".globl %s" % self.name)
        out.append(".p2align 8")
        out.append(".type %s,@function" % self.name)
        out.append("%s:" % self.name)
        out += self.lines
        return "\n".join(out), """.amdhsa_kernel %s
  .amdhsa_next_free_vgpr %d
  .amdhsa_next_free_sgpr %d
  .amdhsa_accum_offset %d
  .amdhsa_group_segment_fixed_size 0
  .amdhsa_kernarg_size 80
  .amdhsa_user_sgpr_count 2
  .amdhsa_user_sgpr_kernarg_segment_ptr 1
  .amdhsa_system_sgpr_workgroup_id_x 1
.end_amdhsa_kernel""" % (self.name, vgprs, sgprs, acc)


def wave_reduce_sum(k, v, stmp):
    k.e("s_nop 1")
    k.e("v_add_f32_dpp v%d, v%d, v%d quad_perm:[1,0,3,2] row_mask:0xf bank_mask:0xf" % (v, v, v))
    k.e("s_nop 1")
    k.e("v_add_f32_dpp v%d, v%d, v%d quad_perm:[2,3,0,1] row_mask:0xf bank_mask:0xf" % (v, v, v))
    k.e("s_nop 1")
    k.e("v_add_f32_dpp v%d, v%d, v%d row_half_mirror row_mask:0xf bank_mask:0xf" % (v, v, v))
    k.e("s_nop 1")
    k.e("v_add_f32_dpp v%d, v%d, v%d row_mirror row_mask:0xf bank_mask:0xf" % (v, v, v))
    k.e("s_nop 1")
    for i in range(4):
        k.e("v_readlane_b32 s%d, v%d, %d" % (stmp + i, v, 16 * i))
    k.e("s_nop 1")
    k.e("v_mov_b32 v%d, s%d" % (v, stmp))
    k.e("v_add_f32 v%d, s%d, v%d" % (v, stmp + 1, v))
    k.e("v_add_f32 v%d, s%d, v%d" % (v, stmp + 2, v))
    k.e("v_add_f32 v%d, s%d, v%d" % (v, stmp + 3, v))


def round_bf16(k, vd, vs):
    k.e("v_cvt_pk_bf16_f32 v%d, v%d, v%d" % (vd, vs, vs))
    k.e("v_lshlrev_b32 v%d, 16, v%d" % (vd, vd))


def gen_k0():
    k = KB("k0_ln_kernel")
    L_cs = k.newlab("cs")
    L_end = k.newlab("end")
    k.e("s_cmp_ge_u32 s2, 368")
    k.e("s_cbranch_scc1 %s" % L_end)
    k.e("s_load_dwordx2 s[4:5], s[0:1], %d" % KA_X)
    k.e("s_load_dwordx2 s[6:7], s[0:1], %d" % KA_WS)
    k.e("s_load_dwordx4 s[24:27], s[0:1], %d" % KA_WG)
    k.e("s_waitcnt lgkmcnt(0)")
    k.e("s_cmp_ge_u32 s2, 256")
    k.e("s_cbranch_scc1 %s" % L_cs)
    k.srd(8, 4, 2048 * 1024 * 2)
    k.srd(12, 6, 2048 * 1024 * 2, WS_XN)
    k.e("v_lshrrev_b32 v1, 6, v0")
    k.e("v_and_b32 v2, 63, v0")
    k.e("s_lshl_b32 s3, s2, 3")
    k.e("v_lshlrev_b32 v1, 1, v1")
    k.e("v_add_u32 v1, s3, v1")
    k.e("v_lshlrev_b32 v1, 11, v1")
    k.e("v_lshl_add_u32 v1, v2, 4, v1")
    for r in range(2):
        k.e("buffer_load_dwordx4 v[%d:%d], v1, s[8:11], 0 offen offset:%d" % (4 + 8 * r, 7 + 8 * r, 2048 * r))
        k.e("buffer_load_dwordx4 v[%d:%d], v1, s[8:11], 0 offen offset:%d" % (8 + 8 * r, 11 + 8 * r, 2048 * r + 1024))
    k.e("v_mov_b32 v60, 0xffff0000")
    for r in range(2):
        k.e("s_waitcnt vmcnt(%d)" % (2 - 2 * r))
        src = 4 + 8 * r
        f = 24
        for i in range(8):
            k.e("v_lshlrev_b32 v%d, 16, v%d" % (f + 2 * i, src + i))
            k.e("v_and_b32 v%d, v60, v%d" % (f + 2 * i + 1, src + i))
        k.e("v_add_f32 v40, v%d, v%d" % (f, f + 1))
        for i in range(2, 16):
            k.e("v_add_f32 v40, v40, v%d" % (f + i))
        wave_reduce_sum(k, 40, 16)
        k.e("v_mul_f32 v40, 0x3a800000, v40")
        k.e("v_mov_b32 v41, 0")
        for i in range(16):
            k.e("v_sub_f32 v42, v%d, v40" % (f + i))
            k.e("v_fmac_f32 v41, v42, v42")
        wave_reduce_sum(k, 41, 16)
        k.e("v_mul_f32 v41, 0x3a800000, v41")
        round_bf16(k, 40, 40)
        round_bf16(k, 41, 41)
        k.e("v_add_f32 v41, 0x3727c5ac, v41")
        round_bf16(k, 41, 41)
        k.e("v_sqrt_f32 v41, v41")
        k.e("s_nop 0")
        round_bf16(k, 41, 41)
        k.e("v_rcp_f32 v41, v41")
        k.e("s_nop 0")
        for i in range(8):
            k.e("v_sub_f32 v42, v%d, v40" % (f + 2 * i))
            k.e("v_sub_f32 v43, v%d, v40" % (f + 2 * i + 1))
            k.e("v_cvt_pk_bf16_f32 v42, v42, v43")
            k.e("v_and_b32 v43, v60, v42")
            k.e("v_lshlrev_b32 v42, 16, v42")
            k.e("v_mul_f32 v42, v42, v41")
            k.e("v_mul_f32 v43, v43, v41")
            k.e("v_cvt_pk_bf16_f32 v%d, v42, v43" % (44 + 8 * r + i))
        k.e("buffer_store_dwordx4 v[%d:%d], v1, s[12:15], 0 offen offset:%d" % (44 + 8 * r, 47 + 8 * r, 2048 * r))
        k.e("buffer_store_dwordx4 v[%d:%d], v1, s[12:15], 0 offen offset:%d" % (48 + 8 * r, 51 + 8 * r, 2048 * r + 1024))
    k.e("s_endpgm")
    k.lab(L_cs)
    k.e("s_sub_u32 s3, s2, 256")
    k.e("s_cmp_ge_u32 s3, 56")
    k.e("s_cselect_b32 s28, s26, s24")
    k.e("s_cselect_b32 s29, s27, s25")
    k.e("s_cselect_b32 s30, 56, 0")
    k.e("s_sub_u32 s31, s3, s30")
    k.srd(8, 28, 1024 * 3584 * 2)
    k.srd(12, 6, 2 * 3584 * 4, WS_CS)
    k.e("v_and_b32 v1, 7, v0")
    k.e("v_lshrrev_b32 v2, 3, v0")
    k.e("s_lshl_b32 s32, s31, 7")
    k.e("s_movk_i32 s33, 7168")
    k.e("v_mul_lo_u32 v3, v2, s33")
    k.e("v_lshl_add_u32 v3, v1, 4, v3")
    k.e("v_add_u32 v3, s32, v3")
    k.e("s_mov_b32 s34, 0")
    for it in range(32):
        k.e("buffer_load_dwordx4 v[%d:%d], v3, s[8:11], s34 offen" % (16 + 4 * it, 19 + 4 * it))
        if it != 31:
            k.e("s_add_u32 s34, s34, %d" % (32 * 7168))
    k.e("v_mov_b32 v4, 0xffff0000")
    for i in range(8):
        k.e("v_mov_b32 v%d, 0" % (8 + i))
    for it in range(32):
        k.e("s_waitcnt vmcnt(%d)" % (31 - it))
        for i in range(4):
            s = 16 + 4 * it + i
            k.e("v_lshlrev_b32 v5, 16, v%d" % s)
            k.e("v_and_b32 v6, v4, v%d" % s)
            k.e("v_add_f32 v%d, v%d, v5" % (8 + 2 * i, 8 + 2 * i))
            k.e("v_add_f32 v%d, v%d, v6" % (9 + 2 * i, 9 + 2 * i))
    k.e("v_lshlrev_b32 v5, 5, v0")
    k.e("ds_write_b128 v5, v[8:11]")
    k.e("ds_write_b128 v5, v[12:15] offset:16")
    k.e("s_waitcnt lgkmcnt(0)")
    k.e("s_barrier")
    k.e("v_cmp_gt_u32 vcc, 64, v0")
    k.e("s_and_saveexec_b64 s[36:37], vcc")
    k.e("s_cbranch_execz %s" % L_end)
    k.e("v_lshlrev_b32 v5, 2, v0")
    for rg in range(32):
        k.e("ds_read_b32 v%d, v5 offset:%d" % (16 + rg, rg * 256))
    k.e("s_waitcnt lgkmcnt(0)")
    for rg in range(1, 32):
        k.e("v_add_f32 v16, v16, v%d" % (16 + rg))
    k.e("s_lshl_b32 s35, s3, 8")
    k.e("v_add_u32 v5, s35, v5")
    k.e("buffer_store_dword v16, v5, s[12:15], 0 offen")
    k.lab(L_end)
    k.e("s_endpgm")
    return k, 144, (368, 256, 8192)


class Spec:
    pass


def emit_gemm(k, sp):
    NS, nst, SB = sp.NS, sp.nst, sp.stage_bytes
    nd = len(sp.dma)
    nsteps = len(sp.steps)

    def dma_issue(i):
        srd, voff, soff, sl = sp.dma[i]
        k.e("s_add_u32 m0, s%d, s%d" % (sp.s_wr, sl))
        k.e("s_nop 0")
        k.e("buffer_load_dwordx4 v%d, s[%d:%d], s%d offen lds" % (voff, srd, srd + 3, soff))

    def dma_advance():
        for s, inc in sp.sadv:
            k.e("s_add_u32 s%d, s%d, 0x%x" % (s, s, inc))
        k.e("s_add_u32 s%d, s%d, %d" % (sp.s_wr, sp.s_wr, SB))
        k.e("s_cmp_ge_u32 s%d, %d" % (sp.s_wr, SB * NS))
        k.e("s_cselect_b32 s%d, 0, s%d" % (sp.s_wr, sp.s_wr))

    def addr_next():
        k.e("s_add_u32 s%d, s%d, %d" % (sp.s_rd, sp.s_rd, SB))
        k.e("s_cmp_ge_u32 s%d, %d" % (sp.s_rd, SB * NS))
        k.e("s_cselect_b32 s%d, 0, s%d" % (sp.s_rd, sp.s_rd))
        for vc, vp in sp.addr:
            k.e("v_add_u32 v%d, s%d, v%d" % (vc, sp.s_rd, vp))

    def read_instr(rd, base):
        op, reg, addr, imm = rd
        n = 4 if op == "ds_read_b128" else 2
        k.e("%s v[%d:%d], v%d offset:%d" % (op, base + reg, base + reg + n - 1, addr, imm))

    k.e("s_mov_b32 s%d, 0" % sp.s_wr)
    k.e("s_mov_b32 s%d, 0" % sp.s_rd)
    for s in range(NS - 1):
        for i in range(nd):
            dma_issue(i)
        dma_advance()
    for vc, vp in sp.addr:
        k.e("v_mov_b32 v%d, v%d" % (vc, vp))
    k.e("s_waitcnt vmcnt(%d)" % ((NS - 2) * nd))
    k.e("s_barrier")
    for rd in sp.steps[0]["reads"]:
        read_instr(rd, sp.fset[0])

    gstep = [0]

    def stage(s_idx, do_dma, last, vm):
        k.e("s_waitcnt vmcnt(%d)" % vm)
        k.e("s_barrier")
        dma_todo = list(range(nd)) if do_dma else []
        for j, st in enumerate(sp.steps):
            cur = sp.fset[gstep[0] & 1]
            nxt = sp.fset[(gstep[0] + 1) & 1]
            lastj = (j == nsteps - 1)
            if lastj and last:
                nreads = []
            else:
                nreads = sp.steps[(j + 1) % nsteps]["reads"]
            R = len(st["reads"])
            M = len(st["mfma"])
            issued = 0
            waited = -1
            if lastj and not last:
                addr_next()
            for i, (acc, a, b, dep) in enumerate(st["mfma"]):
                if dep > waited:
                    n = (R - 1 - dep) + issued
                    k.e("s_waitcnt lgkmcnt(%d)" % min(n, 15))
                    waited = dep
                k.e("v_mfma_f32_32x32x16_bf16 v[%d:%d], v[%d:%d], v[%d:%d], v[%d:%d]" % (
                    acc, acc + 15, cur + a, cur + a + 3, cur + b, cur + b + 3, acc, acc + 15))
                tgt = (len(nreads) * (i + 1) + M - 1) // M
                while issued < tgt:
                    read_instr(nreads[issued], nxt)
                    issued += 1
                if dma_todo:
                    per = (nd + M * nsteps - 1) // (M * nsteps)
                    for _ in range(max(per, 1)):
                        if dma_todo:
                            dma_issue(dma_todo.pop(0))
                    if not dma_todo:
                        dma_advance()
            gstep[0] += 1
        assert not dma_todo

    U = 1 if nsteps % 2 == 0 else 2
    nmain = nst - (NS - 1)
    nloop = (nmain // U) * U
    L = k.newlab("loop")
    if nloop > 0:
        k.e("s_mov_b32 s%d, %d" % (sp.s_cnt, nloop // U))
        k.lab(L)
        for u in range(U):
            stage(None, True, False, (NS - 3) * nd)
        k.e("s_sub_u32 s%d, s%d, 1" % (sp.s_cnt, sp.s_cnt))
        k.e("s_cmp_lg_u32 s%d, 0" % sp.s_cnt)
        k.e("s_cbranch_scc1 %s" % L)
    for s in range(nloop, nst):
        do_dma = (s + NS - 1) < nst
        issued_upto = min(s + NS - 2, nst - 1)
        need = min(s + 1, nst - 1)
        vm = (issued_upto - need) * nd
        stage(s, do_dma, s == nst - 1, vm)


def xtile_dma_voff(k, vdst, vlane, vtmp, vtmp2, instr_tok0_sgpr_or_imm, BK, pitch, stok0):
    gpr = BK // 8
    gs = {4: 2, 8: 3}[gpr]
    k.e("v_lshrrev_b32 v%d, %d, v%d" % (vtmp, gs, vlane))
    k.e("v_add_u32 v%d, s%d, v%d" % (vtmp, instr_tok0_sgpr_or_imm, vtmp))
    if gpr == 8:
        k.e("v_bfe_u32 v%d, v%d, 1, 3" % (vtmp2, vtmp))
    else:
        k.e("v_bfe_u32 v%d, v%d, 2, 2" % (vtmp2, vtmp))
    k.e("v_and_b32 v%d, %d, v%d" % (vdst, gpr - 1, vlane))
    k.e("v_xor_b32 v%d, v%d, v%d" % (vdst, vdst, vtmp2))
    k.e("v_add_u32 v%d, s%d, v%d" % (vtmp, stok0, vtmp))
    k.e("s_mov_b32 s99, %d" % pitch)
    k.e("v_mul_lo_u32 v%d, v%d, s99" % (vtmp, vtmp))
    k.e("v_lshl_add_u32 v%d, v%d, 4, v%d" % (vdst, vdst, vtmp))


def xfrag_pat(k, vdst, vlane, vtok, vtmp, g_sgpr, BK):
    gpr = BK // 8
    k.e("v_lshrrev_b32 v%d, 5, v%d" % (vdst, vlane))
    k.e("v_add_u32 v%d, s%d, v%d" % (vdst, g_sgpr, vdst))
    if gpr == 8:
        k.e("v_bfe_u32 v%d, v%d, 1, 3" % (vtmp, vtok))
    else:
        k.e("v_bfe_u32 v%d, v%d, 2, 2" % (vtmp, vtok))
    k.e("v_xor_b32 v%d, v%d, v%d" % (vdst, vdst, vtmp))
    k.e("v_lshlrev_b32 v%d, 4, v%d" % (vdst, vdst))
    k.e("v_lshl_add_u32 v%d, v%d, %d, v%d" % (vdst, vtok, {4: 6, 8: 7}[gpr], vdst))


def phi(k, v, t):
    k.e("v_mul_f32 v%d, v61, v%d" % (t, v))
    k.e("v_exp_f32 v%d, v%d" % (t, t))
    k.e("v_cmp_lt_f32 vcc, 0, v%d" % v)
    k.e("v_add_f32 v%d, 1.0, v%d" % (v, v))
    k.e("s_nop 0")
    k.e("v_cndmask_b32 v%d, v%d, v%d, vcc" % (v, t, v))
    k.e("v_add_f32 v%d, 0x358637bd, v%d" % (v, v))


def gen_k1():
    k = KB("k1_qkv_kernel")
    L_end = k.newlab("end")
    BK, NS = 64, 4
    XB = 128 * BK * 2
    WB = (BK // 4) * 6 * 256
    SB = XB + WB
    k.e("s_cmp_ge_u32 s2, 256")
    k.e("s_cbranch_scc1 %s" % L_end)
    k.e("s_load_dwordx2 s[4:5], s[0:1], %d" % KA_WQKV)
    k.e("s_load_dwordx2 s[6:7], s[0:1], %d" % KA_WS)
    k.e("s_and_b32 s20, s2, 7")
    k.e("s_lshr_b32 s21, s2, 3")
    k.e("s_and_b32 s22, s20, 3")
    k.e("s_lshl_b32 s22, s22, 2")
    k.e("s_and_b32 s23, s21, 3")
    k.e("s_add_u32 s22, s22, s23")
    k.e("s_lshr_b32 s23, s20, 2")
    k.e("s_lshl_b32 s23, s23, 3")
    k.e("s_lshr_b32 s24, s21, 2")
    k.e("s_add_u32 s23, s23, s24")
    k.e("s_lshl_b32 s24, s23, 7")
    k.e("v_lshrrev_b32 v1, 6, v0")
    k.e("v_and_b32 v2, 63, v0")
    k.e("s_nop 0")
    k.e("v_readfirstlane_b32 s25, v1")
    k.e("s_waitcnt lgkmcnt(0)")
    k.srd(8, 6, 2048 * 1024 * 2, WS_XN)
    k.srd(12, 4, 1024 * 3072 * 2)
    k.e("s_lshr_b32 s26, s25, 2")
    k.e("s_bfe_u32 s27, s25, 0x10001")
    k.e("s_and_b32 s28, s25, 1")
    dma = []
    for i in range(2):
        k.e("s_lshl_b32 s30, s25, 4")
        k.e("s_add_u32 s30, s30, %d" % (8 * i))
        xtile_dma_voff(k, 10 + i, 2, 3, 4, 30, BK, 2048, 24)
        k.e("s_lshl_b32 s%d, s25, 11" % (40 + i))
        k.e("s_add_u32 s%d, s%d, %d" % (40 + i, 40 + i, 1024 * i))
        dma.append((8, 10 + i, 50, 40 + i))
    for i in range(3):
        k.e("s_mul_i32 s30, s25, 12")
        k.e("s_add_u32 s30, s30, %d" % (4 * i))
        k.e("v_lshrrev_b32 v3, 4, v2")
        k.e("v_add_u32 v3, s30, v3")
        k.e("v_mul_u32_u24 v4, 43, v3")
        k.e("v_lshrrev_b32 v4, 8, v4")
        k.e("v_mul_u32_u24 v5, 6, v4")
        k.e("v_sub_u32 v5, v3, v5")
        k.e("v_bfe_u32 v6, v2, 2, 2")
        k.e("v_lshl_add_u32 v6, v4, 2, v6")
        k.e("v_mul_u32_u24 v6, 6144, v6")
        k.e("v_lshrrev_b32 v7, 1, v5")
        k.e("v_lshl_add_u32 v6, v7, 11, v6")
        k.e("v_and_b32 v7, 1, v5")
        k.e("v_lshl_add_u32 v6, v7, 6, v6")
        k.e("v_and_b32 v7, 3, v2")
        k.e("v_lshl_add_u32 v6, v7, 4, v6")
        k.e("s_lshl_b32 s31, s22, 7")
        k.e("v_add_u32 v%d, s31, v6" % (12 + i))
        k.e("s_mul_i32 s%d, s25, 3072" % (42 + i))
        k.e("s_add_u32 s%d, s%d, %d" % (42 + i, 42 + i, XB + 1024 * i))
        dma.append((12, 12 + i, 51, 42 + i))
    k.e("s_mov_b32 s50, 0")
    k.e("s_mov_b32 s51, 0")
    k.e("v_and_b32 v3, 31, v2")
    for tl in range(2):
        k.e("s_xor_b32 s30, s26, %d" % tl)
        k.e("s_lshl_b32 s31, s27, 1")
        k.e("s_add_u32 s30, s30, s31")
        k.e("s_lshl_b32 s30, s30, 5")
        k.e("v_add_u32 v4, s30, v3")
        for jj in range(2):
            k.e("s_lshl_b32 s31, s26, 2")
            k.e("s_add_u32 s31, s31, %d" % (2 * jj))
            xfrag_pat(k, 16 + 2 * tl + jj, 2, 4, 5, 31, BK)
    k.e("v_bfe_u32 v3, v2, 2, 2")
    k.e("v_lshlrev_b32 v3, 6, v3")
    k.e("v_bfe_u32 v4, v2, 4, 1")
    k.e("v_lshl_add_u32 v3, v4, 5, v3")
    k.e("v_and_b32 v4, 3, v2")
    k.e("v_lshl_add_u32 v3, v4, 3, v3")
    k.e("v_lshrrev_b32 v4, 5, v2")
    k.e("v_mul_u32_u24 v4, %d, v4" % (2 * 6 * 256))
    k.e("v_add_u32 v3, v3, v4")
    k.e("s_mul_i32 s30, s26, %d" % (8 * 6 * 256))
    k.e("s_lshl_b32 s31, s28, 8")
    k.e("s_add_u32 s30, s30, s31")
    k.e("s_add_u32 s30, s30, %d" % XB)
    k.e("v_add_u32 v20, s30, v3")
    addr = [(21 + i, 16 + i) for i in range(5)]
    ACC = 64
    for i in range(96):
        k.e("v_mov_b32 v%d, 0" % (ACC + i))
    F0, F1 = 160, 180
    steps = []
    for jj in range(2):
        reads = []
        reads.append(("ds_read_b128", 0, 21 + 0 + jj, 0))
        for p in range(3):
            for i in range(2):
                reads.append(("ds_read_b64_tr_b16", 8 + 4 * p + 2 * i, 25, ((4 * jj + i) * 6 + 2 * p) * 256))
            if p == 0:
                reads.append(("ds_read_b128", 4, 21 + 2 + jj, 0))
        mf = []
        mf.append((ACC + 0 * 16, 8, 0, 2))
        mf.append((ACC + 3 * 16, 8, 4, 3))
        mf.append((ACC + 1 * 16, 0, 12, 5))
        mf.append((ACC + 4 * 16, 4, 12, 5))
        mf.append((ACC + 2 * 16, 0, 16, 7))
        mf.append((ACC + 5 * 16, 4, 16, 7))
        steps.append(dict(reads=reads, mfma=mf))
    sp = Spec()
    sp.NS, sp.nst, sp.stage_bytes = NS, 1024 // BK, SB
    sp.dma = dma
    sp.sadv = [(50, BK * 2), (51, BK * 6144)]
    sp.addr = addr
    sp.steps = steps
    sp.fset = [F0, F1]
    sp.s_wr, sp.s_rd, sp.s_cnt = 52, 53, 54
    emit_gemm(k, sp)
    k.e("s_nop 15")
    k.e("s_barrier")
    k.e("s_mul_i32 s30, s25, 12288")
    k.e("v_lshlrev_b32 v3, 4, v2")
    k.e("v_add_u32 v4, s30, v3")
    for q in range(12):
        k.e("ds_write_b128 v4, v[%d:%d] offset:%d" % (ACC + 48 + 4 * q, ACC + 51 + 4 * q, 1024 * q))
    k.e("s_xor_b32 s31, s25, 4")
    k.e("s_mul_i32 s31, s31, 12288")
    k.e("v_add_u32 v5, s31, v3")
    k.e("s_waitcnt lgkmcnt(0)")
    k.e("s_barrier")
    for q in range(12):
        k.e("ds_read_b128 v[%d:%d], v5 offset:%d" % (ACC + 48 + 4 * q, ACC + 51 + 4 * q, 1024 * q))
    k.e("v_mov_b32 v61, 0x3fb8aa3b")
    k.e("v_mov_b32 v60, 0xffff0000")
    for q in range(12):
        k.e("s_waitcnt lgkmcnt(%d)" % (11 - q))
        for i in range(4):
            k.e("v_add_f32 v%d, v%d, v%d" % (ACC + 4 * q + i, ACC + 4 * q + i, ACC + 48 + 4 * q + i))
    PQ, PK, PV = 160, 168, 176
    for t, dst in ((0, PQ), (1, PK)):
        for i in range(8):
            a, b = ACC + 16 * t + 2 * i, ACC + 16 * t + 2 * i + 1
            k.e("v_cvt_pk_bf16_f32 v6, v%d, v%d" % (a, b))
            k.e("v_lshlrev_b32 v%d, 16, v6" % a)
            k.e("v_and_b32 v%d, v60, v6" % b)
            phi(k, a, 7)
            phi(k, b, 8)
            k.e("v_cvt_pk_bf16_f32 v%d, v%d, v%d" % (dst + i, a, b))
    for i in range(8):
        k.e("v_cvt_pk_bf16_f32 v%d, v%d, v%d" % (PV + i, ACC + 32 + 2 * i, ACC + 33 + 2 * i))
    k.srd(16, 6, 2048 * 1024 * 2, WS_PQ)
    k.e("s_lshl_b32 s30, s27, 1")
    k.e("s_add_u32 s30, s30, s26")
    k.e("s_lshl_b32 s30, s30, 5")
    k.e("s_add_u32 s30, s30, s24")
    k.e("v_and_b32 v3, 31, v2")
    k.e("v_add_u32 v3, s30, v3")
    k.e("v_lshlrev_b32 v3, 11, v3")
    k.e("v_lshrrev_b32 v4, 5, v2")
    k.e("v_lshl_add_u32 v3, v4, 4, v3")
    k.e("s_lshl_b32 s31, s22, 1")
    k.e("s_add_u32 s31, s31, s28")
    k.e("s_lshl_b32 s32, s31, 6")
    k.e("v_add_u32 v3, s32, v3")
    k.e("buffer_store_dwordx4 v[%d:%d], v3, s[16:19], 0 offen" % (PQ, PQ + 3))
    k.e("buffer_store_dwordx4 v[%d:%d], v3, s[16:19], 0 offen offset:32" % (PQ + 4, PQ + 7))
    KV = ACC + 48
    k.e("v_mfma_f32_32x32x16_bf16 v[%d:%d], v[%d:%d], v[%d:%d], 0" % (KV, KV + 15, PK, PK + 3, PV, PV + 3))
    k.e("v_mfma_f32_32x32x16_bf16 v[%d:%d], v[%d:%d], v[%d:%d], v[%d:%d]" % (KV, KV + 15, PK + 4, PK + 7, PV + 4, PV + 7, KV, KV + 15))
    k.e("v_mov_b32 v9, 0")
    for i in range(8):
        k.e("v_lshlrev_b32 v6, 16, v%d" % (PK + i))
        k.e("v_and_b32 v7, v60, v%d" % (PK + i))
        k.e("v_add_f32 v9, v9, v6")
        k.e("v_add_f32 v9, v9, v7")
    KVL = 98304
    ZL = KVL + 32768
    k.e("s_lshl_b32 s30, s25, 12")
    k.e("v_lshlrev_b32 v3, 4, v2")
    k.e("v_add_u32 v4, s30, v3")
    k.e("v_add_u32 v4, %d, v4" % KVL)
    k.e("s_lshl_b32 s30, s25, 8")
    k.e("v_lshlrev_b32 v5, 2, v2")
    k.e("v_add_u32 v5, s30, v5")
    k.e("v_add_u32 v5, %d, v5" % ZL)
    k.e("ds_write_b32 v5, v9")
    k.e("s_nop 7")
    for q in range(4):
        k.e("ds_write_b128 v4, v[%d:%d] offset:%d" % (KV + 4 * q, KV + 4 * q + 3, 1024 * q))
    k.e("s_waitcnt lgkmcnt(0)")
    k.e("s_barrier")
    k.e("s_lshr_b32 s30, s25, 1")
    k.e("s_lshl_b32 s31, s30, 10")
    k.e("s_lshl_b32 s32, s28, 12")
    k.e("s_add_u32 s31, s31, s32")
    k.e("s_add_u32 s31, s31, %d" % KVL)
    k.e("v_add_u32 v4, s31, v3")
    for j in range(4):
        k.e("ds_read_b128 v[%d:%d], v4 offset:%d" % (ACC + 4 * j, ACC + 4 * j + 3, 8192 * j))
    k.e("s_lshl_b32 s32, s28, 8")
    k.e("v_and_b32 v6, 31, v2")
    k.e("v_lshlrev_b32 v6, 2, v6")
    k.e("v_add_u32 v6, s32, v6")
    k.e("v_add_u32 v6, %d, v6" % ZL)
    for j in range(4):
        k.e("ds_read_b32 v%d, v6 offset:%d" % (ACC + 16 + 2 * j, 512 * j))
        k.e("ds_read_b32 v%d, v6 offset:%d" % (ACC + 17 + 2 * j, 512 * j + 128))
    k.srd(16, 6, 16 * 32 * 4096, WS_KVP)
    k.srd(56, 6, 16 * 32 * 128, WS_ZP)
    k.e("s_waitcnt lgkmcnt(0)")
    for i in range(4):
        k.e("v_add_f32 v%d, v%d, v%d" % (ACC + i, ACC + i, ACC + 4 + i))
        k.e("v_add_f32 v%d, v%d, v%d" % (ACC + 8 + i, ACC + 8 + i, ACC + 12 + i))
        k.e("v_add_f32 v%d, v%d, v%d" % (ACC + i, ACC + i, ACC + 8 + i))
    for i in range(1, 8):
        k.e("v_add_f32 v%d, v%d, v%d" % (ACC + 16, ACC + 16, ACC + 16 + i))
    k.e("s_lshl_b32 s33, s23, 5")
    k.e("s_lshl_b32 s34, s22, 1")
    k.e("s_add_u32 s33, s33, s34")
    k.e("s_add_u32 s33, s33, s28")
    k.e("s_lshl_b32 s34, s33, 12")
    k.e("s_lshl_b32 s35, s30, 10")
    k.e("s_add_u32 s34, s34, s35")
    k.e("v_add_u32 v4, s34, v3")
    k.e("buffer_store_dwordx4 v[%d:%d], v4, s[16:19], 0 offen" % (ACC, ACC + 3))
    k.e("s_cmp_lg_u32 s30, 0")
    k.e("s_cbranch_scc1 %s" % L_end)
    k.e("v_cmp_gt_u32 vcc, 32, v2")
    k.e("s_and_saveexec_b64 s[36:37], vcc")
    k.e("s_lshl_b32 s34, s33, 7")
    k.e("v_lshlrev_b32 v6, 2, v2")
    k.e("v_add_u32 v6, s34, v6")
    k.e("buffer_store_dword v%d, v6, s[56:59], 0 offen" % (ACC + 16))
    k.lab(L_end)
    k.e("s_endpgm")
    return k, 200, (256, 512, NS * SB)


def gen_k15():
    k = KB("k15_o_kernel")
    L_end = k.newlab("end")
    k.e("s_cmp_ge_u32 s2, 256")
    k.e("s_cbranch_scc1 %s" % L_end)
    k.e("s_load_dwordx2 s[6:7], s[0:1], %d" % KA_WS)
    k.e("s_and_b32 s20, s2, 31")
    k.e("s_lshr_b32 s21, s2, 5")
    k.e("v_lshrrev_b32 v1, 6, v0")
    k.e("v_and_b32 v2, 63, v0")
    k.e("s_nop 0")
    k.e("v_readfirstlane_b32 s25, v1")
    k.e("s_waitcnt lgkmcnt(0)")
    k.srd(8, 6, 2048 * 1024 * 2, WS_PQ)
    k.srd(12, 6, 16 * 32 * 4096, WS_KVP)
    k.srd(16, 6, 16 * 32 * 128, WS_ZP)
    k.srd(28, 6, 2048 * 1024 * 2, WS_O)
    k.e("s_lshl_b32 s22, s21, 8")
    k.e("s_lshl_b32 s23, s25, 6")
    k.e("s_add_u32 s22, s22, s23")
    k.e("v_and_b32 v3, 31, v2")
    k.e("v_add_u32 v3, s22, v3")
    k.e("v_lshlrev_b32 v3, 11, v3")
    k.e("v_lshrrev_b32 v4, 5, v2")
    k.e("v_lshl_add_u32 v3, v4, 4, v3")
    k.e("s_lshl_b32 s23, s20, 6")
    k.e("v_add_u32 v3, s23, v3")
    k.e("v_add_u32 v5, 0x10000, v3")
    for t in range(2):
        for s in range(2):
            k.e("buffer_load_dwordx4 v[%d:%d], v%d, s[8:11], 0 offen offset:%d" % (16 + 8 * t + 4 * s, 19 + 8 * t + 4 * s, 3 + 2 * t, 32 * s))
    k.e("s_lshl_b32 s23, s20, 12")
    k.e("s_lshl_b32 s24, s25, 10")
    k.e("s_add_u32 s23, s23, s24")
    k.e("v_lshlrev_b32 v6, 4, v2")
    k.e("v_add_u32 v7, s23, v6")
    k.e("s_mov_b32 s24, 0")
    for mb in range(16):
        k.e("buffer_load_dwordx4 v[%d:%d], v7, s[12:15], s24 offen" % (64 + 4 * mb, 67 + 4 * mb))
        if mb != 15:
            k.e("s_add_u32 s24, s24, %d" % (32 * 4096))
    k.e("s_lshl_b32 s23, s20, 7")
    k.e("v_and_b32 v8, 31, v2")
    k.e("v_lshlrev_b32 v8, 2, v8")
    k.e("v_add_u32 v8, s23, v8")
    for mb in range(16):
        k.e("buffer_load_dword v%d, v8, s[16:19], 0 offen offset:%d" % (128 + mb, 0) if mb == 0 else
            "buffer_load_dword v%d, v8, s[16:19], s%d offen" % (128 + mb, 40 + mb))
        if mb != 15:
            k.e("s_mov_b32 s%d, %d" % (41 + mb, (mb + 1) * 32 * 128))
    k.e("s_waitcnt vmcnt(16)")
    for mb in range(1, 16):
        for i in range(4):
            k.e("v_add_f32 v%d, v%d, v%d" % (64 + i, 64 + i, 64 + 4 * mb + i))
    k.e("s_lshl_b32 s23, s25, 10")
    k.e("v_add_u32 v7, s23, v6")
    k.e("ds_write_b128 v7, v[64:67]")
    k.e("s_waitcnt vmcnt(0)")
    for mb in range(1, 16):
        k.e("v_add_f32 v128, v128, v%d" % (128 + mb))
    k.e("v_and_b32 v8, 31, v2")
    k.e("v_lshlrev_b32 v8, 2, v8")
    k.e("ds_write_b32 v8, v128 offset:4096")
    k.e("s_waitcnt lgkmcnt(0)")
    k.e("s_barrier")
    for q in range(4):
        k.e("ds_read_b128 v[%d:%d], v6 offset:%d" % (64 + 4 * q, 67 + 4 * q, 1024 * q))
    k.e("v_lshrrev_b32 v9, 5, v2")
    k.e("v_lshlrev_b32 v9, 4, v9")
    for q in range(4):
        k.e("ds_read_b128 v[%d:%d], v9 offset:%d" % (80 + 4 * q, 83 + 4 * q, 4096 + 32 * q))
    k.e("s_waitcnt lgkmcnt(0)")
    KVA, ZA = 96, 104
    for i in range(8):
        k.e("v_cvt_pk_bf16_f32 v%d, v%d, v%d" % (KVA + i, 64 + 2 * i, 65 + 2 * i))
        k.e("v_cvt_pk_bf16_f32 v%d, v%d, v%d" % (ZA + i, 80 + 2 * i, 81 + 2 * i))
    k.e("v_and_b32 v10, 27, v2")
    k.e("v_cmp_eq_u32 vcc, 0, v10")
    k.e("s_nop 1")
    for i in range(8):
        k.e("v_cndmask_b32 v%d, 0, v%d, vcc" % (ZA + i, ZA + i))
    k.e("s_nop 1")
    for t in range(2):
        N, D = 112 + 32 * t, 128 + 32 * t
        k.e("v_mfma_f32_32x32x16_bf16 v[%d:%d], v[%d:%d], v[%d:%d], 0" % (N, N + 15, KVA, KVA + 3, 16 + 8 * t, 19 + 8 * t))
        k.e("v_mfma_f32_32x32x16_bf16 v[%d:%d], v[%d:%d], v[%d:%d], v[%d:%d]" % (N, N + 15, KVA + 4, KVA + 7, 20 + 8 * t, 23 + 8 * t, N, N + 15))
        k.e("v_mfma_f32_32x32x16_bf16 v[%d:%d], v[%d:%d], v[%d:%d], 0" % (D, D + 15, ZA, ZA + 3, 16 + 8 * t, 19 + 8 * t))
        k.e("v_mfma_f32_32x32x16_bf16 v[%d:%d], v[%d:%d], v[%d:%d], v[%d:%d]" % (D, D + 15, ZA + 4, ZA + 7, 20 + 8 * t, 23 + 8 * t, D, D + 15))
    k.e("s_nop 15")
    for t in range(2):
        N, D = 112 + 32 * t, 128 + 32 * t
        round_bf16(k, 11, D)
        k.e("v_add_f32 v11, 0x358637bd, v11")
        round_bf16(k, 11, 11)
        k.e("v_rcp_f32 v11, v11")
        k.e("s_nop 0")
        for i in range(8):
            k.e("v_mul_f32 v12, v%d, v11" % (N + 2 * i))
            k.e("v_mul_f32 v13, v%d, v11" % (N + 2 * i + 1))
            k.e("v_cvt_pk_bf16_f32 v%d, v12, v13" % (32 + 8 * t + i))
        k.e("buffer_store_dwordx4 v[%d:%d], v%d, s[28:31], 0 offen" % (32 + 8 * t, 35 + 8 * t, 3 + 2 * t))
        k.e("buffer_store_dwordx4 v[%d:%d], v%d, s[28:31], 0 offen offset:32" % (36 + 8 * t, 39 + 8 * t, 3 + 2 * t))
    k.lab(L_end)
    k.e("s_endpgm")
    return k, 176, (256, 256, 8192)


def gen_proj(name, mode):
    k = KB(name)
    L_end = k.newlab("end")
    BK, NS = 64, 6
    KD = 1024 if mode == "wo" else 3584
    XOFF = WS_O if mode == "wo" else WS_HH
    XB = 64 * BK * 2
    WB = (BK // 4) * 4 * 256
    SB = XB + WB
    k.e("s_cmp_ge_u32 s2, 256")
    k.e("s_cbranch_scc1 %s" % L_end)
    k.e("s_load_dwordx2 s[4:5], s[0:1], %d" % (KA_WO if mode == "wo" else KA_WD))
    k.e("s_load_dwordx2 s[6:7], s[0:1], %d" % KA_WS)
    k.e("s_load_dwordx2 s[60:61], s[0:1], %d" % (KA_X if mode == "wo" else KA_OUT))
    k.e("s_and_b32 s20, s2, 7")
    k.e("s_lshr_b32 s21, s2, 3")
    k.e("s_and_b32 s22, s20, 1")
    k.e("s_lshl_b32 s22, s22, 2")
    k.e("s_and_b32 s23, s21, 3")
    k.e("s_add_u32 s22, s22, s23")
    k.e("s_lshr_b32 s23, s20, 1")
    k.e("s_lshl_b32 s23, s23, 3")
    k.e("s_lshr_b32 s24, s21, 2")
    k.e("s_add_u32 s23, s23, s24")
    k.e("s_lshl_b32 s24, s23, 6")
    k.e("v_lshrrev_b32 v1, 6, v0")
    k.e("v_and_b32 v2, 63, v0")
    k.e("s_nop 0")
    k.e("v_readfirstlane_b32 s25, v1")
    k.e("s_waitcnt lgkmcnt(0)")
    k.srd(8, 6, 2048 * KD * 2, XOFF)
    k.srd(12, 4, KD * 1024 * 2)
    k.e("s_lshr_b32 s26, s25, 1")
    k.e("s_and_b32 s28, s25, 1")
    dma = []
    k.e("s_lshl_b32 s30, s25, 3")
    xtile_dma_voff(k, 10, 2, 3, 4, 30, BK, KD * 2, 24)
    k.e("s_lshl_b32 s40, s25, 10")
    dma.append((8, 10, 50, 40))
    for i in range(2):
        k.e("s_lshl_b32 s30, s25, 3")
        k.e("s_add_u32 s30, s30, %d" % (4 * i))
        k.e("v_bfe_u32 v6, v2, 2, 2")
        k.e("v_add_u32 v6, s30, v6")
        k.e("v_lshlrev_b32 v6, 11, v6")
        k.e("v_lshrrev_b32 v7, 4, v2")
        k.e("v_lshl_add_u32 v6, v7, 6, v6")
        k.e("v_and_b32 v7, 3, v2")
        k.e("v_lshl_add_u32 v6, v7, 4, v6")
        k.e("s_lshl_b32 s31, s22, 8")
        k.e("v_add_u32 v%d, s31, v6" % (12 + i))
        k.e("s_lshl_b32 s%d, s25, 11" % (42 + i))
        k.e("s_add_u32 s%d, s%d, %d" % (42 + i, 42 + i, XB + 1024 * i))
        dma.append((12, 12 + i, 51, 42 + i))
    k.e("s_mov_b32 s50, 0")
    k.e("s_mov_b32 s51, 0")
    k.e("v_and_b32 v3, 31, v2")
    k.e("s_lshr_b32 s27, s26, 1")
    for tl in range(2):
        k.e("s_xor_b32 s30, s27, %d" % tl)
        k.e("s_lshl_b32 s30, s30, 5")
        k.e("v_add_u32 v4, s30, v3")
        k.e("s_lshl_b32 s31, s26, 1")
        xfrag_pat(k, 16 + tl, 2, 4, 5, 31, BK)
    k.e("v_bfe_u32 v3, v2, 2, 2")
    k.e("v_lshlrev_b32 v3, 6, v3")
    k.e("v_bfe_u32 v4, v2, 4, 1")
    k.e("v_lshl_add_u32 v3, v4, 5, v3")
    k.e("v_and_b32 v4, 3, v2")
    k.e("v_lshl_add_u32 v3, v4, 3, v3")
    k.e("v_lshrrev_b32 v4, 5, v2")
    k.e("v_lshl_add_u32 v3, v4, 10, v3")
    for nl in range(2):
        k.e("s_and_b32 s30, s26, 1")
        k.e("s_xor_b32 s30, s30, %d" % nl)
        k.e("s_lshl_b32 s31, s28, 1")
        k.e("s_add_u32 s30, s30, s31")
        k.e("s_lshl_b32 s30, s30, 8")
        k.e("s_lshl_b32 s31, s26, 12")
        k.e("s_add_u32 s30, s30, s31")
        k.e("s_add_u32 s30, s30, %d" % XB)
        k.e("v_add_u32 v%d, s30, v3" % (18 + nl))
    addr = [(21 + i, 16 + i) for i in range(4)]
    ACC = 64
    for i in range(64):
        k.e("v_mov_b32 v%d, 0" % (ACC + i))
    F0, F1 = 128, 144
    reads = [("ds_read_b128", 0, 21, 0),
             ("ds_read_b64_tr_b16", 8, 23, 0), ("ds_read_b64_tr_b16", 10, 23, 2048),
             ("ds_read_b64_tr_b16", 12, 24, 0), ("ds_read_b64_tr_b16", 14, 24, 2048),
             ("ds_read_b128", 4, 22, 0)]
    mf = [(ACC + 0, 8, 0, 2), (ACC + 16, 12, 0, 4), (ACC + 32, 8, 4, 5), (ACC + 48, 12, 4, 5)]
    sp = Spec()
    sp.NS, sp.nst, sp.stage_bytes = NS, KD // BK, SB
    sp.dma = dma
    sp.sadv = [(50, BK * 2), (51, BK * 2048)]
    sp.addr = addr
    sp.steps = [dict(reads=reads, mfma=mf)]
    sp.fset = [F0, F1]
    sp.s_wr, sp.s_rd, sp.s_cnt = 52, 53, 54
    emit_gemm(k, sp)
    k.e("s_lshl_b32 s30, s27, 5")
    k.e("s_add_u32 s30, s30, s24")
    k.e("v_and_b32 v3, 31, v2")
    k.e("v_add_u32 v3, s30, v3")
    k.e("v_lshlrev_b32 v4, 11, v3")
    k.e("s_and_b32 s31, s26, 1")
    k.e("s_lshl_b32 s32, s28, 1")
    k.e("s_add_u32 s31, s31, s32")
    k.e("s_lshl_b32 s32, s22, 2")
    k.e("s_add_u32 s31, s31, s32")
    k.e("s_lshl_b32 s32, s31, 6")
    k.e("v_lshrrev_b32 v5, 5, v2")
    k.e("v_add_u32 v4, s32, v4")
    k.e("v_lshl_add_u32 v6, v5, 3, v4")
    k.e("v_lshl_add_u32 v7, v5, 4, v4")
    k.srd(16, 60, 2048 * 1024 * 2)
    k.srd(56, 6, 2048 * 1024 * 2, WS_H)
    if mode == "wo":
        for q in range(4):
            k.e("buffer_load_dwordx2 v[%d:%d], v6, s[16:19], 0 offen offset:%d" % (32 + 2 * q, 33 + 2 * q, 16 * q))
    else:
        for s in range(2):
            k.e("buffer_load_dwordx4 v[%d:%d], v7, s[56:59], 0 offen offset:%d" % (32 + 4 * s, 35 + 4 * s, 32 * s))
    k.e("s_nop 15")
    k.e("s_barrier")
    k.e("v_lshlrev_b32 v8, 4, v2")
    for c in range(1, 4):
        k.e("s_xor_b32 s30, s26, %d" % c)
        k.e("s_lshl_b32 s33, s28, 2")
        k.e("s_add_u32 s30, s30, s33")
        k.e("s_mul_i32 s30, s30, 3")
        k.e("s_add_u32 s30, s30, %d" % (c - 1))
        k.e("s_lshl_b32 s30, s30, 12")
        k.e("v_add_u32 v9, s30, v8")
        for q in range(4):
            k.e("ds_write_b128 v9, v[%d:%d] offset:%d" % (ACC + 16 * c + 4 * q, ACC + 16 * c + 4 * q + 3, 1024 * q))
    k.e("s_lshl_b32 s33, s28, 2")
    k.e("s_add_u32 s30, s26, s33")
    k.e("s_mul_i32 s30, s30, 12288")
    k.e("v_add_u32 v9, s30, v8")
    k.e("s_waitcnt lgkmcnt(0)")
    k.e("s_barrier")
    for c in range(3):
        for q in range(4):
            k.e("ds_read_b128 v[%d:%d], v9 offset:%d" % (ACC + 16 + 16 * c + 4 * q, ACC + 16 + 16 * c + 4 * q + 3, 4096 * c + 1024 * q))
    k.e("v_mov_b32 v60, 0xffff0000")
    k.e("s_waitcnt lgkmcnt(0)")
    for i in range(16):
        k.e("v_add_f32 v%d, v%d, v%d" % (ACC + i, ACC + i, ACC + 16 + i))
        k.e("v_add_f32 v%d, v%d, v%d" % (ACC + 32 + i, ACC + 32 + i, ACC + 48 + i))
        k.e("v_add_f32 v%d, v%d, v%d" % (ACC + i, ACC + i, ACC + 32 + i))
    k.e("s_waitcnt vmcnt(0)")
    if mode == "wo":
        k.e("v_mov_b32 v44, 0")
        k.e("v_mov_b32 v45, 0")
    for i in range(8):
        a, b = ACC + 2 * i, ACC + 2 * i + 1
        k.e("v_cvt_pk_bf16_f32 v40, v%d, v%d" % (a, b))
        k.e("v_lshlrev_b32 v41, 16, v40")
        k.e("v_and_b32 v42, v60, v40")
        k.e("v_lshlrev_b32 v43, 16, v%d" % (32 + i))
        k.e("v_add_f32 v41, v41, v43")
        k.e("v_and_b32 v43, v60, v%d" % (32 + i))
        k.e("v_add_f32 v42, v42, v43")
        k.e("v_cvt_pk_bf16_f32 v%d, v41, v42" % (48 + i))
        if mode == "wo":
            k.e("v_lshlrev_b32 v41, 16, v%d" % (48 + i))
            k.e("v_and_b32 v42, v60, v%d" % (48 + i))
            k.e("v_add_f32 v44, v44, v41")
            k.e("v_fmac_f32 v45, v41, v41")
            k.e("v_add_f32 v44, v44, v42")
            k.e("v_fmac_f32 v45, v42, v42")
    if mode == "wo":
        for s in range(2):
            k.e("buffer_store_dwordx4 v[%d:%d], v7, s[56:59], 0 offen offset:%d" % (48 + 4 * s, 51 + 4 * s, 32 * s))
        k.e("v_mov_b32 v46, v44")
        k.e("v_mov_b32 v47, v45")
        k.e("s_nop 1")
        k.e("v_permlane32_swap_b32 v44, v46")
        k.e("v_permlane32_swap_b32 v45, v47")
        k.e("s_nop 1")
        k.e("v_add_f32 v44, v44, v46")
        k.e("v_add_f32 v45, v45, v47")
        k.srd(16, 6, 2048 * 32 * 8, WS_ST)
        k.e("v_lshlrev_b32 v3, 8, v3")
        k.e("s_lshl_b32 s32, s31, 3")
        k.e("v_add_u32 v3, s32, v3")
        k.e("v_cmp_gt_u32 vcc, 32, v2")
        k.e("s_and_saveexec_b64 s[36:37], vcc")
        k.e("buffer_store_dwordx2 v[44:45], v3, s[16:19], 0 offen")
    else:
        for q in range(4):
            k.e("buffer_store_dwordx2 v[%d:%d], v6, s[16:19], 0 offen offset:%d" % (48 + 2 * q, 49 + 2 * q, 16 * q))
    k.lab(L_end)
    k.e("s_endpgm")
    return k, 160, (256, 512, NS * SB)


def gen_k3():
    k = KB("k3_glu_kernel")
    L_end = k.newlab("end")
    BK, NS = 32, 5
    XB = 256 * BK * 2
    GB = (BK // 4) * 7 * 128
    UOFF = XB + GB + 128
    SB = XB + 14592
    k.e("s_cmp_ge_u32 s2, 256")
    k.e("s_cbranch_scc1 %s" % L_end)
    k.e("s_load_dwordx4 s[60:63], s[0:1], %d" % KA_WG)
    k.e("s_load_dwordx2 s[6:7], s[0:1], %d" % KA_WS)
    k.e("s_and_b32 s20, s2, 7")
    k.e("s_lshr_b32 s21, s2, 3")
    k.e("s_lshr_b32 s23, s20, 2")
    k.e("s_lshl_b32 s23, s23, 2")
    k.e("s_and_b32 s24, s21, 3")
    k.e("s_add_u32 s23, s23, s24")
    k.e("s_and_b32 s22, s20, 3")
    k.e("s_lshl_b32 s22, s22, 3")
    k.e("s_lshr_b32 s24, s21, 2")
    k.e("s_add_u32 s22, s22, s24")
    k.e("s_lshl_b32 s24, s23, 8")
    k.e("v_lshrrev_b32 v1, 6, v0")
    k.e("v_and_b32 v2, 63, v0")
    k.e("s_nop 0")
    k.e("v_readfirstlane_b32 s25, v1")
    k.e("s_waitcnt lgkmcnt(0)")
    k.srd(8, 6, 2048 * 1024 * 2, WS_H)
    k.srd(12, 60, 1024 * 3584 * 2)
    k.srd(16, 62, 1024 * 3584 * 2)
    dma = []
    for i in range(2):
        k.e("s_lshl_b32 s30, s25, 5")
        k.e("s_add_u32 s30, s30, %d" % (16 * i))
        xtile_dma_voff(k, 10 + i, 2, 3, 4, 30, BK, 2048, 24)
        k.e("s_lshl_b32 s%d, s25, 11" % (40 + i))
        k.e("s_add_u32 s%d, s%d, %d" % (40 + i, 40 + i, 1024 * i))
        dma.append((8, 10 + i, 50, 40 + i))
    k.e("s_min_u32 s30, s25, 6")
    k.e("s_lshl_b32 s31, s30, 3")
    k.e("v_lshrrev_b32 v3, 3, v2")
    k.e("v_add_u32 v3, s31, v3")
    k.e("v_mul_u32_u24 v4, 37, v3")
    k.e("v_lshrrev_b32 v4, 8, v4")
    k.e("v_mul_u32_u24 v5, 7, v4")
    k.e("v_sub_u32 v5, v3, v5")
    k.e("v_bfe_u32 v6, v2, 1, 2")
    k.e("v_lshl_add_u32 v6, v4, 2, v6")
    k.e("v_mul_u32_u24 v6, 7168, v6")
    k.e("v_lshl_add_u32 v6, v5, 5, v6")
    k.e("v_and_b32 v7, 1, v2")
    k.e("v_lshl_add_u32 v6, v7, 4, v6")
    k.e("s_mul_i32 s31, s22, 224")
    k.e("v_add_u32 v12, s31, v6")
    k.e("s_lshl_b32 s42, s30, 10")
    k.e("s_add_u32 s43, s42, %d" % UOFF)
    k.e("s_add_u32 s42, s42, %d" % XB)
    dma.append((12, 12, 51, 42))
    dma.append((16, 12, 51, 43))
    k.e("s_mov_b32 s50, 0")
    k.e("s_mov_b32 s51, 0")
    k.e("v_and_b32 v3, 31, v2")
    k.e("s_lshl_b32 s30, s25, 5")
    k.e("v_add_u32 v4, s30, v3")
    for jj in range(2):
        k.e("s_mov_b32 s31, %d" % (2 * jj))
        xfrag_pat(k, 16 + jj, 2, 4, 5, 31, BK)
    k.e("v_bfe_u32 v3, v2, 2, 2")
    k.e("v_lshlrev_b32 v3, 5, v3")
    k.e("v_and_b32 v4, 3, v2")
    k.e("v_lshl_add_u32 v3, v4, 3, v3")
    k.e("v_lshrrev_b32 v4, 5, v2")
    k.e("v_mul_u32_u24 v4, %d, v4" % (7 * 128))
    k.e("v_add_u32 v3, v3, v4")
    k.e("v_bfe_u32 v4, v2, 4, 1")
    k.e("v_mul_u32_u24 v4, %d, v4" % (UOFF - XB))
    k.e("v_add_u32 v3, v3, v4")
    k.e("v_add_u32 v18, %d, v3" % XB)
    addr = [(21 + i, 16 + i) for i in range(3)]
    ACC = 64
    for i in range(112):
        k.e("v_mov_b32 v%d, 0" % (ACC + i))
    F0, F1 = 176, 208
    steps = []
    for jj in range(2):
        reads = [("ds_read_b128", 0, 21 + jj, 0)]
        mf = []
        for t in range(7):
            for i in range(2):
                reads.append(("ds_read_b64_tr_b16", 4 + 4 * t + 2 * i, 23, ((4 * jj + 2 * i) * 7 + t) * 128))
            mf.append((ACC + 16 * t, 4 + 4 * t, 0, 2 * t + 2))
        steps.append(dict(reads=reads, mfma=mf))
    sp = Spec()
    sp.NS, sp.nst, sp.stage_bytes = NS, 1024 // BK, SB
    sp.dma = dma
    sp.sadv = [(50, BK * 2), (51, BK * 7168)]
    sp.addr = addr
    sp.steps = steps
    sp.fset = [F0, F1]
    sp.s_wr, sp.s_rd, sp.s_cnt = 52, 53, 54
    emit_gemm(k, sp)
    k.srd(64, 6, 2048 * 32 * 8, WS_ST)
    k.srd(68, 6, 2 * 3584 * 4, WS_CS)
    k.srd(56, 6, 2048 * 3584 * 2, WS_HH)
    k.e("s_lshl_b32 s30, s25, 5")
    k.e("s_add_u32 s30, s30, s24")
    k.e("v_and_b32 v3, 31, v2")
    k.e("v_add_u32 v3, s30, v3")
    k.e("v_lshlrev_b32 v4, 8, v3")
    S0 = 176
    for i in range(16):
        k.e("buffer_load_dwordx4 v[%d:%d], v4, s[64:67], 0 offen offset:%d" % (S0 + 4 * i, S0 + 4 * i + 3, 16 * i))
    k.e("s_waitcnt vmcnt(0)")
    k.e("v_add_f32 v8, v%d, v%d" % (S0, S0 + 2))
    k.e("v_add_f32 v9, v%d, v%d" % (S0 + 1, S0 + 3))
    for i in range(1, 16):
        k.e("v_add_f32 v8, v8, v%d" % (S0 + 4 * i))
        k.e("v_add_f32 v9, v9, v%d" % (S0 + 4 * i + 1))
        k.e("v_add_f32 v8, v8, v%d" % (S0 + 4 * i + 2))
        k.e("v_add_f32 v9, v9, v%d" % (S0 + 4 * i + 3))
    k.e("v_lshrrev_b32 v5, 5, v2")
    k.e("v_lshlrev_b32 v5, 4, v5")
    k.e("s_mul_i32 s31, s22, 448")
    k.e("v_add_u32 v5, s31, v5")
    k.e("v_add_u32 v6, %d, v5" % (3584 * 4))
    k.e("v_mul_f32 v8, 0x3a800000, v8")
    k.e("v_mul_f32 v9, 0x3a800000, v9")
    k.e("v_fma_f32 v9, -v8, v8, v9")
    k.e("v_max_f32 v9, 0, v9")
    round_bf16(k, 8, 8)
    round_bf16(k, 9, 9)
    k.e("v_add_f32 v9, 0x3727c5ac, v9")
    round_bf16(k, 9, 9)
    k.e("v_sqrt_f32 v9, v9")
    k.e("s_nop 0")
    round_bf16(k, 9, 9)
    k.e("v_rcp_f32 v9, v9")
    k.e("s_nop 0")
    k.e("v_mul_f32 v8, v8, v9")
    k.e("v_sub_f32 v8, 0, v8")
    k.e("s_movk_i32 s31, 7168")
    k.e("v_mul_lo_u32 v7, v3, s31")
    k.e("v_lshrrev_b32 v10, 5, v2")
    k.e("v_lshl_add_u32 v7, v10, 4, v7")
    k.e("s_mul_i32 s31, s22, 224")
    k.e("v_add_u32 v7, s31, v7")
    k.e("v_mov_b32 v60, 0xffff0000")
    import math, struct
    c1 = -2.0 * math.log2(math.e) * math.sqrt(2.0 / math.pi)
    c2 = c1 * 0.044715
    f2u = lambda f: struct.unpack("<I", struct.pack("<f", f))[0]
    k.e("v_mov_b32 v61, 0x%08x" % f2u(c1))
    k.e("v_mov_b32 v62, 0x%08x" % f2u(c2))
    C0 = S0
    for t in range(7):
        cb = C0 + (t & 1) * 16
        for q in range(2):
            k.e("buffer_load_dwordx4 v[%d:%d], v5, s[68:71], 0 offen offset:%d" % (cb + 4 * q, cb + 4 * q + 3, t * 64 + q * 32))
            k.e("buffer_load_dwordx4 v[%d:%d], v6, s[68:71], 0 offen offset:%d" % (cb + 8 + 4 * q, cb + 8 + 4 * q + 3, t * 64 + q * 32))
        k.e("s_waitcnt vmcnt(0)")
        for j in range(8):
            g, u = ACC + 16 * t + j, ACC + 16 * t + 8 + j
            k.e("v_mul_f32 v11, v%d, v8" % (cb + j))
            k.e("v_fma_f32 v%d, v%d, v9, v11" % (g, g))
            k.e("v_mul_f32 v11, v%d, v8" % (cb + 8 + j))
            k.e("v_fma_f32 v%d, v%d, v9, v11" % (u, u))
            k.e("v_cvt_pk_bf16_f32 v11, v%d, v%d" % (g, u))
            k.e("v_lshlrev_b32 v%d, 16, v11" % g)
            k.e("v_and_b32 v%d, v60, v11" % u)
            k.e("v_mul_f32 v11, v%d, v%d" % (g, g))
            k.e("v_fma_f32 v11, v11, v62, v61")
            k.e("v_mul_f32 v11, v11, v%d" % g)
            k.e("v_exp_f32 v11, v11")
            k.e("s_nop 0")
            k.e("v_add_f32 v11, 1.0, v11")
            k.e("v_rcp_f32 v11, v11")
            k.e("s_nop 0")
            k.e("v_mul_f32 v11, v11, v%d" % g)
            k.e("v_mul_f32 v%d, v11, v%d" % (g, u))
        for j in range(4):
            k.e("v_cvt_pk_bf16_f32 v%d, v%d, v%d" % (40 + 4 * (t & 1) + j, ACC + 16 * t + 2 * j, ACC + 16 * t + 2 * j + 1))
        k.e("buffer_store_dwordx4 v[%d:%d], v7, s[56:59], 0 offen offset:%d" % (40 + 4 * (t & 1), 43 + 4 * (t & 1), 32 * t))
    k.lab(L_end)
    k.e("s_endpgm")
    return k, 240, (256, 512, NS * SB)


def main():
    kernels = [gen_k0(), gen_k1(), gen_k15(), gen_proj("k2_wo_kernel", "wo"), gen_k3(), gen_proj("k4_down_kernel", "down")]
    hdr = open(OUT + ".ref").read().split("\n")
    head = []
    for ln in hdr:
        if ln.startswith("; @launch"):
            break
        head.append(ln)
    out = list(head)
    for k, vg, (g, b, lds) in kernels:
        out.append("; @launch kernel=%s grid=(%d,1,1) block=(%d,1,1) lds=%d" % (k.name, g, b, lds))
    out.append('.amdgcn_target "amdgcn-amd-amdhsa--gfx950"')
    out.append(".text")
    descs = []
    for k, vg, _ in kernels:
        t, d = k.text(vg)
        out.append(t)
        descs.append(d)
    out.append('.section .rodata,"a"')
    for d in descs:
        out.append(".p2align 6")
        out.append(d)
    open(OUT, "w").write("\n".join(out) + "\n")
    print("wrote", OUT, sum(len(k.lines) for k, _, _ in kernels), "lines")


if __name__ == "__main__":
    main()
```

```python
import sys

NAME = "sequential_preLN__linear_attn_block__glu_gated_geglu__prompt"
OUT = "cdna_kernels/%s.s" % NAME
REF = OUT + ".ref"

MB = 1 << 20
WS_XN = 0 * MB
WS_PQ = 4 * MB
WS_KVP = 8 * MB
WS_ZP = 10 * MB
WS_CS = 11 * MB
WS_CS2 = 11 * MB + 512 * 1024
WS_ST = 12 * MB
WS_O = 16 * MB
WS_H = 20 * MB
WS_HH = 24 * MB
WS_SIZE = 268435456

KA_X, KA_WQKV, KA_WO, KA_BX, KA_WG, KA_WU, KA_WD, KA_OUT, KA_DBG, KA_WS = [8 * i for i in range(10)]


import os
STAMP = bool(os.environ.get("STAMP"))
STPOL = os.environ.get("STPOL", "")
HHPOL = os.environ.get("HHPOL", "")
WS_STAMP = 128 * MB


class KB:
    def __init__(self, name):
        self.name = name
        self.lines = []
        self.nlab = 0
        self.nstamp = 0

    def stamp(self):
        if not STAMP:
            return
        i = self.nstamp
        self.nstamp += 1
        self.e("s_memtime s[%d:%d]" % (80 + 2 * i, 81 + 2 * i))
        if i == 0:
            self.e("s_memrealtime s[92:93]")
        self.e("s_waitcnt lgkmcnt(0)")

    def stamp_store(self, kidx):
        if not STAMP:
            return
        self.stamp()
        self.e("s_memrealtime s[94:95]")
        self.e("s_waitcnt lgkmcnt(0)")
        self.e("s_mov_b64 exec, -1")
        self.srd(76, 6, 1 << 20, WS_STAMP)
        self.e("s_lshl_b32 s98, s2, 8")
        self.e("s_lshl_b32 s97, s25, 5")
        self.e("s_add_u32 s98, s98, s97")
        self.e("s_add_u32 s98, s98, %d" % (kidx * 65536))
        self.e("v_mov_b32 v1, s98")
        for i in range(self.nstamp):
            self.e("v_mov_b32 v2, s%d" % (80 + 2 * i))
            self.e("buffer_store_dword v2, v1, s[76:79], 0 offen offset:%d" % (4 * i))
        for i, sr in enumerate((92, 94)):
            self.e("v_mov_b32 v2, s%d" % sr)
            self.e("buffer_store_dword v2, v1, s[76:79], 0 offen offset:%d" % (16 + 4 * i))

    def e(self, s):
        if STPOL and s.startswith("buffer_store") and not STAMP:
            s = s + " " + STPOL
        self.lines.append("    " + s)

    def c(self, s):
        self.lines.append("    ; " + s)

    def lab(self, s):
        self.lines.append(s + ":")

    def newlab(self, s):
        self.nlab += 1
        return "L_%s_%s_%d" % (self.name, s, self.nlab)

    def srd(self, sd, sbase, nbytes, off=0):
        if off:
            self.e("s_add_u32 s%d, s%d, 0x%x" % (sd, sbase, off))
            self.e("s_addc_u32 s%d, s%d, 0" % (sd + 1, sbase + 1))
            self.e("s_and_b32 s%d, s%d, 0xffff" % (sd + 1, sd + 1))
        else:
            self.e("s_mov_b32 s%d, s%d" % (sd, sbase))
            self.e("s_and_b32 s%d, s%d, 0xffff" % (sd + 1, sbase + 1))
        self.e("s_mov_b32 s%d, 0x%x" % (sd + 2, nbytes))
        self.e("s_mov_b32 s%d, 0x00020000" % (sd + 3))

    def text(self, vgprs, sgprs=102):
        acc = (vgprs + 3) // 4 * 4
        out = []
        out.append(".globl %s" % self.name)
        out.append(".p2align 8")
        out.append(".type %s,@function" % self.name)
        out.append("%s:" % self.name)
        out += self.lines
        return "\n".join(out), """.amdhsa_kernel %s
  .amdhsa_next_free_vgpr %d
  .amdhsa_next_free_sgpr %d
  .amdhsa_accum_offset %d
  .amdhsa_group_segment_fixed_size 0
  .amdhsa_kernarg_size 80
  .amdhsa_user_sgpr_count 2
  .amdhsa_user_sgpr_kernarg_segment_ptr 1
  .amdhsa_system_sgpr_workgroup_id_x 1
.end_amdhsa_kernel""" % (self.name, vgprs, sgprs, acc)


def wave_reduce_sum(k, v, stmp):
    k.e("s_nop 1")
    k.e("v_add_f32_dpp v%d, v%d, v%d quad_perm:[1,0,3,2] row_mask:0xf bank_mask:0xf" % (v, v, v))
    k.e("s_nop 1")
    k.e("v_add_f32_dpp v%d, v%d, v%d quad_perm:[2,3,0,1] row_mask:0xf bank_mask:0xf" % (v, v, v))
    k.e("s_nop 1")
    k.e("v_add_f32_dpp v%d, v%d, v%d row_half_mirror row_mask:0xf bank_mask:0xf" % (v, v, v))
    k.e("s_nop 1")
    k.e("v_add_f32_dpp v%d, v%d, v%d row_mirror row_mask:0xf bank_mask:0xf" % (v, v, v))
    k.e("s_nop 1")
    for i in range(4):
        k.e("v_readlane_b32 s%d, v%d, %d" % (stmp + i, v, 16 * i))
    k.e("s_nop 1")
    k.e("v_mov_b32 v%d, s%d" % (v, stmp))
    k.e("v_add_f32 v%d, s%d, v%d" % (v, stmp + 1, v))
    k.e("v_add_f32 v%d, s%d, v%d" % (v, stmp + 2, v))
    k.e("v_add_f32 v%d, s%d, v%d" % (v, stmp + 3, v))


def round_bf16(k, vd, vs):
    k.e("v_cvt_pk_bf16_f32 v%d, v%d, v%d" % (vd, vs, vs))
    k.e("v_lshlrev_b32 v%d, 16, v%d" % (vd, vd))


def emit_colsum(k, L_end, sidx):
    k.e("s_cmp_ge_u32 s%d, 112" % sidx)
    k.e("s_cselect_b32 s28, s62, s60")
    k.e("s_cselect_b32 s29, s63, s61")
    k.e("s_cselect_b32 s30, 112, 0")
    k.e("s_cselect_b32 s38, %d, 0" % (3584 * 4))
    k.e("s_sub_u32 s31, s%d, s30" % sidx)
    k.e("s_mul_i32 s32, s31, 4682")
    k.e("s_lshr_b32 s32, s32, 16")
    k.e("s_mul_i32 s33, s32, 14")
    k.e("s_sub_u32 s33, s31, s33")
    k.srd(8, 28, 1024 * 3584 * 2)
    k.srd(12, 20, 8 * 2 * 3584 * 4, WS_CS)
    k.e("v_and_b32 v1, 31, v0")
    k.e("v_lshrrev_b32 v2, 5, v0")
    k.e("s_lshl_b32 s34, s33, 9")
    k.e("s_mul_i32 s35, s32, %d" % (128 * 7168))
    k.e("s_add_u32 s34, s34, s35")
    k.e("s_movk_i32 s35, 7168")
    k.e("v_mul_lo_u32 v3, v2, s35")
    k.e("v_lshl_add_u32 v3, v1, 4, v3")
    k.e("v_add_u32 v3, s34, v3")
    k.e("s_mov_b32 s34, 0")
    for it in range(16):
        k.e("buffer_load_dwordx4 v[%d:%d], v3, s[8:11], s34 offen" % (16 + 4 * it, 19 + 4 * it))
        if it != 15:
            k.e("s_add_u32 s34, s34, %d" % (8 * 7168))
    k.e("v_mov_b32 v4, 0xffff0000")
    for i in range(8):
        k.e("v_mov_b32 v%d, 0" % (8 + i))
    for it in range(16):
        k.e("s_waitcnt vmcnt(%d)" % (15 - it))
        for i in range(4):
            s_ = 16 + 4 * it + i
            k.e("v_lshlrev_b32 v5, 16, v%d" % s_)
            k.e("v_and_b32 v6, v4, v%d" % s_)
            k.e("v_add_f32 v%d, v%d, v5" % (8 + 2 * i, 8 + 2 * i))
            k.e("v_add_f32 v%d, v%d, v6" % (9 + 2 * i, 9 + 2 * i))
    k.e("v_lshlrev_b32 v5, 5, v0")
    k.e("ds_write_b128 v5, v[8:11]")
    k.e("ds_write_b128 v5, v[12:15] offset:16")
    k.e("s_waitcnt lgkmcnt(0)")
    k.e("s_barrier")
    k.e("v_lshlrev_b32 v5, 2, v0")
    for rg in range(8):
        k.e("ds_read_b32 v%d, v5 offset:%d" % (16 + rg, rg * 1024))
    k.e("s_waitcnt lgkmcnt(0)")
    for rg in range(1, 8):
        k.e("v_add_f32 v16, v16, v%d" % (16 + rg))
    k.e("s_mul_i32 s35, s32, %d" % (2 * 3584 * 4))
    k.e("s_add_u32 s35, s35, s38")
    k.e("s_lshl_b32 s36, s33, 10")
    k.e("s_add_u32 s35, s35, s36")
    k.e("v_add_u32 v5, s35, v5")
    k.e("buffer_store_dword v16, v5, s[12:15], 0 offen")
    k.e("s_branch %s" % L_end)


def gen_k0():
    k = KB("k0_ln_kernel")
    L_end = k.newlab("end")
    L_ln = k.newlab("ln")
    k.e("s_cmp_ge_u32 s2, 480")
    k.e("s_cbranch_scc1 %s" % L_end)
    k.e("s_load_dwordx4 s[4:7], s[0:1], %d" % KA_X)
    k.e("s_load_dwordx2 s[20:21], s[0:1], %d" % KA_WS)
    k.e("s_load_dwordx4 s[60:63], s[0:1], %d" % KA_WG)
    k.e("s_load_dwordx2 s[64:65], s[0:1], %d" % KA_WO)
    k.e("s_load_dwordx2 s[66:67], s[0:1], %d" % KA_WD)
    k.e("s_waitcnt lgkmcnt(0)")
    k.e("s_cmp_lt_u32 s2, 256")
    k.e("s_cbranch_scc1 %s" % L_ln)
    k.e("s_sub_u32 s3, s2, 256")
    emit_colsum(k, L_end, 3)
    k.lab(L_ln)

    k.srd(8, 4, 2048 * 1024 * 2)
    k.srd(12, 20, 2048 * 1024 * 2, WS_XN)
    k.srd(24, 6, 1024 * 3072 * 2)
    k.e("v_lshrrev_b32 v1, 6, v0")
    k.e("v_and_b32 v2, 63, v0")
    k.e("s_lshl_b32 s3, s2, 3")
    k.e("v_lshlrev_b32 v3, 1, v1")
    k.e("v_add_u32 v3, s3, v3")
    k.e("v_lshlrev_b32 v3, 11, v3")
    k.e("v_lshl_add_u32 v1, v2, 4, v3")
    for r in range(2):
        k.e("buffer_load_dwordx4 v[%d:%d], v1, s[8:11], 0 offen offset:%d" % (4 + 8 * r, 7 + 8 * r, 2048 * r))
        k.e("buffer_load_dwordx4 v[%d:%d], v1, s[8:11], 0 offen offset:%d" % (8 + 8 * r, 11 + 8 * r, 2048 * r + 1024))
    k.e("v_lshrrev_b32 v61, 1, v3")
    k.e("v_mul_u32_u24 v3, 3, v61")
    k.e("v_lshl_add_u32 v3, v2, 7, v3")
    k.e("buffer_load_dword v64, v3, s[24:27], 0 offen")
    k.srd(28, 64, 1024 * 1024 * 2)
    k.e("v_lshl_add_u32 v3, v2, 5, v61")
    k.e("buffer_load_dword v65, v3, s[28:31], 0 offen")
    k.e("v_mov_b32 v60, 0xffff0000")
    for r in range(2):
        k.e("s_waitcnt vmcnt(%d)" % (4 - 2 * r))
        src = 4 + 8 * r
        f = 24
        for i in range(8):
            k.e("v_lshlrev_b32 v%d, 16, v%d" % (f + 2 * i, src + i))
            k.e("v_and_b32 v%d, v60, v%d" % (f + 2 * i + 1, src + i))
        k.e("v_add_f32 v40, v%d, v%d" % (f, f + 1))
        for i in range(2, 16):
            k.e("v_add_f32 v40, v40, v%d" % (f + i))
        wave_reduce_sum(k, 40, 16)
        k.e("v_mul_f32 v40, 0x3a800000, v40")
        k.e("v_mov_b32 v41, 0")
        for i in range(16):
            k.e("v_sub_f32 v42, v%d, v40" % (f + i))
            k.e("v_fmac_f32 v41, v42, v42")
        wave_reduce_sum(k, 41, 16)
        k.e("v_mul_f32 v41, 0x3a800000, v41")
        round_bf16(k, 40, 40)
        round_bf16(k, 41, 41)
        k.e("v_add_f32 v41, 0x3727c5ac, v41")
        round_bf16(k, 41, 41)
        k.e("v_sqrt_f32 v41, v41")
        k.e("s_nop 0")
        round_bf16(k, 41, 41)
        k.e("v_rcp_f32 v41, v41")
        k.e("s_nop 0")
        for i in range(8):
            k.e("v_sub_f32 v42, v%d, v40" % (f + 2 * i))
            k.e("v_sub_f32 v43, v%d, v40" % (f + 2 * i + 1))
            k.e("v_cvt_pk_bf16_f32 v42, v42, v43")
            k.e("v_and_b32 v43, v60, v42")
            k.e("v_lshlrev_b32 v42, 16, v42")
            k.e("v_mul_f32 v42, v42, v41")
            k.e("v_mul_f32 v43, v43, v41")
            k.e("v_cvt_pk_bf16_f32 v%d, v42, v43" % (44 + 8 * r + i))
        k.e("buffer_store_dwordx4 v[%d:%d], v1, s[12:15], 0 offen offset:%d" % (44 + 8 * r, 47 + 8 * r, 2048 * r))
        k.e("buffer_store_dwordx4 v[%d:%d], v1, s[12:15], 0 offen offset:%d" % (48 + 8 * r, 51 + 8 * r, 2048 * r + 1024))
    k.lab(L_end)
    k.e("s_endpgm")
    return k, 80, (480, 256, 8192)


class Spec:
    pass


def emit_gemm(k, sp):
    NS, nst, SB = sp.NS, sp.nst, sp.stage_bytes
    nd = len(sp.dma)
    nsteps = len(sp.steps)

    def dma_issue(i):
        srd, voff, soff, sl = sp.dma[i]
        if i in getattr(sp, "dma_abs", {}):
            k.e("s_and_b32 s95, s%d, s%d" % (sp.s_wr, sp.dma_abs[i]))
            k.e("s_add_u32 m0, s95, s%d" % sl)
        else:
            k.e("s_add_u32 m0, s%d, s%d" % (sp.s_wr, sl))
        k.e("s_nop 0")
        k.e("buffer_load_dwordx4 v%d, s[%d:%d], s%d offen lds" % (voff, srd, srd + 3, soff))

    def dma_advance():
        for s, inc in sp.sadv:
            if isinstance(inc, str):
                k.e("s_add_u32 s%d, s%d, %s" % (s, s, inc))
            else:
                k.e("s_add_u32 s%d, s%d, 0x%x" % (s, s, inc))
        k.e("s_add_u32 s%d, s%d, %d" % (sp.s_wr, sp.s_wr, SB))
        k.e("s_cmp_ge_u32 s%d, %d" % (sp.s_wr, SB * NS))
        k.e("s_cselect_b32 s%d, 0, s%d" % (sp.s_wr, sp.s_wr))

    def addr_next():
        k.e("s_add_u32 s%d, s%d, %d" % (sp.s_rd, sp.s_rd, SB))
        k.e("s_cmp_ge_u32 s%d, %d" % (sp.s_rd, SB * NS))
        k.e("s_cselect_b32 s%d, 0, s%d" % (sp.s_rd, sp.s_rd))
        if getattr(sp, "inplace", False):
            k.e("s_cselect_b32 s96, s97, %d" % SB)
            for vc in sp.addr:
                k.e("v_add_u32 v%d, s96, v%d" % (vc, vc))
        else:
            for vc, vp in sp.addr:
                k.e("v_add_u32 v%d, s%d, v%d" % (vc, sp.s_rd, vp))

    def read_instr(rd, base):
        op, reg, addr, imm = rd
        n = 4 if op == "ds_read_b128" else 2
        k.e("%s v[%d:%d], v%d offset:%d" % (op, base + reg, base + reg + n - 1, addr, imm))

    k.stamp()
    if getattr(sp, "before_prologue", None):
        sp.before_prologue()
    k.e("s_mov_b32 s%d, 0" % sp.s_wr)
    k.e("s_mov_b32 s%d, 0" % sp.s_rd)
    for s in range(NS - 1):
        for i in range(nd):
            dma_issue(i)
        dma_advance()
    extra = 0
    if getattr(sp, "after_prologue", None):
        extra = sp.after_prologue()
    if getattr(sp, "inplace", False):
        k.e("s_mov_b32 s97, %d" % (-(NS - 1) * SB))
    else:
        for vc, vp in sp.addr:
            k.e("v_mov_b32 v%d, v%d" % (vc, vp))
    k.e("s_waitcnt vmcnt(%d)" % ((NS - 2) * nd + extra))
    if getattr(sp, "after_first_wait", None):
        sp.after_first_wait()
    k.e("s_barrier")
    k.stamp()
    for rd in sp.steps[0]["reads"]:
        read_instr(rd, sp.fset[0])

    gstep = [0]

    def stage(s_idx, do_dma, last, vm):
        k.e("s_waitcnt vmcnt(%d)" % vm)
        k.e("s_barrier")
        dma_todo = list(range(nd)) if do_dma else []
        for j, st in enumerate(sp.steps):
            cur = sp.fset[gstep[0] & 1]
            nxt = sp.fset[(gstep[0] + 1) & 1]
            lastj = (j == nsteps - 1)
            if lastj and last:
                nreads = []
            else:
                nreads = sp.steps[(j + 1) % nsteps]["reads"]
            R = len(st["reads"])
            M = len(st["mfma"])
            issued = 0
            waited = -1
            if lastj and not last:
                addr_next()
            for i, (acc, a, b, dep) in enumerate(st["mfma"]):
                if dep > waited:
                    n = (R - 1 - dep) + issued
                    k.e("s_waitcnt lgkmcnt(%d)" % min(n, 15))
                    waited = dep
                if os.environ.get("EXP16"):
                    for hh_ in range(2):
                        k.e("v_mfma_f32_16x16x32_bf16 v[%d:%d], v[%d:%d], v[%d:%d], v[%d:%d]" % (
                            acc + 8 * hh_ + 4 * (gstep[0] & 1), acc + 8 * hh_ + 4 * (gstep[0] & 1) + 3, cur + a, cur + a + 3, cur + b, cur + b + 3, acc + 8 * hh_ + 4 * (gstep[0] & 1), acc + 8 * hh_ + 4 * (gstep[0] & 1) + 3))
                else:
                    k.e("v_mfma_f32_32x32x16_bf16 v[%d:%d], v[%d:%d], v[%d:%d], v[%d:%d]" % (
                        acc, acc + 15, cur + a, cur + a + 3, cur + b, cur + b + 3, acc, acc + 15))
                if "valu" in st and i in st["valu"]:
                    for ins in st["valu"][i](cur):
                        k.e(ins)
                tgt = (len(nreads) * (i + 1) + M - 1) // M
                while issued < tgt:
                    read_instr(nreads[issued], nxt)
                    issued += 1
                if dma_todo:
                    per = (nd + M * nsteps - 1) // (M * nsteps)
                    for _ in range(max(per, 1)):
                        if dma_todo:
                            dma_issue(dma_todo.pop(0))
                    if not dma_todo:
                        dma_advance()
            gstep[0] += 1
        assert not dma_todo

    U = 1 if nsteps % 2 == 0 else 2
    nmain = nst - (NS - 1)
    nloop = (nmain // U) * U
    L = k.newlab("loop")
    if nloop > 0:
        k.e("s_mov_b32 s%d, %d" % (sp.s_cnt, nloop // U))
        k.lab(L)
        for u in range(U):
            stage(None, True, False, (NS - 3) * nd)
        k.e("s_sub_u32 s%d, s%d, 1" % (sp.s_cnt, sp.s_cnt))
        k.e("s_cmp_lg_u32 s%d, 0" % sp.s_cnt)
        k.e("s_cbranch_scc1 %s" % L)
    textra = 0
    for s in range(nloop, nst):
        do_dma = (s + NS - 1) < nst
        issued_upto = min(s + NS - 2, nst - 1)
        need = min(s + 1, nst - 1)
        vm = (issued_upto - need) * nd + textra
        stage(s, do_dma, s == nst - 1, min(vm, 63))
        if (not do_dma) and getattr(sp, "tail_hook", None) and textra == 0:
            textra = sp.tail_hook()
    k.stamp()


def xtile_dma_voff(k, vdst, vlane, vtmp, vtmp2, instr_tok0_sgpr_or_imm, BK, pitch, stok0):
    gpr = BK // 8
    gs = {4: 2, 8: 3}[gpr]
    k.e("v_lshrrev_b32 v%d, %d, v%d" % (vtmp, gs, vlane))
    k.e("v_add_u32 v%d, s%d, v%d" % (vtmp, instr_tok0_sgpr_or_imm, vtmp))
    if gpr == 8:
        k.e("v_bfe_u32 v%d, v%d, 1, 3" % (vtmp2, vtmp))
    else:
        k.e("v_bfe_u32 v%d, v%d, 2, 2" % (vtmp2, vtmp))
    k.e("v_and_b32 v%d, %d, v%d" % (vdst, gpr - 1, vlane))
    k.e("v_xor_b32 v%d, v%d, v%d" % (vdst, vdst, vtmp2))
    k.e("v_add_u32 v%d, s%d, v%d" % (vtmp, stok0, vtmp))
    k.e("s_mov_b32 s99, %d" % pitch)
    k.e("v_mul_lo_u32 v%d, v%d, s99" % (vtmp, vtmp))
    k.e("v_lshl_add_u32 v%d, v%d, 4, v%d" % (vdst, vdst, vtmp))


def xfrag_pat(k, vdst, vlane, vtok, vtmp, g_sgpr, BK):
    gpr = BK // 8
    k.e("v_lshrrev_b32 v%d, 5, v%d" % (vdst, vlane))
    k.e("v_add_u32 v%d, s%d, v%d" % (vdst, g_sgpr, vdst))
    if gpr == 8:
        k.e("v_bfe_u32 v%d, v%d, 1, 3" % (vtmp, vtok))
    else:
        k.e("v_bfe_u32 v%d, v%d, 2, 2" % (vtmp, vtok))
    k.e("v_xor_b32 v%d, v%d, v%d" % (vdst, vdst, vtmp))
    k.e("v_lshlrev_b32 v%d, 4, v%d" % (vdst, vdst))
    k.e("v_lshl_add_u32 v%d, v%d, %d, v%d" % (vdst, vtok, {4: 6, 8: 7}[gpr], vdst))


def phi(k, v, t, vl2e):
    k.e("v_mul_f32 v%d, v%d, v%d" % (t, vl2e, v))
    k.e("v_exp_f32 v%d, v%d" % (t, t))
    k.e("v_cmp_lt_f32 vcc, 0, v%d" % v)
    k.e("v_add_f32 v%d, 1.0, v%d" % (v, v))
    k.e("s_nop 0")
    k.e("v_cndmask_b32 v%d, v%d, v%d, vcc" % (v, t, v))
    k.e("v_add_f32 v%d, 0x358637bd, v%d" % (v, v))


def gen_k1():
    k = KB("k1_qkv_kernel")
    L_end = k.newlab("end")
    BK, NS = 64, 4
    XB = 128 * BK * 2
    WB = (BK // 4) * 6 * 256
    SB = XB + WB
    k.e("s_cmp_ge_u32 s2, 256")
    k.e("s_cbranch_scc1 %s" % L_end)
    k.e("s_load_dwordx2 s[4:5], s[0:1], %d" % KA_WQKV)
    k.e("s_load_dwordx2 s[6:7], s[0:1], %d" % KA_WS)
    k.e("s_load_dwordx2 s[60:61], s[0:1], %d" % KA_WO)
    k.e("s_load_dwordx4 s[64:67], s[0:1], %d" % KA_WG)
    k.e("s_load_dwordx2 s[68:69], s[0:1], %d" % KA_WD)
    k.e("s_and_b32 s20, s2, 7")
    k.e("s_lshr_b32 s21, s2, 3")
    k.e("s_and_b32 s22, s20, 3")
    k.e("s_lshl_b32 s22, s22, 2")
    k.e("s_and_b32 s23, s21, 3")
    k.e("s_add_u32 s22, s22, s23")
    k.e("s_lshr_b32 s23, s20, 2")
    k.e("s_lshl_b32 s23, s23, 3")
    k.e("s_lshr_b32 s24, s21, 2")
    k.e("s_add_u32 s23, s23, s24")
    k.e("s_lshl_b32 s24, s23, 7")
    k.e("v_lshrrev_b32 v1, 6, v0")
    k.e("v_and_b32 v2, 63, v0")
    k.e("s_nop 0")
    k.e("v_readfirstlane_b32 s25, v1")
    k.e("s_waitcnt lgkmcnt(0)")
    k.srd(8, 6, 2048 * 1024 * 2, WS_XN)
    k.srd(12, 4, 1024 * 3072 * 2)
    k.e("s_lshr_b32 s26, s25, 2")
    k.e("s_bfe_u32 s27, s25, 0x10001")
    k.e("s_and_b32 s28, s25, 1")
    dma = []
    for i in range(2):
        k.e("s_lshl_b32 s30, s25, 4")
        k.e("s_add_u32 s30, s30, %d" % (8 * i))
        xtile_dma_voff(k, 10 + i, 2, 3, 4, 30, BK, 2048, 24)
        k.e("s_lshl_b32 s%d, s25, 11" % (40 + i))
        k.e("s_add_u32 s%d, s%d, %d" % (40 + i, 40 + i, 1024 * i))
        dma.append((8, 10 + i, 50, 40 + i))
    for i in range(3):
        k.e("s_mul_i32 s30, s25, 12")
        k.e("s_add_u32 s30, s30, %d" % (4 * i))
        k.e("v_lshrrev_b32 v3, 4, v2")
        k.e("v_add_u32 v3, s30, v3")
        k.e("v_mul_u32_u24 v4, 43, v3")
        k.e("v_lshrrev_b32 v4, 8, v4")
        k.e("v_mul_u32_u24 v5, 6, v4")
        k.e("v_sub_u32 v5, v3, v5")
        k.e("v_bfe_u32 v6, v2, 2, 2")
        k.e("v_lshl_add_u32 v6, v4, 2, v6")
        k.e("v_mul_u32_u24 v6, 6144, v6")
        k.e("v_lshrrev_b32 v7, 1, v5")
        k.e("v_lshl_add_u32 v6, v7, 11, v6")
        k.e("v_and_b32 v7, 1, v5")
        k.e("v_lshl_add_u32 v6, v7, 6, v6")
        k.e("v_and_b32 v7, 3, v2")
        k.e("v_lshl_add_u32 v6, v7, 4, v6")
        k.e("s_lshl_b32 s31, s22, 7")
        k.e("v_add_u32 v%d, s31, v6" % (12 + i))
        k.e("s_mul_i32 s%d, s25, 3072" % (42 + i))
        k.e("s_add_u32 s%d, s%d, %d" % (42 + i, 42 + i, XB + 1024 * i))
        dma.append((12, 12 + i, 51, 42 + i))
    k.e("s_mov_b32 s50, 0")
    k.e("s_mov_b32 s51, 0")
    k.e("v_and_b32 v3, 31, v2")
    for tl in range(2):
        k.e("s_xor_b32 s30, s26, %d" % tl)
        k.e("s_lshl_b32 s31, s27, 1")
        k.e("s_add_u32 s30, s30, s31")
        k.e("s_lshl_b32 s30, s30, 5")
        k.e("v_add_u32 v4, s30, v3")
        for jj in range(2):
            k.e("s_lshl_b32 s31, s26, 2")
            k.e("s_add_u32 s31, s31, %d" % (2 * jj))
            xfrag_pat(k, 16 + 2 * tl + jj, 2, 4, 5, 31, BK)
    k.e("v_bfe_u32 v3, v2, 2, 2")
    k.e("v_lshlrev_b32 v3, 6, v3")
    k.e("v_bfe_u32 v4, v2, 4, 1")
    k.e("v_lshl_add_u32 v3, v4, 5, v3")
    k.e("v_and_b32 v4, 3, v2")
    k.e("v_lshl_add_u32 v3, v4, 3, v3")
    k.e("v_lshrrev_b32 v4, 5, v2")
    k.e("v_mul_u32_u24 v4, %d, v4" % (2 * 6 * 256))
    k.e("v_add_u32 v3, v3, v4")
    k.e("s_mul_i32 s30, s26, %d" % (8 * 6 * 256))
    k.e("s_lshl_b32 s31, s28, 8")
    k.e("s_add_u32 s30, s30, s31")
    k.e("s_add_u32 s30, s30, %d" % XB)
    k.e("v_add_u32 v20, s30, v3")
    addr = [(21 + i, 16 + i) for i in range(5)]
    ACC = 32
    for i in range(96):
        k.e("v_mov_b32 v%d, 0" % (ACC + i))
    F0, F1 = 128, 148
    steps = []
    for jj in range(2):
        reads = []
        reads.append(("ds_read_b128", 0, 21 + 0 + jj, 0))
        for p in range(3):
            for i in range(2):
                reads.append(("ds_read_b64_tr_b16", 8 + 4 * p + 2 * i, 25, ((4 * jj + i) * 6 + 2 * p) * 256))
            if p == 0:
                reads.append(("ds_read_b128", 4, 21 + 2 + jj, 0))
        mf = []
        mf.append((ACC + 0 * 16, 8, 0, 2))
        mf.append((ACC + 3 * 16, 8, 4, 3))
        mf.append((ACC + 1 * 16, 0, 12, 5))
        mf.append((ACC + 4 * 16, 4, 12, 5))
        mf.append((ACC + 2 * 16, 0, 16, 7))
        mf.append((ACC + 5 * 16, 4, 16, 7))
        steps.append(dict(reads=reads, mfma=mf))
    sp = Spec()
    sp.NS, sp.nst, sp.stage_bytes = NS, 1024 // BK, SB
    sp.dma = dma
    sp.sadv = [(50, BK * 2), (51, BK * 6144)]
    sp.addr = addr
    sp.steps = steps
    sp.fset = [F0, F1]
    sp.s_wr, sp.s_rd, sp.s_cnt = 52, 53, 54

    def prefetch():
        k.e("s_lshl_b32 s30, s2, 3")
        k.e("s_add_u32 s30, s30, s25")
        k.e("v_lshlrev_b32 v3, 6, v2")
        k.e("s_mul_i32 s31, s30, 3584")
        k.e("v_add_u32 v4, s31, v3")
        k.e("s_lshl_b32 s31, s30, 10")
        k.e("v_add_u32 v5, s31, v3")
        for sb, nb in ((68, 3584 * 1024 * 2), (64, 3584 * 1024 * 2), (66, 3584 * 1024 * 2)):
            k.srd(72, sb, nb)
            k.e("buffer_load_dword v6, v4, s[72:75], 0 offen")
        k.srd(72, 60, 1024 * 1024 * 2)
        k.e("buffer_load_dword v6, v5, s[72:75], 0 offen")
        return 4
    emit_gemm(k, sp)
    k.e("s_nop 15")
    k.e("s_barrier")
    k.e("s_mul_i32 s30, s25, 12288")
    k.e("v_lshlrev_b32 v3, 4, v2")
    k.e("v_add_u32 v4, s30, v3")
    for q in range(12):
        k.e("ds_write_b128 v4, v[%d:%d] offset:%d" % (ACC + 48 + 4 * q, ACC + 51 + 4 * q, 1024 * q))
    k.e("s_xor_b32 s31, s25, 4")
    k.e("s_mul_i32 s31, s31, 12288")
    k.e("v_add_u32 v5, s31, v3")
    k.e("s_waitcnt lgkmcnt(0)")
    k.e("s_barrier")
    for q in range(12):
        k.e("ds_read_b128 v[%d:%d], v5 offset:%d" % (ACC + 48 + 4 * q, ACC + 51 + 4 * q, 1024 * q))
    k.e("v_mov_b32 v27, 0x3fb8aa3b")
    k.e("v_mov_b32 v26, 0xffff0000")
    for q in range(12):
        k.e("s_waitcnt lgkmcnt(%d)" % (11 - q))
        for i in range(4):
            k.e("v_add_f32 v%d, v%d, v%d" % (ACC + 4 * q + i, ACC + 4 * q + i, ACC + 48 + 4 * q + i))
    PQ, PK, PV = 128, 136, 144
    for t, dst in ((0, PQ), (1, PK)):
        for i in range(8):
            a, b = ACC + 16 * t + 2 * i, ACC + 16 * t + 2 * i + 1
            k.e("v_cvt_pk_bf16_f32 v6, v%d, v%d" % (a, b))
            k.e("v_lshlrev_b32 v%d, 16, v6" % a)
            k.e("v_and_b32 v%d, v26, v6" % b)
            phi(k, a, 7, 27)
            phi(k, b, 8, 27)
            k.e("v_cvt_pk_bf16_f32 v%d, v%d, v%d" % (dst + i, a, b))
    for i in range(8):
        k.e("v_cvt_pk_bf16_f32 v%d, v%d, v%d" % (PV + i, ACC + 32 + 2 * i, ACC + 33 + 2 * i))
    k.srd(16, 6, 2048 * 1024 * 2, WS_PQ)
    k.e("s_lshl_b32 s30, s27, 1")
    k.e("s_add_u32 s30, s30, s26")
    k.e("s_lshl_b32 s30, s30, 5")
    k.e("s_add_u32 s30, s30, s24")
    k.e("v_and_b32 v3, 31, v2")
    k.e("v_add_u32 v3, s30, v3")
    k.e("v_lshlrev_b32 v3, 11, v3")
    k.e("v_lshrrev_b32 v4, 5, v2")
    k.e("v_lshl_add_u32 v3, v4, 4, v3")
    k.e("s_lshl_b32 s31, s22, 1")
    k.e("s_add_u32 s31, s31, s28")
    k.e("s_lshl_b32 s32, s31, 6")
    k.e("v_add_u32 v3, s32, v3")
    k.e("buffer_store_dwordx4 v[%d:%d], v3, s[16:19], 0 offen" % (PQ, PQ + 3))
    k.e("buffer_store_dwordx4 v[%d:%d], v3, s[16:19], 0 offen offset:32" % (PQ + 4, PQ + 7))
    KV = ACC + 48
    k.e("v_mfma_f32_32x32x16_bf16 v[%d:%d], v[%d:%d], v[%d:%d], 0" % (KV, KV + 15, PK, PK + 3, PV, PV + 3))
    k.e("v_mfma_f32_32x32x16_bf16 v[%d:%d], v[%d:%d], v[%d:%d], v[%d:%d]" % (KV, KV + 15, PK + 4, PK + 7, PV + 4, PV + 7, KV, KV + 15))
    k.e("v_mov_b32 v9, 0")
    for i in range(8):
        k.e("v_lshlrev_b32 v6, 16, v%d" % (PK + i))
        k.e("v_and_b32 v7, v26, v%d" % (PK + i))
        k.e("v_add_f32 v9, v9, v6")
        k.e("v_add_f32 v9, v9, v7")
    KVL = 98304
    ZL = KVL + 32768
    k.e("s_lshl_b32 s30, s25, 12")
    k.e("v_lshlrev_b32 v3, 4, v2")
    k.e("v_add_u32 v4, s30, v3")
    k.e("v_add_u32 v4, %d, v4" % KVL)
    k.e("s_lshl_b32 s30, s25, 8")
    k.e("v_lshlrev_b32 v5, 2, v2")
    k.e("v_add_u32 v5, s30, v5")
    k.e("v_add_u32 v5, %d, v5" % ZL)
    k.e("ds_write_b32 v5, v9")
    k.e("s_nop 7")
    for q in range(4):
        k.e("ds_write_b128 v4, v[%d:%d] offset:%d" % (KV + 4 * q, KV + 4 * q + 3, 1024 * q))
    k.e("s_waitcnt lgkmcnt(0)")
    k.e("s_barrier")
    k.e("s_lshr_b32 s30, s25, 1")
    k.e("s_lshl_b32 s31, s30, 10")
    k.e("s_lshl_b32 s32, s28, 12")
    k.e("s_add_u32 s31, s31, s32")
    k.e("s_add_u32 s31, s31, %d" % KVL)
    k.e("v_add_u32 v4, s31, v3")
    for j in range(4):
        k.e("ds_read_b128 v[%d:%d], v4 offset:%d" % (ACC + 4 * j, ACC + 4 * j + 3, 8192 * j))
    k.e("s_lshl_b32 s32, s28, 8")
    k.e("v_and_b32 v6, 31, v2")
    k.e("v_lshlrev_b32 v6, 2, v6")
    k.e("v_add_u32 v6, s32, v6")
    k.e("v_add_u32 v6, %d, v6" % ZL)
    for j in range(4):
        k.e("ds_read_b32 v%d, v6 offset:%d" % (ACC + 16 + 2 * j, 512 * j))
        k.e("ds_read_b32 v%d, v6 offset:%d" % (ACC + 17 + 2 * j, 512 * j + 128))
    k.srd(16, 6, 16 * 32 * 4096, WS_KVP)
    k.srd(56, 6, 16 * 32 * 128, WS_ZP)
    k.e("s_waitcnt lgkmcnt(0)")
    for i in range(4):
        k.e("v_add_f32 v%d, v%d, v%d" % (ACC + i, ACC + i, ACC + 4 + i))
        k.e("v_add_f32 v%d, v%d, v%d" % (ACC + 8 + i, ACC + 8 + i, ACC + 12 + i))
        k.e("v_add_f32 v%d, v%d, v%d" % (ACC + i, ACC + i, ACC + 8 + i))
    for i in range(1, 8):
        k.e("v_add_f32 v%d, v%d, v%d" % (ACC + 16, ACC + 16, ACC + 16 + i))
    k.e("s_lshl_b32 s33, s23, 5")
    k.e("s_lshl_b32 s34, s22, 1")
    k.e("s_add_u32 s33, s33, s34")
    k.e("s_add_u32 s33, s33, s28")
    k.e("s_lshl_b32 s34, s33, 12")
    k.e("s_lshl_b32 s35, s30, 10")
    k.e("s_add_u32 s34, s34, s35")
    k.e("v_add_u32 v4, s34, v3")
    k.e("buffer_store_dwordx4 v[%d:%d], v4, s[16:19], 0 offen" % (ACC, ACC + 3))
    L_fin = k.newlab("fin")
    k.e("s_cmp_lg_u32 s30, 0")
    k.e("s_cbranch_scc1 %s" % L_fin)
    k.e("v_cmp_gt_u32 vcc, 32, v2")
    k.e("s_and_saveexec_b64 s[36:37], vcc")
    k.e("s_lshl_b32 s34, s33, 7")
    k.e("v_lshlrev_b32 v6, 2, v2")
    k.e("v_add_u32 v6, s34, v6")
    k.e("buffer_store_dword v%d, v6, s[56:59], 0 offen" % (ACC + 16))
    k.lab(L_fin)
    k.stamp_store(1)
    k.lab(L_end)
    k.e("s_endpgm")
    return k, 168, (256, 512, NS * SB)


def gen_k15():
    k = KB("k15_o_kernel")
    L_end = k.newlab("end")
    L_o = k.newlab("o")
    k.e("s_cmp_ge_u32 s2, 284")
    k.e("s_cbranch_scc1 %s" % L_end)
    k.e("s_load_dwordx2 s[6:7], s[0:1], %d" % KA_WS)
    k.e("s_cmp_lt_u32 s2, 256")
    k.e("s_cbranch_scc1 %s" % L_o)
    k.e("s_waitcnt lgkmcnt(0)")
    k.srd(8, 6, 8 * 2 * 3584 * 4, WS_CS)
    k.srd(12, 6, 2 * 3584 * 4, WS_CS2)
    k.e("s_sub_u32 s3, s2, 256")
    k.e("s_lshl_b32 s3, s3, 10")
    k.e("v_lshlrev_b32 v1, 2, v0")
    k.e("v_add_u32 v1, s3, v1")
    k.e("s_mov_b32 s16, 0")
    for i in range(8):
        k.e("buffer_load_dword v%d, v1, s[8:11], s16 offen" % (2 + i))
        k.e("s_add_u32 s16, s16, %d" % (2 * 3584 * 4))
    k.e("s_waitcnt vmcnt(0)")
    for i in range(1, 8):
        k.e("v_add_f32 v2, v2, v%d" % (2 + i))
    k.e("buffer_store_dword v2, v1, s[12:15], 0 offen")
    k.e("s_endpgm")
    k.lab(L_o)
    k.e("s_and_b32 s20, s2, 31")
    k.e("s_lshr_b32 s21, s2, 5")
    k.e("v_lshrrev_b32 v1, 6, v0")
    k.e("v_and_b32 v2, 63, v0")
    k.e("s_nop 0")
    k.e("v_readfirstlane_b32 s25, v1")
    k.e("s_waitcnt lgkmcnt(0)")
    k.srd(8, 6, 2048 * 1024 * 2, WS_PQ)
    k.srd(12, 6, 16 * 32 * 4096, WS_KVP)
    k.srd(16, 6, 16 * 32 * 128, WS_ZP)
    k.srd(28, 6, 2048 * 1024 * 2, WS_O)
    k.e("s_lshl_b32 s22, s21, 8")
    k.e("s_lshl_b32 s23, s25, 6")
    k.e("s_add_u32 s22, s22, s23")
    k.e("v_and_b32 v3, 31, v2")
    k.e("v_add_u32 v3, s22, v3")
    k.e("v_lshlrev_b32 v3, 11, v3")
    k.e("v_lshrrev_b32 v4, 5, v2")
    k.e("v_lshl_add_u32 v3, v4, 4, v3")
    k.e("s_lshl_b32 s23, s20, 6")
    k.e("v_add_u32 v3, s23, v3")
    k.e("v_add_u32 v5, 0x10000, v3")
    for t in range(2):
        for s in range(2):
            k.e("buffer_load_dwordx4 v[%d:%d], v%d, s[8:11], 0 offen offset:%d" % (16 + 8 * t + 4 * s, 19 + 8 * t + 4 * s, 3 + 2 * t, 32 * s))
    k.e("s_lshl_b32 s23, s20, 12")
    k.e("s_lshl_b32 s24, s25, 10")
    k.e("s_add_u32 s23, s23, s24")
    k.e("v_lshlrev_b32 v6, 4, v2")
    k.e("v_add_u32 v7, s23, v6")
    k.e("s_mov_b32 s24, 0")
    for mb in range(16):
        k.e("buffer_load_dwordx4 v[%d:%d], v7, s[12:15], s24 offen" % (64 + 4 * mb, 67 + 4 * mb))
        if mb != 15:
            k.e("s_add_u32 s24, s24, %d" % (32 * 4096))
    k.e("s_lshl_b32 s23, s20, 7")
    k.e("v_and_b32 v8, 31, v2")
    k.e("v_lshlrev_b32 v8, 2, v8")
    k.e("v_add_u32 v8, s23, v8")
    for mb in range(16):
        k.e("buffer_load_dword v%d, v8, s[16:19], 0 offen offset:%d" % (128 + mb, 0) if mb == 0 else
            "buffer_load_dword v%d, v8, s[16:19], s%d offen" % (128 + mb, 40 + mb))
        if mb != 15:
            k.e("s_mov_b32 s%d, %d" % (41 + mb, (mb + 1) * 32 * 128))
    k.e("s_waitcnt vmcnt(16)")
    for mb in range(1, 16):
        for i in range(4):
            k.e("v_add_f32 v%d, v%d, v%d" % (64 + i, 64 + i, 64 + 4 * mb + i))
    k.e("s_lshl_b32 s23, s25, 10")
    k.e("v_add_u32 v7, s23, v6")
    k.e("ds_write_b128 v7, v[64:67]")
    k.e("s_waitcnt vmcnt(0)")
    for mb in range(1, 16):
        k.e("v_add_f32 v128, v128, v%d" % (128 + mb))
    k.e("v_and_b32 v8, 31, v2")
    k.e("v_lshlrev_b32 v8, 2, v8")
    k.e("ds_write_b32 v8, v128 offset:4096")
    k.e("s_waitcnt lgkmcnt(0)")
    k.e("s_barrier")
    for q in range(4):
        k.e("ds_read_b128 v[%d:%d], v6 offset:%d" % (64 + 4 * q, 67 + 4 * q, 1024 * q))
    k.e("v_lshrrev_b32 v9, 5, v2")
    k.e("v_lshlrev_b32 v9, 4, v9")
    for q in range(4):
        k.e("ds_read_b128 v[%d:%d], v9 offset:%d" % (80 + 4 * q, 83 + 4 * q, 4096 + 32 * q))
    k.e("s_waitcnt lgkmcnt(0)")
    KVA, ZA = 96, 104
    for i in range(8):
        k.e("v_cvt_pk_bf16_f32 v%d, v%d, v%d" % (KVA + i, 64 + 2 * i, 65 + 2 * i))
        k.e("v_cvt_pk_bf16_f32 v%d, v%d, v%d" % (ZA + i, 80 + 2 * i, 81 + 2 * i))
    k.e("v_and_b32 v10, 27, v2")
    k.e("v_cmp_eq_u32 vcc, 0, v10")
    k.e("s_nop 1")
    for i in range(8):
        k.e("v_cndmask_b32 v%d, 0, v%d, vcc" % (ZA + i, ZA + i))
    k.e("s_nop 1")
    for t in range(2):
        N, D = 112 + 32 * t, 128 + 32 * t
        k.e("v_mfma_f32_32x32x16_bf16 v[%d:%d], v[%d:%d], v[%d:%d], 0" % (N, N + 15, KVA, KVA + 3, 16 + 8 * t, 19 + 8 * t))
        k.e("v_mfma_f32_32x32x16_bf16 v[%d:%d], v[%d:%d], v[%d:%d], v[%d:%d]" % (N, N + 15, KVA + 4, KVA + 7, 20 + 8 * t, 23 + 8 * t, N, N + 15))
        k.e("v_mfma_f32_32x32x16_bf16 v[%d:%d], v[%d:%d], v[%d:%d], 0" % (D, D + 15, ZA, ZA + 3, 16 + 8 * t, 19 + 8 * t))
        k.e("v_mfma_f32_32x32x16_bf16 v[%d:%d], v[%d:%d], v[%d:%d], v[%d:%d]" % (D, D + 15, ZA + 4, ZA + 7, 20 + 8 * t, 23 + 8 * t, D, D + 15))
    k.e("s_nop 15")
    for t in range(2):
        N, D = 112 + 32 * t, 128 + 32 * t
        round_bf16(k, 11, D)
        k.e("v_add_f32 v11, 0x358637bd, v11")
        round_bf16(k, 11, 11)
        k.e("v_rcp_f32 v11, v11")
        k.e("s_nop 0")
        for i in range(8):
            k.e("v_mul_f32 v12, v%d, v11" % (N + 2 * i))
            k.e("v_mul_f32 v13, v%d, v11" % (N + 2 * i + 1))
            k.e("v_cvt_pk_bf16_f32 v%d, v12, v13" % (32 + 8 * t + i))
        k.e("buffer_store_dwordx4 v[%d:%d], v%d, s[28:31], 0 offen" % (32 + 8 * t, 35 + 8 * t, 3 + 2 * t))
        k.e("buffer_store_dwordx4 v[%d:%d], v%d, s[28:31], 0 offen offset:32" % (36 + 8 * t, 39 + 8 * t, 3 + 2 * t))
    k.lab(L_end)
    k.e("s_endpgm")
    return k, 176, (284, 256, 8192)


def gen_proj(name, mode):
    k = KB(name)
    L_end = k.newlab("end")
    BK, NS = 64, 6
    KD = 1024 if mode == "wo" else 3584
    XOFF = WS_O if mode == "wo" else WS_HH
    XB = 64 * BK * 2
    WB = (BK // 4) * 4 * 256
    SB = XB + WB
    k.e("s_cmp_ge_u32 s2, 256")
    k.e("s_cbranch_scc1 %s" % L_end)
    k.e("s_load_dwordx2 s[4:5], s[0:1], %d" % (KA_WO if mode == "wo" else KA_WD))
    k.e("s_load_dwordx2 s[6:7], s[0:1], %d" % KA_WS)
    k.e("s_load_dwordx2 s[60:61], s[0:1], %d" % (KA_X if mode == "wo" else KA_OUT))
    k.e("s_and_b32 s20, s2, 7")
    k.e("s_lshr_b32 s21, s2, 3")
    k.e("s_and_b32 s22, s20, 1")
    k.e("s_lshl_b32 s22, s22, 2")
    k.e("s_and_b32 s23, s21, 3")
    k.e("s_add_u32 s22, s22, s23")
    k.e("s_lshr_b32 s23, s20, 1")
    k.e("s_lshl_b32 s23, s23, 3")
    k.e("s_lshr_b32 s24, s21, 2")
    k.e("s_add_u32 s23, s23, s24")
    k.e("s_lshl_b32 s24, s23, 6")
    k.e("v_lshrrev_b32 v1, 6, v0")
    k.e("v_and_b32 v2, 63, v0")
    k.e("s_nop 0")
    k.e("v_readfirstlane_b32 s25, v1")
    k.e("s_waitcnt lgkmcnt(0)")
    k.srd(8, 6, 2048 * KD * 2, XOFF)
    k.srd(12, 4, KD * 1024 * 2)
    k.e("s_lshr_b32 s26, s25, 1")
    k.e("s_and_b32 s28, s25, 1")
    dma = []
    if mode == "wo":
        k.e("s_lshl_b32 s30, s25, 3")
        xtile_dma_voff(k, 10, 2, 3, 4, 30, BK, KD * 2, 24)
    else:
        k.e("s_lshl_b32 s30, s23, 1")
        k.e("s_lshr_b32 s31, s25, 2")
        k.e("s_add_u32 s30, s30, s31")
        k.e("s_mul_i32 s30, s30, 224")
        k.e("s_and_b32 s31, s25, 3")
        k.e("s_add_u32 s30, s30, s31")
        k.e("s_lshl_b32 s30, s30, 10")
        k.e("v_lshlrev_b32 v10, 4, v2")
        k.e("v_add_u32 v10, s30, v10")
    k.e("s_lshl_b32 s40, s25, 10")
    dma.append((8, 10, 50, 40))
    for i in range(2):
        k.e("s_lshl_b32 s30, s25, 3")
        k.e("s_add_u32 s30, s30, %d" % (4 * i))
        k.e("v_bfe_u32 v6, v2, 2, 2")
        k.e("v_add_u32 v6, s30, v6")
        k.e("v_lshlrev_b32 v6, 11, v6")
        k.e("v_lshrrev_b32 v7, 4, v2")
        k.e("v_lshl_add_u32 v6, v7, 6, v6")
        k.e("v_and_b32 v7, 3, v2")
        k.e("v_lshl_add_u32 v6, v7, 4, v6")
        k.e("s_lshl_b32 s31, s22, 8")
        k.e("v_add_u32 v%d, s31, v6" % (12 + i))
        k.e("s_lshl_b32 s%d, s25, 11" % (42 + i))
        k.e("s_add_u32 s%d, s%d, %d" % (42 + i, 42 + i, XB + 1024 * i))
        dma.append((12, 12 + i, 51, 42 + i))
    k.e("s_mov_b32 s50, 0")
    k.e("s_mov_b32 s51, 0")
    k.e("v_and_b32 v3, 31, v2")
    k.e("s_lshr_b32 s27, s26, 1")
    for tl in range(2):
        k.e("s_xor_b32 s30, s27, %d" % tl)
        if mode == "wo":
            k.e("s_lshl_b32 s30, s30, 5")
            k.e("v_add_u32 v4, s30, v3")
            k.e("s_lshl_b32 s31, s26, 1")
            xfrag_pat(k, 16 + tl, 2, 4, 5, 31, BK)
        else:
            k.e("s_lshl_b32 s30, s30, 2")
            k.e("s_add_u32 s30, s30, s26")
            k.e("s_lshl_b32 s30, s30, 10")
            k.e("v_lshlrev_b32 v4, 4, v2")
            k.e("v_add_u32 v%d, s30, v4" % (16 + tl))
    k.e("v_bfe_u32 v3, v2, 2, 2")
    k.e("v_lshlrev_b32 v3, 6, v3")
    k.e("v_bfe_u32 v4, v2, 4, 1")
    k.e("v_lshl_add_u32 v3, v4, 5, v3")
    k.e("v_and_b32 v4, 3, v2")
    k.e("v_lshl_add_u32 v3, v4, 3, v3")
    k.e("v_lshrrev_b32 v4, 5, v2")
    k.e("v_lshl_add_u32 v3, v4, 10, v3")
    for nl in range(2):
        k.e("s_and_b32 s30, s26, 1")
        k.e("s_xor_b32 s30, s30, %d" % nl)
        k.e("s_lshl_b32 s31, s28, 1")
        k.e("s_add_u32 s30, s30, s31")
        k.e("s_lshl_b32 s30, s30, 8")
        k.e("s_lshl_b32 s31, s26, 12")
        k.e("s_add_u32 s30, s30, s31")
        k.e("s_add_u32 s30, s30, %d" % XB)
        k.e("v_add_u32 v%d, s30, v3" % (18 + nl))
    addr = [(21 + i, 16 + i) for i in range(4)]
    ACC = 64
    for i in range(64):
        k.e("v_mov_b32 v%d, 0" % (ACC + i))
    F0, F1 = 128, 144
    reads = [("ds_read_b128", 0, 21, 0),
             ("ds_read_b64_tr_b16", 8, 23, 0), ("ds_read_b64_tr_b16", 10, 23, 2048),
             ("ds_read_b64_tr_b16", 12, 24, 0), ("ds_read_b64_tr_b16", 14, 24, 2048),
             ("ds_read_b128", 4, 22, 0)]
    mf = [(ACC + 0, 8, 0, 2), (ACC + 16, 12, 0, 4), (ACC + 32, 8, 4, 5), (ACC + 48, 12, 4, 5)]
    sp = Spec()
    sp.NS, sp.nst, sp.stage_bytes = NS, KD // BK, SB
    sp.dma = dma
    sp.sadv = [(50, BK * 2 if mode == "wo" else 4096), (51, BK * 2048)]
    sp.addr = addr
    sp.steps = [dict(reads=reads, mfma=mf)]
    sp.fset = [F0, F1]
    sp.s_wr, sp.s_rd, sp.s_cnt = 52, 53, 54
    emit_gemm(k, sp)
    k.e("s_lshl_b32 s30, s27, 5")
    k.e("s_add_u32 s30, s30, s24")
    k.e("v_and_b32 v3, 31, v2")
    k.e("v_add_u32 v3, s30, v3")
    k.e("v_lshlrev_b32 v4, 11, v3")
    k.e("s_and_b32 s31, s26, 1")
    k.e("s_lshl_b32 s32, s28, 1")
    k.e("s_add_u32 s31, s31, s32")
    k.e("s_lshl_b32 s32, s22, 2")
    k.e("s_add_u32 s31, s31, s32")
    k.e("s_lshl_b32 s32, s31, 6")
    k.e("v_lshrrev_b32 v5, 5, v2")
    k.e("v_add_u32 v4, s32, v4")
    k.e("v_lshl_add_u32 v6, v5, 3, v4")
    k.e("v_lshl_add_u32 v7, v5, 4, v4")
    k.srd(16, 60, 2048 * 1024 * 2)
    k.srd(56, 6, 2048 * 1024 * 2, WS_H)
    if mode == "wo":
        for q in range(4):
            k.e("buffer_load_dwordx2 v[%d:%d], v6, s[16:19], 0 offen offset:%d" % (32 + 2 * q, 33 + 2 * q, 16 * q))
    else:
        for s in range(2):
            k.e("buffer_load_dwordx4 v[%d:%d], v7, s[56:59], 0 offen offset:%d" % (32 + 4 * s, 35 + 4 * s, 32 * s))
    k.e("s_nop 15")
    k.e("s_barrier")
    k.e("v_lshlrev_b32 v8, 4, v2")
    for c in range(1, 4):
        k.e("s_xor_b32 s30, s26, %d" % c)
        k.e("s_lshl_b32 s33, s28, 2")
        k.e("s_add_u32 s30, s30, s33")
        k.e("s_mul_i32 s30, s30, 3")
        k.e("s_add_u32 s30, s30, %d" % (c - 1))
        k.e("s_lshl_b32 s30, s30, 12")
        k.e("v_add_u32 v9, s30, v8")
        for q in range(4):
            k.e("ds_write_b128 v9, v[%d:%d] offset:%d" % (ACC + 16 * c + 4 * q, ACC + 16 * c + 4 * q + 3, 1024 * q))
    k.e("s_lshl_b32 s33, s28, 2")
    k.e("s_add_u32 s30, s26, s33")
    k.e("s_mul_i32 s30, s30, 12288")
    k.e("v_add_u32 v9, s30, v8")
    k.e("s_waitcnt lgkmcnt(0)")
    k.e("s_barrier")
    for c in range(3):
        for q in range(4):
            k.e("ds_read_b128 v[%d:%d], v9 offset:%d" % (ACC + 16 + 16 * c + 4 * q, ACC + 16 + 16 * c + 4 * q + 3, 4096 * c + 1024 * q))
    k.e("v_mov_b32 v60, 0xffff0000")
    k.e("s_waitcnt lgkmcnt(0)")
    for i in range(16):
        k.e("v_add_f32 v%d, v%d, v%d" % (ACC + i, ACC + i, ACC + 16 + i))
        k.e("v_add_f32 v%d, v%d, v%d" % (ACC + 32 + i, ACC + 32 + i, ACC + 48 + i))
        k.e("v_add_f32 v%d, v%d, v%d" % (ACC + i, ACC + i, ACC + 32 + i))
    k.e("s_waitcnt vmcnt(0)")
    if mode == "wo":
        k.e("v_mov_b32 v44, 0")
        k.e("v_mov_b32 v45, 0")
    for i in range(8):
        a, b = ACC + 2 * i, ACC + 2 * i + 1
        k.e("v_cvt_pk_bf16_f32 v40, v%d, v%d" % (a, b))
        k.e("v_lshlrev_b32 v41, 16, v40")
        k.e("v_and_b32 v42, v60, v40")
        k.e("v_lshlrev_b32 v43, 16, v%d" % (32 + i))
        k.e("v_add_f32 v41, v41, v43")
        k.e("v_and_b32 v43, v60, v%d" % (32 + i))
        k.e("v_add_f32 v42, v42, v43")
        k.e("v_cvt_pk_bf16_f32 v%d, v41, v42" % (48 + i))
        if mode == "wo":
            k.e("v_lshlrev_b32 v41, 16, v%d" % (48 + i))
            k.e("v_and_b32 v42, v60, v%d" % (48 + i))
            k.e("v_add_f32 v44, v44, v41")
            k.e("v_fmac_f32 v45, v41, v41")
            k.e("v_add_f32 v44, v44, v42")
            k.e("v_fmac_f32 v45, v42, v42")
    if mode == "wo":
        for s in range(2):
            k.e("buffer_store_dwordx4 v[%d:%d], v7, s[56:59], 0 offen offset:%d" % (48 + 4 * s, 51 + 4 * s, 32 * s))
        k.e("v_mov_b32 v46, v44")
        k.e("v_mov_b32 v47, v45")
        k.e("s_nop 1")
        k.e("v_permlane32_swap_b32 v44, v46")
        k.e("v_permlane32_swap_b32 v45, v47")
        k.e("s_nop 1")
        k.e("v_add_f32 v44, v44, v46")
        k.e("v_add_f32 v45, v45, v47")
        k.srd(16, 6, 2048 * 32 * 8, WS_ST)
        k.e("v_lshlrev_b32 v3, 3, v3")
        k.e("s_lshl_b32 s32, s31, 14")
        k.e("v_add_u32 v3, s32, v3")
        k.e("v_cmp_gt_u32 vcc, 32, v2")
        k.e("s_and_saveexec_b64 s[36:37], vcc")
        k.e("buffer_store_dwordx2 v[44:45], v3, s[16:19], 0 offen")
    else:
        for q in range(4):
            k.e("buffer_store_dwordx2 v[%d:%d], v6, s[16:19], 0 offen offset:%d" % (48 + 2 * q, 49 + 2 * q, 16 * q))
    k.stamp_store(3 if mode == "wo" else 5)
    k.lab(L_end)
    k.e("s_endpgm")
    return k, 160, (256, 512, NS * SB)


def gen_k3():
    k = KB("k3_glu_kernel")
    L_end = k.newlab("end")
    BK, NS = 32, 5
    XB = 256 * BK * 2
    GB = (BK // 4) * 7 * 128
    UOFF = XB + GB + 128
    SB = XB + 14592
    CSL = NS * SB
    SCR = CSL + 1024
    k.e("s_cmp_ge_u32 s2, 256")
    k.e("s_cbranch_scc1 %s" % L_end)
    k.e("s_load_dwordx4 s[60:63], s[0:1], %d" % KA_WG)
    k.e("s_load_dwordx2 s[6:7], s[0:1], %d" % KA_WS)
    k.e("s_load_dwordx2 s[70:71], s[0:1], %d" % KA_WD)
    k.e("s_and_b32 s20, s2, 7")
    k.e("s_lshr_b32 s21, s2, 3")
    k.e("s_lshr_b32 s23, s20, 2")
    k.e("s_lshl_b32 s23, s23, 2")
    k.e("s_and_b32 s24, s21, 3")
    k.e("s_add_u32 s23, s23, s24")
    k.e("s_and_b32 s22, s20, 3")
    k.e("s_lshl_b32 s22, s22, 3")
    k.e("s_lshr_b32 s24, s21, 2")
    k.e("s_add_u32 s22, s22, s24")
    k.e("s_lshl_b32 s24, s23, 8")
    k.e("v_lshrrev_b32 v1, 6, v0")
    k.e("v_and_b32 v2, 63, v0")
    k.e("s_nop 0")
    k.e("v_readfirstlane_b32 s25, v1")
    k.e("s_waitcnt lgkmcnt(0)")
    k.srd(8, 6, 2048 * 1024 * 2, WS_H)
    k.e("s_cmp_eq_u32 s25, 7")
    k.e("s_cselect_b32 s72, s70, s60")
    k.e("s_cselect_b32 s73, s71, s61")
    k.e("s_cselect_b32 s74, s70, s62")
    k.e("s_cselect_b32 s75, s71, s63")
    k.srd(12, 72, 1024 * 3584 * 2)
    k.srd(16, 74, 1024 * 3584 * 2)
    dma = []
    for i in range(2):
        k.e("s_lshl_b32 s30, s25, 5")
        k.e("s_add_u32 s30, s30, %d" % (16 * i))
        xtile_dma_voff(k, 10 + i, 2, 3, 4, 30, BK, 2048, 24)
        k.e("s_lshl_b32 s%d, s25, 11" % (40 + i))
        k.e("s_add_u32 s%d, s%d, %d" % (40 + i, 40 + i, 1024 * i))
        dma.append((8, 10 + i, 50, 40 + i))
    k.e("s_lshl_b32 s31, s25, 3")
    k.e("v_lshrrev_b32 v3, 3, v2")
    k.e("v_add_u32 v3, s31, v3")
    k.e("v_mul_u32_u24 v4, 37, v3")
    k.e("v_lshrrev_b32 v4, 8, v4")
    k.e("v_mul_u32_u24 v5, 7, v4")
    k.e("v_sub_u32 v5, v3, v5")
    k.e("v_bfe_u32 v6, v2, 1, 2")
    k.e("v_lshl_add_u32 v6, v4, 2, v6")
    k.e("v_mul_u32_u24 v6, 7168, v6")
    k.e("v_lshl_add_u32 v6, v5, 5, v6")
    k.e("v_and_b32 v7, 1, v2")
    k.e("v_lshl_add_u32 v6, v7, 4, v6")
    k.e("s_mul_i32 s31, s22, 224")
    k.e("v_add_u32 v12, s31, v6")
    k.e("s_mul_i32 s31, s2, 28672")
    k.e("v_lshlrev_b32 v7, 4, v2")
    k.e("v_add_u32 v7, s31, v7")
    k.e("s_lshl_b32 s42, s25, 10")
    k.e("s_add_u32 s43, s42, %d" % UOFF)
    k.e("s_add_u32 s42, s42, %d" % XB)
    k.e("s_mov_b32 s56, %d" % (BK * 7168))
    k.e("s_cmp_eq_u32 s25, 7")
    k.e("s_cselect_b32 s56, 896, s56")
    k.e("s_cselect_b64 vcc, -1, 0")
    k.e("s_nop 1")
    k.e("v_cndmask_b32 v12, v12, v7, vcc")
    dma.append((12, 12, 51, 42))
    dma.append((16, 12, 51, 43))
    k.e("s_mov_b32 s50, 0")
    k.e("s_mov_b32 s51, 0")
    k.e("v_and_b32 v3, 31, v2")
    k.e("s_lshl_b32 s30, s25, 5")
    k.e("v_add_u32 v4, s30, v3")
    for jj in range(2):
        k.e("s_mov_b32 s31, %d" % (2 * jj))
        xfrag_pat(k, 14 + jj, 2, 4, 5, 31, BK)
    k.e("v_bfe_u32 v3, v2, 2, 2")
    k.e("v_lshlrev_b32 v3, 5, v3")
    k.e("v_and_b32 v4, 3, v2")
    k.e("v_lshl_add_u32 v3, v4, 3, v3")
    k.e("v_lshrrev_b32 v4, 5, v2")
    k.e("v_mul_u32_u24 v4, %d, v4" % (7 * 128))
    k.e("v_add_u32 v3, v3, v4")
    k.e("v_bfe_u32 v4, v2, 4, 1")
    k.e("v_mul_u32_u24 v4, %d, v4" % (UOFF - XB))
    k.e("v_add_u32 v3, v3, v4")
    k.e("v_add_u32 v3, %d, v3" % XB)
    k.e("v_mov_b32 v16, v3")
    ACC = 64
    for i in range(112):
        k.e("v_mov_b32 v%d, 0" % (ACC + i))
    F0, F1 = 176, 208

    steps = []
    for jj in range(2):
        reads = [("ds_read_b128", 0, 14 + jj, 0)]
        mf = []
        for t in range(7):
            for i in range(2):
                reads.append(("ds_read_b64_tr_b16", 4 + 4 * t + 2 * i, 16, ((4 * jj + 2 * i) * 7 + t) * 128))
            mf.append((ACC + 16 * t, 4 + 4 * t, 0, 2 * t + 2))
        steps.append(dict(reads=reads, mfma=mf))
    sp = Spec()
    sp.NS, sp.nst, sp.stage_bytes = NS, 1024 // BK, SB
    sp.dma = dma
    sp.sadv = [(50, BK * 2), (51, "s56")]
    sp.addr = [14, 15, 16]
    sp.inplace = True
    sp.steps = steps
    sp.fset = [F0, F1]
    sp.s_wr, sp.s_rd, sp.s_cnt = 52, 53, 54
    k.srd(64, 6, 2048 * 32 * 8, WS_ST)
    k.srd(76, 6, 2048 * 3584 * 2, WS_HH)
    k.srd(68, 6, 2 * 3584 * 4, WS_CS2)
    S0 = 24

    def early():
        k.e("s_lshl_b32 s30, s25, 5")
        k.e("s_add_u32 s30, s30, s24")
        k.e("v_and_b32 v3, 31, v2")
        k.e("v_add_u32 v3, s30, v3")
        k.e("v_lshlrev_b32 v4, 3, v3")
        k.e("v_lshrrev_b32 v5, 5, v2")
        k.e("v_lshl_add_u32 v4, v5, 18, v4")
        k.e("s_mov_b32 s31, 0")
        for i in range(16):
            k.e("buffer_load_dwordx2 v[%d:%d], v4, s[64:67], s31 offen" % (S0 + 2 * i, S0 + 2 * i + 1))
            k.e("s_add_u32 s31, s31, 16384")
        k.e("v_cmp_gt_u32 vcc, 28, v2")
        k.e("v_subrev_u32 v6, 28, v2")
        k.e("v_cndmask_b32 v6, v6, v2, vcc")
        k.e("v_lshlrev_b32 v6, 4, v6")
        k.e("v_mov_b32 v7, %d" % (3584 * 4))
        k.e("v_mov_b32 v8, 0")
        k.e("v_cndmask_b32 v7, v7, v8, vcc")
        k.e("v_add_u32 v6, v6, v7")
        k.e("s_mul_i32 s31, s22, 448")
        k.e("v_add_u32 v6, s31, v6")
        k.e("buffer_load_dwordx4 v[240:243], v6, s[68:71], 0 offen")
        return 17
    sp.tail_hook = early
    sp.dma_abs = {2: 57, 3: 57}
    k.e("s_cmp_eq_u32 s25, 7")
    k.e("s_cselect_b32 s57, 0, -1")
    k.e("s_cselect_b32 s42, %d, s42" % SCR)
    k.e("s_cselect_b32 s43, %d, s43" % (SCR + 1024))
    emit_gemm(k, sp)
    k.e("s_waitcnt vmcnt(0)")
    k.e("v_lshlrev_b32 v6, 4, v2")
    k.e("v_add_u32 v6, %d, v6" % CSL)
    k.e("v_cmp_gt_u32 vcc, 56, v2")
    k.e("s_and_saveexec_b64 s[36:37], vcc")
    k.e("ds_write_b128 v6, v[240:243]")
    k.e("s_mov_b64 exec, s[36:37]")
    k.e("v_add_f32 v8, v%d, v%d" % (S0, S0 + 2))
    k.e("v_add_f32 v9, v%d, v%d" % (S0 + 1, S0 + 3))
    for i in range(1, 8):
        k.e("v_add_f32 v8, v8, v%d" % (S0 + 4 * i))
        k.e("v_add_f32 v9, v9, v%d" % (S0 + 4 * i + 1))
        k.e("v_add_f32 v8, v8, v%d" % (S0 + 4 * i + 2))
        k.e("v_add_f32 v9, v9, v%d" % (S0 + 4 * i + 3))
    k.e("v_mov_b32 v6, v8")
    k.e("v_mov_b32 v7, v9")
    k.e("s_nop 1")
    k.e("v_permlane32_swap_b32 v8, v6")
    k.e("v_permlane32_swap_b32 v9, v7")
    k.e("s_nop 1")
    k.e("v_add_f32 v8, v8, v6")
    k.e("v_add_f32 v9, v9, v7")
    k.e("s_waitcnt lgkmcnt(0)")
    k.e("s_barrier")
    k.e("v_mul_f32 v8, 0x3a800000, v8")
    k.e("v_mul_f32 v9, 0x3a800000, v9")
    k.e("v_fma_f32 v9, -v8, v8, v9")
    k.e("v_max_f32 v9, 0, v9")
    round_bf16(k, 8, 8)
    round_bf16(k, 9, 9)
    k.e("v_add_f32 v9, 0x3727c5ac, v9")
    round_bf16(k, 9, 9)
    k.e("v_sqrt_f32 v9, v9")
    k.e("s_nop 0")
    round_bf16(k, 9, 9)
    k.e("v_rcp_f32 v54, v9")
    k.e("s_nop 0")
    k.e("v_mov_b32 v55, v54")
    k.e("v_mul_f32 v8, v8, v54")
    k.e("v_sub_f32 v52, 0, v8")
    k.e("v_mov_b32 v53, v52")
    k.e("v_lshrrev_b32 v6, 5, v2")
    k.e("s_lshl_b32 s31, s23, 3")
    k.e("s_add_u32 s31, s31, s25")
    k.e("s_mul_i32 s31, s31, 224")
    k.e("s_mul_i32 s30, s22, 7")
    k.e("s_add_u32 s31, s31, s30")
    k.e("s_lshl_b32 s31, s31, 10")
    k.e("v_lshlrev_b32 v57, 4, v2")
    k.e("v_add_u32 v57, s31, v57")
    k.e("v_add_u32 v56, 4096, v57")
    import math, struct
    c1 = -2.0 * math.log2(math.e) * math.sqrt(2.0 / math.pi)
    c2 = c1 * 0.044715
    f2u = lambda f: struct.unpack("<I", struct.pack("<f", f))[0]
    k.e("v_mov_b32 v60, 0x%08x" % f2u(c1))
    k.e("v_mov_b32 v61, 0x%08x" % f2u(c1))
    k.e("v_mov_b32 v62, 0x%08x" % f2u(c2))
    k.e("v_mov_b32 v63, 0x%08x" % f2u(c2))
    k.e("v_mov_b32 v58, 1.0")
    k.e("v_mov_b32 v59, 1.0")
    k.e("v_lshlrev_b32 v5, 4, v6")
    k.e("v_add_u32 v5, %d, v5" % CSL)
    C0 = 176
    T = 208

    def csread(tt):
        cbb = C0 + (tt & 1) * 16
        for q in range(2):
            k.e("ds_read_b128 v[%d:%d], v5 offset:%d" % (cbb + 4 * q, cbb + 4 * q + 3, tt * 64 + q * 32))
            k.e("ds_read_b128 v[%d:%d], v5 offset:%d" % (cbb + 8 + 4 * q, cbb + 8 + 4 * q + 3, 448 + tt * 64 + q * 32))
    for t in range(7):
        cb = C0 + (t & 1) * 16
        if t == 0:
            csread(0)
            csread(1)
            k.e("s_waitcnt lgkmcnt(4)")
        elif t < 6:
            k.e("s_waitcnt lgkmcnt(4)")
        else:
            k.e("s_waitcnt lgkmcnt(0)")
        A = ACC + 16 * t
        for j in range(8):
            k.e("v_pk_mul_f32 v[%d:%d], v[%d:%d], v[52:53]" % (T + 2 * j, T + 2 * j + 1, cb + 2 * j, cb + 2 * j + 1))
        for j in range(8):
            k.e("v_pk_fma_f32 v[%d:%d], v[%d:%d], v[54:55], v[%d:%d]" % (A + 2 * j, A + 2 * j + 1, A + 2 * j, A + 2 * j + 1, T + 2 * j, T + 2 * j + 1))
        if t + 2 < 7:
            csread(t + 2)
        for j in range(4):
            k.e("v_pk_mul_f32 v[%d:%d], v[%d:%d], v[%d:%d]" % (T + 2 * j, T + 2 * j + 1, A + 2 * j, A + 2 * j + 1, A + 2 * j, A + 2 * j + 1))
        for j in range(4):
            k.e("v_pk_fma_f32 v[%d:%d], v[%d:%d], v[62:63], v[60:61]" % (T + 2 * j, T + 2 * j + 1, T + 2 * j, T + 2 * j + 1))
        for j in range(4):
            k.e("v_pk_mul_f32 v[%d:%d], v[%d:%d], v[%d:%d]" % (T + 2 * j, T + 2 * j + 1, T + 2 * j, T + 2 * j + 1, A + 2 * j, A + 2 * j + 1))
        for j in range(8):
            k.e("v_exp_f32 v%d, v%d" % (T + j, T + j))
        for j in range(4):
            k.e("v_pk_mul_f32 v[%d:%d], v[%d:%d], v[%d:%d]" % (A + 2 * j, A + 2 * j + 1, A + 2 * j, A + 2 * j + 1, A + 8 + 2 * j, A + 8 + 2 * j + 1))
        for j in range(4):
            k.e("v_pk_add_f32 v[%d:%d], v[%d:%d], v[58:59]" % (T + 2 * j, T + 2 * j + 1, T + 2 * j, T + 2 * j + 1))
        for j in range(8):
            k.e("v_rcp_f32 v%d, v%d" % (T + j, T + j))
        k.e("s_nop 0")
        for j in range(4):
            k.e("v_pk_mul_f32 v[%d:%d], v[%d:%d], v[%d:%d]" % (A + 2 * j, A + 2 * j + 1, A + 2 * j, A + 2 * j + 1, T + 2 * j, T + 2 * j + 1))
        for j in range(4):
            k.e("v_cvt_pk_bf16_f32 v%d, v%d, v%d" % (40 + 4 * (t & 1) + j, A + 2 * j, A + 2 * j + 1))
        k.e("buffer_store_dwordx4 v[%d:%d], v%d, s[76:79], 0 offen offset:%d%s" % (40 + 4 * (t & 1), 43 + 4 * (t & 1), 57 if t < 4 else 56, 1024 * (t & 3), HHPOL))
    k.stamp_store(4)
    k.lab(L_end)
    k.e("s_endpgm")
    return k, 244, (256, 512, SCR + 2048)


def main():
    kernels = [gen_k0(), gen_k1(), gen_k15(), gen_proj("k2_wo_kernel", "wo"), gen_k3(), gen_proj("k4_down_kernel", "down")]
    hdr = open(REF).read().split("\n")
    head = []
    for ln in hdr:
        if ln.startswith("; @launch"):
            break
        head.append(ln)
    out = list(head)
    for k, vg, (g, b, lds) in kernels:
        out.append("; @launch kernel=%s grid=(%d,1,1) block=(%d,1,1) lds=%d" % (k.name, g, b, lds))
    out.append('.amdgcn_target "amdgcn-amd-amdhsa--gfx950"')
    out.append(".text")
    descs = []
    for k, vg, _ in kernels:
        t, d = k.text(vg)
        out.append(t)
        descs.append(d)
    out.append('.section .rodata,"a"')
    for d in descs:
        out.append(".p2align 6")
        out.append(d)
    dst = "stamp.s" if STAMP else OUT
    open(dst, "w").write("\n".join(out) + "\n")
    print("wrote", dst, sum(len(k.lines) for k, _, _ in kernels), "lines")


if __name__ == "__main__":
    main()
```

```python
import os, math, struct

NAME = "sequential_preLN__linear_attn_block__glu_gated_geglu__prompt"
OUT = "cdna_kernels/%s.s" % NAME
REF = OUT + ".ref"

MB = 1 << 20
WS_XN = 0 * MB
WS_PQ = 4 * MB
WS_KVP = 8 * MB
WS_ZP = 10 * MB
WS_CS = 11 * MB
WS_CS2 = 11 * MB + 512 * 1024
WS_ST = 12 * MB
WS_O = 16 * MB
WS_H = 20 * MB
WS_HH = 24 * MB
WS_SIZE = 268435456

KA_X, KA_WQKV, KA_WO, KA_BX, KA_WG, KA_WU, KA_WD, KA_OUT, KA_DBG, KA_WS = [8 * i for i in range(10)]

STAMP = bool(os.environ.get("STAMP"))
WT = os.environ.get("WT", " sc1")
WS_STAMP = 128 * MB
f2u = lambda f: struct.unpack("<I", struct.pack("<f", f))[0]


class KB:
    def __init__(self, name):
        self.name = name
        self.lines = []
        self.nlab = 0
        self.nstamp = 0

    def stamp(self):
        if not STAMP:
            return
        i = self.nstamp
        self.nstamp += 1
        self.e("s_memtime s[%d:%d]" % (80 + 2 * i, 81 + 2 * i))
        if i == 0:
            self.e("s_memrealtime s[92:93]")
        self.e("s_waitcnt lgkmcnt(0)")

    def stamp_store(self, kidx):
        if not STAMP:
            return
        self.stamp()
        self.e("s_memrealtime s[94:95]")
        self.e("s_waitcnt lgkmcnt(0)")
        self.e("s_mov_b64 exec, -1")
        self.srd(76, 6, 1 << 20, WS_STAMP)
        self.e("s_lshl_b32 s98, s2, 8")
        self.e("s_lshl_b32 s97, s25, 5")
        self.e("s_add_u32 s98, s98, s97")
        self.e("s_add_u32 s98, s98, %d" % (kidx * 65536))
        self.e("v_mov_b32 v1, s98")
        for i in range(self.nstamp):
            self.e("v_mov_b32 v2, s%d" % (80 + 2 * i))
            self.e("buffer_store_dword v2, v1, s[76:79], 0 offen offset:%d" % (4 * i))
        for i, sr in enumerate((92, 94)):
            self.e("v_mov_b32 v2, s%d" % sr)
            self.e("buffer_store_dword v2, v1, s[76:79], 0 offen offset:%d" % (16 + 4 * i))

    def e(self, s):
        self.lines.append("    " + s)

    def lab(self, s):
        self.lines.append(s + ":")

    def newlab(self, s):
        self.nlab += 1
        return "L_%s_%s_%d" % (self.name, s, self.nlab)

    def srd(self, sd, sbase, nbytes, off=0):
        if off:
            self.e("s_add_u32 s%d, s%d, 0x%x" % (sd, sbase, off))
            self.e("s_addc_u32 s%d, s%d, 0" % (sd + 1, sbase + 1))
            self.e("s_and_b32 s%d, s%d, 0xffff" % (sd + 1, sd + 1))
        else:
            self.e("s_mov_b32 s%d, s%d" % (sd, sbase))
            self.e("s_and_b32 s%d, s%d, 0xffff" % (sd + 1, sbase + 1))
        self.e("s_mov_b32 s%d, 0x%x" % (sd + 2, nbytes))
        self.e("s_mov_b32 s%d, 0x00020000" % (sd + 3))

    def text(self, vgprs, sgprs=102):
        acc = (vgprs + 3) // 4 * 4
        out = [".globl %s" % self.name, ".p2align 8", ".type %s,@function" % self.name, "%s:" % self.name]
        out += self.lines
        return "\n".join(out), """.amdhsa_kernel %s
  .amdhsa_next_free_vgpr %d
  .amdhsa_next_free_sgpr %d
  .amdhsa_accum_offset %d
  .amdhsa_group_segment_fixed_size 0
  .amdhsa_kernarg_size 80
  .amdhsa_user_sgpr_count 2
  .amdhsa_user_sgpr_kernarg_segment_ptr 1
  .amdhsa_system_sgpr_workgroup_id_x 1
.end_amdhsa_kernel""" % (self.name, vgprs, sgprs, acc)


def wave_reduce_sum(k, v, stmp):
    k.e("s_nop 1")
    k.e("v_add_f32_dpp v%d, v%d, v%d quad_perm:[1,0,3,2] row_mask:0xf bank_mask:0xf" % (v, v, v))
    k.e("s_nop 1")
    k.e("v_add_f32_dpp v%d, v%d, v%d quad_perm:[2,3,0,1] row_mask:0xf bank_mask:0xf" % (v, v, v))
    k.e("s_nop 1")
    k.e("v_add_f32_dpp v%d, v%d, v%d row_half_mirror row_mask:0xf bank_mask:0xf" % (v, v, v))
    k.e("s_nop 1")
    k.e("v_add_f32_dpp v%d, v%d, v%d row_mirror row_mask:0xf bank_mask:0xf" % (v, v, v))
    k.e("s_nop 1")
    for i in range(4):
        k.e("v_readlane_b32 s%d, v%d, %d" % (stmp + i, v, 16 * i))
    k.e("s_nop 1")
    k.e("v_mov_b32 v%d, s%d" % (v, stmp))
    k.e("v_add_f32 v%d, s%d, v%d" % (v, stmp + 1, v))
    k.e("v_add_f32 v%d, s%d, v%d" % (v, stmp + 2, v))
    k.e("v_add_f32 v%d, s%d, v%d" % (v, stmp + 3, v))


def round_bf16(k, vd, vs):
    k.e("v_cvt_pk_bf16_f32 v%d, v%d, v%d" % (vd, vs, vs))
    k.e("v_lshlrev_b32 v%d, 16, v%d" % (vd, vd))


def pk(op, d, a, b, c=None):
    s = "%s v[%d:%d], v[%d:%d], v[%d:%d]" % (op, d, d + 1, a, a + 1, b, b + 1)
    if c is not None:
        s += ", v[%d:%d]" % (c, c + 1)
    return s


def wave_and_lane(k):
    k.e("v_lshrrev_b32 v1, 6, v0")
    k.e("v_and_b32 v2, 63, v0")
    k.e("s_nop 0")
    k.e("v_readfirstlane_b32 s25, v1")


def wfrag_lanepat(k, vd, vt, hh_stride):
    k.e("v_bfe_u32 v%d, v2, 2, 2" % vd)
    k.e("v_lshlrev_b32 v%d, 6, v%d" % (vd, vd))
    k.e("v_bfe_u32 v%d, v2, 4, 1" % vt)
    k.e("v_lshl_add_u32 v%d, v%d, 5, v%d" % (vd, vt, vd))
    k.e("v_and_b32 v%d, 3, v2" % vt)
    k.e("v_lshl_add_u32 v%d, v%d, 3, v%d" % (vd, vt, vd))
    k.e("v_lshrrev_b32 v%d, 5, v2" % vt)
    k.e("v_mul_u32_u24 v%d, %d, v%d" % (vt, hh_stride, vt))
    k.e("v_add_u32 v%d, v%d, v%d" % (vd, vd, vt))


def emit_colsum(k, L_end, sidx):
    k.e("s_cmp_ge_u32 s%d, 112" % sidx)
    k.e("s_cselect_b32 s28, s62, s60")
    k.e("s_cselect_b32 s29, s63, s61")
    k.e("s_cselect_b32 s30, 112, 0")
    k.e("s_cselect_b32 s38, %d, 0" % (3584 * 4))
    k.e("s_sub_u32 s31, s%d, s30" % sidx)
    k.e("s_mul_i32 s32, s31, 4682")
    k.e("s_lshr_b32 s32, s32, 16")
    k.e("s_mul_i32 s33, s32, 14")
    k.e("s_sub_u32 s33, s31, s33")
    k.srd(8, 28, 1024 * 3584 * 2)
    k.srd(12, 20, 8 * 2 * 3584 * 4, WS_CS)
    k.e("v_and_b32 v1, 31, v0")
    k.e("v_lshrrev_b32 v2, 5, v0")
    k.e("s_lshl_b32 s34, s33, 9")
    k.e("s_mul_i32 s35, s32, %d" % (128 * 7168))
    k.e("s_add_u32 s34, s34, s35")
    k.e("s_movk_i32 s35, 7168")
    k.e("v_mul_lo_u32 v3, v2, s35")
    k.e("v_lshl_add_u32 v3, v1, 4, v3")
    k.e("v_add_u32 v3, s34, v3")
    k.e("s_mov_b32 s34, 0")
    for it in range(16):
        k.e("buffer_load_dwordx4 v[%d:%d], v3, s[8:11], s34 offen" % (16 + 4 * it, 19 + 4 * it))
        if it != 15:
            k.e("s_add_u32 s34, s34, %d" % (8 * 7168))
    k.e("v_mov_b32 v4, 0xffff0000")
    for i in range(8):
        k.e("v_mov_b32 v%d, 0" % (8 + i))
    for it in range(16):
        k.e("s_waitcnt vmcnt(%d)" % (15 - it))
        for i in range(4):
            s_ = 16 + 4 * it + i
            k.e("v_lshlrev_b32 v5, 16, v%d" % s_)
            k.e("v_and_b32 v6, v4, v%d" % s_)
            k.e("v_add_f32 v%d, v%d, v5" % (8 + 2 * i, 8 + 2 * i))
            k.e("v_add_f32 v%d, v%d, v6" % (9 + 2 * i, 9 + 2 * i))
    k.e("v_lshlrev_b32 v5, 5, v0")
    k.e("ds_write_b128 v5, v[8:11]")
    k.e("ds_write_b128 v5, v[12:15] offset:16")
    k.e("s_waitcnt lgkmcnt(0)")
    k.e("s_barrier")
    k.e("v_lshlrev_b32 v5, 2, v0")
    for rg in range(8):
        k.e("ds_read_b32 v%d, v5 offset:%d" % (16 + rg, rg * 1024))
    k.e("s_waitcnt lgkmcnt(0)")
    for rg in range(1, 8):
        k.e("v_add_f32 v16, v16, v%d" % (16 + rg))
    k.e("s_mul_i32 s35, s32, %d" % (2 * 3584 * 4))
    k.e("s_add_u32 s35, s35, s38")
    k.e("s_lshl_b32 s36, s33, 10")
    k.e("s_add_u32 s35, s35, s36")
    k.e("v_add_u32 v5, s35, v5")
    k.e("buffer_store_dword v16, v5, s[12:15], 0 offen")
    k.e("s_branch %s" % L_end)


def gen_k0():
    k = KB("k0_ln_kernel")
    L_end = k.newlab("end")
    L_ln = k.newlab("ln")
    k.e("s_cmp_ge_u32 s2, 480")
    k.e("s_cbranch_scc1 %s" % L_end)
    k.e("s_load_dwordx4 s[4:7], s[0:1], %d" % KA_X)
    k.e("s_load_dwordx2 s[20:21], s[0:1], %d" % KA_WS)
    k.e("s_load_dwordx4 s[60:63], s[0:1], %d" % KA_WG)
    k.e("s_load_dwordx2 s[64:65], s[0:1], %d" % KA_WO)
    k.e("s_waitcnt lgkmcnt(0)")
    k.e("s_cmp_lt_u32 s2, 256")
    k.e("s_cbranch_scc1 %s" % L_ln)
    k.e("s_sub_u32 s3, s2, 256")
    emit_colsum(k, L_end, 3)
    k.lab(L_ln)
    k.srd(8, 4, 2048 * 1024 * 2)
    k.srd(12, 20, 2048 * 1024 * 2, WS_XN)
    k.srd(24, 6, 1024 * 3072 * 2)
    k.srd(28, 64, 1024 * 1024 * 2)
    k.e("v_lshrrev_b32 v62, 6, v0")
    k.e("v_and_b32 v2, 63, v0")
    k.e("s_lshl_b32 s3, s2, 3")
    k.e("v_lshlrev_b32 v3, 1, v62")
    k.e("v_add_u32 v3, s3, v3")
    k.e("v_lshlrev_b32 v3, 11, v3")
    k.e("v_lshl_add_u32 v1, v2, 4, v3")
    for r in range(2):
        k.e("buffer_load_dwordx4 v[%d:%d], v1, s[8:11], 0 offen offset:%d" % (4 + 8 * r, 7 + 8 * r, 2048 * r))
        k.e("buffer_load_dwordx4 v[%d:%d], v1, s[8:11], 0 offen offset:%d" % (8 + 8 * r, 11 + 8 * r, 2048 * r + 1024))
    k.e("v_lshrrev_b32 v61, 1, v3")
    k.e("v_mul_u32_u24 v3, 3, v61")
    k.e("v_lshl_add_u32 v3, v2, 7, v3")
    k.e("buffer_load_dword v64, v3, s[24:27], 0 offen")
    k.e("v_lshl_add_u32 v3, v2, 5, v61")
    k.e("buffer_load_dword v65, v3, s[28:31], 0 offen")
    k.e("v_mov_b32 v60, 0xffff0000")
    k.e("v_and_b32 v63, 7, v2")
    for r in range(2):
        k.e("s_waitcnt vmcnt(%d)" % (4 - 2 * r))
        src = 4 + 8 * r
        f = 24
        for i in range(8):
            k.e("v_lshlrev_b32 v%d, 16, v%d" % (f + 2 * i, src + i))
            k.e("v_and_b32 v%d, v60, v%d" % (f + 2 * i + 1, src + i))
        k.e("v_add_f32 v40, v%d, v%d" % (f, f + 1))
        for i in range(2, 16):
            k.e("v_add_f32 v40, v40, v%d" % (f + i))
        wave_reduce_sum(k, 40, 16)
        k.e("v_mul_f32 v40, 0x3a800000, v40")
        k.e("v_mov_b32 v41, 0")
        for i in range(16):
            k.e("v_sub_f32 v42, v%d, v40" % (f + i))
            k.e("v_fmac_f32 v41, v42, v42")
        wave_reduce_sum(k, 41, 16)
        k.e("v_mul_f32 v41, 0x3a800000, v41")
        round_bf16(k, 40, 40)
        round_bf16(k, 41, 41)
        k.e("v_add_f32 v41, 0x3727c5ac, v41")
        round_bf16(k, 41, 41)
        k.e("v_sqrt_f32 v41, v41")
        k.e("s_nop 0")
        round_bf16(k, 41, 41)
        k.e("v_rcp_f32 v41, v41")
        k.e("s_nop 0")
        for i in range(8):
            k.e("v_sub_f32 v42, v%d, v40" % (f + 2 * i))
            k.e("v_sub_f32 v43, v%d, v40" % (f + 2 * i + 1))
            k.e("v_cvt_pk_bf16_f32 v42, v42, v43")
            k.e("v_and_b32 v43, v60, v42")
            k.e("v_lshlrev_b32 v42, 16, v42")
            k.e("v_mul_f32 v42, v42, v41")
            k.e("v_mul_f32 v43, v43, v41")
            k.e("v_cvt_pk_bf16_f32 v%d, v42, v43" % (44 + 8 * r + i))
        k.e("v_lshl_add_u32 v42, v62, 1, %d" % r)
        k.e("v_xor_b32 v42, v42, v63")
        k.e("v_lshlrev_b32 v42, 4, v42")
        k.e("v_lshl_add_u32 v42, v2, 7, v42")
        k.e("ds_write_b128 v42, v[%d:%d]" % (44 + 8 * r, 47 + 8 * r))
        k.e("ds_write_b128 v42, v[%d:%d] offset:8192" % (48 + 8 * r, 51 + 8 * r))
    k.e("s_waitcnt lgkmcnt(0)")
    k.e("s_barrier")
    k.e("v_and_b32 v4, 7, v0")
    k.e("v_lshrrev_b32 v5, 3, v0")
    k.e("v_and_b32 v6, 7, v5")
    k.e("v_xor_b32 v6, v6, v4")
    k.e("v_lshlrev_b32 v6, 4, v6")
    k.e("v_lshl_add_u32 v6, v5, 7, v6")
    for i in range(4):
        k.e("ds_read_b128 v[%d:%d], v6 offset:%d" % (8 + 4 * i, 11 + 4 * i, 4096 * i))
    k.e("s_lshr_b32 s16, s2, 2")
    k.e("s_lshl_b32 s16, s16, 16")
    k.e("s_and_b32 s17, s2, 3")
    k.e("s_lshl_b32 s17, s17, 7")
    k.e("s_add_u32 s16, s16, s17")
    k.e("v_lshlrev_b32 v7, 9, v5")
    k.e("v_lshl_add_u32 v7, v4, 4, v7")
    k.e("v_add_u32 v7, s16, v7")
    k.e("s_mov_b32 s17, 0")
    for i in range(4):
        k.e("s_waitcnt lgkmcnt(%d)" % (3 - i))
        k.e("buffer_store_dwordx4 v[%d:%d], v7, s[12:15], s17 offen%s" % (8 + 4 * i, 11 + 4 * i, WT))
        k.e("s_add_u32 s17, s17, 16384")
    k.lab(L_end)
    k.e("s_endpgm")
    return k, 80, (480, 256, 16384)


class Spec:
    pass


def gemm_dma_issue(k, sp, i):
    srd, voff, soff, sl = sp.dma[i]
    if i in getattr(sp, "dma_abs", {}):
        k.e("s_and_b32 s95, s%d, s%d" % (sp.s_wr, sp.dma_abs[i]))
        k.e("s_add_u32 m0, s95, s%d" % sl)
    else:
        k.e("s_add_u32 m0, s%d, s%d" % (sp.s_wr, sl))
    k.e("s_nop 0")
    k.e("buffer_load_dwordx4 v%d, s[%d:%d], s%d offen lds" % (voff, srd, srd + 3, soff))


def gemm_dma_advance(k, sp):
    for s, inc in sp.sadv:
        if isinstance(inc, str):
            k.e("s_add_u32 s%d, s%d, %s" % (s, s, inc))
        else:
            k.e("s_add_u32 s%d, s%d, 0x%x" % (s, s, inc))
    k.e("s_add_u32 s%d, s%d, %d" % (sp.s_wr, sp.s_wr, sp.stage_bytes))
    k.e("s_cmp_ge_u32 s%d, %d" % (sp.s_wr, sp.stage_bytes * sp.NS))
    k.e("s_cselect_b32 s%d, 0, s%d" % (sp.s_wr, sp.s_wr))


def gemm_prologue(k, sp):
    k.stamp()
    k.e("s_mov_b32 s%d, 0" % sp.s_wr)
    k.e("s_mov_b32 s%d, 0" % sp.s_rd)
    for s in range(sp.NS - 1):
        for i in range(len(sp.dma)):
            gemm_dma_issue(k, sp, i)
        gemm_dma_advance(k, sp)


def gemm_main(k, sp):
    NS, nst, SB = sp.NS, sp.nst, sp.stage_bytes
    nd = len(sp.dma)
    nsteps = len(sp.steps)

    def addr_next():
        k.e("s_add_u32 s%d, s%d, %d" % (sp.s_rd, sp.s_rd, SB))
        k.e("s_cmp_ge_u32 s%d, %d" % (sp.s_rd, SB * NS))
        k.e("s_cselect_b32 s%d, 0, s%d" % (sp.s_rd, sp.s_rd))
        k.e("s_cselect_b32 s96, s97, %d" % SB)
        for vc in sp.addr:
            k.e("v_add_u32 v%d, s96, v%d" % (vc, vc))

    def read_instr(rd, base):
        op, reg, addr, imm = rd
        n = 4 if op == "ds_read_b128" else 2
        k.e("%s v[%d:%d], v%d offset:%d" % (op, base + reg, base + reg + n - 1, addr, imm))

    k.e("s_mov_b32 s97, %d" % (-(NS - 1) * SB))
    k.e("s_waitcnt vmcnt(%d)" % ((NS - 2) * nd))
    k.e("s_barrier")
    k.stamp()
    for rd in sp.steps[0]["reads"]:
        read_instr(rd, sp.fset[0])
    gstep = [0]

    def stage(do_dma, last, vm):
        k.e("s_waitcnt vmcnt(%d)" % vm)
        k.e("s_barrier")
        dma_todo = list(range(nd)) if do_dma else []
        for j, st in enumerate(sp.steps):
            cur = sp.fset[gstep[0] & 1]
            nxt = sp.fset[(gstep[0] + 1) & 1]
            lastj = (j == nsteps - 1)
            nreads = [] if (lastj and last) else sp.steps[(j + 1) % nsteps]["reads"]
            R = len(st["reads"])
            M = len(st["mfma"])
            issued = 0
            waited = -1
            if lastj and not last:
                addr_next()
            for i, (acc, a, b, dep) in enumerate(st["mfma"]):
                if dep > waited:
                    n = (R - 1 - dep) + issued
                    k.e("s_waitcnt lgkmcnt(%d)" % min(n, 15))
                    waited = dep
                k.e("v_mfma_f32_32x32x16_bf16 v[%d:%d], v[%d:%d], v[%d:%d], v[%d:%d]" % (
                    acc, acc + 15, cur + a, cur + a + 3, cur + b, cur + b + 3, acc, acc + 15))
                tgt = (len(nreads) * (i + 1) + M - 1) // M
                while issued < tgt:
                    read_instr(nreads[issued], nxt)
                    issued += 1
                if dma_todo:
                    per = (nd + M * nsteps - 1) // (M * nsteps)
                    for _ in range(max(per, 1)):
                        if dma_todo:
                            gemm_dma_issue(k, sp, dma_todo.pop(0))
                    if not dma_todo:
                        gemm_dma_advance(k, sp)
            gstep[0] += 1
        assert not dma_todo

    U = 1 if nsteps % 2 == 0 else 2
    nmain = nst - (NS - 1)
    nloop = (nmain // U) * U
    L = k.newlab("loop")
    if nloop > 0:
        k.e("s_mov_b32 s%d, %d" % (sp.s_cnt, nloop // U))
        k.lab(L)
        for u in range(U):
            stage(True, False, (NS - 3) * nd)
        k.e("s_sub_u32 s%d, s%d, 1" % (sp.s_cnt, sp.s_cnt))
        k.e("s_cmp_lg_u32 s%d, 0" % sp.s_cnt)
        k.e("s_cbranch_scc1 %s" % L)
    textra = 0
    for s in range(nloop, nst):
        do_dma = (s + NS - 1) < nst
        issued_upto = min(s + NS - 2, nst - 1)
        need = min(s + 1, nst - 1)
        vm = (issued_upto - need) * nd + textra
        stage(do_dma, s == nst - 1, min(vm, 63))
        if (not do_dma) and getattr(sp, "tail_hook", None) and textra == 0:
            textra = sp.tail_hook()
    k.stamp()


def phi16(k, A, T, dst, vmask, vc):
    for i in range(8):
        k.e("v_cvt_pk_bf16_f32 v%d, v%d, v%d" % (T + i, A + 2 * i, A + 2 * i + 1))
    for i in range(8):
        k.e("v_lshlrev_b32 v%d, 16, v%d" % (A + 2 * i, T + i))
        k.e("v_and_b32 v%d, v%d, v%d" % (A + 2 * i + 1, vmask, T + i))
    for i in range(8):
        k.e(pk("v_pk_mul_f32", T + 2 * i, A + 2 * i, vc))
    for i in range(16):
        k.e("v_min_f32 v%d, 0, v%d" % (T + i, T + i))
    for i in range(16):
        k.e("v_exp_f32 v%d, v%d" % (T + i, T + i))
    for i in range(16):
        k.e("v_max_f32 v%d, 0, v%d" % (A + i, A + i))
    for i in range(8):
        k.e(pk("v_pk_add_f32", T + 2 * i, T + 2 * i, vc + 2))
    for i in range(8):
        k.e(pk("v_pk_add_f32", A + 2 * i, A + 2 * i, T + 2 * i))
    for i in range(8):
        k.e("v_cvt_pk_bf16_f32 v%d, v%d, v%d" % (dst + i, A + 2 * i, A + 2 * i + 1))


def gen_k1():
    k = KB("k1_qkv_kernel")
    L_end = k.newlab("end")
    BK, NS = 64, 4
    XB = 16384
    WB = (BK // 4) * 6 * 256
    SB = XB + WB
    k.e("s_cmp_ge_u32 s2, 256")
    k.e("s_cbranch_scc1 %s" % L_end)
    k.e("s_load_dwordx2 s[4:5], s[0:1], %d" % KA_WQKV)
    k.e("s_load_dwordx2 s[6:7], s[0:1], %d" % KA_WS)
    k.e("s_and_b32 s20, s2, 7")
    k.e("s_lshr_b32 s21, s2, 3")
    k.e("s_and_b32 s22, s20, 3")
    k.e("s_lshl_b32 s22, s22, 2")
    k.e("s_and_b32 s23, s21, 3")
    k.e("s_add_u32 s22, s22, s23")
    k.e("s_lshr_b32 s23, s20, 2")
    k.e("s_lshl_b32 s23, s23, 3")
    k.e("s_lshr_b32 s24, s21, 2")
    k.e("s_add_u32 s23, s23, s24")
    wave_and_lane(k)
    k.e("s_lshr_b32 s26, s25, 2")
    k.e("s_bfe_u32 s27, s25, 0x10001")
    k.e("s_and_b32 s28, s25, 1")
    dma = []
    k.e("v_lshlrev_b32 v9, 4, v2")
    k.e("s_lshl_b32 s30, s23, 2")
    k.e("s_lshr_b32 s31, s25, 1")
    k.e("s_add_u32 s30, s30, s31")
    k.e("s_lshl_b32 s30, s30, 6")
    k.e("s_lshl_b32 s31, s28, 1")
    k.e("s_add_u32 s30, s30, s31")
    k.e("s_lshl_b32 s30, s30, 10")
    k.e("v_add_u32 v10, s30, v9")
    k.e("v_add_u32 v11, 1024, v10")
    for i in range(2):
        k.e("s_lshl_b32 s%d, s25, 11" % (40 + i))
        k.e("s_add_u32 s%d, s%d, %d" % (40 + i, 40 + i, 1024 * i))
        dma.append((8, 10 + i, 50, 40 + i))
    for i in range(3):
        k.e("s_mul_i32 s30, s25, 12")
        k.e("s_add_u32 s30, s30, %d" % (4 * i))
        k.e("v_lshrrev_b32 v3, 4, v2")
        k.e("v_add_u32 v3, s30, v3")
        k.e("v_mul_u32_u24 v4, 43, v3")
        k.e("v_lshrrev_b32 v4, 8, v4")
        k.e("v_mul_u32_u24 v5, 6, v4")
        k.e("v_sub_u32 v5, v3, v5")
        k.e("v_bfe_u32 v6, v2, 2, 2")
        k.e("v_lshl_add_u32 v6, v4, 2, v6")
        k.e("v_mul_u32_u24 v6, 6144, v6")
        k.e("v_lshrrev_b32 v7, 1, v5")
        k.e("v_lshl_add_u32 v6, v7, 11, v6")
        k.e("v_and_b32 v7, 1, v5")
        k.e("v_lshl_add_u32 v6, v7, 6, v6")
        k.e("v_and_b32 v7, 3, v2")
        k.e("v_lshl_add_u32 v6, v7, 4, v6")
        k.e("s_lshl_b32 s31, s22, 7")
        k.e("v_add_u32 v%d, s31, v6" % (12 + i))
        k.e("s_mul_i32 s%d, s25, 3072" % (42 + i))
        k.e("s_add_u32 s%d, s%d, %d" % (42 + i, 42 + i, XB + 1024 * i))
        dma.append((12, 12 + i, 51, 42 + i))
    k.e("s_mov_b32 s50, 0")
    k.e("s_mov_b32 s51, 0")
    k.e("s_waitcnt lgkmcnt(0)")
    k.srd(8, 6, 2048 * 1024 * 2, WS_XN)
    k.srd(12, 4, 1024 * 3072 * 2)
    sp = Spec()
    sp.NS, sp.nst, sp.stage_bytes = NS, 1024 // BK, SB
    sp.dma = dma
    sp.sadv = [(50, 4096), (51, BK * 6144)]
    sp.s_wr, sp.s_rd, sp.s_cnt = 52, 53, 54
    gemm_prologue(k, sp)
    for tl in range(2):
        k.e("s_xor_b32 s30, s26, %d" % tl)
        k.e("s_lshl_b32 s31, s27, 1")
        k.e("s_add_u32 s30, s30, s31")
        k.e("s_lshl_b32 s30, s30, 2")
        k.e("s_lshl_b32 s31, s26, 1")
        k.e("s_add_u32 s30, s30, s31")
        k.e("s_lshl_b32 s30, s30, 10")
        k.e("v_add_u32 v%d, s30, v9" % (16 + tl))
    wfrag_lanepat(k, 3, 4, 2 * 6 * 256)
    k.e("s_mul_i32 s30, s26, %d" % (8 * 6 * 256))
    k.e("s_lshl_b32 s31, s28, 8")
    k.e("s_add_u32 s30, s30, s31")
    k.e("s_add_u32 s30, s30, %d" % XB)
    k.e("v_add_u32 v18, s30, v3")
    ACC = 32
    for i in range(96):
        k.e("v_mov_b32 v%d, 0" % (ACC + i))
    F0, F1 = 128, 148
    steps = []
    for jj in range(2):
        reads = [("ds_read_b128", 0, 16, 1024 * jj)]
        for p in range(3):
            for i in range(2):
                reads.append(("ds_read_b64_tr_b16", 8 + 4 * p + 2 * i, 18, ((4 * jj + i) * 6 + 2 * p) * 256))
            if p == 0:
                reads.append(("ds_read_b128", 4, 17, 1024 * jj))
        mf = [(ACC + 0 * 16, 8, 0, 2), (ACC + 3 * 16, 8, 4, 3), (ACC + 1 * 16, 0, 12, 5),
              (ACC + 4 * 16, 4, 12, 5), (ACC + 2 * 16, 0, 16, 7), (ACC + 5 * 16, 4, 16, 7)]
        steps.append(dict(reads=reads, mfma=mf))
    sp.addr = [16, 17, 18]
    sp.steps = steps
    sp.fset = [F0, F1]
    gemm_main(k, sp)
    k.e("s_mul_i32 s30, s25, 12288")
    k.e("v_add_u32 v4, s30, v9")
    k.e("s_xor_b32 s31, s25, 4")
    k.e("s_mul_i32 s31, s31, 12288")
    k.e("v_add_u32 v5, s31, v9")
    k.e("v_mov_b32 v20, 0x3fb8aa3b")
    k.e("v_mov_b32 v21, 0x3fb8aa3b")
    k.e("v_mov_b32 v22, 0x358637bd")
    k.e("v_mov_b32 v23, 0x358637bd")
    k.e("v_mov_b32 v24, 0xffff0000")
    k.srd(16, 6, 2048 * 1024 * 2, WS_PQ)
    k.srd(60, 6, 16 * 32 * 4096, WS_KVP)
    k.srd(56, 6, 16 * 32 * 128, WS_ZP)
    k.e("s_barrier")
    for q in range(12):
        k.e("ds_write_b128 v4, v[%d:%d] offset:%d" % (ACC + 48 + 4 * q, ACC + 51 + 4 * q, 1024 * q))
    k.e("s_waitcnt lgkmcnt(0)")
    k.e("s_barrier")
    for q in range(12):
        k.e("ds_read_b128 v[%d:%d], v5 offset:%d" % (ACC + 48 + 4 * q, ACC + 51 + 4 * q, 1024 * q))
    PQ, PK, PV = 128, 136, 144
    T = 152
    for grp in (1, 2, 0):
        k.e("s_waitcnt lgkmcnt(%d)" % {1: 4, 2: 0, 0: 0}[grp])
        for q in range(4 * grp, 4 * grp + 4):
            for i in range(0, 4, 2):
                k.e(pk("v_pk_add_f32", ACC + 4 * q + i, ACC + 4 * q + i, ACC + 48 + 4 * q + i))
        if grp == 1:
            phi16(k, ACC + 16, T, PK, 24, 20)
        elif grp == 2:
            for i in range(8):
                k.e("v_cvt_pk_bf16_f32 v%d, v%d, v%d" % (PV + i, ACC + 32 + 2 * i, ACC + 33 + 2 * i))
            KV = ACC + 64
            k.e("s_nop 1")
            k.e("v_mfma_f32_32x32x16_bf16 v[%d:%d], v[%d:%d], v[%d:%d], 0" % (KV, KV + 15, PK, PK + 3, PV, PV + 3))
            k.e("v_mfma_f32_32x32x16_bf16 v[%d:%d], v[%d:%d], v[%d:%d], v[%d:%d]" % (KV, KV + 15, PK + 4, PK + 7, PV + 4, PV + 7, KV, KV + 15))
            for i in range(8):
                k.e("v_lshlrev_b32 v%d, 16, v%d" % (T + 2 * i, PK + i))
                k.e("v_and_b32 v%d, v24, v%d" % (T + 2 * i + 1, PK + i))
            for st_ in (8, 4, 2):
                for i in range(0, st_, 2):
                    k.e(pk("v_pk_add_f32", T + i, T + i, T + st_ + i))
            k.e("v_add_f32 v25, v%d, v%d" % (T, T + 1))
        else:
            phi16(k, ACC, T, PQ, 24, 20)
    k.e("s_lshl_b32 s30, s23, 2")
    k.e("s_lshl_b32 s31, s27, 1")
    k.e("s_add_u32 s30, s30, s31")
    k.e("s_add_u32 s30, s30, s26")
    k.e("s_lshl_b32 s30, s30, 6")
    k.e("s_lshl_b32 s31, s22, 1")
    k.e("s_add_u32 s31, s31, s28")
    k.e("s_lshl_b32 s32, s31, 1")
    k.e("s_add_u32 s30, s30, s32")
    k.e("s_lshl_b32 s30, s30, 10")
    k.e("v_add_u32 v3, s30, v9")
    k.e("buffer_store_dwordx4 v[%d:%d], v3, s[16:19], 0 offen%s" % (PQ, PQ + 3, WT))
    k.e("buffer_store_dwordx4 v[%d:%d], v3, s[16:19], 0 offen offset:1024%s" % (PQ + 4, PQ + 7, WT))
    KVL = 98304
    ZL = KVL + 32768
    k.e("s_lshl_b32 s30, s25, 12")
    k.e("s_add_u32 s30, s30, %d" % KVL)
    k.e("v_add_u32 v4, s30, v9")
    k.e("s_lshl_b32 s30, s25, 8")
    k.e("s_add_u32 s30, s30, %d" % ZL)
    k.e("v_lshlrev_b32 v5, 2, v2")
    k.e("v_add_u32 v5, s30, v5")
    k.e("ds_write_b32 v5, v25")
    for q in range(4):
        k.e("ds_write_b128 v4, v[%d:%d] offset:%d" % (KV + 4 * q, KV + 4 * q + 3, 1024 * q))
    k.e("s_lshr_b32 s30, s25, 1")
    k.e("s_lshl_b32 s31, s30, 10")
    k.e("s_lshl_b32 s32, s28, 12")
    k.e("s_add_u32 s31, s31, s32")
    k.e("s_add_u32 s31, s31, %d" % KVL)
    k.e("v_add_u32 v4, s31, v9")
    k.e("s_lshl_b32 s32, s28, 8")
    k.e("s_add_u32 s32, s32, %d" % ZL)
    k.e("v_and_b32 v6, 31, v2")
    k.e("v_lshlrev_b32 v6, 2, v6")
    k.e("v_add_u32 v6, s32, v6")
    k.e("s_waitcnt lgkmcnt(0)")
    k.e("s_barrier")
    for j in range(4):
        k.e("ds_read_b128 v[%d:%d], v4 offset:%d" % (ACC + 4 * j, ACC + 4 * j + 3, 8192 * j))
    for j in range(4):
        k.e("ds_read_b32 v%d, v6 offset:%d" % (ACC + 16 + 2 * j, 512 * j))
        k.e("ds_read_b32 v%d, v6 offset:%d" % (ACC + 17 + 2 * j, 512 * j + 128))
    k.e("s_lshl_b32 s33, s23, 5")
    k.e("s_lshl_b32 s34, s22, 1")
    k.e("s_add_u32 s33, s33, s34")
    k.e("s_add_u32 s33, s33, s28")
    k.e("s_lshl_b32 s34, s33, 12")
    k.e("s_lshl_b32 s35, s30, 10")
    k.e("s_add_u32 s34, s34, s35")
    k.e("v_add_u32 v4, s34, v9")
    k.e("s_waitcnt lgkmcnt(8)")
    for i in range(0, 4, 2):
        k.e(pk("v_pk_add_f32", ACC + i, ACC + i, ACC + 4 + i))
        k.e(pk("v_pk_add_f32", ACC + 8 + i, ACC + 8 + i, ACC + 12 + i))
        k.e(pk("v_pk_add_f32", ACC + i, ACC + i, ACC + 8 + i))
    k.e("buffer_store_dwordx4 v[%d:%d], v4, s[60:63], 0 offen%s" % (ACC, ACC + 3, WT))
    L_fin = k.newlab("fin")
    k.e("s_cmp_lg_u32 s30, 0")
    k.e("s_cbranch_scc1 %s" % L_fin)
    k.e("s_waitcnt lgkmcnt(0)")
    for i in range(1, 8):
        k.e("v_add_f32 v%d, v%d, v%d" % (ACC + 16, ACC + 16, ACC + 16 + i))
    k.e("v_cmp_gt_u32 vcc, 32, v2")
    k.e("s_and_saveexec_b64 s[36:37], vcc")
    k.e("s_lshl_b32 s34, s33, 7")
    k.e("v_lshlrev_b32 v6, 2, v2")
    k.e("v_add_u32 v6, s34, v6")
    k.e("buffer_store_dword v%d, v6, s[56:59], 0 offen%s" % (ACC + 16, WT))
    k.lab(L_fin)
    k.stamp_store(1)
    k.lab(L_end)
    k.e("s_endpgm")
    return k, 168, (256, 512, NS * SB)


def gen_k15():
    k = KB("k15_o_kernel")
    L_end = k.newlab("end")
    L_o = k.newlab("o")
    k.e("s_cmp_ge_u32 s2, 284")
    k.e("s_cbranch_scc1 %s" % L_end)
    k.e("s_load_dwordx2 s[6:7], s[0:1], %d" % KA_WS)
    k.e("s_cmp_lt_u32 s2, 256")
    k.e("s_cbranch_scc1 %s" % L_o)
    k.e("s_waitcnt lgkmcnt(0)")
    k.srd(8, 6, 8 * 2 * 3584 * 4, WS_CS)
    k.srd(12, 6, 2 * 3584 * 4, WS_CS2)
    k.e("s_sub_u32 s3, s2, 256")
    k.e("s_lshl_b32 s3, s3, 10")
    k.e("v_lshlrev_b32 v1, 2, v0")
    k.e("v_add_u32 v1, s3, v1")
    k.e("s_mov_b32 s16, 0")
    for i in range(8):
        k.e("buffer_load_dword v%d, v1, s[8:11], s16 offen" % (2 + i))
        k.e("s_add_u32 s16, s16, %d" % (2 * 3584 * 4))
    k.e("s_waitcnt vmcnt(0)")
    for i in range(1, 8):
        k.e("v_add_f32 v2, v2, v%d" % (2 + i))
    k.e("buffer_store_dword v2, v1, s[12:15], 0 offen")
    k.e("s_endpgm")
    k.lab(L_o)
    k.e("s_and_b32 s20, s2, 31")
    k.e("s_lshr_b32 s21, s2, 5")
    wave_and_lane(k)
    k.e("s_waitcnt lgkmcnt(0)")
    k.srd(8, 6, 2048 * 1024 * 2, WS_PQ)
    k.srd(12, 6, 16 * 32 * 4096, WS_KVP)
    k.srd(16, 6, 16 * 32 * 128, WS_ZP)
    k.srd(28, 6, 2048 * 1024 * 2, WS_O)
    k.e("v_lshlrev_b32 v6, 4, v2")
    k.e("s_lshl_b32 s23, s20, 12")
    k.e("s_lshl_b32 s24, s25, 10")
    k.e("s_add_u32 s23, s23, s24")
    k.e("v_add_u32 v7, s23, v6")
    k.e("s_mov_b32 s24, 0")
    for mb in range(16):
        k.e("buffer_load_dwordx4 v[%d:%d], v7, s[12:15], s24 offen" % (64 + 4 * mb, 67 + 4 * mb))
        if mb != 15:
            k.e("s_add_u32 s24, s24, %d" % (32 * 4096))
    k.e("s_lshl_b32 s23, s20, 7")
    k.e("v_and_b32 v8, 31, v2")
    k.e("v_lshlrev_b32 v8, 2, v8")
    k.e("v_add_u32 v8, s23, v8")
    k.e("v_lshrrev_b32 v9, 5, v2")
    k.e("v_lshl_add_u32 v8, v9, 15, v8")
    k.e("s_mov_b32 s24, 0")
    for mb in range(8):
        k.e("buffer_load_dword v%d, v8, s[16:19], s24 offen" % (128 + mb))
        if mb != 7:
            k.e("s_add_u32 s24, s24, 4096")
    k.e("s_lshl_b32 s22, s21, 3")
    k.e("s_lshl_b32 s23, s25, 1")
    k.e("s_add_u32 s22, s22, s23")
    k.e("s_lshl_b32 s22, s22, 6")
    k.e("s_lshl_b32 s23, s20, 1")
    k.e("s_add_u32 s22, s22, s23")
    k.e("s_lshl_b32 s22, s22, 10")
    k.e("v_add_u32 v3, s22, v6")
    k.e("v_add_u32 v5, 0x10000, v3")
    for t in range(2):
        for s in range(2):
            k.e("buffer_load_dwordx4 v[%d:%d], v%d, s[8:11], 0 offen offset:%d" % (16 + 8 * t + 4 * s, 19 + 8 * t + 4 * s, 3 + 2 * t, 1024 * s))
    k.e("s_waitcnt vmcnt(12)")
    for st_ in (32, 16, 8, 4):
        for i in range(0, st_, 2):
            k.e(pk("v_pk_add_f32", 64 + i, 64 + i, 64 + st_ + i))
    k.e("s_lshl_b32 s23, s25, 10")
    k.e("v_add_u32 v7, s23, v6")
    k.e("ds_write_b128 v7, v[64:67]")
    k.e("s_waitcnt vmcnt(4)")
    for st_ in (4, 2):
        for i in range(0, st_, 2):
            k.e(pk("v_pk_add_f32", 128 + i, 128 + i, 128 + st_ + i))
    k.e("v_add_f32 v128, v128, v129")
    k.e("v_mov_b32 v129, v128")
    k.e("s_nop 1")
    k.e("v_permlane32_swap_b32 v128, v129")
    k.e("s_nop 1")
    k.e("v_add_f32 v128, v128, v129")
    k.e("v_and_b32 v8, 31, v2")
    k.e("v_lshlrev_b32 v8, 2, v8")
    k.e("ds_write_b32 v8, v128 offset:4096")
    k.e("s_waitcnt lgkmcnt(0)")
    k.e("s_barrier")
    for q in range(4):
        k.e("ds_read_b128 v[%d:%d], v6 offset:%d" % (64 + 4 * q, 67 + 4 * q, 1024 * q))
    k.e("v_lshlrev_b32 v9, 4, v9")
    for q in range(4):
        k.e("ds_read_b128 v[%d:%d], v9 offset:%d" % (80 + 4 * q, 83 + 4 * q, 4096 + 32 * q))
    k.e("v_and_b32 v10, 27, v2")
    k.e("v_cmp_eq_u32 vcc, 0, v10")
    k.e("s_waitcnt lgkmcnt(4)")
    KVA, ZA = 96, 104
    for i in range(8):
        k.e("v_cvt_pk_bf16_f32 v%d, v%d, v%d" % (KVA + i, 64 + 2 * i, 65 + 2 * i))
    k.e("s_waitcnt lgkmcnt(0)")
    for i in range(8):
        k.e("v_cvt_pk_bf16_f32 v%d, v%d, v%d" % (ZA + i, 80 + 2 * i, 81 + 2 * i))
    for i in range(8):
        k.e("v_cndmask_b32 v%d, 0, v%d, vcc" % (ZA + i, ZA + i))
    k.e("s_waitcnt vmcnt(0)")
    k.e("s_nop 0")
    for t in range(2):
        N, D = 112 + 32 * t, 128 + 32 * t
        k.e("v_mfma_f32_32x32x16_bf16 v[%d:%d], v[%d:%d], v[%d:%d], 0" % (D, D + 15, ZA, ZA + 3, 16 + 8 * t, 19 + 8 * t))
        k.e("v_mfma_f32_32x32x16_bf16 v[%d:%d], v[%d:%d], v[%d:%d], v[%d:%d]" % (D, D + 15, ZA + 4, ZA + 7, 20 + 8 * t, 23 + 8 * t, D, D + 15))
        k.e("v_mfma_f32_32x32x16_bf16 v[%d:%d], v[%d:%d], v[%d:%d], 0" % (N, N + 15, KVA, KVA + 3, 16 + 8 * t, 19 + 8 * t))
        k.e("v_mfma_f32_32x32x16_bf16 v[%d:%d], v[%d:%d], v[%d:%d], v[%d:%d]" % (N, N + 15, KVA + 4, KVA + 7, 20 + 8 * t, 23 + 8 * t, N, N + 15))
    k.e("s_nop 7")
    for t in range(2):
        D = 128 + 32 * t
        round_bf16(k, 12 + 2 * t, D)
        k.e("v_add_f32 v%d, 0x358637bd, v%d" % (12 + 2 * t, 12 + 2 * t))
        round_bf16(k, 12 + 2 * t, 12 + 2 * t)
        k.e("v_rcp_f32 v%d, v%d" % (12 + 2 * t, 12 + 2 * t))
        k.e("s_nop 0")
        k.e("v_mov_b32 v%d, v%d" % (13 + 2 * t, 12 + 2 * t))
    k.e("s_nop 7")
    for t in range(2):
        N = 112 + 32 * t
        for i in range(8):
            k.e(pk("v_pk_mul_f32", N + 2 * i, N + 2 * i, 12 + 2 * t))
        for i in range(8):
            k.e("v_cvt_pk_bf16_f32 v%d, v%d, v%d" % (32 + 8 * t + i, N + 2 * i, N + 2 * i + 1))
        k.e("buffer_store_dwordx4 v[%d:%d], v%d, s[28:31], 0 offen%s" % (32 + 8 * t, 35 + 8 * t, 3 + 2 * t, WT))
        k.e("buffer_store_dwordx4 v[%d:%d], v%d, s[28:31], 0 offen offset:1024%s" % (36 + 8 * t, 39 + 8 * t, 3 + 2 * t, WT))
    k.lab(L_end)
    k.e("s_endpgm")
    return k, 176, (284, 256, 8192)


def gen_proj(name, mode):
    k = KB(name)
    L_end = k.newlab("end")
    BK, NS = 64, 6
    KD = 1024 if mode == "wo" else 3584
    NBLK = KD // 16
    XOFF = WS_O if mode == "wo" else WS_HH
    XB = 8192
    WB = (BK // 4) * 4 * 256
    SB = XB + WB
    k.e("s_cmp_ge_u32 s2, 256")
    k.e("s_cbranch_scc1 %s" % L_end)
    k.e("s_load_dwordx2 s[4:5], s[0:1], %d" % (KA_WO if mode == "wo" else KA_WD))
    k.e("s_load_dwordx2 s[6:7], s[0:1], %d" % KA_WS)
    k.e("s_load_dwordx2 s[60:61], s[0:1], %d" % (KA_X if mode == "wo" else KA_OUT))
    k.e("s_and_b32 s20, s2, 7")
    k.e("s_lshr_b32 s21, s2, 3")
    k.e("s_and_b32 s22, s20, 1")
    k.e("s_lshl_b32 s22, s22, 2")
    k.e("s_and_b32 s23, s21, 3")
    k.e("s_add_u32 s22, s22, s23")
    k.e("s_lshr_b32 s23, s20, 1")
    k.e("s_lshl_b32 s23, s23, 3")
    k.e("s_lshr_b32 s24, s21, 2")
    k.e("s_add_u32 s23, s23, s24")
    k.e("s_lshl_b32 s24, s23, 6")
    wave_and_lane(k)
    k.e("s_lshr_b32 s26, s25, 1")
    k.e("s_and_b32 s28, s25, 1")
    k.e("s_lshr_b32 s27, s26, 1")
    dma = []
    k.e("v_lshlrev_b32 v9, 4, v2")
    k.e("s_lshl_b32 s30, s23, 1")
    k.e("s_lshr_b32 s31, s25, 2")
    k.e("s_add_u32 s30, s30, s31")
    k.e("s_mul_i32 s30, s30, %d" % NBLK)
    k.e("s_and_b32 s31, s25, 3")
    k.e("s_add_u32 s30, s30, s31")
    k.e("s_lshl_b32 s30, s30, 10")
    k.e("v_add_u32 v10, s30, v9")
    k.e("s_lshl_b32 s40, s25, 10")
    dma.append((8, 10, 50, 40))
    for i in range(2):
        k.e("s_lshl_b32 s30, s25, 3")
        k.e("s_add_u32 s30, s30, %d" % (4 * i))
        k.e("v_bfe_u32 v6, v2, 2, 2")
        k.e("v_add_u32 v6, s30, v6")
        k.e("v_lshlrev_b32 v6, 11, v6")
        k.e("v_lshrrev_b32 v7, 4, v2")
        k.e("v_lshl_add_u32 v6, v7, 6, v6")
        k.e("v_and_b32 v7, 3, v2")
        k.e("v_lshl_add_u32 v6, v7, 4, v6")
        k.e("s_lshl_b32 s31, s22, 8")
        k.e("v_add_u32 v%d, s31, v6" % (12 + i))
        k.e("s_lshl_b32 s%d, s25, 11" % (42 + i))
        k.e("s_add_u32 s%d, s%d, %d" % (42 + i, 42 + i, XB + 1024 * i))
        dma.append((12, 12 + i, 51, 42 + i))
    k.e("s_mov_b32 s50, 0")
    k.e("s_mov_b32 s51, 0")
    k.e("s_waitcnt lgkmcnt(0)")
    k.srd(8, 6, 2048 * KD * 2, XOFF)
    k.srd(12, 4, KD * 1024 * 2)
    sp = Spec()
    sp.NS, sp.nst, sp.stage_bytes = NS, KD // BK, SB
    sp.dma = dma
    sp.sadv = [(50, 4096), (51, BK * 2048)]
    sp.s_wr, sp.s_rd, sp.s_cnt = 52, 53, 54
    gemm_prologue(k, sp)
    for tl in range(2):
        k.e("s_xor_b32 s30, s27, %d" % tl)
        k.e("s_lshl_b32 s30, s30, 2")
        k.e("s_add_u32 s30, s30, s26")
        k.e("s_lshl_b32 s30, s30, 10")
        k.e("v_add_u32 v%d, s30, v9" % (16 + tl))
    wfrag_lanepat(k, 3, 4, 1024)
    for nl in range(2):
        k.e("s_and_b32 s30, s26, 1")
        k.e("s_xor_b32 s30, s30, %d" % nl)
        k.e("s_lshl_b32 s31, s28, 1")
        k.e("s_add_u32 s30, s30, s31")
        k.e("s_lshl_b32 s30, s30, 8")
        k.e("s_lshl_b32 s31, s26, 12")
        k.e("s_add_u32 s30, s30, s31")
        k.e("s_add_u32 s30, s30, %d" % XB)
        k.e("v_add_u32 v%d, s30, v3" % (18 + nl))
    ACC = 64
    for i in range(64):
        k.e("v_mov_b32 v%d, 0" % (ACC + i))
    F0, F1 = 128, 144
    reads = [("ds_read_b128", 0, 16, 0),
             ("ds_read_b64_tr_b16", 8, 18, 0), ("ds_read_b64_tr_b16", 10, 18, 2048),
             ("ds_read_b64_tr_b16", 12, 19, 0), ("ds_read_b64_tr_b16", 14, 19, 2048),
             ("ds_read_b128", 4, 17, 0)]
    mf = [(ACC + 0, 8, 0, 2), (ACC + 16, 12, 0, 4), (ACC + 32, 8, 4, 5), (ACC + 48, 12, 4, 5)]
    sp.addr = [16, 17, 18, 19]
    sp.steps = [dict(reads=reads, mfma=mf)]
    sp.fset = [F0, F1]
    k.e("s_and_b32 s31, s26, 1")
    k.e("s_lshl_b32 s32, s28, 1")
    k.e("s_add_u32 s29, s31, s32")
    k.e("s_lshl_b32 s32, s22, 2")
    k.e("s_add_u32 s33, s29, s32")
    k.e("s_lshl_b32 s30, s23, 1")
    k.e("s_add_u32 s30, s30, s27")
    k.e("s_lshl_b32 s30, s30, 6")
    k.e("s_lshl_b32 s31, s33, 1")
    k.e("s_add_u32 s30, s30, s31")
    k.e("s_lshl_b32 s30, s30, 10")
    k.e("v_add_u32 v7, s30, v9")
    k.srd(16, 60, 2048 * 1024 * 2)
    k.srd(56, 6, 2048 * 1024 * 2, WS_H)

    def resid():
        if mode == "wo":
            k.e("s_lshl_b32 s30, s27, 5")
            k.e("s_add_u32 s30, s30, s24")
            k.e("v_and_b32 v3, 31, v2")
            k.e("v_add_u32 v3, s30, v3")
            k.e("v_lshlrev_b32 v6, 11, v3")
            k.e("s_lshl_b32 s32, s33, 6")
            k.e("v_add_u32 v6, s32, v6")
            k.e("v_lshrrev_b32 v5, 5, v2")
            k.e("v_lshl_add_u32 v6, v5, 3, v6")
            for q in range(4):
                k.e("buffer_load_dwordx2 v[%d:%d], v6, s[16:19], 0 offen offset:%d" % (32 + 2 * q, 33 + 2 * q, 16 * q))
            return 4
        else:
            for s in range(2):
                k.e("buffer_load_dwordx4 v[%d:%d], v7, s[56:59], 0 offen offset:%d" % (32 + 4 * s, 35 + 4 * s, 1024 * s))
            return 2
    sp.tail_hook = resid
    gemm_main(k, sp)
    for c in range(1, 4):
        k.e("s_xor_b32 s30, s26, %d" % c)
        k.e("s_lshl_b32 s34, s28, 2")
        k.e("s_add_u32 s30, s30, s34")
        k.e("s_mul_i32 s30, s30, 3")
        k.e("s_add_u32 s30, s30, %d" % (c - 1))
        k.e("s_lshl_b32 s30, s30, 12")
        k.e("v_add_u32 v%d, s30, v9" % (20 + c))
    k.e("s_lshl_b32 s34, s28, 2")
    k.e("s_add_u32 s30, s26, s34")
    k.e("s_mul_i32 s30, s30, 12288")
    k.e("v_add_u32 v20, s30, v9")
    k.e("v_mov_b32 v60, 0xffff0000")
    k.e("s_nop 4")
    k.e("s_barrier")
    for c in range(1, 4):
        for q in range(4):
            k.e("ds_write_b128 v%d, v[%d:%d] offset:%d" % (20 + c, ACC + 16 * c + 4 * q, ACC + 16 * c + 4 * q + 3, 1024 * q))
    k.e("s_waitcnt lgkmcnt(0)")
    k.e("s_barrier")
    for c in range(3):
        for q in range(4):
            k.e("ds_read_b128 v[%d:%d], v20 offset:%d" % (ACC + 16 + 16 * c + 4 * q, ACC + 16 + 16 * c + 4 * q + 3, 4096 * c + 1024 * q))
    k.e("s_waitcnt lgkmcnt(8)")
    for i in range(0, 16, 2):
        k.e(pk("v_pk_add_f32", ACC + i, ACC + i, ACC + 16 + i))
    k.e("s_waitcnt lgkmcnt(0)")
    for i in range(0, 16, 2):
        k.e(pk("v_pk_add_f32", ACC + 32 + i, ACC + 32 + i, ACC + 48 + i))
    for i in range(0, 16, 2):
        k.e(pk("v_pk_add_f32", ACC + i, ACC + i, ACC + 32 + i))
    k.e("s_waitcnt vmcnt(0)")
    T = ACC + 16
    R = ACC + 32
    for i in range(8):
        k.e("v_cvt_pk_bf16_f32 v%d, v%d, v%d" % (40 + i, ACC + 2 * i, ACC + 2 * i + 1))
    for i in range(8):
        k.e("v_lshlrev_b32 v%d, 16, v%d" % (T + 2 * i, 40 + i))
        k.e("v_and_b32 v%d, v60, v%d" % (T + 2 * i + 1, 40 + i))
        k.e("v_lshlrev_b32 v%d, 16, v%d" % (R + 2 * i, 32 + i))
        k.e("v_and_b32 v%d, v60, v%d" % (R + 2 * i + 1, 32 + i))
    for i in range(8):
        k.e(pk("v_pk_add_f32", T + 2 * i, T + 2 * i, R + 2 * i))
    for i in range(8):
        k.e("v_cvt_pk_bf16_f32 v%d, v%d, v%d" % (48 + i, T + 2 * i, T + 2 * i + 1))
    EX = 98304
    if mode == "wo":
        for s in range(2):
            k.e("buffer_store_dwordx4 v[%d:%d], v7, s[56:59], 0 offen offset:%d%s" % (48 + 4 * s, 51 + 4 * s, 1024 * s, WT))
        for i in range(8):
            k.e("v_lshlrev_b32 v%d, 16, v%d" % (T + 2 * i, 48 + i))
            k.e("v_and_b32 v%d, v60, v%d" % (T + 2 * i + 1, 48 + i))
        for i in range(8):
            k.e(pk("v_pk_mul_f32", R + 2 * i, T + 2 * i, T + 2 * i))
        for st_ in (8, 4, 2):
            for i in range(0, st_, 2):
                k.e(pk("v_pk_add_f32", T + i, T + i, T + st_ + i))
                k.e(pk("v_pk_add_f32", R + i, R + i, R + st_ + i))
        k.e("v_add_f32 v44, v%d, v%d" % (T, T + 1))
        k.e("v_add_f32 v45, v%d, v%d" % (R, R + 1))
        k.e("v_mov_b32 v46, v44")
        k.e("v_mov_b32 v47, v45")
        k.e("s_nop 1")
        k.e("v_permlane32_swap_b32 v44, v46")
        k.e("v_permlane32_swap_b32 v45, v47")
        k.e("s_nop 1")
        k.e("v_add_f32 v44, v44, v46")
        k.e("v_add_f32 v45, v45, v47")
        k.e("s_lshl_b32 s30, s27, 2")
        k.e("s_add_u32 s30, s30, s29")
        k.e("s_lshl_b32 s30, s30, 8")
        k.e("s_add_u32 s30, s30, %d" % EX)
        k.e("v_and_b32 v3, 31, v2")
        k.e("v_lshlrev_b32 v3, 3, v3")
        k.e("v_add_u32 v4, s30, v3")
        k.e("ds_write_b64 v4, v[44:45]")
        k.srd(16, 6, 8 * 2048 * 8, WS_ST)
        k.e("s_waitcnt lgkmcnt(0)")
        k.e("s_barrier")
        L_fin = k.newlab("fin")
        k.e("s_cmp_ge_u32 s25, 2")
        k.e("s_cbranch_scc1 %s" % L_fin)
        k.e("s_lshl_b32 s30, s25, 10")
        k.e("s_add_u32 s30, s30, %d" % EX)
        k.e("v_add_u32 v4, s30, v3")
        for j in range(4):
            k.e("ds_read_b64 v[%d:%d], v4 offset:%d" % (44 + 2 * j, 45 + 2 * j, 256 * j))
        k.e("s_lshl_b32 s30, s22, 14")
        k.e("s_lshl_b32 s31, s25, 5")
        k.e("s_add_u32 s31, s31, s24")
        k.e("s_lshl_b32 s31, s31, 3")
        k.e("s_add_u32 s30, s30, s31")
        k.e("v_add_u32 v3, s30, v3")
        k.e("s_waitcnt lgkmcnt(0)")
        k.e(pk("v_pk_add_f32", 44, 44, 46))
        k.e(pk("v_pk_add_f32", 48, 48, 50))
        k.e(pk("v_pk_add_f32", 44, 44, 48))
        k.e("v_cmp_gt_u32 vcc, 32, v2")
        k.e("s_and_saveexec_b64 s[36:37], vcc")
        k.e("buffer_store_dwordx2 v[44:45], v3, s[16:19], 0 offen%s" % WT)
        k.lab(L_fin)
    else:
        k.e("s_lshl_b32 s30, s27, 5")
        k.e("v_and_b32 v3, 31, v2")
        k.e("v_add_u32 v3, s30, v3")
        k.e("v_mul_u32_u24 v3, 272, v3")
        k.e("v_lshrrev_b32 v5, 5, v2")
        k.e("v_lshl_add_u32 v3, v5, 3, v3")
        k.e("s_lshl_b32 s30, s29, 6")
        k.e("s_add_u32 s30, s30, %d" % EX)
        k.e("v_add_u32 v3, s30, v3")
        for q in range(4):
            k.e("ds_write_b64 v3, v[%d:%d] offset:%d" % (48 + 2 * q, 49 + 2 * q, 16 * q))
        k.e("v_lshrrev_b32 v4, 4, v2")
        k.e("s_lshl_b32 s30, s25, 3")
        k.e("v_add_u32 v4, s30, v4")
        k.e("v_and_b32 v5, 15, v2")
        k.e("v_mul_u32_u24 v6, 272, v4")
        k.e("v_lshl_add_u32 v6, v5, 4, v6")
        k.e("v_add_u32 v6, %d, v6" % EX)
        k.e("v_add_u32 v4, s24, v4")
        k.e("v_lshlrev_b32 v4, 11, v4")
        k.e("v_lshl_add_u32 v4, v5, 4, v4")
        k.e("s_lshl_b32 s30, s22, 8")
        k.e("v_add_u32 v4, s30, v4")
        k.e("v_add_u32 v5, 8192, v4")
        k.e("s_waitcnt lgkmcnt(0)")
        k.e("s_barrier")
        k.e("ds_read_b128 v[32:35], v6")
        k.e("ds_read_b128 v[36:39], v6 offset:1088")
        k.e("s_waitcnt lgkmcnt(1)")
        k.e("buffer_store_dwordx4 v[32:35], v4, s[16:19], 0 offen%s" % WT)
        k.e("s_waitcnt lgkmcnt(0)")
        k.e("buffer_store_dwordx4 v[36:39], v5, s[16:19], 0 offen%s" % WT)
    k.stamp_store(3 if mode == "wo" else 5)
    k.lab(L_end)
    k.e("s_endpgm")
    return k, 160, (256, 512, NS * SB)


def gen_k3():
    k = KB("k3_glu_kernel")
    L_end = k.newlab("end")
    BK, NS = 32, 5
    XB = 16384
    GB = (BK // 4) * 7 * 128
    UOFF = XB + GB + 128
    SB = XB + 14592
    CSL = NS * SB
    SCR = CSL + 1024
    k.e("s_cmp_ge_u32 s2, 256")
    k.e("s_cbranch_scc1 %s" % L_end)
    k.e("s_load_dwordx4 s[60:63], s[0:1], %d" % KA_WG)
    k.e("s_load_dwordx2 s[6:7], s[0:1], %d" % KA_WS)
    k.e("s_load_dwordx2 s[70:71], s[0:1], %d" % KA_WD)
    k.e("s_and_b32 s20, s2, 7")
    k.e("s_lshr_b32 s21, s2, 3")
    k.e("s_lshr_b32 s23, s20, 2")
    k.e("s_lshl_b32 s23, s23, 2")
    k.e("s_and_b32 s24, s21, 3")
    k.e("s_add_u32 s23, s23, s24")
    k.e("s_and_b32 s22, s20, 3")
    k.e("s_lshl_b32 s22, s22, 3")
    k.e("s_lshr_b32 s24, s21, 2")
    k.e("s_add_u32 s22, s22, s24")
    k.e("s_lshl_b32 s24, s23, 8")
    wave_and_lane(k)
    dma = []
    k.e("v_lshlrev_b32 v9, 4, v2")
    k.e("s_lshl_b32 s29, s23, 3")
    k.e("s_add_u32 s29, s29, s25")
    k.e("s_lshl_b32 s30, s29, 16")
    k.e("v_add_u32 v10, s30, v9")
    k.e("v_add_u32 v11, 1024, v10")
    for i in range(2):
        k.e("s_lshl_b32 s%d, s25, 11" % (40 + i))
        k.e("s_add_u32 s%d, s%d, %d" % (40 + i, 40 + i, 1024 * i))
        dma.append((8, 10 + i, 50, 40 + i))
    k.e("s_lshl_b32 s31, s25, 3")
    k.e("v_lshrrev_b32 v3, 3, v2")
    k.e("v_add_u32 v3, s31, v3")
    k.e("v_mul_u32_u24 v4, 37, v3")
    k.e("v_lshrrev_b32 v4, 8, v4")
    k.e("v_mul_u32_u24 v5, 7, v4")
    k.e("v_sub_u32 v5, v3, v5")
    k.e("v_bfe_u32 v6, v2, 1, 2")
    k.e("v_lshl_add_u32 v6, v4, 2, v6")
    k.e("v_mul_u32_u24 v6, 7168, v6")
    k.e("v_lshl_add_u32 v6, v5, 5, v6")
    k.e("v_and_b32 v7, 1, v2")
    k.e("v_lshl_add_u32 v6, v7, 4, v6")
    k.e("s_mul_i32 s31, s22, 224")
    k.e("v_add_u32 v12, s31, v6")
    k.e("s_mul_i32 s31, s2, 28672")
    k.e("v_add_u32 v7, s31, v9")
    k.e("s_lshl_b32 s42, s25, 10")
    k.e("s_add_u32 s43, s42, %d" % UOFF)
    k.e("s_add_u32 s42, s42, %d" % XB)
    k.e("s_mov_b32 s56, %d" % (BK * 7168))
    k.e("s_cmp_eq_u32 s25, 7")
    k.e("s_cselect_b32 s56, 896, s56")
    k.e("s_cselect_b32 s57, 0, -1")
    k.e("s_cselect_b32 s42, %d, s42" % SCR)
    k.e("s_cselect_b32 s43, %d, s43" % (SCR + 1024))
    k.e("s_cselect_b64 vcc, -1, 0")
    k.e("s_nop 1")
    k.e("v_cndmask_b32 v12, v12, v7, vcc")
    dma.append((12, 12, 51, 42))
    dma.append((16, 12, 51, 43))
    k.e("s_mov_b32 s50, 0")
    k.e("s_mov_b32 s51, 0")
    k.e("s_waitcnt lgkmcnt(0)")
    k.srd(8, 6, 2048 * 1024 * 2, WS_H)
    k.e("s_cmp_eq_u32 s25, 7")
    k.e("s_cselect_b32 s72, s70, s60")
    k.e("s_cselect_b32 s73, s71, s61")
    k.e("s_cselect_b32 s74, s70, s62")
    k.e("s_cselect_b32 s75, s71, s63")
    k.srd(12, 72, 1024 * 3584 * 2)
    k.srd(16, 74, 1024 * 3584 * 2)
    sp = Spec()
    sp.NS, sp.nst, sp.stage_bytes = NS, 1024 // BK, SB
    sp.dma = dma
    sp.dma_abs = {2: 57, 3: 57}
    sp.sadv = [(50, 2048), (51, "s56")]
    sp.s_wr, sp.s_rd, sp.s_cnt = 52, 53, 54
    gemm_prologue(k, sp)
    k.e("s_lshl_b32 s30, s25, 11")
    k.e("v_add_u32 v14, s30, v9")
    k.e("v_bfe_u32 v3, v2, 2, 2")
    k.e("v_lshlrev_b32 v3, 5, v3")
    k.e("v_and_b32 v4, 3, v2")
    k.e("v_lshl_add_u32 v3, v4, 3, v3")
    k.e("v_lshrrev_b32 v4, 5, v2")
    k.e("v_mul_u32_u24 v4, %d, v4" % (7 * 128))
    k.e("v_add_u32 v3, v3, v4")
    k.e("v_bfe_u32 v4, v2, 4, 1")
    k.e("v_mul_u32_u24 v4, %d, v4" % (UOFF - XB))
    k.e("v_add_u32 v3, v3, v4")
    k.e("v_add_u32 v16, %d, v3" % XB)
    ACC = 64
    for i in range(112):
        k.e("v_mov_b32 v%d, 0" % (ACC + i))
    F0, F1 = 176, 208
    steps = []
    for jj in range(2):
        reads = [("ds_read_b128", 0, 14, 1024 * jj)]
        mf = []
        for t in range(7):
            for i in range(2):
                reads.append(("ds_read_b64_tr_b16", 4 + 4 * t + 2 * i, 16, ((4 * jj + 2 * i) * 7 + t) * 128))
            mf.append((ACC + 16 * t, 4 + 4 * t, 0, 2 * t + 2))
        steps.append(dict(reads=reads, mfma=mf))
    sp.addr = [14, 16]
    sp.steps = steps
    sp.fset = [F0, F1]
    k.srd(64, 6, 8 * 2048 * 8, WS_ST)
    k.srd(76, 6, 2048 * 3584 * 2, WS_HH)
    k.srd(68, 6, 2 * 3584 * 4, WS_CS2)
    S0 = 24

    def early():
        k.e("s_lshl_b32 s30, s25, 5")
        k.e("s_add_u32 s30, s30, s24")
        k.e("v_and_b32 v3, 31, v2")
        k.e("v_add_u32 v3, s30, v3")
        k.e("v_lshlrev_b32 v4, 3, v3")
        k.e("v_lshrrev_b32 v5, 5, v2")
        k.e("v_lshl_add_u32 v4, v5, 16, v4")
        k.e("s_mov_b32 s31, 0")
        for i in range(4):
            k.e("buffer_load_dwordx2 v[%d:%d], v4, s[64:67], s31 offen" % (S0 + 2 * i, S0 + 2 * i + 1))
            k.e("s_add_u32 s31, s31, 16384")
        k.e("v_cmp_gt_u32 vcc, 28, v2")
        k.e("v_subrev_u32 v6, 28, v2")
        k.e("v_cndmask_b32 v6, v6, v2, vcc")
        k.e("v_lshlrev_b32 v6, 4, v6")
        k.e("v_mov_b32 v7, %d" % (3584 * 4))
        k.e("v_mov_b32 v8, 0")
        k.e("v_cndmask_b32 v7, v7, v8, vcc")
        k.e("v_add_u32 v6, v6, v7")
        k.e("s_mul_i32 s31, s22, 448")
        k.e("v_add_u32 v6, s31, v6")
        k.e("buffer_load_dwordx4 v[32:35], v6, s[68:71], 0 offen")
        return 5
    sp.tail_hook = early
    gemm_main(k, sp)
    k.e("s_waitcnt vmcnt(0)")
    k.e("v_add_u32 v6, %d, v9" % CSL)
    k.e("v_cmp_gt_u32 vcc, 56, v2")
    k.e("s_and_saveexec_b64 s[36:37], vcc")
    k.e("ds_write_b128 v6, v[32:35]")
    k.e("s_mov_b64 exec, s[36:37]")
    k.e(pk("v_pk_add_f32", S0, S0, S0 + 2))
    k.e(pk("v_pk_add_f32", S0 + 4, S0 + 4, S0 + 6))
    k.e(pk("v_pk_add_f32", S0, S0, S0 + 4))
    k.e("v_mov_b32 v8, v%d" % S0)
    k.e("v_mov_b32 v7, v%d" % (S0 + 1))
    k.e("v_mov_b32 v6, v8")
    k.e("v_mov_b32 v10, v7")
    k.e("s_nop 1")
    k.e("v_permlane32_swap_b32 v8, v6")
    k.e("v_permlane32_swap_b32 v7, v10")
    k.e("s_nop 1")
    k.e("v_add_f32 v8, v8, v6")
    k.e("v_add_f32 v7, v7, v10")
    k.e("s_waitcnt lgkmcnt(0)")
    k.e("s_barrier")
    k.e("v_lshrrev_b32 v6, 5, v2")
    k.e("v_lshlrev_b32 v5, 4, v6")
    k.e("v_add_u32 v5, %d, v5" % CSL)
    C0 = 176
    T = 208

    def csread(tt):
        cbb = C0 + (tt & 1) * 16
        for q in range(2):
            k.e("ds_read_b128 v[%d:%d], v5 offset:%d" % (cbb + 4 * q, cbb + 4 * q + 3, tt * 64 + q * 32))
            k.e("ds_read_b128 v[%d:%d], v5 offset:%d" % (cbb + 8 + 4 * q, cbb + 8 + 4 * q + 3, 448 + tt * 64 + q * 32))
    csread(0)
    csread(1)
    k.e("v_mul_f32 v8, 0x3a800000, v8")
    k.e("v_mul_f32 v7, 0x3a800000, v7")
    k.e("v_fma_f32 v7, -v8, v8, v7")
    k.e("v_max_f32 v7, 0, v7")
    round_bf16(k, 8, 8)
    round_bf16(k, 7, 7)
    k.e("v_add_f32 v7, 0x3727c5ac, v7")
    round_bf16(k, 7, 7)
    k.e("v_sqrt_f32 v7, v7")
    k.e("s_nop 0")
    round_bf16(k, 7, 7)
    k.e("v_rcp_f32 v54, v7")
    k.e("s_nop 0")
    k.e("v_mov_b32 v55, v54")
    k.e("v_mul_f32 v8, v8, v54")
    k.e("v_sub_f32 v52, 0, v8")
    k.e("v_mov_b32 v53, v52")
    k.e("s_mul_i32 s31, s29, 224")
    k.e("s_mul_i32 s30, s22, 7")
    k.e("s_add_u32 s31, s31, s30")
    k.e("s_lshl_b32 s31, s31, 10")
    k.e("v_add_u32 v57, s31, v9")
    k.e("v_add_u32 v56, 4096, v57")
    c1 = -2.0 * math.log2(math.e) * math.sqrt(2.0 / math.pi)
    c2 = c1 * 0.044715
    k.e("v_mov_b32 v60, 0x%08x" % f2u(c1))
    k.e("v_mov_b32 v61, 0x%08x" % f2u(c1))
    k.e("v_mov_b32 v62, 0x%08x" % f2u(c2))
    k.e("v_mov_b32 v63, 0x%08x" % f2u(c2))
    k.e("v_mov_b32 v58, 1.0")
    k.e("v_mov_b32 v59, 1.0")
    for t in range(7):
        cb = C0 + (t & 1) * 16
        k.e("s_waitcnt lgkmcnt(%d)" % (4 if t < 6 else 0))
        A = ACC + 16 * t
        for j in range(8):
            k.e(pk("v_pk_mul_f32", T + 2 * j, cb + 2 * j, 52))
        for j in range(8):
            k.e(pk("v_pk_fma_f32", A + 2 * j, A + 2 * j, 54, T + 2 * j))
        if t + 2 < 7:
            csread(t + 2)
        for j in range(4):
            k.e(pk("v_pk_mul_f32", T + 2 * j, A + 2 * j, A + 2 * j))
        for j in range(4):
            k.e(pk("v_pk_fma_f32", T + 2 * j, T + 2 * j, 62, 60))
        for j in range(4):
            k.e(pk("v_pk_mul_f32", T + 2 * j, T + 2 * j, A + 2 * j))
        for j in range(8):
            k.e("v_exp_f32 v%d, v%d" % (T + j, T + j))
        for j in range(4):
            k.e(pk("v_pk_mul_f32", A + 2 * j, A + 2 * j, A + 8 + 2 * j))
        for j in range(4):
            k.e(pk("v_pk_add_f32", T + 2 * j, T + 2 * j, 58))
        for j in range(8):
            k.e("v_rcp_f32 v%d, v%d" % (T + j, T + j))
        k.e("s_nop 0")
        for j in range(4):
            k.e(pk("v_pk_mul_f32", A + 2 * j, A + 2 * j, T + 2 * j))
        for j in range(4):
            k.e("v_cvt_pk_bf16_f32 v%d, v%d, v%d" % (40 + 4 * (t & 1) + j, A + 2 * j, A + 2 * j + 1))
        k.e("buffer_store_dwordx4 v[%d:%d], v%d, s[76:79], 0 offen offset:%d%s" % (40 + 4 * (t & 1), 43 + 4 * (t & 1), 57 if t < 4 else 56, 1024 * (t & 3), WT))
    k.stamp_store(4)
    k.lab(L_end)
    k.e("s_endpgm")
    return k, 240, (256, 512, SCR + 2048)


def main():
    kernels = [gen_k0(), gen_k1(), gen_k15(), gen_proj("k2_wo_kernel", "wo"), gen_k3(), gen_proj("k4_down_kernel", "down")]
    hdr = open(REF).read().split("\n")
    out = []
    for ln in hdr:
        if ln.startswith("; @launch"):
            break
        out.append(ln)
    for k, vg, (g, b, lds) in kernels:
        out.append("; @launch kernel=%s grid=(%d,1,1) block=(%d,1,1) lds=%d" % (k.name, g, b, lds))
    out.append('.amdgcn_target "amdgcn-amd-amdhsa--gfx950"')
    out.append(".text")
    descs = []
    for k, vg, _ in kernels:
        t, d = k.text(vg)
        out.append(t)
        descs.append(d)
    out.append('.section .rodata,"a"')
    for d in descs:
        out.append(".p2align 6")
        out.append(d)
    dst = os.environ.get("DST", "stamp.s" if STAMP else OUT)
    open(dst, "w").write("\n".join(out) + "\n")
    print("wrote", dst, sum(len(k.lines) for k, _, _ in kernels), "lines")


if __name__ == "__main__":
    main()
```

```python
import os, math, struct

NAME = "sequential_preLN__linear_attn_block__glu_gated_geglu__prompt"
OUT = "cdna_kernels/%s.s" % NAME
REF = OUT + ".ref"

MB = 1 << 20
WS_XN = 0 * MB
WS_PQ = 4 * MB
WS_KVP = 8 * MB
WS_ZP = 10 * MB
WS_CS = 11 * MB
WS_CS2 = 11 * MB + 512 * 1024
WS_ST = 12 * MB
WS_O = 16 * MB
WS_H = 20 * MB
WS_HH = 24 * MB
WS_FLAG = 13 * MB
WS_SIZE = 268435456

KA_X, KA_WQKV, KA_WO, KA_BX, KA_WG, KA_WU, KA_WD, KA_OUT, KA_DBG, KA_WS = [8 * i for i in range(10)]

STAMP = bool(os.environ.get("STAMP"))
WT = os.environ.get("WT", " sc1")
WS_STAMP = 128 * MB
f2u = lambda f: struct.unpack("<I", struct.pack("<f", f))[0]


class KB:
    def __init__(self, name):
        self.name = name
        self.lines = []
        self.nlab = 0
        self.nstamp = 0

    def stamp(self):
        if not STAMP:
            return
        i = self.nstamp
        self.nstamp += 1
        self.e("s_memtime s[%d:%d]" % (80 + 2 * i, 81 + 2 * i))
        if i == 0:
            self.e("s_memrealtime s[92:93]")
        self.e("s_waitcnt lgkmcnt(0)")

    def stamp_store(self, kidx):
        if not STAMP:
            return
        self.stamp()
        self.e("s_memrealtime s[94:95]")
        self.e("s_waitcnt lgkmcnt(0)")
        self.e("s_mov_b64 exec, -1")
        self.srd(76, 6, 1 << 20, WS_STAMP)
        self.e("s_lshl_b32 s98, s2, 8")
        self.e("s_lshl_b32 s97, s25, 5")
        self.e("s_add_u32 s98, s98, s97")
        self.e("s_add_u32 s98, s98, %d" % (kidx * 65536))
        self.e("v_mov_b32 v1, s98")
        for i in range(self.nstamp):
            self.e("v_mov_b32 v2, s%d" % (80 + 2 * i))
            self.e("buffer_store_dword v2, v1, s[76:79], 0 offen offset:%d" % (4 * i))
        for i, sr in enumerate((92, 94)):
            self.e("v_mov_b32 v2, s%d" % sr)
            self.e("buffer_store_dword v2, v1, s[76:79], 0 offen offset:%d" % (16 + 4 * i))

    def e(self, s):
        self.lines.append("    " + s)

    def lab(self, s):
        self.lines.append(s + ":")

    def newlab(self, s):
        self.nlab += 1
        return "L_%s_%s_%d" % (self.name, s, self.nlab)

    def srd(self, sd, sbase, nbytes, off=0):
        if off:
            self.e("s_add_u32 s%d, s%d, 0x%x" % (sd, sbase, off))
            self.e("s_addc_u32 s%d, s%d, 0" % (sd + 1, sbase + 1))
            self.e("s_and_b32 s%d, s%d, 0xffff" % (sd + 1, sd + 1))
        else:
            self.e("s_mov_b32 s%d, s%d" % (sd, sbase))
            self.e("s_and_b32 s%d, s%d, 0xffff" % (sd + 1, sbase + 1))
        self.e("s_mov_b32 s%d, 0x%x" % (sd + 2, nbytes))
        self.e("s_mov_b32 s%d, 0x00020000" % (sd + 3))

    def text(self, vgprs, sgprs=102):
        acc = (vgprs + 3) // 4 * 4
        out = [".globl %s" % self.name, ".p2align 8", ".type %s,@function" % self.name, "%s:" % self.name]
        out += self.lines
        return "\n".join(out), """.amdhsa_kernel %s
  .amdhsa_next_free_vgpr %d
  .amdhsa_next_free_sgpr %d
  .amdhsa_accum_offset %d
  .amdhsa_group_segment_fixed_size 0
  .amdhsa_kernarg_size 80
  .amdhsa_user_sgpr_count 2
  .amdhsa_user_sgpr_kernarg_segment_ptr 1
  .amdhsa_system_sgpr_workgroup_id_x 1
.end_amdhsa_kernel""" % (self.name, vgprs, sgprs, acc)


def wave_reduce_sum(k, v, stmp):
    k.e("s_nop 1")
    k.e("v_add_f32_dpp v%d, v%d, v%d quad_perm:[1,0,3,2] row_mask:0xf bank_mask:0xf" % (v, v, v))
    k.e("s_nop 1")
    k.e("v_add_f32_dpp v%d, v%d, v%d quad_perm:[2,3,0,1] row_mask:0xf bank_mask:0xf" % (v, v, v))
    k.e("s_nop 1")
    k.e("v_add_f32_dpp v%d, v%d, v%d row_half_mirror row_mask:0xf bank_mask:0xf" % (v, v, v))
    k.e("s_nop 1")
    k.e("v_add_f32_dpp v%d, v%d, v%d row_mirror row_mask:0xf bank_mask:0xf" % (v, v, v))
    k.e("s_nop 1")
    for i in range(4):
        k.e("v_readlane_b32 s%d, v%d, %d" % (stmp + i, v, 16 * i))
    k.e("s_nop 1")
    k.e("v_mov_b32 v%d, s%d" % (v, stmp))
    k.e("v_add_f32 v%d, s%d, v%d" % (v, stmp + 1, v))
    k.e("v_add_f32 v%d, s%d, v%d" % (v, stmp + 2, v))
    k.e("v_add_f32 v%d, s%d, v%d" % (v, stmp + 3, v))


def round_bf16(k, vd, vs):
    k.e("v_cvt_pk_bf16_f32 v%d, v%d, v%d" % (vd, vs, vs))
    k.e("v_lshlrev_b32 v%d, 16, v%d" % (vd, vd))


def pk(op, d, a, b, c=None):
    s = "%s v[%d:%d], v[%d:%d], v[%d:%d]" % (op, d, d + 1, a, a + 1, b, b + 1)
    if c is not None:
        s += ", v[%d:%d]" % (c, c + 1)
    return s


def wave_and_lane(k):
    k.e("v_lshrrev_b32 v1, 6, v0")
    k.e("v_and_b32 v2, 63, v0")
    k.e("s_nop 0")
    k.e("v_readfirstlane_b32 s25, v1")


def wfrag_lanepat(k, vd, vt, hh_stride):
    k.e("v_bfe_u32 v%d, v2, 2, 2" % vd)
    k.e("v_lshlrev_b32 v%d, 6, v%d" % (vd, vd))
    k.e("v_bfe_u32 v%d, v2, 4, 1" % vt)
    k.e("v_lshl_add_u32 v%d, v%d, 5, v%d" % (vd, vt, vd))
    k.e("v_and_b32 v%d, 3, v2" % vt)
    k.e("v_lshl_add_u32 v%d, v%d, 3, v%d" % (vd, vt, vd))
    k.e("v_lshrrev_b32 v%d, 5, v2" % vt)
    k.e("v_mul_u32_u24 v%d, %d, v%d" % (vt, hh_stride, vt))
    k.e("v_add_u32 v%d, v%d, v%d" % (vd, vd, vt))


def emit_colsum(k, L_end, sidx):
    k.e("s_cmp_ge_u32 s%d, 112" % sidx)
    k.e("s_cselect_b32 s28, s62, s60")
    k.e("s_cselect_b32 s29, s63, s61")
    k.e("s_cselect_b32 s30, 112, 0")
    k.e("s_cselect_b32 s38, %d, 0" % (3584 * 4))
    k.e("s_sub_u32 s31, s%d, s30" % sidx)
    k.e("s_mul_i32 s32, s31, 4682")
    k.e("s_lshr_b32 s32, s32, 16")
    k.e("s_mul_i32 s33, s32, 14")
    k.e("s_sub_u32 s33, s31, s33")
    k.srd(8, 28, 1024 * 3584 * 2)
    k.srd(12, 20, 8 * 2 * 3584 * 4, WS_CS)
    k.e("v_and_b32 v1, 31, v0")
    k.e("v_lshrrev_b32 v2, 5, v0")
    k.e("s_lshl_b32 s34, s33, 9")
    k.e("s_mul_i32 s35, s32, %d" % (128 * 7168))
    k.e("s_add_u32 s34, s34, s35")
    k.e("s_movk_i32 s35, 7168")
    k.e("v_mul_lo_u32 v3, v2, s35")
    k.e("v_lshl_add_u32 v3, v1, 4, v3")
    k.e("v_add_u32 v3, s34, v3")
    k.e("s_mov_b32 s34, 0")
    for it in range(16):
        k.e("buffer_load_dwordx4 v[%d:%d], v3, s[8:11], s34 offen" % (16 + 4 * it, 19 + 4 * it))
        if it != 15:
            k.e("s_add_u32 s34, s34, %d" % (8 * 7168))
    k.e("v_mov_b32 v4, 0xffff0000")
    for i in range(8):
        k.e("v_mov_b32 v%d, 0" % (8 + i))
    for it in range(16):
        k.e("s_waitcnt vmcnt(%d)" % (15 - it))
        for i in range(4):
            s_ = 16 + 4 * it + i
            k.e("v_lshlrev_b32 v5, 16, v%d" % s_)
            k.e("v_and_b32 v6, v4, v%d" % s_)
            k.e("v_add_f32 v%d, v%d, v5" % (8 + 2 * i, 8 + 2 * i))
            k.e("v_add_f32 v%d, v%d, v6" % (9 + 2 * i, 9 + 2 * i))
    k.e("v_lshlrev_b32 v5, 5, v0")
    k.e("ds_write_b128 v5, v[8:11]")
    k.e("ds_write_b128 v5, v[12:15] offset:16")
    k.e("s_waitcnt lgkmcnt(0)")
    k.e("s_barrier")
    k.e("v_lshlrev_b32 v5, 2, v0")
    for rg in range(8):
        k.e("ds_read_b32 v%d, v5 offset:%d" % (16 + rg, rg * 1024))
    k.e("s_waitcnt lgkmcnt(0)")
    for rg in range(1, 8):
        k.e("v_add_f32 v16, v16, v%d" % (16 + rg))
    k.e("s_mul_i32 s35, s32, %d" % (2 * 3584 * 4))
    k.e("s_add_u32 s35, s35, s38")
    k.e("s_lshl_b32 s36, s33, 10")
    k.e("s_add_u32 s35, s35, s36")
    k.e("v_add_u32 v5, s35, v5")
    k.e("buffer_store_dword v16, v5, s[12:15], 0 offen")
    k.e("s_branch %s" % L_end)


def gen_k0():
    k = KB("k0_ln_kernel")
    L_end = k.newlab("end")
    L_ln = k.newlab("ln")
    k.e("s_cmp_ge_u32 s2, 480")
    k.e("s_cbranch_scc1 %s" % L_end)
    k.e("s_load_dwordx4 s[4:7], s[0:1], %d" % KA_X)
    k.e("s_load_dwordx2 s[20:21], s[0:1], %d" % KA_WS)
    k.e("s_load_dwordx4 s[60:63], s[0:1], %d" % KA_WG)
    k.e("s_load_dwordx2 s[64:65], s[0:1], %d" % KA_WO)
    k.e("s_waitcnt lgkmcnt(0)")
    k.e("s_cmp_lt_u32 s2, 256")
    k.e("s_cbranch_scc1 %s" % L_ln)
    k.e("s_sub_u32 s3, s2, 256")
    emit_colsum(k, L_end, 3)
    k.lab(L_ln)
    k.srd(8, 4, 2048 * 1024 * 2)
    k.srd(12, 20, 2048 * 1024 * 2, WS_XN)
    k.srd(24, 6, 1024 * 3072 * 2)
    k.srd(28, 64, 1024 * 1024 * 2)
    k.e("v_lshrrev_b32 v62, 6, v0")
    k.e("v_and_b32 v2, 63, v0")
    k.e("s_lshl_b32 s3, s2, 3")
    k.e("v_lshlrev_b32 v3, 1, v62")
    k.e("v_add_u32 v3, s3, v3")
    k.e("v_lshlrev_b32 v3, 11, v3")
    k.e("v_lshl_add_u32 v1, v2, 4, v3")
    for r in range(2):
        k.e("buffer_load_dwordx4 v[%d:%d], v1, s[8:11], 0 offen offset:%d" % (4 + 8 * r, 7 + 8 * r, 2048 * r))
        k.e("buffer_load_dwordx4 v[%d:%d], v1, s[8:11], 0 offen offset:%d" % (8 + 8 * r, 11 + 8 * r, 2048 * r + 1024))
    k.e("v_lshrrev_b32 v61, 1, v3")
    k.e("v_mul_u32_u24 v3, 3, v61")
    k.e("v_lshl_add_u32 v3, v2, 7, v3")
    k.e("buffer_load_dword v64, v3, s[24:27], 0 offen")
    k.e("v_lshl_add_u32 v3, v2, 5, v61")
    k.e("buffer_load_dword v65, v3, s[28:31], 0 offen")
    k.e("v_mov_b32 v60, 0xffff0000")
    k.e("v_and_b32 v63, 7, v2")
    for r in range(2):
        k.e("s_waitcnt vmcnt(%d)" % (4 - 2 * r))
        src = 4 + 8 * r
        f = 24
        for i in range(8):
            k.e("v_lshlrev_b32 v%d, 16, v%d" % (f + 2 * i, src + i))
            k.e("v_and_b32 v%d, v60, v%d" % (f + 2 * i + 1, src + i))
        k.e("v_add_f32 v40, v%d, v%d" % (f, f + 1))
        for i in range(2, 16):
            k.e("v_add_f32 v40, v40, v%d" % (f + i))
        wave_reduce_sum(k, 40, 16)
        k.e("v_mul_f32 v40, 0x3a800000, v40")
        k.e("v_mov_b32 v41, 0")
        for i in range(16):
            k.e("v_sub_f32 v42, v%d, v40" % (f + i))
            k.e("v_fmac_f32 v41, v42, v42")
        wave_reduce_sum(k, 41, 16)
        k.e("v_mul_f32 v41, 0x3a800000, v41")
        round_bf16(k, 40, 40)
        round_bf16(k, 41, 41)
        k.e("v_add_f32 v41, 0x3727c5ac, v41")
        round_bf16(k, 41, 41)
        k.e("v_sqrt_f32 v41, v41")
        k.e("s_nop 0")
        round_bf16(k, 41, 41)
        k.e("v_rcp_f32 v41, v41")
        k.e("s_nop 0")
        for i in range(8):
            k.e("v_sub_f32 v42, v%d, v40" % (f + 2 * i))
            k.e("v_sub_f32 v43, v%d, v40" % (f + 2 * i + 1))
            k.e("v_cvt_pk_bf16_f32 v42, v42, v43")
            k.e("v_and_b32 v43, v60, v42")
            k.e("v_lshlrev_b32 v42, 16, v42")
            k.e("v_mul_f32 v42, v42, v41")
            k.e("v_mul_f32 v43, v43, v41")
            k.e("v_cvt_pk_bf16_f32 v%d, v42, v43" % (44 + 8 * r + i))
        k.e("v_lshl_add_u32 v42, v62, 1, %d" % r)
        k.e("v_xor_b32 v42, v42, v63")
        k.e("v_lshlrev_b32 v42, 4, v42")
        k.e("v_lshl_add_u32 v42, v2, 7, v42")
        k.e("ds_write_b128 v42, v[%d:%d]" % (44 + 8 * r, 47 + 8 * r))
        k.e("ds_write_b128 v42, v[%d:%d] offset:8192" % (48 + 8 * r, 51 + 8 * r))
    k.e("s_waitcnt lgkmcnt(0)")
    k.e("s_barrier")
    k.e("v_and_b32 v4, 7, v0")
    k.e("v_lshrrev_b32 v5, 3, v0")
    k.e("v_and_b32 v6, 7, v5")
    k.e("v_xor_b32 v6, v6, v4")
    k.e("v_lshlrev_b32 v6, 4, v6")
    k.e("v_lshl_add_u32 v6, v5, 7, v6")
    for i in range(4):
        k.e("ds_read_b128 v[%d:%d], v6 offset:%d" % (8 + 4 * i, 11 + 4 * i, 4096 * i))
    k.e("s_lshr_b32 s16, s2, 2")
    k.e("s_lshl_b32 s16, s16, 16")
    k.e("s_and_b32 s17, s2, 3")
    k.e("s_lshl_b32 s17, s17, 7")
    k.e("s_add_u32 s16, s16, s17")
    k.e("v_lshlrev_b32 v7, 9, v5")
    k.e("v_lshl_add_u32 v7, v4, 4, v7")
    k.e("v_add_u32 v7, s16, v7")
    k.e("s_mov_b32 s17, 0")
    for i in range(4):
        k.e("s_waitcnt lgkmcnt(%d)" % (3 - i))
        k.e("buffer_store_dwordx4 v[%d:%d], v7, s[12:15], s17 offen%s" % (8 + 4 * i, 11 + 4 * i, WT))
        k.e("s_add_u32 s17, s17, 16384")
    k.lab(L_end)
    k.e("s_endpgm")
    return k, 80, (480, 256, 16384)


class Spec:
    pass


def gemm_dma_issue(k, sp, i):
    srd, voff, soff, sl = sp.dma[i]
    if i in getattr(sp, "dma_abs", {}):
        k.e("s_and_b32 s95, s%d, s%d" % (sp.s_wr, sp.dma_abs[i]))
        k.e("s_add_u32 m0, s95, s%d" % sl)
    else:
        k.e("s_add_u32 m0, s%d, s%d" % (sp.s_wr, sl))
    k.e("s_nop 0")
    k.e("buffer_load_dwordx4 v%d, s[%d:%d], s%d offen lds" % (voff, srd, srd + 3, soff))


def gemm_dma_advance(k, sp):
    for s, inc in sp.sadv:
        if isinstance(inc, str):
            k.e("s_add_u32 s%d, s%d, %s" % (s, s, inc))
        else:
            k.e("s_add_u32 s%d, s%d, 0x%x" % (s, s, inc))
    k.e("s_add_u32 s%d, s%d, %d" % (sp.s_wr, sp.s_wr, sp.stage_bytes))
    k.e("s_cmp_ge_u32 s%d, %d" % (sp.s_wr, sp.stage_bytes * sp.NS))
    k.e("s_cselect_b32 s%d, 0, s%d" % (sp.s_wr, sp.s_wr))


def gemm_prologue(k, sp):
    k.stamp()
    k.e("s_mov_b32 s%d, 0" % sp.s_wr)
    k.e("s_mov_b32 s%d, 0" % sp.s_rd)
    for s in range(sp.NS - 1):
        for i in range(len(sp.dma)):
            gemm_dma_issue(k, sp, i)
        gemm_dma_advance(k, sp)


def gemm_main(k, sp):
    NS, nst, SB = sp.NS, sp.nst, sp.stage_bytes
    nd = len(sp.dma)
    nsteps = len(sp.steps)

    def addr_next():
        k.e("s_add_u32 s%d, s%d, %d" % (sp.s_rd, sp.s_rd, SB))
        k.e("s_cmp_ge_u32 s%d, %d" % (sp.s_rd, SB * NS))
        k.e("s_cselect_b32 s%d, 0, s%d" % (sp.s_rd, sp.s_rd))
        k.e("s_cselect_b32 s96, s97, %d" % SB)
        for vc in sp.addr:
            k.e("v_add_u32 v%d, s96, v%d" % (vc, vc))

    def read_instr(rd, base):
        op, reg, addr, imm = rd
        n = 4 if op == "ds_read_b128" else 2
        if os.environ.get("NOLDS"):
            return
        k.e("%s v[%d:%d], v%d offset:%d" % (op, base + reg, base + reg + n - 1, addr, imm))

    k.e("s_mov_b32 s97, %d" % (-(NS - 1) * SB))
    k.e("s_waitcnt vmcnt(%d)" % ((NS - 2) * nd))
    k.e("s_barrier")
    k.stamp()
    for rd in sp.steps[0]["reads"]:
        read_instr(rd, sp.fset[0])
    gstep = [0]

    def stage(do_dma, last, vm):
        k.e("s_waitcnt vmcnt(%d)" % vm)
        k.e("s_barrier")
        dma_todo = list(range(nd)) if do_dma else []
        for j, st in enumerate(sp.steps):
            cur = sp.fset[gstep[0] & 1]
            nxt = sp.fset[(gstep[0] + 1) & 1]
            lastj = (j == nsteps - 1)
            nreads = [] if (lastj and last) else sp.steps[(j + 1) % nsteps]["reads"]
            R = len(st["reads"])
            M = len(st["mfma"])
            issued = 0
            waited = -1
            if lastj and not last:
                addr_next()
            for i, (acc, a, b, dep) in enumerate(st["mfma"]):
                if dep > waited:
                    n = (R - 1 - dep) + issued
                    k.e("s_waitcnt lgkmcnt(%d)" % min(n, 15))
                    waited = dep
                if not os.environ.get("NOMFMA"):
                    k.e("v_mfma_f32_32x32x16_bf16 v[%d:%d], v[%d:%d], v[%d:%d], v[%d:%d]" % (
                        acc, acc + 15, cur + a, cur + a + 3, cur + b, cur + b + 3, acc, acc + 15))
                tgt = (len(nreads) * (i + 1) + M - 1) // M
                while issued < tgt:
                    read_instr(nreads[issued], nxt)
                    issued += 1
                if dma_todo:
                    per = (nd + M * nsteps - 1) // (M * nsteps)
                    for _ in range(max(per, 1)):
                        if dma_todo:
                            gemm_dma_issue(k, sp, dma_todo.pop(0))
                    if not dma_todo:
                        gemm_dma_advance(k, sp)
            gstep[0] += 1
        assert not dma_todo

    U = 1 if nsteps % 2 == 0 else 2
    nmain = nst - (NS - 1)
    nloop = (nmain // U) * U
    L = k.newlab("loop")
    if nloop > 0:
        k.e("s_mov_b32 s%d, %d" % (sp.s_cnt, nloop // U))
        k.lab(L)
        for u in range(U):
            stage(True, False, (NS - 3) * nd)
        k.e("s_sub_u32 s%d, s%d, 1" % (sp.s_cnt, sp.s_cnt))
        k.e("s_cmp_lg_u32 s%d, 0" % sp.s_cnt)
        k.e("s_cbranch_scc1 %s" % L)
    textra = 0
    for s in range(nloop, nst):
        do_dma = (s + NS - 1) < nst
        issued_upto = min(s + NS - 2, nst - 1)
        need = min(s + 1, nst - 1)
        vm = (issued_upto - need) * nd + textra
        stage(do_dma, s == nst - 1, min(vm, 63))
        if (not do_dma) and getattr(sp, "tail_hook", None) and textra == 0:
            textra = sp.tail_hook()
    k.stamp()


def phi16(k, A, T, dst, vmask, vc):
    for i in range(8):
        k.e("v_cvt_pk_bf16_f32 v%d, v%d, v%d" % (T + i, A + 2 * i, A + 2 * i + 1))
    for i in range(8):
        k.e("v_lshlrev_b32 v%d, 16, v%d" % (A + 2 * i, T + i))
        k.e("v_and_b32 v%d, v%d, v%d" % (A + 2 * i + 1, vmask, T + i))
    for i in range(8):
        k.e(pk("v_pk_mul_f32", T + 2 * i, A + 2 * i, vc))
    for i in range(16):
        k.e("v_min_f32 v%d, 0, v%d" % (T + i, T + i))
    for i in range(16):
        k.e("v_exp_f32 v%d, v%d" % (T + i, T + i))
    for i in range(16):
        k.e("v_max_f32 v%d, 0, v%d" % (A + i, A + i))
    for i in range(8):
        k.e(pk("v_pk_add_f32", T + 2 * i, T + 2 * i, vc + 2))
    for i in range(8):
        k.e(pk("v_pk_add_f32", A + 2 * i, A + 2 * i, T + 2 * i))
    for i in range(8):
        k.e("v_cvt_pk_bf16_f32 v%d, v%d, v%d" % (dst + i, A + 2 * i, A + 2 * i + 1))


def gen_k1():
    k = KB("k1_qkv_kernel")
    L_end = k.newlab("end")
    BK, NS = 64, 4
    XB = 16384
    WB = (BK // 4) * 6 * 256
    SB = XB + WB
    k.e("s_cmp_ge_u32 s2, 256")
    k.e("s_cbranch_scc1 %s" % L_end)
    k.e("s_load_dwordx2 s[4:5], s[0:1], %d" % KA_WQKV)
    k.e("s_load_dwordx2 s[6:7], s[0:1], %d" % KA_WS)
    k.e("s_and_b32 s20, s2, 7")
    k.e("s_lshr_b32 s21, s2, 3")
    k.e("s_and_b32 s22, s20, 3")
    k.e("s_lshl_b32 s22, s22, 2")
    k.e("s_and_b32 s23, s21, 3")
    k.e("s_add_u32 s22, s22, s23")
    k.e("s_lshr_b32 s23, s20, 2")
    k.e("s_lshl_b32 s23, s23, 3")
    k.e("s_lshr_b32 s24, s21, 2")
    k.e("s_add_u32 s23, s23, s24")
    wave_and_lane(k)
    k.e("s_lshr_b32 s26, s25, 2")
    k.e("s_bfe_u32 s27, s25, 0x10001")
    k.e("s_and_b32 s28, s25, 1")
    dma = []
    k.e("v_lshlrev_b32 v9, 4, v2")
    k.e("s_lshl_b32 s30, s23, 2")
    k.e("s_lshr_b32 s31, s25, 1")
    k.e("s_add_u32 s30, s30, s31")
    k.e("s_lshl_b32 s30, s30, 6")
    k.e("s_lshl_b32 s31, s28, 1")
    k.e("s_add_u32 s30, s30, s31")
    k.e("s_lshl_b32 s30, s30, 10")
    k.e("v_add_u32 v10, s30, v9")
    k.e("v_add_u32 v11, 1024, v10")
    for i in range(2):
        k.e("s_lshl_b32 s%d, s25, 11" % (40 + i))
        k.e("s_add_u32 s%d, s%d, %d" % (40 + i, 40 + i, 1024 * i))
        dma.append((8, 10 + i, 50, 40 + i))
    for i in range(3):
        k.e("s_mul_i32 s30, s25, 12")
        k.e("s_add_u32 s30, s30, %d" % (4 * i))
        k.e("v_lshrrev_b32 v3, 4, v2")
        k.e("v_add_u32 v3, s30, v3")
        k.e("v_mul_u32_u24 v4, 43, v3")
        k.e("v_lshrrev_b32 v4, 8, v4")
        k.e("v_mul_u32_u24 v5, 6, v4")
        k.e("v_sub_u32 v5, v3, v5")
        k.e("v_bfe_u32 v6, v2, 2, 2")
        k.e("v_lshl_add_u32 v6, v4, 2, v6")
        k.e("v_mul_u32_u24 v6, 6144, v6")
        k.e("v_lshrrev_b32 v7, 1, v5")
        k.e("v_lshl_add_u32 v6, v7, 11, v6")
        k.e("v_and_b32 v7, 1, v5")
        k.e("v_lshl_add_u32 v6, v7, 6, v6")
        k.e("v_and_b32 v7, 3, v2")
        k.e("v_lshl_add_u32 v6, v7, 4, v6")
        k.e("s_lshl_b32 s31, s22, 7")
        k.e("v_add_u32 v%d, s31, v6" % (12 + i))
        k.e("s_mul_i32 s%d, s25, 3072" % (42 + i))
        k.e("s_add_u32 s%d, s%d, %d" % (42 + i, 42 + i, XB + 1024 * i))
        dma.append((12, 12 + i, 51, 42 + i))
    k.e("s_mov_b32 s50, 0")
    k.e("s_mov_b32 s51, 0")
    k.e("s_waitcnt lgkmcnt(0)")
    k.srd(8, 6, 2048 * 1024 * 2, WS_XN)
    k.srd(12, 4, 1024 * 3072 * 2)
    sp = Spec()
    sp.NS, sp.nst, sp.stage_bytes = NS, 1024 // BK, SB
    sp.dma = dma
    sp.sadv = [(50, 4096), (51, BK * 6144)]
    sp.s_wr, sp.s_rd, sp.s_cnt = 52, 53, 54
    gemm_prologue(k, sp)
    for tl in range(2):
        k.e("s_xor_b32 s30, s26, %d" % tl)
        k.e("s_lshl_b32 s31, s27, 1")
        k.e("s_add_u32 s30, s30, s31")
        k.e("s_lshl_b32 s30, s30, 2")
        k.e("s_lshl_b32 s31, s26, 1")
        k.e("s_add_u32 s30, s30, s31")
        k.e("s_lshl_b32 s30, s30, 10")
        k.e("v_add_u32 v%d, s30, v9" % (16 + tl))
    wfrag_lanepat(k, 3, 4, 2 * 6 * 256)
    k.e("s_mul_i32 s30, s26, %d" % (8 * 6 * 256))
    k.e("s_lshl_b32 s31, s28, 8")
    k.e("s_add_u32 s30, s30, s31")
    k.e("s_add_u32 s30, s30, %d" % XB)
    k.e("v_add_u32 v18, s30, v3")
    ACC = 32
    for i in range(96):
        k.e("v_mov_b32 v%d, 0" % (ACC + i))
    F0, F1 = 128, 148
    steps = []
    for jj in range(2):
        reads = [("ds_read_b128", 0, 16, 1024 * jj)]
        for p in range(3):
            for i in range(2):
                reads.append(("ds_read_b64_tr_b16", 8 + 4 * p + 2 * i, 18, ((4 * jj + i) * 6 + 2 * p) * 256))
            if p == 0:
                reads.append(("ds_read_b128", 4, 17, 1024 * jj))
        mf = [(ACC + 0 * 16, 8, 0, 2), (ACC + 3 * 16, 8, 4, 3), (ACC + 1 * 16, 0, 12, 5),
              (ACC + 4 * 16, 4, 12, 5), (ACC + 2 * 16, 0, 16, 7), (ACC + 5 * 16, 4, 16, 7)]
        steps.append(dict(reads=reads, mfma=mf))
    sp.addr = [16, 17, 18]
    sp.steps = steps
    sp.fset = [F0, F1]
    gemm_main(k, sp)
    k.e("s_mul_i32 s30, s25, 12288")
    k.e("v_add_u32 v4, s30, v9")
    k.e("s_xor_b32 s31, s25, 4")
    k.e("s_mul_i32 s31, s31, 12288")
    k.e("v_add_u32 v5, s31, v9")
    k.e("v_mov_b32 v20, 0x3fb8aa3b")
    k.e("v_mov_b32 v21, 0x3fb8aa3b")
    k.e("v_mov_b32 v22, 0x358637bd")
    k.e("v_mov_b32 v23, 0x358637bd")
    k.e("v_mov_b32 v24, 0xffff0000")
    k.srd(16, 6, 2048 * 1024 * 2, WS_PQ)
    k.srd(60, 6, 16 * 32 * 4096, WS_KVP)
    k.srd(56, 6, 16 * 32 * 128, WS_ZP)
    k.e("s_barrier")
    for q in range(12):
        k.e("ds_write_b128 v4, v[%d:%d] offset:%d" % (ACC + 48 + 4 * q, ACC + 51 + 4 * q, 1024 * q))
    k.e("s_waitcnt lgkmcnt(0)")
    k.e("s_barrier")
    for q in range(12):
        k.e("ds_read_b128 v[%d:%d], v5 offset:%d" % (ACC + 48 + 4 * q, ACC + 51 + 4 * q, 1024 * q))
    PQ, PK, PV = 128, 136, 144
    T = 152
    for grp in (1, 2, 0):
        k.e("s_waitcnt lgkmcnt(%d)" % {1: 4, 2: 0, 0: 0}[grp])
        for q in range(4 * grp, 4 * grp + 4):
            for i in range(0, 4, 2):
                k.e(pk("v_pk_add_f32", ACC + 4 * q + i, ACC + 4 * q + i, ACC + 48 + 4 * q + i))
        if grp == 1:
            phi16(k, ACC + 16, T, PK, 24, 20)
        elif grp == 2:
            for i in range(8):
                k.e("v_cvt_pk_bf16_f32 v%d, v%d, v%d" % (PV + i, ACC + 32 + 2 * i, ACC + 33 + 2 * i))
            KV = ACC + 64
            k.e("s_nop 1")
            k.e("v_mfma_f32_32x32x16_bf16 v[%d:%d], v[%d:%d], v[%d:%d], 0" % (KV, KV + 15, PK, PK + 3, PV, PV + 3))
            k.e("v_mfma_f32_32x32x16_bf16 v[%d:%d], v[%d:%d], v[%d:%d], v[%d:%d]" % (KV, KV + 15, PK + 4, PK + 7, PV + 4, PV + 7, KV, KV + 15))
            for i in range(8):
                k.e("v_lshlrev_b32 v%d, 16, v%d" % (T + 2 * i, PK + i))
                k.e("v_and_b32 v%d, v24, v%d" % (T + 2 * i + 1, PK + i))
            for st_ in (8, 4, 2):
                for i in range(0, st_, 2):
                    k.e(pk("v_pk_add_f32", T + i, T + i, T + st_ + i))
            k.e("v_add_f32 v25, v%d, v%d" % (T, T + 1))
        else:
            phi16(k, ACC, T, PQ, 24, 20)
    k.e("s_lshl_b32 s30, s23, 2")
    k.e("s_lshl_b32 s31, s27, 1")
    k.e("s_add_u32 s30, s30, s31")
    k.e("s_add_u32 s30, s30, s26")
    k.e("s_lshl_b32 s30, s30, 6")
    k.e("s_lshl_b32 s31, s22, 1")
    k.e("s_add_u32 s31, s31, s28")
    k.e("s_lshl_b32 s32, s31, 1")
    k.e("s_add_u32 s30, s30, s32")
    k.e("s_lshl_b32 s30, s30, 10")
    k.e("v_add_u32 v3, s30, v9")
    k.e("buffer_store_dwordx4 v[%d:%d], v3, s[16:19], 0 offen%s" % (PQ, PQ + 3, WT))
    k.e("buffer_store_dwordx4 v[%d:%d], v3, s[16:19], 0 offen offset:1024%s" % (PQ + 4, PQ + 7, WT))
    KVL = 98304
    ZL = KVL + 32768
    k.e("s_lshl_b32 s30, s25, 12")
    k.e("s_add_u32 s30, s30, %d" % KVL)
    k.e("v_add_u32 v4, s30, v9")
    k.e("s_lshl_b32 s30, s25, 8")
    k.e("s_add_u32 s30, s30, %d" % ZL)
    k.e("v_lshlrev_b32 v5, 2, v2")
    k.e("v_add_u32 v5, s30, v5")
    k.e("ds_write_b32 v5, v25")
    for q in range(4):
        k.e("ds_write_b128 v4, v[%d:%d] offset:%d" % (KV + 4 * q, KV + 4 * q + 3, 1024 * q))
    k.e("s_lshr_b32 s30, s25, 1")
    k.e("s_lshl_b32 s31, s30, 10")
    k.e("s_lshl_b32 s32, s28, 12")
    k.e("s_add_u32 s31, s31, s32")
    k.e("s_add_u32 s31, s31, %d" % KVL)
    k.e("v_add_u32 v4, s31, v9")
    k.e("s_lshl_b32 s32, s28, 8")
    k.e("s_add_u32 s32, s32, %d" % ZL)
    k.e("v_and_b32 v6, 31, v2")
    k.e("v_lshlrev_b32 v6, 2, v6")
    k.e("v_add_u32 v6, s32, v6")
    k.e("s_waitcnt lgkmcnt(0)")
    k.e("s_barrier")
    for j in range(4):
        k.e("ds_read_b128 v[%d:%d], v4 offset:%d" % (ACC + 4 * j, ACC + 4 * j + 3, 8192 * j))
    for j in range(4):
        k.e("ds_read_b32 v%d, v6 offset:%d" % (ACC + 16 + 2 * j, 512 * j))
        k.e("ds_read_b32 v%d, v6 offset:%d" % (ACC + 17 + 2 * j, 512 * j + 128))
    k.e("s_lshl_b32 s33, s23, 5")
    k.e("s_lshl_b32 s34, s22, 1")
    k.e("s_add_u32 s33, s33, s34")
    k.e("s_add_u32 s33, s33, s28")
    k.e("s_lshl_b32 s34, s33, 12")
    k.e("s_lshl_b32 s35, s30, 10")
    k.e("s_add_u32 s34, s34, s35")
    k.e("v_add_u32 v4, s34, v9")
    k.e("s_waitcnt lgkmcnt(8)")
    for i in range(0, 4, 2):
        k.e(pk("v_pk_add_f32", ACC + i, ACC + i, ACC + 4 + i))
        k.e(pk("v_pk_add_f32", ACC + 8 + i, ACC + 8 + i, ACC + 12 + i))
        k.e(pk("v_pk_add_f32", ACC + i, ACC + i, ACC + 8 + i))
    k.e("buffer_store_dwordx4 v[%d:%d], v4, s[60:63], 0 offen%s" % (ACC, ACC + 3, WT))
    L_fin = k.newlab("fin")
    k.e("s_cmp_lg_u32 s30, 0")
    k.e("s_cbranch_scc1 %s" % L_fin)
    k.e("s_waitcnt lgkmcnt(0)")
    for i in range(1, 8):
        k.e("v_add_f32 v%d, v%d, v%d" % (ACC + 16, ACC + 16, ACC + 16 + i))
    k.e("v_cmp_gt_u32 vcc, 32, v2")
    k.e("s_and_saveexec_b64 s[36:37], vcc")
    k.e("s_lshl_b32 s34, s33, 7")
    k.e("v_lshlrev_b32 v6, 2, v2")
    k.e("v_add_u32 v6, s34, v6")
    k.e("buffer_store_dword v%d, v6, s[56:59], 0 offen%s" % (ACC + 16, WT))
    k.lab(L_fin)
    k.stamp_store(1)
    k.lab(L_end)
    k.e("s_endpgm")
    return k, 168, (256, 512, NS * SB)


def gen_k1b():
    k = KB("k1_qkv_kernel")
    L_end = k.newlab("end")
    BK, NS = 64, 4
    XB = 16384
    WB = (BK // 4) * 6 * 256
    SB = XB + WB
    k.e("s_cmp_ge_u32 s2, 256")
    k.e("s_cbranch_scc1 %s" % L_end)
    k.e("s_load_dwordx2 s[4:5], s[0:1], %d" % KA_WQKV)
    k.e("s_load_dwordx2 s[6:7], s[0:1], %d" % KA_WS)
    k.e("s_and_b32 s20, s2, 7")
    k.e("s_lshr_b32 s21, s2, 3")
    k.e("s_and_b32 s22, s20, 3")
    k.e("s_lshl_b32 s22, s22, 2")
    k.e("s_and_b32 s23, s21, 3")
    k.e("s_add_u32 s22, s22, s23")
    k.e("s_lshr_b32 s23, s20, 2")
    k.e("s_lshl_b32 s23, s23, 3")
    k.e("s_lshr_b32 s24, s21, 2")
    k.e("s_add_u32 s23, s23, s24")
    wave_and_lane(k)
    k.e("s_lshr_b32 s27, s25, 1")
    k.e("s_and_b32 s28, s25, 1")
    dma = []
    k.e("v_lshlrev_b32 v9, 4, v2")
    k.e("s_lshl_b32 s30, s23, 2")
    k.e("s_lshr_b32 s31, s25, 1")
    k.e("s_add_u32 s30, s30, s31")
    k.e("s_lshl_b32 s30, s30, 6")
    k.e("s_lshl_b32 s31, s28, 1")
    k.e("s_add_u32 s30, s30, s31")
    k.e("s_lshl_b32 s30, s30, 10")
    k.e("v_add_u32 v10, s30, v9")
    k.e("v_add_u32 v11, 1024, v10")
    for i in range(2):
        k.e("s_lshl_b32 s%d, s25, 11" % (40 + i))
        k.e("s_add_u32 s%d, s%d, %d" % (40 + i, 40 + i, 1024 * i))
        dma.append((8, 10 + i, 50, 40 + i))
    for i in range(3):
        k.e("s_mul_i32 s30, s25, 12")
        k.e("s_add_u32 s30, s30, %d" % (4 * i))
        k.e("v_lshrrev_b32 v3, 4, v2")
        k.e("v_add_u32 v3, s30, v3")
        k.e("v_mul_u32_u24 v4, 43, v3")
        k.e("v_lshrrev_b32 v4, 8, v4")
        k.e("v_mul_u32_u24 v5, 6, v4")
        k.e("v_sub_u32 v5, v3, v5")
        k.e("v_bfe_u32 v6, v2, 2, 2")
        k.e("v_lshl_add_u32 v6, v4, 2, v6")
        k.e("v_mul_u32_u24 v6, 6144, v6")
        k.e("v_lshrrev_b32 v7, 1, v5")
        k.e("v_lshl_add_u32 v6, v7, 11, v6")
        k.e("v_and_b32 v7, 1, v5")
        k.e("v_lshl_add_u32 v6, v7, 6, v6")
        k.e("v_and_b32 v7, 3, v2")
        k.e("v_lshl_add_u32 v6, v7, 4, v6")
        k.e("s_lshl_b32 s31, s22, 7")
        k.e("v_add_u32 v%d, s31, v6" % (12 + i))
        k.e("s_mul_i32 s%d, s25, 3072" % (42 + i))
        k.e("s_add_u32 s%d, s%d, %d" % (42 + i, 42 + i, XB + 1024 * i))
        dma.append((12, 12 + i, 51, 42 + i))
    k.e("s_mov_b32 s50, 0")
    k.e("s_mov_b32 s51, 0")
    k.e("s_waitcnt lgkmcnt(0)")
    k.srd(8, 6, 2048 * 1024 * 2, WS_XN)
    k.srd(12, 4, 1024 * 3072 * 2)
    sp = Spec()
    sp.NS, sp.nst, sp.stage_bytes = NS, 1024 // BK, SB
    sp.dma = dma
    sp.sadv = [(50, 4096), (51, BK * 6144)]
    sp.s_wr, sp.s_rd, sp.s_cnt = 52, 53, 54
    gemm_prologue(k, sp)
    k.e("s_lshl_b32 s30, s27, 12")
    k.e("v_add_u32 v16, s30, v9")
    wfrag_lanepat(k, 3, 4, 2 * 6 * 256)
    k.e("s_lshl_b32 s31, s28, 8")
    k.e("s_add_u32 s30, s31, %d" % XB)
    k.e("v_add_u32 v18, s30, v3")
    ACC = 32
    for i in range(48):
        k.e("v_mov_b32 v%d, 0" % (ACC + i))
    F0, F1 = 128, 148
    steps = []
    for jj in range(4):
        reads = [("ds_read_b128", 0, 16, 1024 * jj)]
        for p in range(3):
            for i in range(2):
                reads.append(("ds_read_b64_tr_b16", 8 + 4 * p + 2 * i, 18, ((4 * jj + i) * 6 + 2 * p) * 256))
        mf = [(ACC + 0 * 16, 8, 0, 2), (ACC + 1 * 16, 0, 12, 4), (ACC + 2 * 16, 0, 16, 6)]
        steps.append(dict(reads=reads, mfma=mf))
    sp.addr = [16, 18]
    sp.steps = steps
    sp.fset = [F0, F1]
    gemm_main(k, sp)
    k.e("v_mov_b32 v20, 0x3fb8aa3b")
    k.e("v_mov_b32 v21, 0x3fb8aa3b")
    k.e("v_mov_b32 v22, 0x358637bd")
    k.e("v_mov_b32 v23, 0x358637bd")
    k.e("v_mov_b32 v24, 0xffff0000")
    k.srd(16, 6, 2048 * 1024 * 2, WS_PQ)
    k.srd(60, 6, 16 * 32 * 4096, WS_KVP)
    k.srd(56, 6, 16 * 32 * 128, WS_ZP)
    k.e("s_nop 7")
    PQ, PK, PV = 128, 136, 144
    T = 152
    for grp in (1, 2, 0):
        if grp == 1:
            phi16(k, ACC + 16, T, PK, 24, 20)
        elif grp == 2:
            for i in range(8):
                k.e("v_cvt_pk_bf16_f32 v%d, v%d, v%d" % (PV + i, ACC + 32 + 2 * i, ACC + 33 + 2 * i))
            KV = ACC + 64
            k.e("s_nop 1")
            k.e("v_mfma_f32_32x32x16_bf16 v[%d:%d], v[%d:%d], v[%d:%d], 0" % (KV, KV + 15, PK, PK + 3, PV, PV + 3))
            k.e("v_mfma_f32_32x32x16_bf16 v[%d:%d], v[%d:%d], v[%d:%d], v[%d:%d]" % (KV, KV + 15, PK + 4, PK + 7, PV + 4, PV + 7, KV, KV + 15))
            for i in range(8):
                k.e("v_lshlrev_b32 v%d, 16, v%d" % (T + 2 * i, PK + i))
                k.e("v_and_b32 v%d, v24, v%d" % (T + 2 * i + 1, PK + i))
            for st_ in (8, 4, 2):
                for i in range(0, st_, 2):
                    k.e(pk("v_pk_add_f32", T + i, T + i, T + st_ + i))
            k.e("v_add_f32 v25, v%d, v%d" % (T, T + 1))
        else:
            phi16(k, ACC, T, PQ, 24, 20)
    k.e("s_lshl_b32 s30, s23, 2")
    k.e("s_add_u32 s30, s30, s27")
    k.e("s_lshl_b32 s30, s30, 6")
    k.e("s_lshl_b32 s31, s22, 1")
    k.e("s_add_u32 s31, s31, s28")
    k.e("s_lshl_b32 s32, s31, 1")
    k.e("s_add_u32 s30, s30, s32")
    k.e("s_lshl_b32 s30, s30, 10")
    k.e("v_add_u32 v3, s30, v9")
    k.e("buffer_store_dwordx4 v[%d:%d], v3, s[16:19], 0 offen%s" % (PQ, PQ + 3, WT))
    k.e("buffer_store_dwordx4 v[%d:%d], v3, s[16:19], 0 offen offset:1024%s" % (PQ + 4, PQ + 7, WT))
    KVL = 98304
    ZL = KVL + 32768
    k.e("s_lshl_b32 s30, s25, 12")
    k.e("s_add_u32 s30, s30, %d" % KVL)
    k.e("v_add_u32 v4, s30, v9")
    k.e("s_lshl_b32 s30, s25, 8")
    k.e("s_add_u32 s30, s30, %d" % ZL)
    k.e("v_lshlrev_b32 v5, 2, v2")
    k.e("v_add_u32 v5, s30, v5")
    k.e("s_barrier")
    k.e("ds_write_b32 v5, v25")
    for q in range(4):
        k.e("ds_write_b128 v4, v[%d:%d] offset:%d" % (KV + 4 * q, KV + 4 * q + 3, 1024 * q))
    k.e("s_lshr_b32 s30, s25, 1")
    k.e("s_lshl_b32 s31, s30, 10")
    k.e("s_lshl_b32 s32, s28, 12")
    k.e("s_add_u32 s31, s31, s32")
    k.e("s_add_u32 s31, s31, %d" % KVL)
    k.e("v_add_u32 v4, s31, v9")
    k.e("s_lshl_b32 s32, s28, 8")
    k.e("s_add_u32 s32, s32, %d" % ZL)
    k.e("v_and_b32 v6, 31, v2")
    k.e("v_lshlrev_b32 v6, 2, v6")
    k.e("v_add_u32 v6, s32, v6")
    k.e("s_waitcnt lgkmcnt(0)")
    k.e("s_barrier")
    for j in range(4):
        k.e("ds_read_b128 v[%d:%d], v4 offset:%d" % (ACC + 4 * j, ACC + 4 * j + 3, 8192 * j))
    for j in range(4):
        k.e("ds_read_b32 v%d, v6 offset:%d" % (ACC + 16 + 2 * j, 512 * j))
        k.e("ds_read_b32 v%d, v6 offset:%d" % (ACC + 17 + 2 * j, 512 * j + 128))
    k.e("s_lshl_b32 s33, s23, 5")
    k.e("s_lshl_b32 s34, s22, 1")
    k.e("s_add_u32 s33, s33, s34")
    k.e("s_add_u32 s33, s33, s28")
    k.e("s_lshl_b32 s34, s33, 12")
    k.e("s_lshl_b32 s35, s30, 10")
    k.e("s_add_u32 s34, s34, s35")
    k.e("v_add_u32 v4, s34, v9")
    k.e("s_waitcnt lgkmcnt(8)")
    for i in range(0, 4, 2):
        k.e(pk("v_pk_add_f32", ACC + i, ACC + i, ACC + 4 + i))
        k.e(pk("v_pk_add_f32", ACC + 8 + i, ACC + 8 + i, ACC + 12 + i))
        k.e(pk("v_pk_add_f32", ACC + i, ACC + i, ACC + 8 + i))
    k.e("buffer_store_dwordx4 v[%d:%d], v4, s[60:63], 0 offen%s" % (ACC, ACC + 3, WT))
    L_fin = k.newlab("fin")
    k.e("s_cmp_lg_u32 s30, 0")
    k.e("s_cbranch_scc1 %s" % L_fin)
    k.e("s_waitcnt lgkmcnt(0)")
    for i in range(1, 8):
        k.e("v_add_f32 v%d, v%d, v%d" % (ACC + 16, ACC + 16, ACC + 16 + i))
    k.e("v_cmp_gt_u32 vcc, 32, v2")
    k.e("s_and_saveexec_b64 s[36:37], vcc")
    k.e("s_lshl_b32 s34, s33, 7")
    k.e("v_lshlrev_b32 v6, 2, v2")
    k.e("v_add_u32 v6, s34, v6")
    k.e("buffer_store_dword v%d, v6, s[56:59], 0 offen%s" % (ACC + 16, WT))
    k.lab(L_fin)
    k.stamp_store(1)
    k.lab(L_end)
    k.e("s_endpgm")
    return k, 168, (256, 512, NS * SB)


def gen_k15():
    k = KB("k15_o_kernel")
    L_end = k.newlab("end")
    L_o = k.newlab("o")
    k.e("s_cmp_ge_u32 s2, 284")
    k.e("s_cbranch_scc1 %s" % L_end)
    k.e("s_load_dwordx2 s[6:7], s[0:1], %d" % KA_WS)
    k.e("s_cmp_lt_u32 s2, 256")
    k.e("s_cbranch_scc1 %s" % L_o)
    k.e("s_waitcnt lgkmcnt(0)")
    k.srd(8, 6, 8 * 2 * 3584 * 4, WS_CS)
    k.srd(12, 6, 2 * 3584 * 4, WS_CS2)
    k.e("s_sub_u32 s3, s2, 256")
    k.e("s_lshl_b32 s3, s3, 10")
    k.e("v_lshlrev_b32 v1, 2, v0")
    k.e("v_add_u32 v1, s3, v1")
    k.e("s_mov_b32 s16, 0")
    for i in range(8):
        k.e("buffer_load_dword v%d, v1, s[8:11], s16 offen" % (2 + i))
        k.e("s_add_u32 s16, s16, %d" % (2 * 3584 * 4))
    k.e("s_waitcnt vmcnt(0)")
    for i in range(1, 8):
        k.e("v_add_f32 v2, v2, v%d" % (2 + i))
    k.e("buffer_store_dword v2, v1, s[12:15], 0 offen")
    k.e("s_endpgm")
    k.lab(L_o)
    k.e("s_and_b32 s20, s2, 31")
    k.e("s_lshr_b32 s21, s2, 5")
    wave_and_lane(k)
    k.e("s_waitcnt lgkmcnt(0)")
    k.srd(8, 6, 2048 * 1024 * 2, WS_PQ)
    k.srd(12, 6, 16 * 32 * 4096, WS_KVP)
    k.srd(16, 6, 16 * 32 * 128, WS_ZP)
    k.srd(28, 6, 2048 * 1024 * 2, WS_O)
    k.e("v_lshlrev_b32 v6, 4, v2")
    k.e("s_lshl_b32 s23, s20, 12")
    k.e("s_lshl_b32 s24, s25, 10")
    k.e("s_add_u32 s23, s23, s24")
    k.e("v_add_u32 v7, s23, v6")
    k.e("s_mov_b32 s24, 0")
    for mb in range(16):
        k.e("buffer_load_dwordx4 v[%d:%d], v7, s[12:15], s24 offen" % (64 + 4 * mb, 67 + 4 * mb))
        if mb != 15:
            k.e("s_add_u32 s24, s24, %d" % (32 * 4096))
    k.e("s_lshl_b32 s23, s20, 7")
    k.e("v_and_b32 v8, 31, v2")
    k.e("v_lshlrev_b32 v8, 2, v8")
    k.e("v_add_u32 v8, s23, v8")
    k.e("v_lshrrev_b32 v9, 5, v2")
    k.e("v_lshl_add_u32 v8, v9, 15, v8")
    k.e("s_mov_b32 s24, 0")
    for mb in range(8):
        k.e("buffer_load_dword v%d, v8, s[16:19], s24 offen" % (128 + mb))
        if mb != 7:
            k.e("s_add_u32 s24, s24, 4096")
    k.e("s_lshl_b32 s22, s21, 3")
    k.e("s_lshl_b32 s23, s25, 1")
    k.e("s_add_u32 s22, s22, s23")
    k.e("s_lshl_b32 s22, s22, 6")
    k.e("s_lshl_b32 s23, s20, 1")
    k.e("s_add_u32 s22, s22, s23")
    k.e("s_lshl_b32 s22, s22, 10")
    k.e("v_add_u32 v3, s22, v6")
    k.e("v_add_u32 v5, 0x10000, v3")
    for t in range(2):
        for s in range(2):
            k.e("buffer_load_dwordx4 v[%d:%d], v%d, s[8:11], 0 offen offset:%d" % (16 + 8 * t + 4 * s, 19 + 8 * t + 4 * s, 3 + 2 * t, 1024 * s))
    k.e("s_waitcnt vmcnt(12)")
    for st_ in (32, 16, 8, 4):
        for i in range(0, st_, 2):
            k.e(pk("v_pk_add_f32", 64 + i, 64 + i, 64 + st_ + i))
    k.e("s_lshl_b32 s23, s25, 10")
    k.e("v_add_u32 v7, s23, v6")
    k.e("ds_write_b128 v7, v[64:67]")
    k.e("s_waitcnt vmcnt(4)")
    for st_ in (4, 2):
        for i in range(0, st_, 2):
            k.e(pk("v_pk_add_f32", 128 + i, 128 + i, 128 + st_ + i))
    k.e("v_add_f32 v128, v128, v129")
    k.e("v_mov_b32 v129, v128")
    k.e("s_nop 1")
    k.e("v_permlane32_swap_b32 v128, v129")
    k.e("s_nop 1")
    k.e("v_add_f32 v128, v128, v129")
    k.e("v_and_b32 v8, 31, v2")
    k.e("v_lshlrev_b32 v8, 2, v8")
    k.e("ds_write_b32 v8, v128 offset:4096")
    k.e("s_waitcnt lgkmcnt(0)")
    k.e("s_barrier")
    for q in range(4):
        k.e("ds_read_b128 v[%d:%d], v6 offset:%d" % (64 + 4 * q, 67 + 4 * q, 1024 * q))
    k.e("v_lshlrev_b32 v9, 4, v9")
    for q in range(4):
        k.e("ds_read_b128 v[%d:%d], v9 offset:%d" % (80 + 4 * q, 83 + 4 * q, 4096 + 32 * q))
    k.e("v_and_b32 v10, 27, v2")
    k.e("v_cmp_eq_u32 vcc, 0, v10")
    k.e("s_waitcnt lgkmcnt(4)")
    KVA, ZA = 96, 104
    for i in range(8):
        k.e("v_cvt_pk_bf16_f32 v%d, v%d, v%d" % (KVA + i, 64 + 2 * i, 65 + 2 * i))
    k.e("s_waitcnt lgkmcnt(0)")
    for i in range(8):
        k.e("v_cvt_pk_bf16_f32 v%d, v%d, v%d" % (ZA + i, 80 + 2 * i, 81 + 2 * i))
    for i in range(8):
        k.e("v_cndmask_b32 v%d, 0, v%d, vcc" % (ZA + i, ZA + i))
    k.e("s_waitcnt vmcnt(0)")
    k.e("s_nop 0")
    for t in range(2):
        N, D = 112 + 32 * t, 128 + 32 * t
        k.e("v_mfma_f32_32x32x16_bf16 v[%d:%d], v[%d:%d], v[%d:%d], 0" % (D, D + 15, ZA, ZA + 3, 16 + 8 * t, 19 + 8 * t))
        k.e("v_mfma_f32_32x32x16_bf16 v[%d:%d], v[%d:%d], v[%d:%d], v[%d:%d]" % (D, D + 15, ZA + 4, ZA + 7, 20 + 8 * t, 23 + 8 * t, D, D + 15))
        k.e("v_mfma_f32_32x32x16_bf16 v[%d:%d], v[%d:%d], v[%d:%d], 0" % (N, N + 15, KVA, KVA + 3, 16 + 8 * t, 19 + 8 * t))
        k.e("v_mfma_f32_32x32x16_bf16 v[%d:%d], v[%d:%d], v[%d:%d], v[%d:%d]" % (N, N + 15, KVA + 4, KVA + 7, 20 + 8 * t, 23 + 8 * t, N, N + 15))
    k.e("s_nop 7")
    for t in range(2):
        D = 128 + 32 * t
        round_bf16(k, 12 + 2 * t, D)
        k.e("v_add_f32 v%d, 0x358637bd, v%d" % (12 + 2 * t, 12 + 2 * t))
        round_bf16(k, 12 + 2 * t, 12 + 2 * t)
        k.e("v_rcp_f32 v%d, v%d" % (12 + 2 * t, 12 + 2 * t))
        k.e("s_nop 0")
        k.e("v_mov_b32 v%d, v%d" % (13 + 2 * t, 12 + 2 * t))
    k.e("s_nop 7")
    for t in range(2):
        N = 112 + 32 * t
        for i in range(8):
            k.e(pk("v_pk_mul_f32", N + 2 * i, N + 2 * i, 12 + 2 * t))
        for i in range(8):
            k.e("v_cvt_pk_bf16_f32 v%d, v%d, v%d" % (32 + 8 * t + i, N + 2 * i, N + 2 * i + 1))
        k.e("buffer_store_dwordx4 v[%d:%d], v%d, s[28:31], 0 offen%s" % (32 + 8 * t, 35 + 8 * t, 3 + 2 * t, WT))
        k.e("buffer_store_dwordx4 v[%d:%d], v%d, s[28:31], 0 offen offset:1024%s" % (36 + 8 * t, 39 + 8 * t, 3 + 2 * t, WT))
    k.lab(L_end)
    k.e("s_endpgm")
    return k, 176, (284, 256, 8192)


def gen_proj(name, mode):
    k = KB(name)
    L_end = k.newlab("end")
    BK, NS = 64, 6
    KD = 1024 if mode == "wo" else 3584
    NBLK = KD // 16
    XOFF = WS_O if mode == "wo" else WS_HH
    XB = 8192
    WB = (BK // 4) * 4 * 256
    SB = XB + WB
    k.e("s_cmp_ge_u32 s2, 256")
    k.e("s_cbranch_scc1 %s" % L_end)
    k.e("s_load_dwordx2 s[4:5], s[0:1], %d" % (KA_WO if mode == "wo" else KA_WD))
    k.e("s_load_dwordx2 s[6:7], s[0:1], %d" % KA_WS)
    k.e("s_load_dwordx2 s[60:61], s[0:1], %d" % (KA_X if mode == "wo" else KA_OUT))
    k.e("s_and_b32 s20, s2, 7")
    k.e("s_lshr_b32 s21, s2, 3")
    k.e("s_and_b32 s22, s20, 1")
    k.e("s_lshl_b32 s22, s22, 2")
    k.e("s_and_b32 s23, s21, 3")
    k.e("s_add_u32 s22, s22, s23")
    k.e("s_lshr_b32 s23, s20, 1")
    k.e("s_lshl_b32 s23, s23, 3")
    k.e("s_lshr_b32 s24, s21, 2")
    k.e("s_add_u32 s23, s23, s24")
    k.e("s_lshl_b32 s24, s23, 6")
    wave_and_lane(k)
    k.e("s_lshr_b32 s26, s25, 1")
    k.e("s_and_b32 s28, s25, 1")
    k.e("s_lshr_b32 s27, s26, 1")
    dma = []
    k.e("v_lshlrev_b32 v9, 4, v2")
    k.e("s_lshl_b32 s30, s23, 1")
    k.e("s_lshr_b32 s31, s25, 2")
    k.e("s_add_u32 s30, s30, s31")
    k.e("s_mul_i32 s30, s30, %d" % NBLK)
    k.e("s_and_b32 s31, s25, 3")
    k.e("s_add_u32 s30, s30, s31")
    k.e("s_lshl_b32 s30, s30, 10")
    k.e("v_add_u32 v10, s30, v9")
    k.e("s_lshl_b32 s40, s25, 10")
    dma.append((8, 10, 50, 40))
    for i in range(2):
        k.e("s_lshl_b32 s30, s25, 3")
        k.e("s_add_u32 s30, s30, %d" % (4 * i))
        k.e("v_bfe_u32 v6, v2, 2, 2")
        k.e("v_add_u32 v6, s30, v6")
        k.e("v_lshlrev_b32 v6, 11, v6")
        k.e("v_lshrrev_b32 v7, 4, v2")
        k.e("v_lshl_add_u32 v6, v7, 6, v6")
        k.e("v_and_b32 v7, 3, v2")
        k.e("v_lshl_add_u32 v6, v7, 4, v6")
        k.e("s_lshl_b32 s31, s22, 8")
        k.e("v_add_u32 v%d, s31, v6" % (12 + i))
        k.e("s_lshl_b32 s%d, s25, 11" % (42 + i))
        k.e("s_add_u32 s%d, s%d, %d" % (42 + i, 42 + i, XB + 1024 * i))
        dma.append((12, 12 + i, 51, 42 + i))
    k.e("s_mov_b32 s50, 0")
    k.e("s_mov_b32 s51, 0")
    k.e("s_waitcnt lgkmcnt(0)")
    k.srd(8, 6, 2048 * KD * 2, XOFF)
    k.srd(12, 4, KD * 1024 * 2)
    sp = Spec()
    sp.NS, sp.nst, sp.stage_bytes = NS, KD // BK, SB
    sp.dma = dma
    sp.sadv = [(50, 4096), (51, BK * 2048)]
    sp.s_wr, sp.s_rd, sp.s_cnt = 52, 53, 54
    gemm_prologue(k, sp)
    for tl in range(2):
        k.e("s_xor_b32 s30, s27, %d" % tl)
        k.e("s_lshl_b32 s30, s30, 2")
        k.e("s_add_u32 s30, s30, s26")
        k.e("s_lshl_b32 s30, s30, 10")
        k.e("v_add_u32 v%d, s30, v9" % (16 + tl))
    wfrag_lanepat(k, 3, 4, 1024)
    for nl in range(2):
        k.e("s_and_b32 s30, s26, 1")
        k.e("s_xor_b32 s30, s30, %d" % nl)
        k.e("s_lshl_b32 s31, s28, 1")
        k.e("s_add_u32 s30, s30, s31")
        k.e("s_lshl_b32 s30, s30, 8")
        k.e("s_lshl_b32 s31, s26, 12")
        k.e("s_add_u32 s30, s30, s31")
        k.e("s_add_u32 s30, s30, %d" % XB)
        k.e("v_add_u32 v%d, s30, v3" % (18 + nl))
    ACC = 64
    for i in range(64):
        k.e("v_mov_b32 v%d, 0" % (ACC + i))
    F0, F1 = 128, 144
    reads = [("ds_read_b128", 0, 16, 0),
             ("ds_read_b64_tr_b16", 8, 18, 0), ("ds_read_b64_tr_b16", 10, 18, 2048),
             ("ds_read_b64_tr_b16", 12, 19, 0), ("ds_read_b64_tr_b16", 14, 19, 2048),
             ("ds_read_b128", 4, 17, 0)]
    mf = [(ACC + 0, 8, 0, 2), (ACC + 16, 12, 0, 4), (ACC + 32, 8, 4, 5), (ACC + 48, 12, 4, 5)]
    sp.addr = [16, 17, 18, 19]
    sp.steps = [dict(reads=reads, mfma=mf)]
    sp.fset = [F0, F1]
    k.e("s_and_b32 s31, s26, 1")
    k.e("s_lshl_b32 s32, s28, 1")
    k.e("s_add_u32 s29, s31, s32")
    k.e("s_lshl_b32 s32, s22, 2")
    k.e("s_add_u32 s33, s29, s32")
    k.e("s_lshl_b32 s30, s23, 1")
    k.e("s_add_u32 s30, s30, s27")
    k.e("s_lshl_b32 s30, s30, 6")
    k.e("s_lshl_b32 s31, s33, 1")
    k.e("s_add_u32 s30, s30, s31")
    k.e("s_lshl_b32 s30, s30, 10")
    k.e("v_add_u32 v7, s30, v9")
    k.srd(16, 60, 2048 * 1024 * 2)
    k.srd(56, 6, 2048 * 1024 * 2, WS_H)

    def resid():
        if mode == "wo":
            k.e("s_lshl_b32 s30, s27, 5")
            k.e("s_add_u32 s30, s30, s24")
            k.e("v_and_b32 v3, 31, v2")
            k.e("v_add_u32 v3, s30, v3")
            k.e("v_lshlrev_b32 v6, 11, v3")
            k.e("s_lshl_b32 s32, s33, 6")
            k.e("v_add_u32 v6, s32, v6")
            k.e("v_lshrrev_b32 v5, 5, v2")
            k.e("v_lshl_add_u32 v6, v5, 3, v6")
            for q in range(4):
                k.e("buffer_load_dwordx2 v[%d:%d], v6, s[16:19], 0 offen offset:%d" % (32 + 2 * q, 33 + 2 * q, 16 * q))
            return 4
        else:
            for s in range(2):
                k.e("buffer_load_dwordx4 v[%d:%d], v7, s[56:59], 0 offen offset:%d" % (32 + 4 * s, 35 + 4 * s, 1024 * s))
            return 2
    sp.tail_hook = resid
    gemm_main(k, sp)
    for c in range(1, 4):
        k.e("s_xor_b32 s30, s26, %d" % c)
        k.e("s_lshl_b32 s34, s28, 2")
        k.e("s_add_u32 s30, s30, s34")
        k.e("s_mul_i32 s30, s30, 3")
        k.e("s_add_u32 s30, s30, %d" % (c - 1))
        k.e("s_lshl_b32 s30, s30, 12")
        k.e("v_add_u32 v%d, s30, v9" % (20 + c))
    k.e("s_lshl_b32 s34, s28, 2")
    k.e("s_add_u32 s30, s26, s34")
    k.e("s_mul_i32 s30, s30, 12288")
    k.e("v_add_u32 v20, s30, v9")
    k.e("v_mov_b32 v60, 0xffff0000")
    k.e("s_nop 4")
    k.e("s_barrier")
    for c in range(1, 4):
        for q in range(4):
            k.e("ds_write_b128 v%d, v[%d:%d] offset:%d" % (20 + c, ACC + 16 * c + 4 * q, ACC + 16 * c + 4 * q + 3, 1024 * q))
    k.e("s_waitcnt lgkmcnt(0)")
    k.e("s_barrier")
    for c in range(3):
        for q in range(4):
            k.e("ds_read_b128 v[%d:%d], v20 offset:%d" % (ACC + 16 + 16 * c + 4 * q, ACC + 16 + 16 * c + 4 * q + 3, 4096 * c + 1024 * q))
    k.e("s_waitcnt lgkmcnt(8)")
    for i in range(0, 16, 2):
        k.e(pk("v_pk_add_f32", ACC + i, ACC + i, ACC + 16 + i))
    k.e("s_waitcnt lgkmcnt(0)")
    for i in range(0, 16, 2):
        k.e(pk("v_pk_add_f32", ACC + 32 + i, ACC + 32 + i, ACC + 48 + i))
    for i in range(0, 16, 2):
        k.e(pk("v_pk_add_f32", ACC + i, ACC + i, ACC + 32 + i))
    k.e("s_waitcnt vmcnt(0)")
    T = ACC + 16
    R = ACC + 32
    for i in range(8):
        k.e("v_cvt_pk_bf16_f32 v%d, v%d, v%d" % (40 + i, ACC + 2 * i, ACC + 2 * i + 1))
    for i in range(8):
        k.e("v_lshlrev_b32 v%d, 16, v%d" % (T + 2 * i, 40 + i))
        k.e("v_and_b32 v%d, v60, v%d" % (T + 2 * i + 1, 40 + i))
        k.e("v_lshlrev_b32 v%d, 16, v%d" % (R + 2 * i, 32 + i))
        k.e("v_and_b32 v%d, v60, v%d" % (R + 2 * i + 1, 32 + i))
    for i in range(8):
        k.e(pk("v_pk_add_f32", T + 2 * i, T + 2 * i, R + 2 * i))
    for i in range(8):
        k.e("v_cvt_pk_bf16_f32 v%d, v%d, v%d" % (48 + i, T + 2 * i, T + 2 * i + 1))
    EX = 98304
    if mode == "wo":
        for s in range(2):
            k.e("buffer_store_dwordx4 v[%d:%d], v7, s[56:59], 0 offen offset:%d%s" % (48 + 4 * s, 51 + 4 * s, 1024 * s, WT))
        for i in range(8):
            k.e("v_lshlrev_b32 v%d, 16, v%d" % (T + 2 * i, 48 + i))
            k.e("v_and_b32 v%d, v60, v%d" % (T + 2 * i + 1, 48 + i))
        for i in range(8):
            k.e(pk("v_pk_mul_f32", R + 2 * i, T + 2 * i, T + 2 * i))
        for st_ in (8, 4, 2):
            for i in range(0, st_, 2):
                k.e(pk("v_pk_add_f32", T + i, T + i, T + st_ + i))
                k.e(pk("v_pk_add_f32", R + i, R + i, R + st_ + i))
        k.e("v_add_f32 v44, v%d, v%d" % (T, T + 1))
        k.e("v_add_f32 v45, v%d, v%d" % (R, R + 1))
        k.e("v_mov_b32 v46, v44")
        k.e("v_mov_b32 v47, v45")
        k.e("s_nop 1")
        k.e("v_permlane32_swap_b32 v44, v46")
        k.e("v_permlane32_swap_b32 v45, v47")
        k.e("s_nop 1")
        k.e("v_add_f32 v44, v44, v46")
        k.e("v_add_f32 v45, v45, v47")
        k.e("s_lshl_b32 s30, s27, 2")
        k.e("s_add_u32 s30, s30, s29")
        k.e("s_lshl_b32 s30, s30, 8")
        k.e("s_add_u32 s30, s30, %d" % EX)
        k.e("v_and_b32 v3, 31, v2")
        k.e("v_lshlrev_b32 v3, 3, v3")
        k.e("v_add_u32 v4, s30, v3")
        k.e("ds_write_b64 v4, v[44:45]")
        k.srd(16, 6, 8 * 2048 * 8, WS_ST)
        k.e("s_waitcnt lgkmcnt(0)")
        k.e("s_barrier")
        L_fin = k.newlab("fin")
        k.e("s_cmp_ge_u32 s25, 2")
        k.e("s_cbranch_scc1 %s" % L_fin)
        k.e("s_lshl_b32 s30, s25, 10")
        k.e("s_add_u32 s30, s30, %d" % EX)
        k.e("v_add_u32 v4, s30, v3")
        for j in range(4):
            k.e("ds_read_b64 v[%d:%d], v4 offset:%d" % (44 + 2 * j, 45 + 2 * j, 256 * j))
        k.e("s_lshl_b32 s30, s22, 14")
        k.e("s_lshl_b32 s31, s25, 5")
        k.e("s_add_u32 s31, s31, s24")
        k.e("s_lshl_b32 s31, s31, 3")
        k.e("s_add_u32 s30, s30, s31")
        k.e("v_add_u32 v3, s30, v3")
        k.e("s_waitcnt lgkmcnt(0)")
        k.e(pk("v_pk_add_f32", 44, 44, 46))
        k.e(pk("v_pk_add_f32", 48, 48, 50))
        k.e(pk("v_pk_add_f32", 44, 44, 48))
        k.e("v_cmp_gt_u32 vcc, 32, v2")
        k.e("s_and_saveexec_b64 s[36:37], vcc")
        k.e("buffer_store_dwordx2 v[44:45], v3, s[16:19], 0 offen%s" % WT)
        k.lab(L_fin)
    else:
        k.e("s_lshl_b32 s30, s27, 5")
        k.e("v_and_b32 v3, 31, v2")
        k.e("v_add_u32 v3, s30, v3")
        k.e("v_mul_u32_u24 v3, 272, v3")
        k.e("v_lshrrev_b32 v5, 5, v2")
        k.e("v_lshl_add_u32 v3, v5, 3, v3")
        k.e("s_lshl_b32 s30, s29, 6")
        k.e("s_add_u32 s30, s30, %d" % EX)
        k.e("v_add_u32 v3, s30, v3")
        for q in range(4):
            k.e("ds_write_b64 v3, v[%d:%d] offset:%d" % (48 + 2 * q, 49 + 2 * q, 16 * q))
        k.e("v_lshrrev_b32 v4, 4, v2")
        k.e("s_lshl_b32 s30, s25, 3")
        k.e("v_add_u32 v4, s30, v4")
        k.e("v_and_b32 v5, 15, v2")
        k.e("v_mul_u32_u24 v6, 272, v4")
        k.e("v_lshl_add_u32 v6, v5, 4, v6")
        k.e("v_add_u32 v6, %d, v6" % EX)
        k.e("v_add_u32 v4, s24, v4")
        k.e("v_lshlrev_b32 v4, 11, v4")
        k.e("v_lshl_add_u32 v4, v5, 4, v4")
        k.e("s_lshl_b32 s30, s22, 8")
        k.e("v_add_u32 v4, s30, v4")
        k.e("v_add_u32 v5, 8192, v4")
        k.e("s_waitcnt lgkmcnt(0)")
        k.e("s_barrier")
        k.e("ds_read_b128 v[32:35], v6")
        k.e("ds_read_b128 v[36:39], v6 offset:1088")
        k.e("s_waitcnt lgkmcnt(1)")
        k.e("buffer_store_dwordx4 v[32:35], v4, s[16:19], 0 offen%s" % WT)
        k.e("s_waitcnt lgkmcnt(0)")
        k.e("buffer_store_dwordx4 v[36:39], v5, s[16:19], 0 offen%s" % WT)
    k.stamp_store(3 if mode == "wo" else 5)
    k.lab(L_end)
    k.e("s_endpgm")
    return k, 160, (256, 512, NS * SB)


def gen_k3():
    k = KB("k3_glu_kernel")
    L_end = k.newlab("end")
    BK, NS = 32, 5
    XB = 16384
    GB = (BK // 4) * 7 * 128
    UOFF = XB + GB + 128
    SB = XB + 14592
    CSL = NS * SB
    SCR = CSL + 1024
    k.e("s_cmp_ge_u32 s2, 256")
    k.e("s_cbranch_scc1 %s" % L_end)
    k.e("s_load_dwordx4 s[60:63], s[0:1], %d" % KA_WG)
    k.e("s_load_dwordx2 s[6:7], s[0:1], %d" % KA_WS)
    k.e("s_load_dwordx2 s[70:71], s[0:1], %d" % KA_WD)
    k.e("s_and_b32 s20, s2, 7")
    k.e("s_lshr_b32 s21, s2, 3")
    k.e("s_lshr_b32 s23, s20, 2")
    k.e("s_lshl_b32 s23, s23, 2")
    k.e("s_and_b32 s24, s21, 3")
    k.e("s_add_u32 s23, s23, s24")
    k.e("s_and_b32 s22, s20, 3")
    k.e("s_lshl_b32 s22, s22, 3")
    k.e("s_lshr_b32 s24, s21, 2")
    k.e("s_add_u32 s22, s22, s24")
    k.e("s_lshl_b32 s24, s23, 8")
    wave_and_lane(k)
    dma = []
    k.e("v_lshlrev_b32 v9, 4, v2")
    k.e("s_lshl_b32 s29, s23, 3")
    k.e("s_add_u32 s29, s29, s25")
    k.e("s_lshl_b32 s30, s29, 16")
    k.e("v_add_u32 v10, s30, v9")
    k.e("v_add_u32 v11, 1024, v10")
    for i in range(2):
        k.e("s_lshl_b32 s%d, s25, 11" % (40 + i))
        k.e("s_add_u32 s%d, s%d, %d" % (40 + i, 40 + i, 1024 * i))
        dma.append((8, 10 + i, 50, 40 + i))
    k.e("s_lshl_b32 s31, s25, 3")
    k.e("v_lshrrev_b32 v3, 3, v2")
    k.e("v_add_u32 v3, s31, v3")
    k.e("v_mul_u32_u24 v4, 37, v3")
    k.e("v_lshrrev_b32 v4, 8, v4")
    k.e("v_mul_u32_u24 v5, 7, v4")
    k.e("v_sub_u32 v5, v3, v5")
    k.e("v_bfe_u32 v6, v2, 1, 2")
    k.e("v_lshl_add_u32 v6, v4, 2, v6")
    k.e("v_mul_u32_u24 v6, 7168, v6")
    k.e("v_lshl_add_u32 v6, v5, 5, v6")
    k.e("v_and_b32 v7, 1, v2")
    k.e("v_lshl_add_u32 v6, v7, 4, v6")
    k.e("s_mul_i32 s31, s22, 224")
    k.e("v_add_u32 v12, s31, v6")
    k.e("s_mul_i32 s31, s2, 28672")
    k.e("v_add_u32 v7, s31, v9")
    k.e("s_lshl_b32 s42, s25, 10")
    k.e("s_add_u32 s43, s42, %d" % UOFF)
    k.e("s_add_u32 s42, s42, %d" % XB)
    k.e("s_mov_b32 s56, %d" % (BK * 7168))
    k.e("s_cmp_eq_u32 s25, 7")
    k.e("s_cselect_b32 s56, 1024, s56")
    k.e("s_cselect_b32 s57, 0, -1")
    k.e("s_cselect_b32 s42, %d, s42" % SCR)
    k.e("s_cselect_b32 s43, %d, s43" % (SCR + 1024))
    k.e("s_cselect_b64 vcc, -1, 0")
    k.e("s_nop 1")
    k.e("v_cndmask_b32 v12, v12, v7, vcc")
    dma.append((12, 12, 51, 42))
    dma.append((16, 12, 51, 43))
    k.e("s_mov_b32 s50, 0")
    k.e("s_mov_b32 s51, 0")
    k.e("s_waitcnt lgkmcnt(0)")
    k.srd(8, 6, 2048 * 1024 * 2, WS_H)
    k.e("s_cmp_eq_u32 s25, 7")
    k.e("s_cselect_b32 s72, s70, s60")
    k.e("s_cselect_b32 s73, s71, s61")
    k.e("s_cselect_b32 s74, s70, s62")
    k.e("s_cselect_b32 s75, s71, s63")
    k.srd(12, 72, 1024 * 3584 * 2)
    k.srd(16, 74, 1024 * 3584 * 2)
    k.e("s_cmp_eq_u32 s25, 7")
    k.e("s_cselect_b32 s14, 0, s14")
    k.e("s_cselect_b32 s18, 0, s18")
    sp = Spec()
    sp.NS, sp.nst, sp.stage_bytes = NS, 1024 // BK, SB
    sp.dma = dma
    sp.dma_abs = {2: 57, 3: 57}
    sp.sadv = [(50, 2048), (51, "s56")]
    sp.s_wr, sp.s_rd, sp.s_cnt = 52, 53, 54
    gemm_prologue(k, sp)
    k.e("s_mov_b32 s14, %d" % (1024 * 3584 * 2))
    k.e("s_cmp_eq_u32 s25, 7")
    k.e("s_cselect_b32 s51, 0, s51")
    k.e("s_lshl_b32 s30, s25, 11")
    k.e("v_add_u32 v14, s30, v9")
    k.e("v_bfe_u32 v3, v2, 2, 2")
    k.e("v_lshlrev_b32 v3, 5, v3")
    k.e("v_and_b32 v4, 3, v2")
    k.e("v_lshl_add_u32 v3, v4, 3, v3")
    k.e("v_lshrrev_b32 v4, 5, v2")
    k.e("v_mul_u32_u24 v4, %d, v4" % (7 * 128))
    k.e("v_add_u32 v3, v3, v4")
    k.e("v_bfe_u32 v4, v2, 4, 1")
    k.e("v_mul_u32_u24 v4, %d, v4" % (UOFF - XB))
    k.e("v_add_u32 v3, v3, v4")
    k.e("v_add_u32 v16, %d, v3" % XB)
    ACC = 64
    for i in range(112):
        k.e("v_mov_b32 v%d, 0" % (ACC + i))
    F0, F1 = 176, 208
    steps = []
    for jj in range(2):
        reads = [("ds_read_b128", 0, 14, 1024 * jj)]
        mf = []
        for t in range(7):
            for i in range(2):
                reads.append(("ds_read_b64_tr_b16", 4 + 4 * t + 2 * i, 16, ((4 * jj + 2 * i) * 7 + t) * 128))
            mf.append((ACC + 16 * t, 4 + 4 * t, 0, 2 * t + 2))
        steps.append(dict(reads=reads, mfma=mf))
    sp.addr = [14, 16]
    sp.steps = steps
    sp.fset = [F0, F1]
    k.srd(64, 6, 8 * 2048 * 8, WS_ST)
    k.srd(76, 6, 2048 * 3584 * 2, WS_HH)
    k.srd(68, 6, 2 * 3584 * 4, WS_CS2)
    S0 = 24

    def early():
        k.e("s_lshl_b32 s30, s25, 5")
        k.e("s_add_u32 s30, s30, s24")
        k.e("v_and_b32 v3, 31, v2")
        k.e("v_add_u32 v3, s30, v3")
        k.e("v_lshlrev_b32 v4, 3, v3")
        k.e("v_lshrrev_b32 v5, 5, v2")
        k.e("v_lshl_add_u32 v4, v5, 16, v4")
        k.e("s_mov_b32 s31, 0")
        for i in range(4):
            k.e("buffer_load_dwordx2 v[%d:%d], v4, s[64:67], s31 offen" % (S0 + 2 * i, S0 + 2 * i + 1))
            k.e("s_add_u32 s31, s31, 16384")
        k.e("v_cmp_gt_u32 vcc, 28, v2")
        k.e("v_subrev_u32 v6, 28, v2")
        k.e("v_cndmask_b32 v6, v6, v2, vcc")
        k.e("v_lshlrev_b32 v6, 4, v6")
        k.e("v_mov_b32 v7, %d" % (3584 * 4))
        k.e("v_mov_b32 v8, 0")
        k.e("v_cndmask_b32 v7, v7, v8, vcc")
        k.e("v_add_u32 v6, v6, v7")
        k.e("s_mul_i32 s31, s22, 448")
        k.e("v_add_u32 v6, s31, v6")
        k.e("buffer_load_dwordx4 v[32:35], v6, s[68:71], 0 offen")
        return 5
    sp.tail_hook = early
    gemm_main(k, sp)
    k.e("s_waitcnt vmcnt(0)")
    k.e("v_add_u32 v6, %d, v9" % CSL)
    k.e("v_cmp_gt_u32 vcc, 56, v2")
    k.e("s_and_saveexec_b64 s[36:37], vcc")
    k.e("ds_write_b128 v6, v[32:35]")
    k.e("s_mov_b64 exec, s[36:37]")
    k.e(pk("v_pk_add_f32", S0, S0, S0 + 2))
    k.e(pk("v_pk_add_f32", S0 + 4, S0 + 4, S0 + 6))
    k.e(pk("v_pk_add_f32", S0, S0, S0 + 4))
    k.e("v_mov_b32 v8, v%d" % S0)
    k.e("v_mov_b32 v7, v%d" % (S0 + 1))
    k.e("v_mov_b32 v6, v8")
    k.e("v_mov_b32 v10, v7")
    k.e("s_nop 1")
    k.e("v_permlane32_swap_b32 v8, v6")
    k.e("v_permlane32_swap_b32 v7, v10")
    k.e("s_nop 1")
    k.e("v_add_f32 v8, v8, v6")
    k.e("v_add_f32 v7, v7, v10")
    k.e("s_waitcnt lgkmcnt(0)")
    k.e("s_barrier")
    k.e("v_lshrrev_b32 v6, 5, v2")
    k.e("v_lshlrev_b32 v5, 4, v6")
    k.e("v_add_u32 v5, %d, v5" % CSL)
    C0 = 176
    T = 208

    def csread(tt):
        cbb = C0 + (tt & 1) * 16
        for q in range(2):
            k.e("ds_read_b128 v[%d:%d], v5 offset:%d" % (cbb + 4 * q, cbb + 4 * q + 3, tt * 64 + q * 32))
            k.e("ds_read_b128 v[%d:%d], v5 offset:%d" % (cbb + 8 + 4 * q, cbb + 8 + 4 * q + 3, 448 + tt * 64 + q * 32))
    csread(0)
    csread(1)
    k.e("v_mul_f32 v8, 0x3a800000, v8")
    k.e("v_mul_f32 v7, 0x3a800000, v7")
    k.e("v_fma_f32 v7, -v8, v8, v7")
    k.e("v_max_f32 v7, 0, v7")
    round_bf16(k, 8, 8)
    round_bf16(k, 7, 7)
    k.e("v_add_f32 v7, 0x3727c5ac, v7")
    round_bf16(k, 7, 7)
    k.e("v_sqrt_f32 v7, v7")
    k.e("s_nop 0")
    round_bf16(k, 7, 7)
    k.e("v_rcp_f32 v54, v7")
    k.e("s_nop 0")
    k.e("v_mov_b32 v55, v54")
    k.e("v_mul_f32 v8, v8, v54")
    k.e("v_sub_f32 v52, 0, v8")
    k.e("v_mov_b32 v53, v52")
    k.e("s_mul_i32 s31, s29, 224")
    k.e("s_mul_i32 s30, s22, 7")
    k.e("s_add_u32 s31, s31, s30")
    k.e("s_lshl_b32 s31, s31, 10")
    k.e("v_add_u32 v57, s31, v9")
    k.e("v_add_u32 v56, 4096, v57")
    c1 = -2.0 * math.log2(math.e) * math.sqrt(2.0 / math.pi)
    c2 = c1 * 0.044715
    k.e("v_mov_b32 v60, 0x%08x" % f2u(c1))
    k.e("v_mov_b32 v61, 0x%08x" % f2u(c1))
    k.e("v_mov_b32 v62, 0x%08x" % f2u(c2))
    k.e("v_mov_b32 v63, 0x%08x" % f2u(c2))
    k.e("v_mov_b32 v58, 1.0")
    k.e("v_mov_b32 v59, 1.0")
    for t in range(7):
        cb = C0 + (t & 1) * 16
        k.e("s_waitcnt lgkmcnt(%d)" % (4 if t < 6 else 0))
        A = ACC + 16 * t
        for j in range(8):
            k.e(pk("v_pk_mul_f32", T + 2 * j, cb + 2 * j, 52))
        for j in range(8):
            k.e(pk("v_pk_fma_f32", A + 2 * j, A + 2 * j, 54, T + 2 * j))
        if t + 2 < 7:
            csread(t + 2)
        for j in range(4):
            k.e(pk("v_pk_mul_f32", T + 2 * j, A + 2 * j, A + 2 * j))
        for j in range(4):
            k.e(pk("v_pk_fma_f32", T + 2 * j, T + 2 * j, 62, 60))
        for j in range(4):
            k.e(pk("v_pk_mul_f32", T + 2 * j, T + 2 * j, A + 2 * j))
        for j in range(8):
            k.e("v_exp_f32 v%d, v%d" % (T + j, T + j))
        for j in range(4):
            k.e(pk("v_pk_mul_f32", A + 2 * j, A + 2 * j, A + 8 + 2 * j))
        for j in range(4):
            k.e(pk("v_pk_add_f32", T + 2 * j, T + 2 * j, 58))
        for j in range(8):
            k.e("v_rcp_f32 v%d, v%d" % (T + j, T + j))
        k.e("s_nop 0")
        for j in range(4):
            k.e(pk("v_pk_mul_f32", A + 2 * j, A + 2 * j, T + 2 * j))
        for j in range(4):
            k.e("v_cvt_pk_bf16_f32 v%d, v%d, v%d" % (40 + 4 * (t & 1) + j, A + 2 * j, A + 2 * j + 1))
        k.e("buffer_store_dwordx4 v[%d:%d], v%d, s[76:79], 0 offen offset:%d%s" % (40 + 4 * (t & 1), 43 + 4 * (t & 1), 57 if t < 4 else 56, 1024 * (t & 3), WT))
    k.stamp_store(4)
    k.lab(L_end)
    k.e("s_endpgm")
    return k, 240, (256, 512, SCR + 2048)


WS_P = 40 * MB


def gen_down2():
    k = KB("k4_down_kernel")
    L_end = k.newlab("end")
    BK, NS = 64, 5
    XB = 16384
    WB = 16384
    SB = XB + WB
    k.e("s_cmp_ge_u32 s2, 256")
    k.e("s_cbranch_scc1 %s" % L_end)
    k.e("s_load_dwordx2 s[4:5], s[0:1], %d" % KA_WD)
    k.e("s_load_dwordx2 s[6:7], s[0:1], %d" % KA_WS)
    k.e("s_load_dwordx4 s[60:63], s[0:1], %d" % KA_OUT)
    k.e("s_and_b32 s20, s2, 7")
    k.e("s_lshr_b32 s21, s2, 3")
    k.e("s_and_b32 s38, s21, 1")
    k.e("s_lshr_b32 s21, s21, 1")
    k.e("s_and_b32 s22, s20, 1")
    k.e("s_lshl_b32 s22, s22, 2")
    k.e("s_and_b32 s23, s21, 3")
    k.e("s_add_u32 s22, s22, s23")
    k.e("s_lshr_b32 s23, s20, 1")
    k.e("s_lshl_b32 s23, s23, 2")
    k.e("s_lshr_b32 s24, s21, 2")
    k.e("s_add_u32 s23, s23, s24")
    k.e("s_lshl_b32 s24, s23, 7")
    wave_and_lane(k)
    k.e("s_lshr_b32 s26, s25, 2")
    k.e("s_bfe_u32 s27, s25, 0x10001")
    k.e("s_and_b32 s28, s25, 1")
    dma = []
    k.e("v_lshlrev_b32 v9, 4, v2")
    k.e("s_lshl_b32 s30, s23, 2")
    k.e("s_lshr_b32 s31, s25, 1")
    k.e("s_add_u32 s30, s30, s31")
    k.e("s_mul_i32 s30, s30, 224")
    k.e("s_mul_i32 s31, s38, 112")
    k.e("s_add_u32 s30, s30, s31")
    k.e("s_lshl_b32 s31, s28, 1")
    k.e("s_add_u32 s30, s30, s31")
    k.e("s_lshl_b32 s30, s30, 10")
    k.e("v_add_u32 v10, s30, v9")
    k.e("v_add_u32 v11, 1024, v10")
    for i in range(2):
        k.e("s_lshl_b32 s%d, s25, 11" % (40 + i))
        k.e("s_add_u32 s%d, s%d, %d" % (40 + i, 40 + i, 1024 * i))
        dma.append((8, 10 + i, 50, 40 + i))
    for i in range(2):
        k.e("s_lshl_b32 s30, s25, 3")
        k.e("s_add_u32 s30, s30, %d" % (4 * i))
        k.e("v_bfe_u32 v6, v2, 2, 2")
        k.e("v_add_u32 v6, s30, v6")
        k.e("v_lshlrev_b32 v6, 11, v6")
        k.e("v_lshrrev_b32 v7, 4, v2")
        k.e("v_lshl_add_u32 v6, v7, 6, v6")
        k.e("v_and_b32 v7, 3, v2")
        k.e("v_lshl_add_u32 v6, v7, 4, v6")
        k.e("s_lshl_b32 s31, s22, 8")
        k.e("v_add_u32 v%d, s31, v6" % (12 + i))
        k.e("s_lshl_b32 s%d, s25, 11" % (42 + i))
        k.e("s_add_u32 s%d, s%d, %d" % (42 + i, 42 + i, XB + 1024 * i))
        dma.append((12, 12 + i, 51, 42 + i))
    k.e("s_mov_b32 s50, 0")
    k.e("s_mul_i32 s51, s38, %d" % (1792 * 2048))
    k.e("s_waitcnt lgkmcnt(0)")
    k.srd(8, 6, 2048 * 3584 * 2, WS_HH)
    k.srd(12, 4, 3584 * 1024 * 2)
    sp = Spec()
    sp.NS, sp.nst, sp.stage_bytes = NS, 1792 // BK, SB
    sp.dma = dma
    sp.sadv = [(50, 4096), (51, BK * 2048)]
    sp.s_wr, sp.s_rd, sp.s_cnt = 52, 53, 54
    k.srd(64, 6, 32768, WS_FLAG)
    k.e("s_lshl_b32 s33, s23, 3")
    k.e("s_add_u32 s33, s33, s22")
    k.e("s_lshl_b32 s34, s33, 8")
    k.e("v_mov_b32 v20, s34")
    k.e("v_mov_b32 v21, 1")
    L_na0 = k.newlab("noarr0")
    k.e("s_cmp_lg_u32 s25, 0")
    k.e("s_cbranch_scc1 %s" % L_na0)
    k.e("s_mov_b64 exec, 1")
    k.e("buffer_atomic_add v21, v20, s[64:67], 0 offen sc0 sc1")
    k.e("s_mov_b64 exec, -1")
    k.lab(L_na0)
    gemm_prologue(k, sp)
    for tl in range(2):
        k.e("s_xor_b32 s30, s26, %d" % tl)
        k.e("s_lshl_b32 s31, s27, 1")
        k.e("s_add_u32 s30, s30, s31")
        k.e("s_lshl_b32 s30, s30, 2")
        k.e("s_lshl_b32 s31, s26, 1")
        k.e("s_add_u32 s30, s30, s31")
        k.e("s_lshl_b32 s30, s30, 10")
        k.e("v_add_u32 v%d, s30, v9" % (16 + tl))
    wfrag_lanepat(k, 3, 4, 1024)
    k.e("s_lshl_b32 s30, s26, 13")
    k.e("s_lshl_b32 s31, s28, 9")
    k.e("s_add_u32 s30, s30, s31")
    k.e("s_add_u32 s30, s30, %d" % XB)
    k.e("v_add_u32 v18, s30, v3")
    ACC = 64
    for i in range(64):
        k.e("v_mov_b32 v%d, 0" % (ACC + i))
    F0, F1 = 128, 144
    steps = []
    for jj in range(2):
        reads = [("ds_read_b128", 0, 16, 1024 * jj),
                 ("ds_read_b64_tr_b16", 8, 18, 4096 * jj), ("ds_read_b64_tr_b16", 10, 18, 4096 * jj + 2048),
                 ("ds_read_b64_tr_b16", 12, 18, 4096 * jj + 256), ("ds_read_b64_tr_b16", 14, 18, 4096 * jj + 2048 + 256),
                 ("ds_read_b128", 4, 17, 1024 * jj)]
        mf = [(ACC + 0, 8, 0, 2), (ACC + 16, 12, 0, 4), (ACC + 32, 8, 4, 5), (ACC + 48, 12, 4, 5)]
        steps.append(dict(reads=reads, mfma=mf))
    sp.addr = [16, 17, 18]
    sp.steps = steps
    sp.fset = [F0, F1]
    k.e("s_lshl_b32 s29, s27, 1")
    k.e("s_add_u32 s29, s29, s26")
    k.e("s_lshl_b32 s30, s23, 2")
    k.e("s_add_u32 s30, s30, s29")
    k.e("s_lshl_b32 s30, s30, 6")
    k.e("s_lshl_b32 s31, s22, 3")
    k.e("s_add_u32 s30, s30, s31")
    k.e("s_lshl_b32 s31, s28, 2")
    k.e("s_add_u32 s30, s30, s31")
    k.e("s_lshl_b32 s30, s30, 10")
    k.e("v_add_u32 v7, s30, v9")
    k.srd(16, 60, 2048 * 1024 * 2)
    k.srd(56, 6, 2048 * 1024 * 2, WS_H)
    k.srd(68, 6, 128 * 65536, WS_P)

    def resid():
        for s_ in range(4):
            k.e("buffer_load_dwordx4 v[%d:%d], v7, s[56:59], 0 offen offset:%d" % (32 + 4 * s_, 35 + 4 * s_, 1024 * s_))
        return 4
    sp.tail_hook = resid
    gemm_main(k, sp)
    k.e("s_lshl_b32 s30, s25, 13")
    k.e("v_add_u32 v4, s30, v9")
    k.e("s_xor_b32 s31, s25, 4")
    k.e("s_lshl_b32 s31, s31, 13")
    k.e("v_add_u32 v5, s31, v9")
    k.e("v_mov_b32 v60, 0xffff0000")
    k.e("s_mov_b32 s35, 0")
    k.e("s_mov_b32 s36, 1")
    k.e("s_lshl_b32 s30, s33, 16")
    k.e("s_lshl_b32 s31, s25, 13")
    k.e("s_add_u32 s30, s30, s31")
    k.e("v_add_u32 v22, s30, v9")
    k.e("v_add_u32 v23, 4096, v22")
    k.e("s_barrier")
    for q in range(8):
        k.e("ds_write_b128 v4, v[%d:%d] offset:%d" % (ACC + 32 + 4 * q, ACC + 35 + 4 * q, 1024 * q))
    L_na = k.newlab("noarr")
    k.e("s_cmp_lg_u32 s25, 0")
    k.e("s_cbranch_scc1 %s" % L_na)
    k.e("s_mov_b64 exec, 1")
    k.e("v_mov_b32 v24, %d" % 131072)
    k.e("ds_write_b32 v24, v21")
    k.e("s_mov_b64 exec, -1")
    k.lab(L_na)
    k.e("s_waitcnt lgkmcnt(0)")
    k.e("s_barrier")
    for q in range(8):
        k.e("ds_read_b128 v[%d:%d], v5 offset:%d" % (ACC + 32 + 4 * q, ACC + 35 + 4 * q, 1024 * q))
    k.e("v_mov_b32 v24, %d" % 131072)
    k.e("ds_read_b32 v25, v24")
    k.e("s_waitcnt lgkmcnt(0)")
    for i in range(0, 32, 2):
        k.e(pk("v_pk_add_f32", ACC + i, ACC + i, ACC + 32 + i))
    k.e("v_readfirstlane_b32 s37, v25")
    k.e("s_nop 3")
    k.e("s_lshr_b32 s37, s37, s35")
    k.e("s_and_b32 s37, s37, 0xff")
    L_second = k.newlab("second")
    k.e("s_cmp_lg_u32 s37, 0")
    k.e("s_cbranch_scc1 %s" % L_second)
    for q in range(8):
        k.e("buffer_store_dwordx4 v[%d:%d], v%d, s[68:71], 0 offen offset:%d sc1" % (ACC + 4 * q, ACC + 4 * q + 3, 22 if q < 4 else 23, 1024 * (q & 3)))
    k.e("s_waitcnt vmcnt(0)")
    k.e("s_barrier")
    L_fin = k.newlab("fin")
    k.e("s_cmp_lg_u32 s25, 0")
    k.e("s_cbranch_scc1 %s" % L_fin)
    k.e("s_mov_b64 exec, 1")
    k.e("v_mov_b32 v21, s36")
    k.e("buffer_atomic_add v21, v20, s[64:67], 0 offen offset:128 sc1")
    k.e("s_mov_b64 exec, -1")
    k.e("s_branch %s" % L_fin)
    k.lab(L_second)
    L_wait = k.newlab("wait")
    L_go = k.newlab("go")
    k.e("s_cmp_lg_u32 s25, 0")
    k.e("s_cbranch_scc1 %s" % L_go)
    k.lab(L_wait)
    k.e("buffer_load_dword v25, v20, s[64:67], 0 offen offset:128 sc1")
    k.e("s_waitcnt vmcnt(0)")
    k.e("v_readfirstlane_b32 s37, v25")
    k.e("s_nop 3")
    k.e("s_and_b32 s37, s37, s36")
    k.e("s_cmp_lg_u32 s37, 0")
    k.e("s_cbranch_scc1 %s" % L_go)
    k.e("s_sleep 2")
    k.e("s_branch %s" % L_wait)
    k.lab(L_go)
    k.e("s_barrier")
    for q in range(8):
        k.e("buffer_load_dwordx4 v[%d:%d], v%d, s[68:71], 0 offen offset:%d sc1" % (ACC + 32 + 4 * q, ACC + 35 + 4 * q, 22 if q < 4 else 23, 1024 * (q & 3)))
    EX = 65536
    k.e("s_lshl_b32 s30, s29, 5")
    k.e("v_and_b32 v3, 31, v2")
    k.e("v_add_u32 v3, s30, v3")
    k.e("v_mul_u32_u24 v3, 272, v3")
    k.e("v_lshrrev_b32 v5, 5, v2")
    k.e("v_lshl_add_u32 v3, v5, 3, v3")
    k.e("s_lshl_b32 s30, s28, 7")
    k.e("s_add_u32 s30, s30, %d" % EX)
    k.e("v_add_u32 v3, s30, v3")
    k.e("v_lshrrev_b32 v4, 4, v2")
    k.e("s_lshl_b32 s30, s25, 4")
    k.e("v_add_u32 v4, s30, v4")
    k.e("v_and_b32 v5, 15, v2")
    k.e("v_mul_u32_u24 v6, 272, v4")
    k.e("v_lshl_add_u32 v6, v5, 4, v6")
    k.e("v_add_u32 v6, %d, v6" % EX)
    k.e("v_add_u32 v4, s24, v4")
    k.e("v_lshlrev_b32 v4, 11, v4")
    k.e("v_lshl_add_u32 v4, v5, 4, v4")
    k.e("s_lshl_b32 s30, s22, 8")
    k.e("v_add_u32 v4, s30, v4")
    T = 128
    R = 144
    for nl in range(2):
        k.e("s_waitcnt vmcnt(%d)" % (4 - 4 * nl))
        A = ACC + 16 * nl
        for i in range(0, 16, 2):
            k.e(pk("v_pk_add_f32", A + i, A + i, A + 32 + i))
        for i in range(8):
            k.e("v_cvt_pk_bf16_f32 v%d, v%d, v%d" % (48 + i, A + 2 * i, A + 2 * i + 1))
        for i in range(8):
            k.e("v_lshlrev_b32 v%d, 16, v%d" % (T + 2 * i, 48 + i))
            k.e("v_and_b32 v%d, v60, v%d" % (T + 2 * i + 1, 48 + i))
            k.e("v_lshlrev_b32 v%d, 16, v%d" % (R + 2 * i, 32 + 8 * nl + i))
            k.e("v_and_b32 v%d, v60, v%d" % (R + 2 * i + 1, 32 + 8 * nl + i))
        for i in range(8):
            k.e(pk("v_pk_add_f32", T + 2 * i, T + 2 * i, R + 2 * i))
        for i in range(8):
            k.e("v_cvt_pk_bf16_f32 v%d, v%d, v%d" % (48 + i, T + 2 * i, T + 2 * i + 1))
        for q in range(4):
            k.e("ds_write_b64 v3, v[%d:%d] offset:%d" % (48 + 2 * q, 49 + 2 * q, 64 * nl + 16 * q))
        if nl == 0:
            k.e("s_nop 1")
    k.e("s_waitcnt lgkmcnt(0)")
    k.e("s_barrier")
    for i in range(4):
        k.e("ds_read_b128 v[%d:%d], v6 offset:%d" % (32 + 4 * i, 35 + 4 * i, 1088 * i))
    k.e("s_mov_b32 s30, 0")
    for i in range(4):
        k.e("s_waitcnt lgkmcnt(%d)" % (3 - i))
        k.e("buffer_store_dwordx4 v[%d:%d], v4, s[16:19], s30 offen%s" % (32 + 4 * i, 35 + 4 * i, WT))
        k.e("s_add_u32 s30, s30, 8192")
    k.lab(L_fin)
    k.stamp_store(5)
    k.lab(L_end)
    k.e("s_endpgm")
    return k, 160, (256, 512, NS * SB)


def main():
    kernels = [gen_k0(), gen_k1() if os.environ.get('K1A') else gen_k1b(), gen_k15(), gen_proj("k2_wo_kernel", "wo"), gen_k3(),
               gen_down2() if os.environ.get("NEWK4") else gen_proj("k4_down_kernel", "down")]
    hdr = open(REF).read().split("\n")
    out = []
    for ln in hdr:
        if ln.startswith("; @launch"):
            break
        out.append(ln)
    for k, vg, (g, b, lds) in kernels:
        out.append("; @launch kernel=%s grid=(%d,1,1) block=(%d,1,1) lds=%d" % (k.name, g, b, lds))
    out.append('.amdgcn_target "amdgcn-amd-amdhsa--gfx950"')
    out.append(".text")
    descs = []
    for k, vg, _ in kernels:
        t, d = k.text(vg)
        out.append(t)
        descs.append(d)
    out.append('.section .rodata,"a"')
    for d in descs:
        out.append(".p2align 6")
        out.append(d)
    dst = os.environ.get("DST", "stamp.s" if STAMP else OUT)
    open(dst, "w").write("\n".join(out) + "\n")
    print("wrote", dst, sum(len(k.lines) for k, _, _ in kernels), "lines")


if __name__ == "__main__":
    main()
```

```python
import os, math, struct

NAME = "sequential_preLN__linear_attn_block__glu_gated_geglu__prompt"
OUT = "cdna_kernels/%s.s" % NAME
REF = OUT + ".ref"

MB = 1 << 20
WS_XN = 0 * MB
WS_PQ = 4 * MB
WS_KVP = 8 * MB
WS_ZP = 10 * MB
WS_CS = 11 * MB
WS_CS2 = 11 * MB + 512 * 1024
WS_ST = 12 * MB
WS_O = 16 * MB
WS_H = 20 * MB
WS_HH = 24 * MB
WS_FLAG = 13 * MB
WS_SIZE = 268435456

KA_X, KA_WQKV, KA_WO, KA_BX, KA_WG, KA_WU, KA_WD, KA_OUT, KA_DBG, KA_WS = [8 * i for i in range(10)]

STAMP = bool(os.environ.get("STAMP"))
WT = os.environ.get("WT", " sc1")
WS_STAMP = 128 * MB
f2u = lambda f: struct.unpack("<I", struct.pack("<f", f))[0]


class KB:
    def __init__(self, name):
        self.name = name
        self.lines = []
        self.nlab = 0
        self.nstamp = 0

    def stamp(self):
        if not STAMP:
            return
        i = self.nstamp
        self.nstamp += 1
        self.e("s_memtime s[%d:%d]" % (80 + 2 * i, 81 + 2 * i))
        if i == 0:
            self.e("s_memrealtime s[92:93]")
        self.e("s_waitcnt lgkmcnt(0)")

    def stamp_store(self, kidx):
        if not STAMP:
            return
        self.stamp()
        self.e("s_memrealtime s[94:95]")
        self.e("s_waitcnt lgkmcnt(0)")
        self.e("s_mov_b64 exec, -1")
        self.srd(76, 6, 1 << 20, WS_STAMP)
        self.e("s_lshl_b32 s98, s2, 8")
        self.e("s_lshl_b32 s97, s25, 5")
        self.e("s_add_u32 s98, s98, s97")
        self.e("s_add_u32 s98, s98, %d" % (kidx * 65536))
        self.e("v_mov_b32 v1, s98")
        for i in range(self.nstamp):
            self.e("v_mov_b32 v2, s%d" % (80 + 2 * i))
            self.e("buffer_store_dword v2, v1, s[76:79], 0 offen offset:%d" % (4 * i))
        for i, sr in enumerate((92, 94)):
            self.e("v_mov_b32 v2, s%d" % sr)
            self.e("buffer_store_dword v2, v1, s[76:79], 0 offen offset:%d" % (16 + 4 * i))

    def e(self, s):
        self.lines.append("    " + s)

    def lab(self, s):
        self.lines.append(s + ":")

    def newlab(self, s):
        self.nlab += 1
        return "L_%s_%s_%d" % (self.name, s, self.nlab)

    def srd(self, sd, sbase, nbytes, off=0):
        if off:
            self.e("s_add_u32 s%d, s%d, 0x%x" % (sd, sbase, off))
            self.e("s_addc_u32 s%d, s%d, 0" % (sd + 1, sbase + 1))
            self.e("s_and_b32 s%d, s%d, 0xffff" % (sd + 1, sd + 1))
        else:
            self.e("s_mov_b32 s%d, s%d" % (sd, sbase))
            self.e("s_and_b32 s%d, s%d, 0xffff" % (sd + 1, sbase + 1))
        self.e("s_mov_b32 s%d, 0x%x" % (sd + 2, nbytes))
        self.e("s_mov_b32 s%d, 0x00020000" % (sd + 3))

    def text(self, vgprs, sgprs=102):
        acc = (vgprs + 3) // 4 * 4
        out = [".globl %s" % self.name, ".p2align 8", ".type %s,@function" % self.name, "%s:" % self.name]
        out += self.lines
        return "\n".join(out), """.amdhsa_kernel %s
  .amdhsa_next_free_vgpr %d
  .amdhsa_next_free_sgpr %d
  .amdhsa_accum_offset %d
  .amdhsa_group_segment_fixed_size 0
  .amdhsa_kernarg_size 80
  .amdhsa_user_sgpr_count 2
  .amdhsa_user_sgpr_kernarg_segment_ptr 1
  .amdhsa_system_sgpr_workgroup_id_x 1
.end_amdhsa_kernel""" % (self.name, vgprs, sgprs, acc)


def wave_reduce_sum(k, v, stmp):
    k.e("s_nop 1")
    k.e("v_add_f32_dpp v%d, v%d, v%d quad_perm:[1,0,3,2] row_mask:0xf bank_mask:0xf" % (v, v, v))
    k.e("s_nop 1")
    k.e("v_add_f32_dpp v%d, v%d, v%d quad_perm:[2,3,0,1] row_mask:0xf bank_mask:0xf" % (v, v, v))
    k.e("s_nop 1")
    k.e("v_add_f32_dpp v%d, v%d, v%d row_half_mirror row_mask:0xf bank_mask:0xf" % (v, v, v))
    k.e("s_nop 1")
    k.e("v_add_f32_dpp v%d, v%d, v%d row_mirror row_mask:0xf bank_mask:0xf" % (v, v, v))
    k.e("s_nop 1")
    for i in range(4):
        k.e("v_readlane_b32 s%d, v%d, %d" % (stmp + i, v, 16 * i))
    k.e("s_nop 1")
    k.e("v_mov_b32 v%d, s%d" % (v, stmp))
    k.e("v_add_f32 v%d, s%d, v%d" % (v, stmp + 1, v))
    k.e("v_add_f32 v%d, s%d, v%d" % (v, stmp + 2, v))
    k.e("v_add_f32 v%d, s%d, v%d" % (v, stmp + 3, v))


def round_bf16(k, vd, vs):
    k.e("v_cvt_pk_bf16_f32 v%d, v%d, v%d" % (vd, vs, vs))
    k.e("v_lshlrev_b32 v%d, 16, v%d" % (vd, vd))


def pk(op, d, a, b, c=None):
    s = "%s v[%d:%d], v[%d:%d], v[%d:%d]" % (op, d, d + 1, a, a + 1, b, b + 1)
    if c is not None:
        s += ", v[%d:%d]" % (c, c + 1)
    return s


def wave_and_lane(k):
    k.e("v_lshrrev_b32 v1, 6, v0")
    k.e("v_and_b32 v2, 63, v0")
    k.e("s_nop 0")
    k.e("v_readfirstlane_b32 s25, v1")


def wfrag_lanepat(k, vd, vt, hh_stride):
    k.e("v_bfe_u32 v%d, v2, 2, 2" % vd)
    k.e("v_lshlrev_b32 v%d, 6, v%d" % (vd, vd))
    k.e("v_bfe_u32 v%d, v2, 4, 1" % vt)
    k.e("v_lshl_add_u32 v%d, v%d, 5, v%d" % (vd, vt, vd))
    k.e("v_and_b32 v%d, 3, v2" % vt)
    k.e("v_lshl_add_u32 v%d, v%d, 3, v%d" % (vd, vt, vd))
    k.e("v_lshrrev_b32 v%d, 5, v2" % vt)
    k.e("v_mul_u32_u24 v%d, %d, v%d" % (vt, hh_stride, vt))
    k.e("v_add_u32 v%d, v%d, v%d" % (vd, vd, vt))


def emit_colsum(k, L_end, sidx):
    k.e("s_cmp_ge_u32 s%d, 112" % sidx)
    k.e("s_cselect_b32 s28, s62, s60")
    k.e("s_cselect_b32 s29, s63, s61")
    k.e("s_cselect_b32 s30, 112, 0")
    k.e("s_cselect_b32 s38, %d, 0" % (3584 * 4))
    k.e("s_sub_u32 s31, s%d, s30" % sidx)
    k.e("s_mul_i32 s32, s31, 4682")
    k.e("s_lshr_b32 s32, s32, 16")
    k.e("s_mul_i32 s33, s32, 14")
    k.e("s_sub_u32 s33, s31, s33")
    k.srd(8, 28, 1024 * 3584 * 2)
    k.srd(12, 20, 8 * 2 * 3584 * 4, WS_CS)
    k.e("v_and_b32 v1, 31, v0")
    k.e("v_lshrrev_b32 v2, 5, v0")
    k.e("s_lshl_b32 s34, s33, 9")
    k.e("s_mul_i32 s35, s32, %d" % (128 * 7168))
    k.e("s_add_u32 s34, s34, s35")
    k.e("s_movk_i32 s35, 7168")
    k.e("v_mul_lo_u32 v3, v2, s35")
    k.e("v_lshl_add_u32 v3, v1, 4, v3")
    k.e("v_add_u32 v3, s34, v3")
    k.e("s_mov_b32 s34, 0")
    for it in range(16):
        k.e("buffer_load_dwordx4 v[%d:%d], v3, s[8:11], s34 offen" % (16 + 4 * it, 19 + 4 * it))
        if it != 15:
            k.e("s_add_u32 s34, s34, %d" % (8 * 7168))
    k.e("v_mov_b32 v4, 0xffff0000")
    for i in range(8):
        k.e("v_mov_b32 v%d, 0" % (8 + i))
    for it in range(16):
        k.e("s_waitcnt vmcnt(%d)" % (15 - it))
        for i in range(4):
            s_ = 16 + 4 * it + i
            k.e("v_lshlrev_b32 v5, 16, v%d" % s_)
            k.e("v_and_b32 v6, v4, v%d" % s_)
            k.e("v_add_f32 v%d, v%d, v5" % (8 + 2 * i, 8 + 2 * i))
            k.e("v_add_f32 v%d, v%d, v6" % (9 + 2 * i, 9 + 2 * i))
    k.e("v_lshlrev_b32 v5, 5, v0")
    k.e("ds_write_b128 v5, v[8:11]")
    k.e("ds_write_b128 v5, v[12:15] offset:16")
    k.e("s_waitcnt lgkmcnt(0)")
    k.e("s_barrier")
    k.e("v_lshlrev_b32 v5, 2, v0")
    for rg in range(8):
        k.e("ds_read_b32 v%d, v5 offset:%d" % (16 + rg, rg * 1024))
    k.e("s_waitcnt lgkmcnt(0)")
    for rg in range(1, 8):
        k.e("v_add_f32 v16, v16, v%d" % (16 + rg))
    k.e("s_mul_i32 s35, s32, %d" % (2 * 3584 * 4))
    k.e("s_add_u32 s35, s35, s38")
    k.e("s_lshl_b32 s36, s33, 10")
    k.e("s_add_u32 s35, s35, s36")
    k.e("v_add_u32 v5, s35, v5")
    k.e("buffer_store_dword v16, v5, s[12:15], 0 offen")
    k.e("s_branch %s" % L_end)


def gen_k0():
    k = KB("k0_ln_kernel")
    L_end = k.newlab("end")
    L_ln = k.newlab("ln")
    k.e("s_cmp_ge_u32 s2, 480")
    k.e("s_cbranch_scc1 %s" % L_end)
    k.e("s_load_dwordx4 s[4:7], s[0:1], %d" % KA_X)
    k.e("s_load_dwordx2 s[20:21], s[0:1], %d" % KA_WS)
    k.e("s_load_dwordx4 s[60:63], s[0:1], %d" % KA_WG)
    k.e("s_load_dwordx2 s[64:65], s[0:1], %d" % KA_WO)
    k.e("s_waitcnt lgkmcnt(0)")
    k.e("s_cmp_ge_u32 s2, 224")
    k.e("s_cbranch_scc1 %s" % L_ln)
    k.e("s_mov_b32 s3, s2")
    emit_colsum(k, L_end, 3)
    k.lab(L_ln)
    k.e("s_sub_u32 s2, s2, 224")
    k.srd(8, 4, 2048 * 1024 * 2)
    k.srd(12, 20, 2048 * 1024 * 2, WS_XN)
    k.srd(24, 6, 1024 * 3072 * 2)
    k.srd(28, 64, 1024 * 1024 * 2)
    k.e("v_lshrrev_b32 v62, 6, v0")
    k.e("v_and_b32 v2, 63, v0")
    k.e("s_lshl_b32 s3, s2, 3")
    k.e("v_lshlrev_b32 v3, 1, v62")
    k.e("v_add_u32 v3, s3, v3")
    k.e("v_lshlrev_b32 v3, 11, v3")
    k.e("v_lshl_add_u32 v1, v2, 4, v3")
    for r in range(2):
        k.e("buffer_load_dwordx4 v[%d:%d], v1, s[8:11], 0 offen offset:%d" % (4 + 8 * r, 7 + 8 * r, 2048 * r))
        k.e("buffer_load_dwordx4 v[%d:%d], v1, s[8:11], 0 offen offset:%d" % (8 + 8 * r, 11 + 8 * r, 2048 * r + 1024))
    k.e("v_lshrrev_b32 v61, 1, v3")
    k.e("v_mul_u32_u24 v3, 3, v61")
    k.e("v_lshl_add_u32 v3, v2, 7, v3")
    k.e("buffer_load_dword v64, v3, s[24:27], 0 offen")
    k.e("v_lshl_add_u32 v3, v2, 5, v61")
    k.e("buffer_load_dword v65, v3, s[28:31], 0 offen")
    k.e("v_mov_b32 v60, 0xffff0000")
    k.e("v_and_b32 v63, 7, v2")
    for r in range(2):
        k.e("s_waitcnt vmcnt(%d)" % (4 - 2 * r))
        src = 4 + 8 * r
        f = 24
        for i in range(8):
            k.e("v_lshlrev_b32 v%d, 16, v%d" % (f + 2 * i, src + i))
            k.e("v_and_b32 v%d, v60, v%d" % (f + 2 * i + 1, src + i))
        k.e("v_add_f32 v40, v%d, v%d" % (f, f + 1))
        for i in range(2, 16):
            k.e("v_add_f32 v40, v40, v%d" % (f + i))
        wave_reduce_sum(k, 40, 16)
        k.e("v_mul_f32 v40, 0x3a800000, v40")
        k.e("v_mov_b32 v41, 0")
        for i in range(16):
            k.e("v_sub_f32 v42, v%d, v40" % (f + i))
            k.e("v_fmac_f32 v41, v42, v42")
        wave_reduce_sum(k, 41, 16)
        k.e("v_mul_f32 v41, 0x3a800000, v41")
        round_bf16(k, 40, 40)
        round_bf16(k, 41, 41)
        k.e("v_add_f32 v41, 0x3727c5ac, v41")
        round_bf16(k, 41, 41)
        k.e("v_sqrt_f32 v41, v41")
        k.e("s_nop 0")
        round_bf16(k, 41, 41)
        k.e("v_rcp_f32 v41, v41")
        k.e("s_nop 0")
        for i in range(8):
            k.e("v_sub_f32 v42, v%d, v40" % (f + 2 * i))
            k.e("v_sub_f32 v43, v%d, v40" % (f + 2 * i + 1))
            k.e("v_cvt_pk_bf16_f32 v42, v42, v43")
            k.e("v_and_b32 v43, v60, v42")
            k.e("v_lshlrev_b32 v42, 16, v42")
            k.e("v_mul_f32 v42, v42, v41")
            k.e("v_mul_f32 v43, v43, v41")
            k.e("v_cvt_pk_bf16_f32 v%d, v42, v43" % (44 + 8 * r + i))
        k.e("v_lshl_add_u32 v42, v62, 1, %d" % r)
        k.e("v_xor_b32 v42, v42, v63")
        k.e("v_lshlrev_b32 v42, 4, v42")
        k.e("v_lshl_add_u32 v42, v2, 7, v42")
        k.e("ds_write_b128 v42, v[%d:%d]" % (44 + 8 * r, 47 + 8 * r))
        k.e("ds_write_b128 v42, v[%d:%d] offset:8192" % (48 + 8 * r, 51 + 8 * r))
    k.e("s_waitcnt lgkmcnt(0)")
    k.e("s_barrier")
    k.e("v_and_b32 v4, 7, v0")
    k.e("v_lshrrev_b32 v5, 3, v0")
    k.e("v_and_b32 v6, 7, v5")
    k.e("v_xor_b32 v6, v6, v4")
    k.e("v_lshlrev_b32 v6, 4, v6")
    k.e("v_lshl_add_u32 v6, v5, 7, v6")
    for i in range(4):
        k.e("ds_read_b128 v[%d:%d], v6 offset:%d" % (8 + 4 * i, 11 + 4 * i, 4096 * i))
    k.e("s_lshr_b32 s16, s2, 2")
    k.e("s_lshl_b32 s16, s16, 16")
    k.e("s_and_b32 s17, s2, 3")
    k.e("s_lshl_b32 s17, s17, 7")
    k.e("s_add_u32 s16, s16, s17")
    k.e("v_lshlrev_b32 v7, 9, v5")
    k.e("v_lshl_add_u32 v7, v4, 4, v7")
    k.e("v_add_u32 v7, s16, v7")
    k.e("s_mov_b32 s17, 0")
    for i in range(4):
        k.e("s_waitcnt lgkmcnt(%d)" % (3 - i))
        k.e("buffer_store_dwordx4 v[%d:%d], v7, s[12:15], s17 offen%s" % (8 + 4 * i, 11 + 4 * i, WT))
        k.e("s_add_u32 s17, s17, 16384")
    k.lab(L_end)
    k.e("s_endpgm")
    return k, 80, (480, 256, 16384)


class Spec:
    pass


def gemm_dma_issue(k, sp, i):
    srd, voff, soff, sl = sp.dma[i]
    if i in getattr(sp, "dma_abs", {}):
        k.e("s_and_b32 s95, s%d, s%d" % (sp.s_wr, sp.dma_abs[i]))
        k.e("s_add_u32 m0, s95, s%d" % sl)
    else:
        k.e("s_add_u32 m0, s%d, s%d" % (sp.s_wr, sl))
    k.e("s_nop 0")
    k.e("buffer_load_dwordx4 v%d, s[%d:%d], s%d offen lds" % (voff, srd, srd + 3, soff))


def gemm_dma_advance(k, sp):
    for s, inc in sp.sadv:
        if isinstance(inc, str):
            k.e("s_add_u32 s%d, s%d, %s" % (s, s, inc))
        else:
            k.e("s_add_u32 s%d, s%d, 0x%x" % (s, s, inc))
    k.e("s_add_u32 s%d, s%d, %d" % (sp.s_wr, sp.s_wr, sp.stage_bytes))
    k.e("s_cmp_ge_u32 s%d, %d" % (sp.s_wr, sp.stage_bytes * sp.NS))
    k.e("s_cselect_b32 s%d, 0, s%d" % (sp.s_wr, sp.s_wr))


def gemm_prologue(k, sp):
    k.stamp()
    k.e("s_mov_b32 s%d, 0" % sp.s_wr)
    k.e("s_mov_b32 s%d, 0" % sp.s_rd)
    for s in range(sp.NS - 1):
        for i in range(len(sp.dma)):
            gemm_dma_issue(k, sp, i)
        gemm_dma_advance(k, sp)


def gemm_main(k, sp):
    NS, nst, SB = sp.NS, sp.nst, sp.stage_bytes
    nd = len(sp.dma)
    nsteps = len(sp.steps)

    def addr_next():
        k.e("s_add_u32 s%d, s%d, %d" % (sp.s_rd, sp.s_rd, SB))
        k.e("s_cmp_ge_u32 s%d, %d" % (sp.s_rd, SB * NS))
        k.e("s_cselect_b32 s%d, 0, s%d" % (sp.s_rd, sp.s_rd))
        k.e("s_cselect_b32 s96, s97, %d" % SB)
        for vc in sp.addr:
            k.e("v_add_u32 v%d, s96, v%d" % (vc, vc))

    def read_instr(rd, base):
        op, reg, addr, imm = rd
        n = 4 if op == "ds_read_b128" else 2
        if os.environ.get("NOLDS"):
            return
        if os.environ.get("HALFLDS") and k.name.startswith("k3") and op != "ds_read_b128" and ((reg - 4) // 4) % 2 == 1:
            k.e("s_nop 0")
            return
        k.e("%s v[%d:%d], v%d offset:%d" % (op, base + reg, base + reg + n - 1, addr, imm))

    k.e("s_mov_b32 s97, %d" % (-(NS - 1) * SB))
    if os.environ.get("PRIO"):
        Lp = k.newlab("prio")
        k.e("s_cmp_lt_u32 s25, 4")
        k.e("s_cbranch_scc1 %s" % Lp)
        k.e("s_setprio 1")
        k.lab(Lp)
    k.e("s_waitcnt vmcnt(%d)" % ((NS - 2) * nd))
    k.e("s_barrier")
    k.stamp()
    for rd in sp.steps[0]["reads"]:
        read_instr(rd, sp.fset[0])
    gstep = [0]

    def stage(do_dma, last, vm):
        k.e("s_waitcnt vmcnt(%d)" % vm)
        k.e("s_barrier")
        dma_todo = list(range(nd)) if do_dma else []
        for j, st in enumerate(sp.steps):
            cur = sp.fset[gstep[0] & 1]
            nxt = sp.fset[(gstep[0] + 1) & 1]
            lastj = (j == nsteps - 1)
            nreads = [] if (lastj and last) else sp.steps[(j + 1) % nsteps]["reads"]
            R = len(st["reads"])
            M = len(st["mfma"])
            issued = 0
            waited = -1
            if lastj and not last:
                addr_next()
            for i, (acc, a, b, dep) in enumerate(st["mfma"]):
                if dep > waited:
                    n = (R - 1 - dep) + issued
                    k.e("s_waitcnt lgkmcnt(%d)" % min(n, 15))
                    waited = dep
                if not os.environ.get("NOMFMA"):
                    k.e("v_mfma_f32_32x32x16_bf16 v[%d:%d], v[%d:%d], v[%d:%d], v[%d:%d]" % (
                        acc, acc + 15, cur + a, cur + a + 3, cur + b, cur + b + 3, acc, acc + 15))
                tgt = (len(nreads) * (i + 1) + M - 1) // M
                while issued < tgt:
                    read_instr(nreads[issued], nxt)
                    issued += 1
                if dma_todo:
                    per = (nd + M * nsteps - 1) // (M * nsteps)
                    for _ in range(max(per, 1)):
                        if dma_todo:
                            gemm_dma_issue(k, sp, dma_todo.pop(0))
                    if not dma_todo:
                        gemm_dma_advance(k, sp)
            gstep[0] += 1
        assert not dma_todo

    U = 1 if nsteps % 2 == 0 else 2
    nmain = nst - (NS - 1)
    nloop = (nmain // U) * U
    L = k.newlab("loop")
    if nloop > 0:
        k.e("s_mov_b32 s%d, %d" % (sp.s_cnt, nloop // U))
        k.lab(L)
        for u in range(U):
            stage(True, False, (NS - 3) * nd)
        k.e("s_sub_u32 s%d, s%d, 1" % (sp.s_cnt, sp.s_cnt))
        k.e("s_cmp_lg_u32 s%d, 0" % sp.s_cnt)
        k.e("s_cbranch_scc1 %s" % L)
    textra = 0
    for s in range(nloop, nst):
        do_dma = (s + NS - 1) < nst
        issued_upto = min(s + NS - 2, nst - 1)
        need = min(s + 1, nst - 1)
        vm = (issued_upto - need) * nd + textra
        stage(do_dma, s == nst - 1, min(vm, 63))
        if (not do_dma) and getattr(sp, "tail_hook", None) and textra == 0:
            textra = sp.tail_hook()
    k.stamp()


def phi16(k, A, T, dst, vmask, vc):
    for i in range(8):
        k.e("v_cvt_pk_bf16_f32 v%d, v%d, v%d" % (T + i, A + 2 * i, A + 2 * i + 1))
    for i in range(8):
        k.e("v_lshlrev_b32 v%d, 16, v%d" % (A + 2 * i, T + i))
        k.e("v_and_b32 v%d, v%d, v%d" % (A + 2 * i + 1, vmask, T + i))
    for i in range(8):
        k.e(pk("v_pk_mul_f32", T + 2 * i, A + 2 * i, vc))
    for i in range(16):
        k.e("v_min_f32 v%d, 0, v%d" % (T + i, T + i))
    for i in range(16):
        k.e("v_exp_f32 v%d, v%d" % (T + i, T + i))
    for i in range(16):
        k.e("v_max_f32 v%d, 0, v%d" % (A + i, A + i))
    for i in range(8):
        k.e(pk("v_pk_add_f32", T + 2 * i, T + 2 * i, vc + 2))
    for i in range(8):
        k.e(pk("v_pk_add_f32", A + 2 * i, A + 2 * i, T + 2 * i))
    for i in range(8):
        k.e("v_cvt_pk_bf16_f32 v%d, v%d, v%d" % (dst + i, A + 2 * i, A + 2 * i + 1))


def gen_k1():
    k = KB("k1_qkv_kernel")
    L_end = k.newlab("end")
    BK, NS = 64, 4
    XB = 16384
    WB = (BK // 4) * 6 * 256
    SB = XB + WB
    k.e("s_cmp_ge_u32 s2, 256")
    k.e("s_cbranch_scc1 %s" % L_end)
    k.e("s_load_dwordx2 s[4:5], s[0:1], %d" % KA_WQKV)
    k.e("s_load_dwordx2 s[6:7], s[0:1], %d" % KA_WS)
    k.e("s_and_b32 s20, s2, 7")
    k.e("s_lshr_b32 s21, s2, 3")
    k.e("s_and_b32 s22, s20, 3")
    k.e("s_lshl_b32 s22, s22, 2")
    k.e("s_and_b32 s23, s21, 3")
    k.e("s_add_u32 s22, s22, s23")
    k.e("s_lshr_b32 s23, s20, 2")
    k.e("s_lshl_b32 s23, s23, 3")
    k.e("s_lshr_b32 s24, s21, 2")
    k.e("s_add_u32 s23, s23, s24")
    wave_and_lane(k)
    k.e("s_lshr_b32 s26, s25, 2")
    k.e("s_bfe_u32 s27, s25, 0x10001")
    k.e("s_and_b32 s28, s25, 1")
    dma = []
    k.e("v_lshlrev_b32 v9, 4, v2")
    k.e("s_lshl_b32 s30, s23, 2")
    k.e("s_lshr_b32 s31, s25, 1")
    k.e("s_add_u32 s30, s30, s31")
    k.e("s_lshl_b32 s30, s30, 6")
    k.e("s_lshl_b32 s31, s28, 1")
    k.e("s_add_u32 s30, s30, s31")
    k.e("s_lshl_b32 s30, s30, 10")
    k.e("v_add_u32 v10, s30, v9")
    k.e("v_add_u32 v11, 1024, v10")
    for i in range(2):
        k.e("s_lshl_b32 s%d, s25, 11" % (40 + i))
        k.e("s_add_u32 s%d, s%d, %d" % (40 + i, 40 + i, 1024 * i))
        dma.append((8, 10 + i, 50, 40 + i))
    for i in range(3):
        k.e("s_mul_i32 s30, s25, 12")
        k.e("s_add_u32 s30, s30, %d" % (4 * i))
        k.e("v_lshrrev_b32 v3, 4, v2")
        k.e("v_add_u32 v3, s30, v3")
        k.e("v_mul_u32_u24 v4, 43, v3")
        k.e("v_lshrrev_b32 v4, 8, v4")
        k.e("v_mul_u32_u24 v5, 6, v4")
        k.e("v_sub_u32 v5, v3, v5")
        k.e("v_bfe_u32 v6, v2, 2, 2")
        k.e("v_lshl_add_u32 v6, v4, 2, v6")
        k.e("v_mul_u32_u24 v6, 6144, v6")
        k.e("v_lshrrev_b32 v7, 1, v5")
        k.e("v_lshl_add_u32 v6, v7, 11, v6")
        k.e("v_and_b32 v7, 1, v5")
        k.e("v_lshl_add_u32 v6, v7, 6, v6")
        k.e("v_and_b32 v7, 3, v2")
        k.e("v_lshl_add_u32 v6, v7, 4, v6")
        k.e("s_lshl_b32 s31, s22, 7")
        k.e("v_add_u32 v%d, s31, v6" % (12 + i))
        k.e("s_mul_i32 s%d, s25, 3072" % (42 + i))
        k.e("s_add_u32 s%d, s%d, %d" % (42 + i, 42 + i, XB + 1024 * i))
        dma.append((12, 12 + i, 51, 42 + i))
    k.e("s_mov_b32 s50, 0")
    k.e("s_mov_b32 s51, 0")
    k.e("s_waitcnt lgkmcnt(0)")
    k.srd(8, 6, 2048 * 1024 * 2, WS_XN)
    k.srd(12, 4, 1024 * 3072 * 2)
    sp = Spec()
    sp.NS, sp.nst, sp.stage_bytes = NS, 1024 // BK, SB
    sp.dma = dma
    sp.sadv = [(50, 4096), (51, BK * 6144)]
    sp.s_wr, sp.s_rd, sp.s_cnt = 52, 53, 54
    gemm_prologue(k, sp)
    for tl in range(2):
        k.e("s_xor_b32 s30, s26, %d" % tl)
        k.e("s_lshl_b32 s31, s27, 1")
        k.e("s_add_u32 s30, s30, s31")
        k.e("s_lshl_b32 s30, s30, 2")
        k.e("s_lshl_b32 s31, s26, 1")
        k.e("s_add_u32 s30, s30, s31")
        k.e("s_lshl_b32 s30, s30, 10")
        k.e("v_add_u32 v%d, s30, v9" % (16 + tl))
    wfrag_lanepat(k, 3, 4, 2 * 6 * 256)
    k.e("s_mul_i32 s30, s26, %d" % (8 * 6 * 256))
    k.e("s_lshl_b32 s31, s28, 8")
    k.e("s_add_u32 s30, s30, s31")
    k.e("s_add_u32 s30, s30, %d" % XB)
    k.e("v_add_u32 v18, s30, v3")
    ACC = 32
    for i in range(96):
        k.e("v_mov_b32 v%d, 0" % (ACC + i))
    F0, F1 = 128, 148
    steps = []
    for jj in range(2):
        reads = [("ds_read_b128", 0, 16, 1024 * jj)]
        for p in range(3):
            for i in range(2):
                reads.append(("ds_read_b64_tr_b16", 8 + 4 * p + 2 * i, 18, ((4 * jj + i) * 6 + 2 * p) * 256))
            if p == 0:
                reads.append(("ds_read_b128", 4, 17, 1024 * jj))
        mf = [(ACC + 0 * 16, 8, 0, 2), (ACC + 3 * 16, 8, 4, 3), (ACC + 1 * 16, 0, 12, 5),
              (ACC + 4 * 16, 4, 12, 5), (ACC + 2 * 16, 0, 16, 7), (ACC + 5 * 16, 4, 16, 7)]
        steps.append(dict(reads=reads, mfma=mf))
    sp.addr = [16, 17, 18]
    sp.steps = steps
    sp.fset = [F0, F1]
    gemm_main(k, sp)
    k.e("s_mul_i32 s30, s25, 12288")
    k.e("v_add_u32 v4, s30, v9")
    k.e("s_xor_b32 s31, s25, 4")
    k.e("s_mul_i32 s31, s31, 12288")
    k.e("v_add_u32 v5, s31, v9")
    k.e("v_mov_b32 v20, 0x3fb8aa3b")
    k.e("v_mov_b32 v21, 0x3fb8aa3b")
    k.e("v_mov_b32 v22, 0x358637bd")
    k.e("v_mov_b32 v23, 0x358637bd")
    k.e("v_mov_b32 v24, 0xffff0000")
    k.srd(16, 6, 2048 * 1024 * 2, WS_PQ)
    k.srd(60, 6, 16 * 32 * 4096, WS_KVP)
    k.srd(56, 6, 16 * 32 * 128, WS_ZP)
    k.e("s_barrier")
    for q in range(12):
        k.e("ds_write_b128 v4, v[%d:%d] offset:%d" % (ACC + 48 + 4 * q, ACC + 51 + 4 * q, 1024 * q))
    k.e("s_waitcnt lgkmcnt(0)")
    k.e("s_barrier")
    for q in range(12):
        k.e("ds_read_b128 v[%d:%d], v5 offset:%d" % (ACC + 48 + 4 * q, ACC + 51 + 4 * q, 1024 * q))
    PQ, PK, PV = 128, 136, 144
    T = 152
    for grp in (1, 2, 0):
        k.e("s_waitcnt lgkmcnt(%d)" % {1: 4, 2: 0, 0: 0}[grp])
        for q in range(4 * grp, 4 * grp + 4):
            for i in range(0, 4, 2):
                k.e(pk("v_pk_add_f32", ACC + 4 * q + i, ACC + 4 * q + i, ACC + 48 + 4 * q + i))
        if grp == 1:
            phi16(k, ACC + 16, T, PK, 24, 20)
        elif grp == 2:
            for i in range(8):
                k.e("v_cvt_pk_bf16_f32 v%d, v%d, v%d" % (PV + i, ACC + 32 + 2 * i, ACC + 33 + 2 * i))
            KV = ACC + 64
            k.e("s_nop 1")
            k.e("v_mfma_f32_32x32x16_bf16 v[%d:%d], v[%d:%d], v[%d:%d], 0" % (KV, KV + 15, PK, PK + 3, PV, PV + 3))
            k.e("v_mfma_f32_32x32x16_bf16 v[%d:%d], v[%d:%d], v[%d:%d], v[%d:%d]" % (KV, KV + 15, PK + 4, PK + 7, PV + 4, PV + 7, KV, KV + 15))
            for i in range(8):
                k.e("v_lshlrev_b32 v%d, 16, v%d" % (T + 2 * i, PK + i))
                k.e("v_and_b32 v%d, v24, v%d" % (T + 2 * i + 1, PK + i))
            for st_ in (8, 4, 2):
                for i in range(0, st_, 2):
                    k.e(pk("v_pk_add_f32", T + i, T + i, T + st_ + i))
            k.e("v_add_f32 v25, v%d, v%d" % (T, T + 1))
        else:
            phi16(k, ACC, T, PQ, 24, 20)
    k.e("s_lshl_b32 s30, s23, 2")
    k.e("s_lshl_b32 s31, s27, 1")
    k.e("s_add_u32 s30, s30, s31")
    k.e("s_add_u32 s30, s30, s26")
    k.e("s_lshl_b32 s30, s30, 6")
    k.e("s_lshl_b32 s31, s22, 1")
    k.e("s_add_u32 s31, s31, s28")
    k.e("s_lshl_b32 s32, s31, 1")
    k.e("s_add_u32 s30, s30, s32")
    k.e("s_lshl_b32 s30, s30, 10")
    k.e("v_add_u32 v3, s30, v9")
    k.e("buffer_store_dwordx4 v[%d:%d], v3, s[16:19], 0 offen%s" % (PQ, PQ + 3, WT))
    k.e("buffer_store_dwordx4 v[%d:%d], v3, s[16:19], 0 offen offset:1024%s" % (PQ + 4, PQ + 7, WT))
    KVL = 98304
    ZL = KVL + 32768
    k.e("s_lshl_b32 s30, s25, 12")
    k.e("s_add_u32 s30, s30, %d" % KVL)
    k.e("v_add_u32 v4, s30, v9")
    k.e("s_lshl_b32 s30, s25, 8")
    k.e("s_add_u32 s30, s30, %d" % ZL)
    k.e("v_lshlrev_b32 v5, 2, v2")
    k.e("v_add_u32 v5, s30, v5")
    k.e("ds_write_b32 v5, v25")
    for q in range(4):
        k.e("ds_write_b128 v4, v[%d:%d] offset:%d" % (KV + 4 * q, KV + 4 * q + 3, 1024 * q))
    k.e("s_lshr_b32 s30, s25, 1")
    k.e("s_lshl_b32 s31, s30, 10")
    k.e("s_lshl_b32 s32, s28, 12")
    k.e("s_add_u32 s31, s31, s32")
    k.e("s_add_u32 s31, s31, %d" % KVL)
    k.e("v_add_u32 v4, s31, v9")
    k.e("s_lshl_b32 s32, s28, 8")
    k.e("s_add_u32 s32, s32, %d" % ZL)
    k.e("v_and_b32 v6, 31, v2")
    k.e("v_lshlrev_b32 v6, 2, v6")
    k.e("v_add_u32 v6, s32, v6")
    k.e("s_waitcnt lgkmcnt(0)")
    k.e("s_barrier")
    for j in range(4):
        k.e("ds_read_b128 v[%d:%d], v4 offset:%d" % (ACC + 4 * j, ACC + 4 * j + 3, 8192 * j))
    for j in range(4):
        k.e("ds_read_b32 v%d, v6 offset:%d" % (ACC + 16 + 2 * j, 512 * j))
        k.e("ds_read_b32 v%d, v6 offset:%d" % (ACC + 17 + 2 * j, 512 * j + 128))
    k.e("s_lshl_b32 s33, s23, 5")
    k.e("s_lshl_b32 s34, s22, 1")
    k.e("s_add_u32 s33, s33, s34")
    k.e("s_add_u32 s33, s33, s28")
    k.e("s_lshl_b32 s34, s33, 12")
    k.e("s_lshl_b32 s35, s30, 10")
    k.e("s_add_u32 s34, s34, s35")
    k.e("v_add_u32 v4, s34, v9")
    k.e("s_waitcnt lgkmcnt(8)")
    for i in range(0, 4, 2):
        k.e(pk("v_pk_add_f32", ACC + i, ACC + i, ACC + 4 + i))
        k.e(pk("v_pk_add_f32", ACC + 8 + i, ACC + 8 + i, ACC + 12 + i))
        k.e(pk("v_pk_add_f32", ACC + i, ACC + i, ACC + 8 + i))
    k.e("buffer_store_dwordx4 v[%d:%d], v4, s[60:63], 0 offen%s" % (ACC, ACC + 3, WT))
    L_fin = k.newlab("fin")
    k.e("s_cmp_lg_u32 s30, 0")
    k.e("s_cbranch_scc1 %s" % L_fin)
    k.e("s_waitcnt lgkmcnt(0)")
    for i in range(1, 8):
        k.e("v_add_f32 v%d, v%d, v%d" % (ACC + 16, ACC + 16, ACC + 16 + i))
    k.e("v_cmp_gt_u32 vcc, 32, v2")
    k.e("s_and_saveexec_b64 s[36:37], vcc")
    k.e("s_lshl_b32 s34, s33, 7")
    k.e("v_lshlrev_b32 v6, 2, v2")
    k.e("v_add_u32 v6, s34, v6")
    k.e("buffer_store_dword v%d, v6, s[56:59], 0 offen%s" % (ACC + 16, WT))
    k.lab(L_fin)
    k.stamp_store(1)
    k.lab(L_end)
    k.e("s_endpgm")
    return k, 168, (256, 512, NS * SB)


def gen_k1b():
    k = KB("k1_qkv_kernel")
    L_end = k.newlab("end")
    BK, NS = 64, 4
    XB = 16384
    WB = (BK // 4) * 6 * 256
    SB = XB + WB
    k.e("s_cmp_ge_u32 s2, 256")
    k.e("s_cbranch_scc1 %s" % L_end)
    k.e("s_load_dwordx2 s[4:5], s[0:1], %d" % KA_WQKV)
    k.e("s_load_dwordx2 s[6:7], s[0:1], %d" % KA_WS)
    k.e("s_and_b32 s20, s2, 7")
    k.e("s_lshr_b32 s21, s2, 3")
    k.e("s_and_b32 s22, s20, 3")
    k.e("s_lshl_b32 s22, s22, 2")
    k.e("s_and_b32 s23, s21, 3")
    k.e("s_add_u32 s22, s22, s23")
    k.e("s_lshr_b32 s23, s20, 2")
    k.e("s_lshl_b32 s23, s23, 3")
    k.e("s_lshr_b32 s24, s21, 2")
    k.e("s_add_u32 s23, s23, s24")
    wave_and_lane(k)
    k.e("s_lshr_b32 s27, s25, 1")
    k.e("s_and_b32 s28, s25, 1")
    dma = []
    k.e("v_lshlrev_b32 v9, 4, v2")
    k.e("s_lshl_b32 s30, s23, 2")
    k.e("s_lshr_b32 s31, s25, 1")
    k.e("s_add_u32 s30, s30, s31")
    k.e("s_lshl_b32 s30, s30, 6")
    k.e("s_lshl_b32 s31, s28, 1")
    k.e("s_add_u32 s30, s30, s31")
    k.e("s_lshl_b32 s30, s30, 10")
    k.e("v_add_u32 v10, s30, v9")
    k.e("v_add_u32 v11, 1024, v10")
    for i in range(2):
        k.e("s_lshl_b32 s%d, s25, 11" % (40 + i))
        k.e("s_add_u32 s%d, s%d, %d" % (40 + i, 40 + i, 1024 * i))
        dma.append((8, 10 + i, 50, 40 + i))
    for i in range(3):
        k.e("s_mul_i32 s30, s25, 12")
        k.e("s_add_u32 s30, s30, %d" % (4 * i))
        k.e("v_lshrrev_b32 v3, 4, v2")
        k.e("v_add_u32 v3, s30, v3")
        k.e("v_mul_u32_u24 v4, 43, v3")
        k.e("v_lshrrev_b32 v4, 8, v4")
        k.e("v_mul_u32_u24 v5, 6, v4")
        k.e("v_sub_u32 v5, v3, v5")
        k.e("v_bfe_u32 v6, v2, 2, 2")
        k.e("v_lshl_add_u32 v6, v4, 2, v6")
        k.e("v_mul_u32_u24 v6, 6144, v6")
        k.e("v_lshrrev_b32 v7, 1, v5")
        k.e("v_lshl_add_u32 v6, v7, 11, v6")
        k.e("v_and_b32 v7, 1, v5")
        k.e("v_lshl_add_u32 v6, v7, 6, v6")
        k.e("v_and_b32 v7, 3, v2")
        k.e("v_lshl_add_u32 v6, v7, 4, v6")
        k.e("s_lshl_b32 s31, s22, 7")
        k.e("v_add_u32 v%d, s31, v6" % (12 + i))
        k.e("s_mul_i32 s%d, s25, 3072" % (42 + i))
        k.e("s_add_u32 s%d, s%d, %d" % (42 + i, 42 + i, XB + 1024 * i))
        dma.append((12, 12 + i, 51, 42 + i))
    k.e("s_mov_b32 s50, 0")
    k.e("s_mov_b32 s51, 0")
    k.e("s_waitcnt lgkmcnt(0)")
    k.srd(8, 6, 2048 * 1024 * 2, WS_XN)
    k.srd(12, 4, 1024 * 3072 * 2)
    sp = Spec()
    sp.NS, sp.nst, sp.stage_bytes = NS, 1024 // BK, SB
    sp.dma = dma
    sp.sadv = [(50, 4096), (51, BK * 6144)]
    sp.s_wr, sp.s_rd, sp.s_cnt = 52, 53, 54
    gemm_prologue(k, sp)
    k.e("s_lshl_b32 s30, s27, 12")
    k.e("v_add_u32 v16, s30, v9")
    wfrag_lanepat(k, 3, 4, 2 * 6 * 256)
    k.e("s_lshl_b32 s31, s28, 8")
    k.e("s_add_u32 s30, s31, %d" % XB)
    k.e("v_add_u32 v18, s30, v3")
    ACC = 32
    for i in range(48):
        k.e("v_mov_b32 v%d, 0" % (ACC + i))
    F0, F1 = 128, 148
    steps = []
    for jj in range(4):
        reads = [("ds_read_b128", 0, 16, 1024 * jj)]
        for p in range(3):
            for i in range(2):
                reads.append(("ds_read_b64_tr_b16", 8 + 4 * p + 2 * i, 18, ((4 * jj + i) * 6 + 2 * p) * 256))
        mf = [(ACC + 0 * 16, 8, 0, 2), (ACC + 1 * 16, 0, 12, 4), (ACC + 2 * 16, 0, 16, 6)]
        steps.append(dict(reads=reads, mfma=mf))
    sp.addr = [16, 18]
    sp.steps = steps
    sp.fset = [F0, F1]
    gemm_main(k, sp)
    k.e("v_mov_b32 v20, 0x3fb8aa3b")
    k.e("v_mov_b32 v21, 0x3fb8aa3b")
    k.e("v_mov_b32 v22, 0x358637bd")
    k.e("v_mov_b32 v23, 0x358637bd")
    k.e("v_mov_b32 v24, 0xffff0000")
    k.srd(16, 6, 2048 * 1024 * 2, WS_PQ)
    k.srd(60, 6, 16 * 32 * 4096, WS_KVP)
    k.srd(56, 6, 16 * 32 * 128, WS_ZP)
    k.e("s_nop 7")
    PQ, PK, PV = 128, 136, 144
    T = 152
    for grp in (1, 2, 0):
        if grp == 1:
            phi16(k, ACC + 16, T, PK, 24, 20)
        elif grp == 2:
            for i in range(8):
                k.e("v_cvt_pk_bf16_f32 v%d, v%d, v%d" % (PV + i, ACC + 32 + 2 * i, ACC + 33 + 2 * i))
            KV = ACC + 64
            k.e("s_nop 1")
            k.e("v_mfma_f32_32x32x16_bf16 v[%d:%d], v[%d:%d], v[%d:%d], 0" % (KV, KV + 15, PK, PK + 3, PV, PV + 3))
            k.e("v_mfma_f32_32x32x16_bf16 v[%d:%d], v[%d:%d], v[%d:%d], v[%d:%d]" % (KV, KV + 15, PK + 4, PK + 7, PV + 4, PV + 7, KV, KV + 15))
            for i in range(8):
                k.e("v_lshlrev_b32 v%d, 16, v%d" % (T + 2 * i, PK + i))
                k.e("v_and_b32 v%d, v24, v%d" % (T + 2 * i + 1, PK + i))
            for st_ in (8, 4, 2):
                for i in range(0, st_, 2):
                    k.e(pk("v_pk_add_f32", T + i, T + i, T + st_ + i))
            k.e("v_add_f32 v25, v%d, v%d" % (T, T + 1))
        else:
            phi16(k, ACC, T, PQ, 24, 20)
    k.e("s_lshl_b32 s30, s23, 2")
    k.e("s_add_u32 s30, s30, s27")
    k.e("s_lshl_b32 s30, s30, 6")
    k.e("s_lshl_b32 s31, s22, 1")
    k.e("s_add_u32 s31, s31, s28")
    k.e("s_lshl_b32 s32, s31, 1")
    k.e("s_add_u32 s30, s30, s32")
    k.e("s_lshl_b32 s30, s30, 10")
    k.e("v_add_u32 v3, s30, v9")
    k.e("buffer_store_dwordx4 v[%d:%d], v3, s[16:19], 0 offen%s" % (PQ, PQ + 3, WT))
    k.e("buffer_store_dwordx4 v[%d:%d], v3, s[16:19], 0 offen offset:1024%s" % (PQ + 4, PQ + 7, WT))
    KVL = 98304
    ZL = KVL + 32768
    k.e("s_lshl_b32 s30, s25, 12")
    k.e("s_add_u32 s30, s30, %d" % KVL)
    k.e("v_add_u32 v4, s30, v9")
    k.e("s_lshl_b32 s30, s25, 8")
    k.e("s_add_u32 s30, s30, %d" % ZL)
    k.e("v_lshlrev_b32 v5, 2, v2")
    k.e("v_add_u32 v5, s30, v5")
    k.e("s_barrier")
    k.e("ds_write_b32 v5, v25")
    for q in range(4):
        k.e("ds_write_b128 v4, v[%d:%d] offset:%d" % (KV + 4 * q, KV + 4 * q + 3, 1024 * q))
    k.e("s_lshr_b32 s30, s25, 1")
    k.e("s_lshl_b32 s31, s30, 10")
    k.e("s_lshl_b32 s32, s28, 12")
    k.e("s_add_u32 s31, s31, s32")
    k.e("s_add_u32 s31, s31, %d" % KVL)
    k.e("v_add_u32 v4, s31, v9")
    k.e("s_lshl_b32 s32, s28, 8")
    k.e("s_add_u32 s32, s32, %d" % ZL)
    k.e("v_and_b32 v6, 31, v2")
    k.e("v_lshlrev_b32 v6, 2, v6")
    k.e("v_add_u32 v6, s32, v6")
    k.e("s_waitcnt lgkmcnt(0)")
    k.e("s_barrier")
    for j in range(4):
        k.e("ds_read_b128 v[%d:%d], v4 offset:%d" % (ACC + 4 * j, ACC + 4 * j + 3, 8192 * j))
    for j in range(4):
        k.e("ds_read_b32 v%d, v6 offset:%d" % (ACC + 16 + 2 * j, 512 * j))
        k.e("ds_read_b32 v%d, v6 offset:%d" % (ACC + 17 + 2 * j, 512 * j + 128))
    k.e("s_lshl_b32 s33, s23, 5")
    k.e("s_lshl_b32 s34, s22, 1")
    k.e("s_add_u32 s33, s33, s34")
    k.e("s_add_u32 s33, s33, s28")
    k.e("s_lshl_b32 s34, s33, 12")
    k.e("s_lshl_b32 s35, s30, 10")
    k.e("s_add_u32 s34, s34, s35")
    k.e("v_add_u32 v4, s34, v9")
    k.e("s_waitcnt lgkmcnt(8)")
    for i in range(0, 4, 2):
        k.e(pk("v_pk_add_f32", ACC + i, ACC + i, ACC + 4 + i))
        k.e(pk("v_pk_add_f32", ACC + 8 + i, ACC + 8 + i, ACC + 12 + i))
        k.e(pk("v_pk_add_f32", ACC + i, ACC + i, ACC + 8 + i))
    k.e("buffer_store_dwordx4 v[%d:%d], v4, s[60:63], 0 offen%s" % (ACC, ACC + 3, WT))
    L_fin = k.newlab("fin")
    k.e("s_cmp_lg_u32 s30, 0")
    k.e("s_cbranch_scc1 %s" % L_fin)
    k.e("s_waitcnt lgkmcnt(0)")
    for i in range(1, 8):
        k.e("v_add_f32 v%d, v%d, v%d" % (ACC + 16, ACC + 16, ACC + 16 + i))
    k.e("v_cmp_gt_u32 vcc, 32, v2")
    k.e("s_and_saveexec_b64 s[36:37], vcc")
    k.e("s_lshl_b32 s34, s33, 7")
    k.e("v_lshlrev_b32 v6, 2, v2")
    k.e("v_add_u32 v6, s34, v6")
    k.e("buffer_store_dword v%d, v6, s[56:59], 0 offen%s" % (ACC + 16, WT))
    k.lab(L_fin)
    k.stamp_store(1)
    k.lab(L_end)
    k.e("s_endpgm")
    return k, 168, (256, 512, NS * SB)


def gen_k15():
    k = KB("k15_o_kernel")
    L_end = k.newlab("end")
    L_o = k.newlab("o")
    k.e("s_cmp_ge_u32 s2, 284")
    k.e("s_cbranch_scc1 %s" % L_end)
    k.e("s_load_dwordx2 s[6:7], s[0:1], %d" % KA_WS)
    k.e("s_cmp_lt_u32 s2, 256")
    k.e("s_cbranch_scc1 %s" % L_o)
    k.e("s_waitcnt lgkmcnt(0)")
    k.srd(8, 6, 8 * 2 * 3584 * 4, WS_CS)
    k.srd(12, 6, 2 * 3584 * 4, WS_CS2)
    k.e("s_sub_u32 s3, s2, 256")
    k.e("s_lshl_b32 s3, s3, 10")
    k.e("v_lshlrev_b32 v1, 2, v0")
    k.e("v_add_u32 v1, s3, v1")
    k.e("s_mov_b32 s16, 0")
    for i in range(8):
        k.e("buffer_load_dword v%d, v1, s[8:11], s16 offen" % (2 + i))
        k.e("s_add_u32 s16, s16, %d" % (2 * 3584 * 4))
    k.e("s_waitcnt vmcnt(0)")
    for i in range(1, 8):
        k.e("v_add_f32 v2, v2, v%d" % (2 + i))
    k.e("buffer_store_dword v2, v1, s[12:15], 0 offen")
    k.e("s_endpgm")
    k.lab(L_o)
    k.e("s_and_b32 s20, s2, 31")
    k.e("s_lshr_b32 s21, s2, 5")
    wave_and_lane(k)
    k.e("s_waitcnt lgkmcnt(0)")
    k.srd(8, 6, 2048 * 1024 * 2, WS_PQ)
    k.srd(12, 6, 16 * 32 * 4096, WS_KVP)
    k.srd(16, 6, 16 * 32 * 128, WS_ZP)
    k.srd(28, 6, 2048 * 1024 * 2, WS_O)
    k.e("v_lshlrev_b32 v6, 4, v2")
    k.e("s_lshl_b32 s23, s20, 12")
    k.e("s_lshl_b32 s24, s25, 10")
    k.e("s_add_u32 s23, s23, s24")
    k.e("v_add_u32 v7, s23, v6")
    k.e("s_mov_b32 s24, 0")
    for mb in range(16):
        k.e("buffer_load_dwordx4 v[%d:%d], v7, s[12:15], s24 offen" % (64 + 4 * mb, 67 + 4 * mb))
        if mb != 15:
            k.e("s_add_u32 s24, s24, %d" % (32 * 4096))
    k.e("s_lshl_b32 s23, s20, 7")
    k.e("v_and_b32 v8, 31, v2")
    k.e("v_lshlrev_b32 v8, 2, v8")
    k.e("v_add_u32 v8, s23, v8")
    k.e("v_lshrrev_b32 v9, 5, v2")
    k.e("v_lshl_add_u32 v8, v9, 15, v8")
    k.e("s_mov_b32 s24, 0")
    for mb in range(8):
        k.e("buffer_load_dword v%d, v8, s[16:19], s24 offen" % (128 + mb))
        if mb != 7:
            k.e("s_add_u32 s24, s24, 4096")
    k.e("s_lshl_b32 s22, s21, 3")
    k.e("s_lshl_b32 s23, s25, 1")
    k.e("s_add_u32 s22, s22, s23")
    k.e("s_lshl_b32 s22, s22, 6")
    k.e("s_lshl_b32 s23, s20, 1")
    k.e("s_add_u32 s22, s22, s23")
    k.e("s_lshl_b32 s22, s22, 10")
    k.e("v_add_u32 v3, s22, v6")
    k.e("v_add_u32 v5, 0x10000, v3")
    for t in range(2):
        for s in range(2):
            k.e("buffer_load_dwordx4 v[%d:%d], v%d, s[8:11], 0 offen offset:%d" % (16 + 8 * t + 4 * s, 19 + 8 * t + 4 * s, 3 + 2 * t, 1024 * s))
    k.e("s_waitcnt vmcnt(12)")
    for st_ in (32, 16, 8, 4):
        for i in range(0, st_, 2):
            k.e(pk("v_pk_add_f32", 64 + i, 64 + i, 64 + st_ + i))
    k.e("s_lshl_b32 s23, s25, 10")
    k.e("v_add_u32 v7, s23, v6")
    k.e("ds_write_b128 v7, v[64:67]")
    k.e("s_waitcnt vmcnt(4)")
    for st_ in (4, 2):
        for i in range(0, st_, 2):
            k.e(pk("v_pk_add_f32", 128 + i, 128 + i, 128 + st_ + i))
    k.e("v_add_f32 v128, v128, v129")
    k.e("v_mov_b32 v129, v128")
    k.e("s_nop 1")
    k.e("v_permlane32_swap_b32 v128, v129")
    k.e("s_nop 1")
    k.e("v_add_f32 v128, v128, v129")
    k.e("v_and_b32 v8, 31, v2")
    k.e("v_lshlrev_b32 v8, 2, v8")
    k.e("ds_write_b32 v8, v128 offset:4096")
    k.e("s_waitcnt lgkmcnt(0)")
    k.e("s_barrier")
    for q in range(4):
        k.e("ds_read_b128 v[%d:%d], v6 offset:%d" % (64 + 4 * q, 67 + 4 * q, 1024 * q))
    k.e("v_lshlrev_b32 v9, 4, v9")
    for q in range(4):
        k.e("ds_read_b128 v[%d:%d], v9 offset:%d" % (80 + 4 * q, 83 + 4 * q, 4096 + 32 * q))
    k.e("v_and_b32 v10, 27, v2")
    k.e("v_cmp_eq_u32 vcc, 0, v10")
    k.e("s_waitcnt lgkmcnt(4)")
    KVA, ZA = 96, 104
    for i in range(8):
        k.e("v_cvt_pk_bf16_f32 v%d, v%d, v%d" % (KVA + i, 64 + 2 * i, 65 + 2 * i))
    k.e("s_waitcnt lgkmcnt(0)")
    for i in range(8):
        k.e("v_cvt_pk_bf16_f32 v%d, v%d, v%d" % (ZA + i, 80 + 2 * i, 81 + 2 * i))
    for i in range(8):
        k.e("v_cndmask_b32 v%d, 0, v%d, vcc" % (ZA + i, ZA + i))
    k.e("s_waitcnt vmcnt(0)")
    k.e("s_nop 0")
    for t in range(2):
        N, D = 112 + 32 * t, 128 + 32 * t
        k.e("v_mfma_f32_32x32x16_bf16 v[%d:%d], v[%d:%d], v[%d:%d], 0" % (D, D + 15, ZA, ZA + 3, 16 + 8 * t, 19 + 8 * t))
        k.e("v_mfma_f32_32x32x16_bf16 v[%d:%d], v[%d:%d], v[%d:%d], v[%d:%d]" % (D, D + 15, ZA + 4, ZA + 7, 20 + 8 * t, 23 + 8 * t, D, D + 15))
        k.e("v_mfma_f32_32x32x16_bf16 v[%d:%d], v[%d:%d], v[%d:%d], 0" % (N, N + 15, KVA, KVA + 3, 16 + 8 * t, 19 + 8 * t))
        k.e("v_mfma_f32_32x32x16_bf16 v[%d:%d], v[%d:%d], v[%d:%d], v[%d:%d]" % (N, N + 15, KVA + 4, KVA + 7, 20 + 8 * t, 23 + 8 * t, N, N + 15))
    k.e("s_nop 7")
    for t in range(2):
        D = 128 + 32 * t
        round_bf16(k, 12 + 2 * t, D)
        k.e("v_add_f32 v%d, 0x358637bd, v%d" % (12 + 2 * t, 12 + 2 * t))
        round_bf16(k, 12 + 2 * t, 12 + 2 * t)
        k.e("v_rcp_f32 v%d, v%d" % (12 + 2 * t, 12 + 2 * t))
        k.e("s_nop 0")
        k.e("v_mov_b32 v%d, v%d" % (13 + 2 * t, 12 + 2 * t))
    k.e("s_nop 7")
    for t in range(2):
        N = 112 + 32 * t
        for i in range(8):
            k.e(pk("v_pk_mul_f32", N + 2 * i, N + 2 * i, 12 + 2 * t))
        for i in range(8):
            k.e("v_cvt_pk_bf16_f32 v%d, v%d, v%d" % (32 + 8 * t + i, N + 2 * i, N + 2 * i + 1))
        k.e("buffer_store_dwordx4 v[%d:%d], v%d, s[28:31], 0 offen%s" % (32 + 8 * t, 35 + 8 * t, 3 + 2 * t, WT))
        k.e("buffer_store_dwordx4 v[%d:%d], v%d, s[28:31], 0 offen offset:1024%s" % (36 + 8 * t, 39 + 8 * t, 3 + 2 * t, WT))
    k.lab(L_end)
    k.e("s_endpgm")
    return k, 176, (284, 256, 8192)


def gen_proj(name, mode):
    k = KB(name)
    L_end = k.newlab("end")
    BK, NS = 64, 6
    KD = 1024 if mode == "wo" else 3584
    NBLK = KD // 16
    XOFF = WS_O if mode == "wo" else WS_HH
    XB = 8192
    WB = (BK // 4) * 4 * 256
    SB = XB + WB
    k.e("s_cmp_ge_u32 s2, 256")
    k.e("s_cbranch_scc1 %s" % L_end)
    k.e("s_load_dwordx2 s[4:5], s[0:1], %d" % (KA_WO if mode == "wo" else KA_WD))
    k.e("s_load_dwordx2 s[6:7], s[0:1], %d" % KA_WS)
    k.e("s_load_dwordx2 s[60:61], s[0:1], %d" % (KA_X if mode == "wo" else KA_OUT))
    k.e("s_and_b32 s20, s2, 7")
    k.e("s_lshr_b32 s21, s2, 3")
    k.e("s_and_b32 s22, s20, 1")
    k.e("s_lshl_b32 s22, s22, 2")
    k.e("s_and_b32 s23, s21, 3")
    k.e("s_add_u32 s22, s22, s23")
    k.e("s_lshr_b32 s23, s20, 1")
    k.e("s_lshl_b32 s23, s23, 3")
    k.e("s_lshr_b32 s24, s21, 2")
    k.e("s_add_u32 s23, s23, s24")
    k.e("s_lshl_b32 s24, s23, 6")
    wave_and_lane(k)
    k.e("s_lshr_b32 s26, s25, 1")
    k.e("s_and_b32 s28, s25, 1")
    k.e("s_lshr_b32 s27, s26, 1")
    dma = []
    k.e("v_lshlrev_b32 v9, 4, v2")
    k.e("s_lshl_b32 s30, s23, 1")
    k.e("s_lshr_b32 s31, s25, 2")
    k.e("s_add_u32 s30, s30, s31")
    k.e("s_mul_i32 s30, s30, %d" % NBLK)
    k.e("s_and_b32 s31, s25, 3")
    k.e("s_add_u32 s30, s30, s31")
    k.e("s_lshl_b32 s30, s30, 10")
    k.e("v_add_u32 v10, s30, v9")
    k.e("s_lshl_b32 s40, s25, 10")
    dma.append((8, 10, 50, 40))
    for i in range(2):
        k.e("s_lshl_b32 s30, s25, 3")
        k.e("s_add_u32 s30, s30, %d" % (4 * i))
        k.e("v_bfe_u32 v6, v2, 2, 2")
        k.e("v_add_u32 v6, s30, v6")
        k.e("v_lshlrev_b32 v6, 11, v6")
        k.e("v_lshrrev_b32 v7, 4, v2")
        k.e("v_lshl_add_u32 v6, v7, 6, v6")
        k.e("v_and_b32 v7, 3, v2")
        k.e("v_lshl_add_u32 v6, v7, 4, v6")
        k.e("s_lshl_b32 s31, s22, 8")
        k.e("v_add_u32 v%d, s31, v6" % (12 + i))
        k.e("s_lshl_b32 s%d, s25, 11" % (42 + i))
        k.e("s_add_u32 s%d, s%d, %d" % (42 + i, 42 + i, XB + 1024 * i))
        dma.append((12, 12 + i, 51, 42 + i))
    k.e("s_mov_b32 s50, 0")
    k.e("s_mov_b32 s51, 0")
    k.e("s_waitcnt lgkmcnt(0)")
    k.srd(8, 6, 2048 * KD * 2, XOFF)
    k.srd(12, 4, KD * 1024 * 2)
    sp = Spec()
    sp.NS, sp.nst, sp.stage_bytes = NS, KD // BK, SB
    sp.dma = dma
    sp.sadv = [(50, 4096), (51, BK * 2048)]
    sp.s_wr, sp.s_rd, sp.s_cnt = 52, 53, 54
    gemm_prologue(k, sp)
    for tl in range(2):
        k.e("s_xor_b32 s30, s27, %d" % tl)
        k.e("s_lshl_b32 s30, s30, 2")
        k.e("s_add_u32 s30, s30, s26")
        k.e("s_lshl_b32 s30, s30, 10")
        k.e("v_add_u32 v%d, s30, v9" % (16 + tl))
    wfrag_lanepat(k, 3, 4, 1024)
    for nl in range(2):
        k.e("s_and_b32 s30, s26, 1")
        k.e("s_xor_b32 s30, s30, %d" % nl)
        k.e("s_lshl_b32 s31, s28, 1")
        k.e("s_add_u32 s30, s30, s31")
        k.e("s_lshl_b32 s30, s30, 8")
        k.e("s_lshl_b32 s31, s26, 12")
        k.e("s_add_u32 s30, s30, s31")
        k.e("s_add_u32 s30, s30, %d" % XB)
        k.e("v_add_u32 v%d, s30, v3" % (18 + nl))
    ACC = 64
    for i in range(64):
        k.e("v_mov_b32 v%d, 0" % (ACC + i))
    F0, F1 = 128, 144
    reads = [("ds_read_b128", 0, 16, 0),
             ("ds_read_b64_tr_b16", 8, 18, 0), ("ds_read_b64_tr_b16", 10, 18, 2048),
             ("ds_read_b64_tr_b16", 12, 19, 0), ("ds_read_b64_tr_b16", 14, 19, 2048),
             ("ds_read_b128", 4, 17, 0)]
    mf = [(ACC + 0, 8, 0, 2), (ACC + 16, 12, 0, 4), (ACC + 32, 8, 4, 5), (ACC + 48, 12, 4, 5)]
    sp.addr = [16, 17, 18, 19]
    sp.steps = [dict(reads=reads, mfma=mf)]
    sp.fset = [F0, F1]
    k.e("s_and_b32 s31, s26, 1")
    k.e("s_lshl_b32 s32, s28, 1")
    k.e("s_add_u32 s29, s31, s32")
    k.e("s_lshl_b32 s32, s22, 2")
    k.e("s_add_u32 s33, s29, s32")
    k.e("s_lshl_b32 s30, s23, 1")
    k.e("s_add_u32 s30, s30, s27")
    k.e("s_lshl_b32 s30, s30, 6")
    k.e("s_lshl_b32 s31, s33, 1")
    k.e("s_add_u32 s30, s30, s31")
    k.e("s_lshl_b32 s30, s30, 10")
    k.e("v_add_u32 v7, s30, v9")
    k.srd(16, 60, 2048 * 1024 * 2)
    k.srd(56, 6, 2048 * 1024 * 2, WS_H)

    def resid():
        if mode == "wo":
            k.e("s_lshl_b32 s30, s27, 5")
            k.e("s_add_u32 s30, s30, s24")
            k.e("v_and_b32 v3, 31, v2")
            k.e("v_add_u32 v3, s30, v3")
            k.e("v_lshlrev_b32 v6, 11, v3")
            k.e("s_lshl_b32 s32, s33, 6")
            k.e("v_add_u32 v6, s32, v6")
            k.e("v_lshrrev_b32 v5, 5, v2")
            k.e("v_lshl_add_u32 v6, v5, 3, v6")
            for q in range(4):
                k.e("buffer_load_dwordx2 v[%d:%d], v6, s[16:19], 0 offen offset:%d" % (32 + 2 * q, 33 + 2 * q, 16 * q))
            return 4
        else:
            for s in range(2):
                k.e("buffer_load_dwordx4 v[%d:%d], v7, s[56:59], 0 offen offset:%d" % (32 + 4 * s, 35 + 4 * s, 1024 * s))
            return 2
    sp.tail_hook = resid
    gemm_main(k, sp)
    for c in range(1, 4):
        k.e("s_xor_b32 s30, s26, %d" % c)
        k.e("s_lshl_b32 s34, s28, 2")
        k.e("s_add_u32 s30, s30, s34")
        k.e("s_mul_i32 s30, s30, 3")
        k.e("s_add_u32 s30, s30, %d" % (c - 1))
        k.e("s_lshl_b32 s30, s30, 12")
        k.e("v_add_u32 v%d, s30, v9" % (20 + c))
    k.e("s_lshl_b32 s34, s28, 2")
    k.e("s_add_u32 s30, s26, s34")
    k.e("s_mul_i32 s30, s30, 12288")
    k.e("v_add_u32 v20, s30, v9")
    k.e("v_mov_b32 v60, 0xffff0000")
    k.e("s_nop 4")
    k.e("s_barrier")
    for c in range(1, 4):
        for q in range(4):
            k.e("ds_write_b128 v%d, v[%d:%d] offset:%d" % (20 + c, ACC + 16 * c + 4 * q, ACC + 16 * c + 4 * q + 3, 1024 * q))
    k.e("s_waitcnt lgkmcnt(0)")
    k.e("s_barrier")
    for c in range(3):
        for q in range(4):
            k.e("ds_read_b128 v[%d:%d], v20 offset:%d" % (ACC + 16 + 16 * c + 4 * q, ACC + 16 + 16 * c + 4 * q + 3, 4096 * c + 1024 * q))
    k.e("s_waitcnt lgkmcnt(8)")
    for i in range(0, 16, 2):
        k.e(pk("v_pk_add_f32", ACC + i, ACC + i, ACC + 16 + i))
    k.e("s_waitcnt lgkmcnt(0)")
    for i in range(0, 16, 2):
        k.e(pk("v_pk_add_f32", ACC + 32 + i, ACC + 32 + i, ACC + 48 + i))
    for i in range(0, 16, 2):
        k.e(pk("v_pk_add_f32", ACC + i, ACC + i, ACC + 32 + i))
    k.e("s_waitcnt vmcnt(0)")
    T = ACC + 16
    R = ACC + 32
    for i in range(8):
        k.e("v_cvt_pk_bf16_f32 v%d, v%d, v%d" % (40 + i, ACC + 2 * i, ACC + 2 * i + 1))
    for i in range(8):
        k.e("v_lshlrev_b32 v%d, 16, v%d" % (T + 2 * i, 40 + i))
        k.e("v_and_b32 v%d, v60, v%d" % (T + 2 * i + 1, 40 + i))
        k.e("v_lshlrev_b32 v%d, 16, v%d" % (R + 2 * i, 32 + i))
        k.e("v_and_b32 v%d, v60, v%d" % (R + 2 * i + 1, 32 + i))
    for i in range(8):
        k.e(pk("v_pk_add_f32", T + 2 * i, T + 2 * i, R + 2 * i))
    for i in range(8):
        k.e("v_cvt_pk_bf16_f32 v%d, v%d, v%d" % (48 + i, T + 2 * i, T + 2 * i + 1))
    EX = 98304
    if mode == "wo":
        for s in range(2):
            k.e("buffer_store_dwordx4 v[%d:%d], v7, s[56:59], 0 offen offset:%d%s" % (48 + 4 * s, 51 + 4 * s, 1024 * s, WT))
        for i in range(8):
            k.e("v_lshlrev_b32 v%d, 16, v%d" % (T + 2 * i, 48 + i))
            k.e("v_and_b32 v%d, v60, v%d" % (T + 2 * i + 1, 48 + i))
        for i in range(8):
            k.e(pk("v_pk_mul_f32", R + 2 * i, T + 2 * i, T + 2 * i))
        for st_ in (8, 4, 2):
            for i in range(0, st_, 2):
                k.e(pk("v_pk_add_f32", T + i, T + i, T + st_ + i))
                k.e(pk("v_pk_add_f32", R + i, R + i, R + st_ + i))
        k.e("v_add_f32 v44, v%d, v%d" % (T, T + 1))
        k.e("v_add_f32 v45, v%d, v%d" % (R, R + 1))
        k.e("v_mov_b32 v46, v44")
        k.e("v_mov_b32 v47, v45")
        k.e("s_nop 1")
        k.e("v_permlane32_swap_b32 v44, v46")
        k.e("v_permlane32_swap_b32 v45, v47")
        k.e("s_nop 1")
        k.e("v_add_f32 v44, v44, v46")
        k.e("v_add_f32 v45, v45, v47")
        k.e("s_lshl_b32 s30, s27, 2")
        k.e("s_add_u32 s30, s30, s29")
        k.e("s_lshl_b32 s30, s30, 8")
        k.e("s_add_u32 s30, s30, %d" % EX)
        k.e("v_and_b32 v3, 31, v2")
        k.e("v_lshlrev_b32 v3, 3, v3")
        k.e("v_add_u32 v4, s30, v3")
        k.e("ds_write_b64 v4, v[44:45]")
        k.srd(16, 6, 8 * 2048 * 8, WS_ST)
        k.e("s_waitcnt lgkmcnt(0)")
        k.e("s_barrier")
        L_fin = k.newlab("fin")
        k.e("s_cmp_ge_u32 s25, 2")
        k.e("s_cbranch_scc1 %s" % L_fin)
        k.e("s_lshl_b32 s30, s25, 10")
        k.e("s_add_u32 s30, s30, %d" % EX)
        k.e("v_add_u32 v4, s30, v3")
        for j in range(4):
            k.e("ds_read_b64 v[%d:%d], v4 offset:%d" % (44 + 2 * j, 45 + 2 * j, 256 * j))
        k.e("s_lshl_b32 s30, s22, 14")
        k.e("s_lshl_b32 s31, s25, 5")
        k.e("s_add_u32 s31, s31, s24")
        k.e("s_lshl_b32 s31, s31, 3")
        k.e("s_add_u32 s30, s30, s31")
        k.e("v_add_u32 v3, s30, v3")
        k.e("s_waitcnt lgkmcnt(0)")
        k.e(pk("v_pk_add_f32", 44, 44, 46))
        k.e(pk("v_pk_add_f32", 48, 48, 50))
        k.e(pk("v_pk_add_f32", 44, 44, 48))
        k.e("v_cmp_gt_u32 vcc, 32, v2")
        k.e("s_and_saveexec_b64 s[36:37], vcc")
        k.e("buffer_store_dwordx2 v[44:45], v3, s[16:19], 0 offen%s" % WT)
        k.lab(L_fin)
    else:
        k.e("s_lshl_b32 s30, s27, 5")
        k.e("v_and_b32 v3, 31, v2")
        k.e("v_add_u32 v3, s30, v3")
        k.e("v_mul_u32_u24 v3, 272, v3")
        k.e("v_lshrrev_b32 v5, 5, v2")
        k.e("v_lshl_add_u32 v3, v5, 3, v3")
        k.e("s_lshl_b32 s30, s29, 6")
        k.e("s_add_u32 s30, s30, %d" % EX)
        k.e("v_add_u32 v3, s30, v3")
        for q in range(4):
            k.e("ds_write_b64 v3, v[%d:%d] offset:%d" % (48 + 2 * q, 49 + 2 * q, 16 * q))
        k.e("v_lshrrev_b32 v4, 4, v2")
        k.e("s_lshl_b32 s30, s25, 3")
        k.e("v_add_u32 v4, s30, v4")
        k.e("v_and_b32 v5, 15, v2")
        k.e("v_mul_u32_u24 v6, 272, v4")
        k.e("v_lshl_add_u32 v6, v5, 4, v6")
        k.e("v_add_u32 v6, %d, v6" % EX)
        k.e("v_add_u32 v4, s24, v4")
        k.e("v_lshlrev_b32 v4, 11, v4")
        k.e("v_lshl_add_u32 v4, v5, 4, v4")
        k.e("s_lshl_b32 s30, s22, 8")
        k.e("v_add_u32 v4, s30, v4")
        k.e("v_add_u32 v5, 8192, v4")
        k.e("s_waitcnt lgkmcnt(0)")
        k.e("s_barrier")
        k.e("ds_read_b128 v[32:35], v6")
        k.e("ds_read_b128 v[36:39], v6 offset:1088")
        k.e("s_waitcnt lgkmcnt(1)")
        k.e("buffer_store_dwordx4 v[32:35], v4, s[16:19], 0 offen%s" % WT)
        k.e("s_waitcnt lgkmcnt(0)")
        k.e("buffer_store_dwordx4 v[36:39], v5, s[16:19], 0 offen%s" % WT)
    k.stamp_store(3 if mode == "wo" else 5)
    k.lab(L_end)
    k.e("s_endpgm")
    return k, 160, (256, 512, NS * SB)


def gen_k3():
    k = KB("k3_glu_kernel")
    L_end = k.newlab("end")
    BK, NS = 32, 5
    XB = 16384
    GB = (BK // 4) * 7 * 128
    UOFF = XB + GB + 128
    SB = XB + 14592
    CSL = NS * SB
    SCR = CSL + 1024
    k.e("s_cmp_ge_u32 s2, 256")
    k.e("s_cbranch_scc1 %s" % L_end)
    k.e("s_load_dwordx4 s[60:63], s[0:1], %d" % KA_WG)
    k.e("s_load_dwordx2 s[6:7], s[0:1], %d" % KA_WS)
    k.e("s_load_dwordx2 s[70:71], s[0:1], %d" % KA_WD)
    k.e("s_and_b32 s20, s2, 7")
    k.e("s_lshr_b32 s21, s2, 3")
    k.e("s_lshr_b32 s23, s20, 2")
    k.e("s_lshl_b32 s23, s23, 2")
    k.e("s_and_b32 s24, s21, 3")
    k.e("s_add_u32 s23, s23, s24")
    k.e("s_and_b32 s22, s20, 3")
    k.e("s_lshl_b32 s22, s22, 3")
    k.e("s_lshr_b32 s24, s21, 2")
    k.e("s_add_u32 s22, s22, s24")
    k.e("s_lshl_b32 s24, s23, 8")
    wave_and_lane(k)
    dma = []
    k.e("v_lshlrev_b32 v9, 4, v2")
    k.e("s_lshl_b32 s29, s23, 3")
    k.e("s_add_u32 s29, s29, s25")
    k.e("s_lshl_b32 s30, s29, 16")
    k.e("v_add_u32 v10, s30, v9")
    k.e("v_add_u32 v11, 1024, v10")
    for i in range(2):
        k.e("s_lshl_b32 s%d, s25, 11" % (40 + i))
        k.e("s_add_u32 s%d, s%d, %d" % (40 + i, 40 + i, 1024 * i))
        dma.append((8, 10 + i, 50, 40 + i))
    k.e("s_lshl_b32 s31, s25, 3")
    k.e("v_lshrrev_b32 v3, 3, v2")
    k.e("v_add_u32 v3, s31, v3")
    k.e("v_mul_u32_u24 v4, 37, v3")
    k.e("v_lshrrev_b32 v4, 8, v4")
    k.e("v_mul_u32_u24 v5, 7, v4")
    k.e("v_sub_u32 v5, v3, v5")
    k.e("v_bfe_u32 v6, v2, 1, 2")
    k.e("v_lshl_add_u32 v6, v4, 2, v6")
    k.e("v_mul_u32_u24 v6, 7168, v6")
    k.e("v_lshl_add_u32 v6, v5, 5, v6")
    k.e("v_and_b32 v7, 1, v2")
    k.e("v_lshl_add_u32 v6, v7, 4, v6")
    k.e("s_mul_i32 s31, s22, 224")
    k.e("v_add_u32 v12, s31, v6")
    k.e("s_mul_i32 s31, s2, 28672")
    k.e("v_add_u32 v7, s31, v9")
    k.e("s_lshl_b32 s42, s25, 10")
    k.e("s_add_u32 s43, s42, %d" % UOFF)
    k.e("s_add_u32 s42, s42, %d" % XB)
    k.e("s_mov_b32 s56, %d" % (BK * 7168))
    k.e("s_cmp_eq_u32 s25, 7")
    k.e("s_cselect_b32 s56, 1024, s56")
    k.e("s_cselect_b32 s57, 0, -1")
    k.e("s_cselect_b32 s42, %d, s42" % SCR)
    k.e("s_cselect_b32 s43, %d, s43" % (SCR + 1024))
    k.e("s_cselect_b64 vcc, -1, 0")
    k.e("s_nop 1")
    k.e("v_cndmask_b32 v12, v12, v7, vcc")
    dma.append((12, 12, 51, 42))
    dma.append((16, 12, 51, 43))
    k.e("s_mov_b32 s50, 0")
    k.e("s_mov_b32 s51, 0")
    k.e("s_waitcnt lgkmcnt(0)")
    k.srd(8, 6, 2048 * 1024 * 2, WS_H)
    k.e("s_cmp_eq_u32 s25, 7")
    k.e("s_cselect_b32 s72, s70, s60")
    k.e("s_cselect_b32 s73, s71, s61")
    k.e("s_cselect_b32 s74, s70, s62")
    k.e("s_cselect_b32 s75, s71, s63")
    k.srd(12, 72, 1024 * 3584 * 2)
    k.srd(16, 74, 1024 * 3584 * 2)
    k.e("s_cmp_eq_u32 s25, 7")
    k.e("s_cselect_b32 s14, 0, s14")
    k.e("s_cselect_b32 s18, 0, s18")
    sp = Spec()
    sp.NS, sp.nst, sp.stage_bytes = NS, 1024 // BK, SB
    sp.dma = dma
    sp.dma_abs = {2: 57, 3: 57}
    sp.sadv = [(50, 2048), (51, "s56")]
    sp.s_wr, sp.s_rd, sp.s_cnt = 52, 53, 54
    gemm_prologue(k, sp)
    k.e("s_mov_b32 s14, %d" % (1024 * 3584 * 2))
    k.e("s_cmp_eq_u32 s25, 7")
    k.e("s_cselect_b32 s51, 0, s51")
    k.e("s_lshl_b32 s30, s25, 11")
    k.e("v_add_u32 v14, s30, v9")
    k.e("v_bfe_u32 v3, v2, 2, 2")
    k.e("v_lshlrev_b32 v3, 5, v3")
    k.e("v_and_b32 v4, 3, v2")
    k.e("v_lshl_add_u32 v3, v4, 3, v3")
    k.e("v_lshrrev_b32 v4, 5, v2")
    k.e("v_mul_u32_u24 v4, %d, v4" % (7 * 128))
    k.e("v_add_u32 v3, v3, v4")
    k.e("v_bfe_u32 v4, v2, 4, 1")
    k.e("v_mul_u32_u24 v4, %d, v4" % (UOFF - XB))
    k.e("v_add_u32 v3, v3, v4")
    k.e("v_add_u32 v16, %d, v3" % XB)
    ACC = 64
    for i in range(112):
        k.e("v_mov_b32 v%d, 0" % (ACC + i))
    F0, F1 = 176, 208
    steps = []
    for jj in range(2):
        reads = [("ds_read_b128", 0, 14, 1024 * jj)]
        mf = []
        for t in range(7):
            for i in range(2):
                reads.append(("ds_read_b64_tr_b16", 4 + 4 * t + 2 * i, 16, ((4 * jj + 2 * i) * 7 + t) * 128))
            mf.append((ACC + 16 * t, 4 + 4 * t, 0, 2 * t + 2))
        steps.append(dict(reads=reads, mfma=mf))
    sp.addr = [14, 16]
    sp.steps = steps
    sp.fset = [F0, F1]
    k.srd(64, 6, 8 * 2048 * 8, WS_ST)
    k.srd(76, 6, 2048 * 3584 * 2, WS_HH)
    k.srd(68, 6, 2 * 3584 * 4, WS_CS2)
    S0 = 24

    def early():
        k.e("s_lshl_b32 s30, s25, 5")
        k.e("s_add_u32 s30, s30, s24")
        k.e("v_and_b32 v3, 31, v2")
        k.e("v_add_u32 v3, s30, v3")
        k.e("v_lshlrev_b32 v4, 3, v3")
        k.e("v_lshrrev_b32 v5, 5, v2")
        k.e("v_lshl_add_u32 v4, v5, 16, v4")
        k.e("s_mov_b32 s31, 0")
        for i in range(4):
            k.e("buffer_load_dwordx2 v[%d:%d], v4, s[64:67], s31 offen" % (S0 + 2 * i, S0 + 2 * i + 1))
            k.e("s_add_u32 s31, s31, 16384")
        k.e("v_cmp_gt_u32 vcc, 28, v2")
        k.e("v_subrev_u32 v6, 28, v2")
        k.e("v_cndmask_b32 v6, v6, v2, vcc")
        k.e("v_lshlrev_b32 v6, 4, v6")
        k.e("v_mov_b32 v7, %d" % (3584 * 4))
        k.e("v_mov_b32 v8, 0")
        k.e("v_cndmask_b32 v7, v7, v8, vcc")
        k.e("v_add_u32 v6, v6, v7")
        k.e("s_mul_i32 s31, s22, 448")
        k.e("v_add_u32 v6, s31, v6")
        k.e("buffer_load_dwordx4 v[32:35], v6, s[68:71], 0 offen")
        return 5
    sp.tail_hook = early
    gemm_main(k, sp)
    k.e("s_waitcnt vmcnt(0)")
    k.e("v_add_u32 v6, %d, v9" % CSL)
    k.e("v_cmp_gt_u32 vcc, 56, v2")
    k.e("s_and_saveexec_b64 s[36:37], vcc")
    k.e("ds_write_b128 v6, v[32:35]")
    k.e("s_mov_b64 exec, s[36:37]")
    k.e(pk("v_pk_add_f32", S0, S0, S0 + 2))
    k.e(pk("v_pk_add_f32", S0 + 4, S0 + 4, S0 + 6))
    k.e(pk("v_pk_add_f32", S0, S0, S0 + 4))
    k.e("v_mov_b32 v8, v%d" % S0)
    k.e("v_mov_b32 v7, v%d" % (S0 + 1))
    k.e("v_mov_b32 v6, v8")
    k.e("v_mov_b32 v10, v7")
    k.e("s_nop 1")
    k.e("v_permlane32_swap_b32 v8, v6")
    k.e("v_permlane32_swap_b32 v7, v10")
    k.e("s_nop 1")
    k.e("v_add_f32 v8, v8, v6")
    k.e("v_add_f32 v7, v7, v10")
    k.e("s_waitcnt lgkmcnt(0)")
    k.e("s_barrier")
    k.e("v_lshrrev_b32 v6, 5, v2")
    k.e("v_lshlrev_b32 v5, 4, v6")
    k.e("v_add_u32 v5, %d, v5" % CSL)
    C0 = 176
    T = 208

    def csread(tt):
        cbb = C0 + (tt & 1) * 16
        for q in range(2):
            k.e("ds_read_b128 v[%d:%d], v5 offset:%d" % (cbb + 4 * q, cbb + 4 * q + 3, tt * 64 + q * 32))
            k.e("ds_read_b128 v[%d:%d], v5 offset:%d" % (cbb + 8 + 4 * q, cbb + 8 + 4 * q + 3, 448 + tt * 64 + q * 32))
    csread(0)
    csread(1)
    k.e("v_mul_f32 v8, 0x3a800000, v8")
    k.e("v_mul_f32 v7, 0x3a800000, v7")
    k.e("v_fma_f32 v7, -v8, v8, v7")
    k.e("v_max_f32 v7, 0, v7")
    round_bf16(k, 8, 8)
    round_bf16(k, 7, 7)
    k.e("v_add_f32 v7, 0x3727c5ac, v7")
    round_bf16(k, 7, 7)
    k.e("v_sqrt_f32 v7, v7")
    k.e("s_nop 0")
    round_bf16(k, 7, 7)
    k.e("v_rcp_f32 v54, v7")
    k.e("s_nop 0")
    k.e("v_mov_b32 v55, v54")
    k.e("v_mul_f32 v8, v8, v54")
    k.e("v_sub_f32 v52, 0, v8")
    k.e("v_mov_b32 v53, v52")
    k.e("s_mul_i32 s31, s29, 224")
    k.e("s_mul_i32 s30, s22, 7")
    k.e("s_add_u32 s31, s31, s30")
    k.e("s_lshl_b32 s31, s31, 10")
    k.e("v_add_u32 v57, s31, v9")
    k.e("v_add_u32 v56, 4096, v57")
    c1 = -2.0 * math.log2(math.e) * math.sqrt(2.0 / math.pi)
    c2 = c1 * 0.044715
    k.e("v_mov_b32 v60, 0x%08x" % f2u(c1))
    k.e("v_mov_b32 v61, 0x%08x" % f2u(c1))
    k.e("v_mov_b32 v62, 0x%08x" % f2u(c2))
    k.e("v_mov_b32 v63, 0x%08x" % f2u(c2))
    k.e("v_mov_b32 v58, 1.0")
    k.e("v_mov_b32 v59, 1.0")
    for t in range(7):
        cb = C0 + (t & 1) * 16
        k.e("s_waitcnt lgkmcnt(%d)" % (4 if t < 6 else 0))
        A = ACC + 16 * t
        for j in range(8):
            k.e(pk("v_pk_mul_f32", T + 2 * j, cb + 2 * j, 52))
        for j in range(8):
            k.e(pk("v_pk_fma_f32", A + 2 * j, A + 2 * j, 54, T + 2 * j))
        if t + 2 < 7:
            csread(t + 2)
        for j in range(4):
            k.e(pk("v_pk_mul_f32", T + 2 * j, A + 2 * j, A + 2 * j))
        for j in range(4):
            k.e(pk("v_pk_fma_f32", T + 2 * j, T + 2 * j, 62, 60))
        for j in range(4):
            k.e(pk("v_pk_mul_f32", T + 2 * j, T + 2 * j, A + 2 * j))
        for j in range(8):
            k.e("v_exp_f32 v%d, v%d" % (T + j, T + j))
        for j in range(4):
            k.e(pk("v_pk_mul_f32", A + 2 * j, A + 2 * j, A + 8 + 2 * j))
        for j in range(4):
            k.e(pk("v_pk_add_f32", T + 2 * j, T + 2 * j, 58))
        for j in range(8):
            k.e("v_rcp_f32 v%d, v%d" % (T + j, T + j))
        k.e("s_nop 0")
        for j in range(4):
            k.e(pk("v_pk_mul_f32", A + 2 * j, A + 2 * j, T + 2 * j))
        for j in range(4):
            k.e("v_cvt_pk_bf16_f32 v%d, v%d, v%d" % (40 + 4 * (t & 1) + j, A + 2 * j, A + 2 * j + 1))
        k.e("buffer_store_dwordx4 v[%d:%d], v%d, s[76:79], 0 offen offset:%d%s" % (40 + 4 * (t & 1), 43 + 4 * (t & 1), 57 if t < 4 else 56, 1024 * (t & 3), WT))
    k.stamp_store(4)
    k.lab(L_end)
    k.e("s_endpgm")
    return k, 240, (256, 512, SCR + 2048)


WS_P = 40 * MB


def gen_down2():
    k = KB("k4_down_kernel")
    L_end = k.newlab("end")
    BK, NS = 64, 5
    XB = 16384
    WB = 16384
    SB = XB + WB
    k.e("s_cmp_ge_u32 s2, 256")
    k.e("s_cbranch_scc1 %s" % L_end)
    k.e("s_load_dwordx2 s[4:5], s[0:1], %d" % KA_WD)
    k.e("s_load_dwordx2 s[6:7], s[0:1], %d" % KA_WS)
    k.e("s_load_dwordx4 s[60:63], s[0:1], %d" % KA_OUT)
    k.e("s_and_b32 s20, s2, 7")
    k.e("s_lshr_b32 s21, s2, 3")
    k.e("s_and_b32 s38, s21, 1")
    k.e("s_lshr_b32 s21, s21, 1")
    k.e("s_and_b32 s22, s20, 1")
    k.e("s_lshl_b32 s22, s22, 2")
    k.e("s_and_b32 s23, s21, 3")
    k.e("s_add_u32 s22, s22, s23")
    k.e("s_lshr_b32 s23, s20, 1")
    k.e("s_lshl_b32 s23, s23, 2")
    k.e("s_lshr_b32 s24, s21, 2")
    k.e("s_add_u32 s23, s23, s24")
    k.e("s_lshl_b32 s24, s23, 7")
    wave_and_lane(k)
    k.e("s_lshr_b32 s26, s25, 2")
    k.e("s_bfe_u32 s27, s25, 0x10001")
    k.e("s_and_b32 s28, s25, 1")
    dma = []
    k.e("v_lshlrev_b32 v9, 4, v2")
    k.e("s_lshl_b32 s30, s23, 2")
    k.e("s_lshr_b32 s31, s25, 1")
    k.e("s_add_u32 s30, s30, s31")
    k.e("s_mul_i32 s30, s30, 224")
    k.e("s_mul_i32 s31, s38, 112")
    k.e("s_add_u32 s30, s30, s31")
    k.e("s_lshl_b32 s31, s28, 1")
    k.e("s_add_u32 s30, s30, s31")
    k.e("s_lshl_b32 s30, s30, 10")
    k.e("v_add_u32 v10, s30, v9")
    k.e("v_add_u32 v11, 1024, v10")
    for i in range(2):
        k.e("s_lshl_b32 s%d, s25, 11" % (40 + i))
        k.e("s_add_u32 s%d, s%d, %d" % (40 + i, 40 + i, 1024 * i))
        dma.append((8, 10 + i, 50, 40 + i))
    for i in range(2):
        k.e("s_lshl_b32 s30, s25, 3")
        k.e("s_add_u32 s30, s30, %d" % (4 * i))
        k.e("v_bfe_u32 v6, v2, 2, 2")
        k.e("v_add_u32 v6, s30, v6")
        k.e("v_lshlrev_b32 v6, 11, v6")
        k.e("v_lshrrev_b32 v7, 4, v2")
        k.e("v_lshl_add_u32 v6, v7, 6, v6")
        k.e("v_and_b32 v7, 3, v2")
        k.e("v_lshl_add_u32 v6, v7, 4, v6")
        k.e("s_lshl_b32 s31, s22, 8")
        k.e("v_add_u32 v%d, s31, v6" % (12 + i))
        k.e("s_lshl_b32 s%d, s25, 11" % (42 + i))
        k.e("s_add_u32 s%d, s%d, %d" % (42 + i, 42 + i, XB + 1024 * i))
        dma.append((12, 12 + i, 51, 42 + i))
    k.e("s_mov_b32 s50, 0")
    k.e("s_mul_i32 s51, s38, %d" % (1792 * 2048))
    k.e("s_waitcnt lgkmcnt(0)")
    k.srd(8, 6, 2048 * 3584 * 2, WS_HH)
    k.srd(12, 4, 3584 * 1024 * 2)
    sp = Spec()
    sp.NS, sp.nst, sp.stage_bytes = NS, 1792 // BK, SB
    sp.dma = dma
    sp.sadv = [(50, 4096), (51, BK * 2048)]
    sp.s_wr, sp.s_rd, sp.s_cnt = 52, 53, 54
    k.srd(64, 6, 32768, WS_FLAG)
    k.e("s_lshl_b32 s33, s23, 3")
    k.e("s_add_u32 s33, s33, s22")
    k.e("s_lshl_b32 s34, s33, 8")
    k.e("v_mov_b32 v20, s34")
    k.e("v_mov_b32 v21, 1")
    L_na0 = k.newlab("noarr0")
    k.e("s_cmp_lg_u32 s25, 0")
    k.e("s_cbranch_scc1 %s" % L_na0)
    k.e("s_mov_b64 exec, 1")
    k.e("buffer_atomic_add v21, v20, s[64:67], 0 offen sc0 sc1")
    k.e("s_mov_b64 exec, -1")
    k.lab(L_na0)
    gemm_prologue(k, sp)
    for tl in range(2):
        k.e("s_xor_b32 s30, s26, %d" % tl)
        k.e("s_lshl_b32 s31, s27, 1")
        k.e("s_add_u32 s30, s30, s31")
        k.e("s_lshl_b32 s30, s30, 2")
        k.e("s_lshl_b32 s31, s26, 1")
        k.e("s_add_u32 s30, s30, s31")
        k.e("s_lshl_b32 s30, s30, 10")
        k.e("v_add_u32 v%d, s30, v9" % (16 + tl))
    wfrag_lanepat(k, 3, 4, 1024)
    k.e("s_lshl_b32 s30, s26, 13")
    k.e("s_lshl_b32 s31, s28, 9")
    k.e("s_add_u32 s30, s30, s31")
    k.e("s_add_u32 s30, s30, %d" % XB)
    k.e("v_add_u32 v18, s30, v3")
    ACC = 64
    for i in range(64):
        k.e("v_mov_b32 v%d, 0" % (ACC + i))
    F0, F1 = 128, 144
    steps = []
    for jj in range(2):
        reads = [("ds_read_b128", 0, 16, 1024 * jj),
                 ("ds_read_b64_tr_b16", 8, 18, 4096 * jj), ("ds_read_b64_tr_b16", 10, 18, 4096 * jj + 2048),
                 ("ds_read_b64_tr_b16", 12, 18, 4096 * jj + 256), ("ds_read_b64_tr_b16", 14, 18, 4096 * jj + 2048 + 256),
                 ("ds_read_b128", 4, 17, 1024 * jj)]
        mf = [(ACC + 0, 8, 0, 2), (ACC + 16, 12, 0, 4), (ACC + 32, 8, 4, 5), (ACC + 48, 12, 4, 5)]
        steps.append(dict(reads=reads, mfma=mf))
    sp.addr = [16, 17, 18]
    sp.steps = steps
    sp.fset = [F0, F1]
    k.e("s_lshl_b32 s29, s27, 1")
    k.e("s_add_u32 s29, s29, s26")
    k.e("s_lshl_b32 s30, s23, 2")
    k.e("s_add_u32 s30, s30, s29")
    k.e("s_lshl_b32 s30, s30, 6")
    k.e("s_lshl_b32 s31, s22, 3")
    k.e("s_add_u32 s30, s30, s31")
    k.e("s_lshl_b32 s31, s28, 2")
    k.e("s_add_u32 s30, s30, s31")
    k.e("s_lshl_b32 s30, s30, 10")
    k.e("v_add_u32 v7, s30, v9")
    k.srd(16, 60, 2048 * 1024 * 2)
    k.srd(56, 6, 2048 * 1024 * 2, WS_H)
    k.srd(68, 6, 128 * 65536, WS_P)

    def resid():
        for s_ in range(4):
            k.e("buffer_load_dwordx4 v[%d:%d], v7, s[56:59], 0 offen offset:%d" % (32 + 4 * s_, 35 + 4 * s_, 1024 * s_))
        return 4
    sp.tail_hook = resid
    gemm_main(k, sp)
    k.e("s_lshl_b32 s30, s25, 13")
    k.e("v_add_u32 v4, s30, v9")
    k.e("s_xor_b32 s31, s25, 4")
    k.e("s_lshl_b32 s31, s31, 13")
    k.e("v_add_u32 v5, s31, v9")
    k.e("v_mov_b32 v60, 0xffff0000")
    k.e("s_mov_b32 s35, 0")
    k.e("s_mov_b32 s36, 1")
    k.e("s_lshl_b32 s30, s33, 16")
    k.e("s_lshl_b32 s31, s25, 13")
    k.e("s_add_u32 s30, s30, s31")
    k.e("v_add_u32 v22, s30, v9")
    k.e("v_add_u32 v23, 4096, v22")
    k.e("s_barrier")
    for q in range(8):
        k.e("ds_write_b128 v4, v[%d:%d] offset:%d" % (ACC + 32 + 4 * q, ACC + 35 + 4 * q, 1024 * q))
    L_na = k.newlab("noarr")
    k.e("s_cmp_lg_u32 s25, 0")
    k.e("s_cbranch_scc1 %s" % L_na)
    k.e("s_mov_b64 exec, 1")
    k.e("v_mov_b32 v24, %d" % 131072)
    k.e("ds_write_b32 v24, v21")
    k.e("s_mov_b64 exec, -1")
    k.lab(L_na)
    k.e("s_waitcnt lgkmcnt(0)")
    k.e("s_barrier")
    for q in range(8):
        k.e("ds_read_b128 v[%d:%d], v5 offset:%d" % (ACC + 32 + 4 * q, ACC + 35 + 4 * q, 1024 * q))
    k.e("v_mov_b32 v24, %d" % 131072)
    k.e("ds_read_b32 v25, v24")
    k.e("s_waitcnt lgkmcnt(0)")
    for i in range(0, 32, 2):
        k.e(pk("v_pk_add_f32", ACC + i, ACC + i, ACC + 32 + i))
    k.e("v_readfirstlane_b32 s37, v25")
    k.e("s_nop 3")
    k.e("s_lshr_b32 s37, s37, s35")
    k.e("s_and_b32 s37, s37, 0xff")
    L_second = k.newlab("second")
    k.e("s_cmp_lg_u32 s37, 0")
    k.e("s_cbranch_scc1 %s" % L_second)
    for q in range(8):
        k.e("buffer_store_dwordx4 v[%d:%d], v%d, s[68:71], 0 offen offset:%d sc1" % (ACC + 4 * q, ACC + 4 * q + 3, 22 if q < 4 else 23, 1024 * (q & 3)))
    k.e("s_waitcnt vmcnt(0)")
    k.e("s_barrier")
    L_fin = k.newlab("fin")
    k.e("s_cmp_lg_u32 s25, 0")
    k.e("s_cbranch_scc1 %s" % L_fin)
    k.e("s_mov_b64 exec, 1")
    k.e("v_mov_b32 v21, s36")
    k.e("buffer_atomic_add v21, v20, s[64:67], 0 offen offset:128 sc1")
    k.e("s_mov_b64 exec, -1")
    k.e("s_branch %s" % L_fin)
    k.lab(L_second)
    L_wait = k.newlab("wait")
    L_go = k.newlab("go")
    k.e("s_cmp_lg_u32 s25, 0")
    k.e("s_cbranch_scc1 %s" % L_go)
    k.lab(L_wait)
    k.e("buffer_load_dword v25, v20, s[64:67], 0 offen offset:128 sc1")
    k.e("s_waitcnt vmcnt(0)")
    k.e("v_readfirstlane_b32 s37, v25")
    k.e("s_nop 3")
    k.e("s_and_b32 s37, s37, s36")
    k.e("s_cmp_lg_u32 s37, 0")
    k.e("s_cbranch_scc1 %s" % L_go)
    k.e("s_sleep 2")
    k.e("s_branch %s" % L_wait)
    k.lab(L_go)
    k.e("s_barrier")
    for q in range(8):
        k.e("buffer_load_dwordx4 v[%d:%d], v%d, s[68:71], 0 offen offset:%d sc1" % (ACC + 32 + 4 * q, ACC + 35 + 4 * q, 22 if q < 4 else 23, 1024 * (q & 3)))
    EX = 65536
    k.e("s_lshl_b32 s30, s29, 5")
    k.e("v_and_b32 v3, 31, v2")
    k.e("v_add_u32 v3, s30, v3")
    k.e("v_mul_u32_u24 v3, 272, v3")
    k.e("v_lshrrev_b32 v5, 5, v2")
    k.e("v_lshl_add_u32 v3, v5, 3, v3")
    k.e("s_lshl_b32 s30, s28, 7")
    k.e("s_add_u32 s30, s30, %d" % EX)
    k.e("v_add_u32 v3, s30, v3")
    k.e("v_lshrrev_b32 v4, 4, v2")
    k.e("s_lshl_b32 s30, s25, 4")
    k.e("v_add_u32 v4, s30, v4")
    k.e("v_and_b32 v5, 15, v2")
    k.e("v_mul_u32_u24 v6, 272, v4")
    k.e("v_lshl_add_u32 v6, v5, 4, v6")
    k.e("v_add_u32 v6, %d, v6" % EX)
    k.e("v_add_u32 v4, s24, v4")
    k.e("v_lshlrev_b32 v4, 11, v4")
    k.e("v_lshl_add_u32 v4, v5, 4, v4")
    k.e("s_lshl_b32 s30, s22, 8")
    k.e("v_add_u32 v4, s30, v4")
    T = 128
    R = 144
    for nl in range(2):
        k.e("s_waitcnt vmcnt(%d)" % (4 - 4 * nl))
        A = ACC + 16 * nl
        for i in range(0, 16, 2):
            k.e(pk("v_pk_add_f32", A + i, A + i, A + 32 + i))
        for i in range(8):
            k.e("v_cvt_pk_bf16_f32 v%d, v%d, v%d" % (48 + i, A + 2 * i, A + 2 * i + 1))
        for i in range(8):
            k.e("v_lshlrev_b32 v%d, 16, v%d" % (T + 2 * i, 48 + i))
            k.e("v_and_b32 v%d, v60, v%d" % (T + 2 * i + 1, 48 + i))
            k.e("v_lshlrev_b32 v%d, 16, v%d" % (R + 2 * i, 32 + 8 * nl + i))
            k.e("v_and_b32 v%d, v60, v%d" % (R + 2 * i + 1, 32 + 8 * nl + i))
        for i in range(8):
            k.e(pk("v_pk_add_f32", T + 2 * i, T + 2 * i, R + 2 * i))
        for i in range(8):
            k.e("v_cvt_pk_bf16_f32 v%d, v%d, v%d" % (48 + i, T + 2 * i, T + 2 * i + 1))
        for q in range(4):
            k.e("ds_write_b64 v3, v[%d:%d] offset:%d" % (48 + 2 * q, 49 + 2 * q, 64 * nl + 16 * q))
        if nl == 0:
            k.e("s_nop 1")
    k.e("s_waitcnt lgkmcnt(0)")
    k.e("s_barrier")
    for i in range(4):
        k.e("ds_read_b128 v[%d:%d], v6 offset:%d" % (32 + 4 * i, 35 + 4 * i, 1088 * i))
    k.e("s_mov_b32 s30, 0")
    for i in range(4):
        k.e("s_waitcnt lgkmcnt(%d)" % (3 - i))
        k.e("buffer_store_dwordx4 v[%d:%d], v4, s[16:19], s30 offen%s" % (32 + 4 * i, 35 + 4 * i, WT))
        k.e("s_add_u32 s30, s30, 8192")
    k.lab(L_fin)
    k.stamp_store(5)
    k.lab(L_end)
    k.e("s_endpgm")
    return k, 160, (256, 512, NS * SB)


def main():
    kernels = [gen_k0(), gen_k1() if os.environ.get('K1A') else gen_k1b(), gen_k15(), gen_proj("k2_wo_kernel", "wo"), gen_k3(),
               gen_down2() if os.environ.get("NEWK4") else gen_proj("k4_down_kernel", "down")]
    hdr = open(REF).read().split("\n")
    out = []
    for ln in hdr:
        if ln.startswith("; @launch"):
            break
        out.append(ln)
    for k, vg, (g, b, lds) in kernels:
        out.append("; @launch kernel=%s grid=(%d,1,1) block=(%d,1,1) lds=%d" % (k.name, g, b, lds))
    out.append('.amdgcn_target "amdgcn-amd-amdhsa--gfx950"')
    out.append(".text")
    descs = []
    for k, vg, _ in kernels:
        t, d = k.text(vg)
        out.append(t)
        descs.append(d)
    out.append('.section .rodata,"a"')
    for d in descs:
        out.append(".p2align 6")
        out.append(d)
    dst = os.environ.get("DST", "stamp.s" if STAMP else OUT)
    open(dst, "w").write("\n".join(out) + "\n")
    print("wrote", dst, sum(len(k.lines) for k, _, _ in kernels), "lines")


if __name__ == "__main__":
    main()
```

```python
import os, math, struct

NAME = "sequential_preLN__linear_attn_block__glu_gated_geglu__prompt"
OUT = "cdna_kernels/%s.s" % NAME
REF = OUT + ".ref"

MB = 1 << 20
WS_XN = 0 * MB
WS_PQ = 4 * MB
WS_KVP = 8 * MB
WS_ZP = 10 * MB
WS_CS = 11 * MB
WS_CS2 = 11 * MB + 512 * 1024
WS_ST = 12 * MB
WS_O = 16 * MB
WS_H = 20 * MB
WS_HH = 24 * MB
WS_FLAG = 13 * MB
WS_SIZE = 268435456

KA_X, KA_WQKV, KA_WO, KA_BX, KA_WG, KA_WU, KA_WD, KA_OUT, KA_DBG, KA_WS = [8 * i for i in range(10)]

STAMP = bool(os.environ.get("STAMP"))
WT = os.environ.get("WT", " sc1")
WS_STAMP = 128 * MB
f2u = lambda f: struct.unpack("<I", struct.pack("<f", f))[0]


class KB:
    def __init__(self, name):
        self.name = name
        self.lines = []
        self.nlab = 0
        self.nstamp = 0

    def stamp(self):
        if not STAMP:
            return
        i = self.nstamp
        self.nstamp += 1
        self.e("s_memtime s[%d:%d]" % (80 + 2 * i, 81 + 2 * i))
        if i == 0:
            self.e("s_memrealtime s[92:93]")
        self.e("s_waitcnt lgkmcnt(0)")

    def stamp_store(self, kidx):
        if not STAMP:
            return
        self.stamp()
        self.e("s_memrealtime s[94:95]")
        self.e("s_waitcnt lgkmcnt(0)")
        self.e("s_mov_b64 exec, -1")
        self.srd(76, 6, 1 << 20, WS_STAMP)
        self.e("s_lshl_b32 s98, s2, 8")
        self.e("s_lshl_b32 s97, s25, 5")
        self.e("s_add_u32 s98, s98, s97")
        self.e("s_add_u32 s98, s98, %d" % (kidx * 65536))
        self.e("v_mov_b32 v1, s98")
        for i in range(self.nstamp):
            self.e("v_mov_b32 v2, s%d" % (80 + 2 * i))
            self.e("buffer_store_dword v2, v1, s[76:79], 0 offen offset:%d" % (4 * i))
        for i, sr in enumerate((92, 94)):
            self.e("v_mov_b32 v2, s%d" % sr)
            self.e("buffer_store_dword v2, v1, s[76:79], 0 offen offset:%d" % (16 + 4 * i))

    def e(self, s):
        self.lines.append("    " + s)

    def lab(self, s):
        self.lines.append(s + ":")

    def newlab(self, s):
        self.nlab += 1
        return "L_%s_%s_%d" % (self.name, s, self.nlab)

    def srd(self, sd, sbase, nbytes, off=0):
        if off:
            self.e("s_add_u32 s%d, s%d, 0x%x" % (sd, sbase, off))
            self.e("s_addc_u32 s%d, s%d, 0" % (sd + 1, sbase + 1))
            self.e("s_and_b32 s%d, s%d, 0xffff" % (sd + 1, sd + 1))
        else:
            self.e("s_mov_b32 s%d, s%d" % (sd, sbase))
            self.e("s_and_b32 s%d, s%d, 0xffff" % (sd + 1, sbase + 1))
        self.e("s_mov_b32 s%d, 0x%x" % (sd + 2, nbytes))
        self.e("s_mov_b32 s%d, 0x00020000" % (sd + 3))

    def text(self, vgprs, sgprs=102):
        acc = (vgprs + 3) // 4 * 4
        out = [".globl %s" % self.name, ".p2align 8", ".type %s,@function" % self.name, "%s:" % self.name]
        out += self.lines
        return "\n".join(out), """.amdhsa_kernel %s
  .amdhsa_next_free_vgpr %d
  .amdhsa_next_free_sgpr %d
  .amdhsa_accum_offset %d
  .amdhsa_group_segment_fixed_size 0
  .amdhsa_kernarg_size 80
  .amdhsa_user_sgpr_count 2
  .amdhsa_user_sgpr_kernarg_segment_ptr 1
  .amdhsa_system_sgpr_workgroup_id_x 1
.end_amdhsa_kernel""" % (self.name, vgprs, sgprs, acc)


def wave_reduce_sum(k, v, stmp):
    k.e("s_nop 1")
    k.e("v_add_f32_dpp v%d, v%d, v%d quad_perm:[1,0,3,2] row_mask:0xf bank_mask:0xf" % (v, v, v))
    k.e("s_nop 1")
    k.e("v_add_f32_dpp v%d, v%d, v%d quad_perm:[2,3,0,1] row_mask:0xf bank_mask:0xf" % (v, v, v))
    k.e("s_nop 1")
    k.e("v_add_f32_dpp v%d, v%d, v%d row_half_mirror row_mask:0xf bank_mask:0xf" % (v, v, v))
    k.e("s_nop 1")
    k.e("v_add_f32_dpp v%d, v%d, v%d row_mirror row_mask:0xf bank_mask:0xf" % (v, v, v))
    k.e("s_nop 1")
    for i in range(4):
        k.e("v_readlane_b32 s%d, v%d, %d" % (stmp + i, v, 16 * i))
    k.e("s_nop 1")
    k.e("v_mov_b32 v%d, s%d" % (v, stmp))
    k.e("v_add_f32 v%d, s%d, v%d" % (v, stmp + 1, v))
    k.e("v_add_f32 v%d, s%d, v%d" % (v, stmp + 2, v))
    k.e("v_add_f32 v%d, s%d, v%d" % (v, stmp + 3, v))


def round_bf16(k, vd, vs):
    k.e("v_cvt_pk_bf16_f32 v%d, v%d, v%d" % (vd, vs, vs))
    k.e("v_lshlrev_b32 v%d, 16, v%d" % (vd, vd))


def pk(op, d, a, b, c=None):
    s = "%s v[%d:%d], v[%d:%d], v[%d:%d]" % (op, d, d + 1, a, a + 1, b, b + 1)
    if c is not None:
        s += ", v[%d:%d]" % (c, c + 1)
    return s


def wave_and_lane(k):
    k.e("v_lshrrev_b32 v1, 6, v0")
    k.e("v_and_b32 v2, 63, v0")
    k.e("s_nop 0")
    k.e("v_readfirstlane_b32 s25, v1")


def wfrag_lanepat(k, vd, vt, hh_stride):
    k.e("v_bfe_u32 v%d, v2, 2, 2" % vd)
    k.e("v_lshlrev_b32 v%d, 6, v%d" % (vd, vd))
    k.e("v_bfe_u32 v%d, v2, 4, 1" % vt)
    k.e("v_lshl_add_u32 v%d, v%d, 5, v%d" % (vd, vt, vd))
    k.e("v_and_b32 v%d, 3, v2" % vt)
    k.e("v_lshl_add_u32 v%d, v%d, 3, v%d" % (vd, vt, vd))
    k.e("v_lshrrev_b32 v%d, 5, v2" % vt)
    k.e("v_mul_u32_u24 v%d, %d, v%d" % (vt, hh_stride, vt))
    k.e("v_add_u32 v%d, v%d, v%d" % (vd, vd, vt))


def emit_colsum(k, L_end, sidx):
    k.e("s_cmp_ge_u32 s%d, 112" % sidx)
    k.e("s_cselect_b32 s28, s62, s60")
    k.e("s_cselect_b32 s29, s63, s61")
    k.e("s_cselect_b32 s30, 112, 0")
    k.e("s_cselect_b32 s38, %d, 0" % (3584 * 4))
    k.e("s_sub_u32 s31, s%d, s30" % sidx)
    k.e("s_mul_i32 s32, s31, 4682")
    k.e("s_lshr_b32 s32, s32, 16")
    k.e("s_mul_i32 s33, s32, 14")
    k.e("s_sub_u32 s33, s31, s33")
    k.srd(8, 28, 1024 * 3584 * 2)
    k.srd(12, 20, 8 * 2 * 3584 * 4, WS_CS)
    k.e("v_and_b32 v1, 31, v0")
    k.e("v_lshrrev_b32 v2, 5, v0")
    k.e("s_lshl_b32 s34, s33, 9")
    k.e("s_mul_i32 s35, s32, %d" % (128 * 7168))
    k.e("s_add_u32 s34, s34, s35")
    k.e("s_movk_i32 s35, 7168")
    k.e("v_mul_lo_u32 v3, v2, s35")
    k.e("v_lshl_add_u32 v3, v1, 4, v3")
    k.e("v_add_u32 v3, s34, v3")
    k.e("s_mov_b32 s34, 0")
    for it in range(16):
        k.e("buffer_load_dwordx4 v[%d:%d], v3, s[8:11], s34 offen" % (16 + 4 * it, 19 + 4 * it))
        if it != 15:
            k.e("s_add_u32 s34, s34, %d" % (8 * 7168))
    k.e("v_mov_b32 v4, 0xffff0000")
    for i in range(8):
        k.e("v_mov_b32 v%d, 0" % (8 + i))
    for it in range(16):
        k.e("s_waitcnt vmcnt(%d)" % (15 - it))
        for i in range(4):
            s_ = 16 + 4 * it + i
            k.e("v_lshlrev_b32 v5, 16, v%d" % s_)
            k.e("v_and_b32 v6, v4, v%d" % s_)
            k.e("v_add_f32 v%d, v%d, v5" % (8 + 2 * i, 8 + 2 * i))
            k.e("v_add_f32 v%d, v%d, v6" % (9 + 2 * i, 9 + 2 * i))
    k.e("v_lshlrev_b32 v5, 5, v0")
    k.e("ds_write_b128 v5, v[8:11]")
    k.e("ds_write_b128 v5, v[12:15] offset:16")
    k.e("s_waitcnt lgkmcnt(0)")
    k.e("s_barrier")
    k.e("v_lshlrev_b32 v5, 2, v0")
    for rg in range(8):
        k.e("ds_read_b32 v%d, v5 offset:%d" % (16 + rg, rg * 1024))
    k.e("s_waitcnt lgkmcnt(0)")
    for rg in range(1, 8):
        k.e("v_add_f32 v16, v16, v%d" % (16 + rg))
    k.e("s_mul_i32 s35, s32, %d" % (2 * 3584 * 4))
    k.e("s_add_u32 s35, s35, s38")
    k.e("s_lshl_b32 s36, s33, 10")
    k.e("s_add_u32 s35, s35, s36")
    k.e("v_add_u32 v5, s35, v5")
    k.e("buffer_store_dword v16, v5, s[12:15], 0 offen")
    k.e("s_branch %s" % L_end)


def gen_k0():
    k = KB("k0_ln_kernel")
    L_end = k.newlab("end")
    L_ln = k.newlab("ln")
    k.e("s_cmp_ge_u32 s2, 480")
    k.e("s_cbranch_scc1 %s" % L_end)
    k.e("s_load_dwordx4 s[4:7], s[0:1], %d" % KA_X)
    k.e("s_load_dwordx2 s[20:21], s[0:1], %d" % KA_WS)
    k.e("s_load_dwordx4 s[60:63], s[0:1], %d" % KA_WG)
    k.e("s_load_dwordx2 s[64:65], s[0:1], %d" % KA_WO)
    k.e("s_waitcnt lgkmcnt(0)")
    k.e("s_cmp_ge_u32 s2, 224")
    k.e("s_cbranch_scc1 %s" % L_ln)
    k.e("s_mov_b32 s3, s2")
    emit_colsum(k, L_end, 3)
    k.lab(L_ln)
    k.e("s_sub_u32 s2, s2, 224")
    k.srd(8, 4, 2048 * 1024 * 2)
    k.srd(12, 20, 2048 * 1024 * 2, WS_XN)
    k.srd(24, 6, 1024 * 3072 * 2)
    k.srd(28, 64, 1024 * 1024 * 2)
    k.e("v_lshrrev_b32 v62, 6, v0")
    k.e("v_and_b32 v2, 63, v0")
    k.e("s_lshl_b32 s3, s2, 3")
    k.e("v_lshlrev_b32 v3, 1, v62")
    k.e("v_add_u32 v3, s3, v3")
    k.e("v_lshlrev_b32 v3, 11, v3")
    k.e("v_lshl_add_u32 v1, v2, 4, v3")
    for r in range(2):
        k.e("buffer_load_dwordx4 v[%d:%d], v1, s[8:11], 0 offen offset:%d" % (4 + 8 * r, 7 + 8 * r, 2048 * r))
        k.e("buffer_load_dwordx4 v[%d:%d], v1, s[8:11], 0 offen offset:%d" % (8 + 8 * r, 11 + 8 * r, 2048 * r + 1024))
    k.e("v_lshrrev_b32 v61, 1, v3")
    k.e("v_mul_u32_u24 v3, 3, v61")
    k.e("v_lshl_add_u32 v3, v2, 7, v3")
    k.e("buffer_load_dword v64, v3, s[24:27], 0 offen")
    k.e("v_lshl_add_u32 v3, v2, 5, v61")
    k.e("buffer_load_dword v65, v3, s[28:31], 0 offen")
    k.e("v_mov_b32 v60, 0xffff0000")
    k.e("v_and_b32 v63, 7, v2")
    for r in range(2):
        k.e("s_waitcnt vmcnt(%d)" % (4 - 2 * r))
        src = 4 + 8 * r
        f = 24
        for i in range(8):
            k.e("v_lshlrev_b32 v%d, 16, v%d" % (f + 2 * i, src + i))
            k.e("v_and_b32 v%d, v60, v%d" % (f + 2 * i + 1, src + i))
        k.e("v_add_f32 v40, v%d, v%d" % (f, f + 1))
        for i in range(2, 16):
            k.e("v_add_f32 v40, v40, v%d" % (f + i))
        wave_reduce_sum(k, 40, 16)
        k.e("v_mul_f32 v40, 0x3a800000, v40")
        k.e("v_mov_b32 v41, 0")
        for i in range(16):
            k.e("v_sub_f32 v42, v%d, v40" % (f + i))
            k.e("v_fmac_f32 v41, v42, v42")
        wave_reduce_sum(k, 41, 16)
        k.e("v_mul_f32 v41, 0x3a800000, v41")
        round_bf16(k, 40, 40)
        round_bf16(k, 41, 41)
        k.e("v_add_f32 v41, 0x3727c5ac, v41")
        round_bf16(k, 41, 41)
        k.e("v_sqrt_f32 v41, v41")
        k.e("s_nop 0")
        round_bf16(k, 41, 41)
        k.e("v_rcp_f32 v41, v41")
        k.e("s_nop 0")
        for i in range(8):
            k.e("v_sub_f32 v42, v%d, v40" % (f + 2 * i))
            k.e("v_sub_f32 v43, v%d, v40" % (f + 2 * i + 1))
            k.e("v_cvt_pk_bf16_f32 v42, v42, v43")
            k.e("v_and_b32 v43, v60, v42")
            k.e("v_lshlrev_b32 v42, 16, v42")
            k.e("v_mul_f32 v42, v42, v41")
            k.e("v_mul_f32 v43, v43, v41")
            k.e("v_cvt_pk_bf16_f32 v%d, v42, v43" % (44 + 8 * r + i))
        k.e("v_lshl_add_u32 v42, v62, 1, %d" % r)
        k.e("v_xor_b32 v42, v42, v63")
        k.e("v_lshlrev_b32 v42, 4, v42")
        k.e("v_lshl_add_u32 v42, v2, 7, v42")
        k.e("ds_write_b128 v42, v[%d:%d]" % (44 + 8 * r, 47 + 8 * r))
        k.e("ds_write_b128 v42, v[%d:%d] offset:8192" % (48 + 8 * r, 51 + 8 * r))
    k.e("s_waitcnt lgkmcnt(0)")
    k.e("s_barrier")
    k.e("v_and_b32 v4, 7, v0")
    k.e("v_lshrrev_b32 v5, 3, v0")
    k.e("v_and_b32 v6, 7, v5")
    k.e("v_xor_b32 v6, v6, v4")
    k.e("v_lshlrev_b32 v6, 4, v6")
    k.e("v_lshl_add_u32 v6, v5, 7, v6")
    for i in range(4):
        k.e("ds_read_b128 v[%d:%d], v6 offset:%d" % (8 + 4 * i, 11 + 4 * i, 4096 * i))
    k.e("s_lshr_b32 s16, s2, 2")
    k.e("s_lshl_b32 s16, s16, 16")
    k.e("s_and_b32 s17, s2, 3")
    k.e("s_lshl_b32 s17, s17, 7")
    k.e("s_add_u32 s16, s16, s17")
    k.e("v_lshlrev_b32 v7, 9, v5")
    k.e("v_lshl_add_u32 v7, v4, 4, v7")
    k.e("v_add_u32 v7, s16, v7")
    k.e("s_mov_b32 s17, 0")
    for i in range(4):
        k.e("s_waitcnt lgkmcnt(%d)" % (3 - i))
        k.e("buffer_store_dwordx4 v[%d:%d], v7, s[12:15], s17 offen%s" % (8 + 4 * i, 11 + 4 * i, WT))
        k.e("s_add_u32 s17, s17, 16384")
    k.lab(L_end)
    k.e("s_endpgm")
    return k, 80, (480, 256, 16384)


class Spec:
    pass


def gemm_dma_issue(k, sp, i):
    srd, voff, soff, sl = sp.dma[i]
    if i in getattr(sp, "dma_abs", {}):
        k.e("s_and_b32 s95, s%d, s%d" % (sp.s_wr, sp.dma_abs[i]))
        k.e("s_add_u32 m0, s95, s%d" % sl)
    else:
        k.e("s_add_u32 m0, s%d, s%d" % (sp.s_wr, sl))
    k.e("s_nop 0")
    k.e("buffer_load_dwordx4 v%d, s[%d:%d], s%d offen lds" % (voff, srd, srd + 3, soff))


def gemm_dma_advance(k, sp):
    for s, inc in sp.sadv:
        if isinstance(inc, str):
            k.e("s_add_u32 s%d, s%d, %s" % (s, s, inc))
        else:
            k.e("s_add_u32 s%d, s%d, 0x%x" % (s, s, inc))
    k.e("s_add_u32 s%d, s%d, %d" % (sp.s_wr, sp.s_wr, sp.stage_bytes))
    k.e("s_cmp_ge_u32 s%d, %d" % (sp.s_wr, sp.stage_bytes * sp.NS))
    k.e("s_cselect_b32 s%d, 0, s%d" % (sp.s_wr, sp.s_wr))


def gemm_prologue(k, sp):
    k.stamp()
    k.e("s_mov_b32 s%d, 0" % sp.s_wr)
    k.e("s_mov_b32 s%d, 0" % sp.s_rd)
    for s in range(sp.NS - 1):
        for i in range(len(sp.dma)):
            gemm_dma_issue(k, sp, i)
        gemm_dma_advance(k, sp)


def gemm_main(k, sp):
    NS, nst, SB = sp.NS, sp.nst, sp.stage_bytes
    nd = len(sp.dma)
    nsteps = len(sp.steps)

    def addr_next():
        k.e("s_add_u32 s%d, s%d, %d" % (sp.s_rd, sp.s_rd, SB))
        k.e("s_cmp_ge_u32 s%d, %d" % (sp.s_rd, SB * NS))
        k.e("s_cselect_b32 s%d, 0, s%d" % (sp.s_rd, sp.s_rd))
        k.e("s_cselect_b32 s96, s97, %d" % SB)
        for vc in sp.addr:
            k.e("v_add_u32 v%d, s96, v%d" % (vc, vc))

    def read_instr(rd, base):
        op, reg, addr, imm = rd
        n = 4 if op == "ds_read_b128" else 2
        if os.environ.get("NOLDS"):
            return
        if os.environ.get("HALFLDS") and k.name.startswith("k3") and op != "ds_read_b128" and ((reg - 4) // 4) % 2 == 1:
            k.e("s_nop 0")
            return
        k.e("%s v[%d:%d], v%d offset:%d" % (op, base + reg, base + reg + n - 1, addr, imm))

    k.e("s_mov_b32 s97, %d" % (-(NS - 1) * SB))
    if os.environ.get("PRIO"):
        Lp = k.newlab("prio")
        k.e("s_cmp_lt_u32 s25, 4")
        k.e("s_cbranch_scc1 %s" % Lp)
        k.e("s_setprio 1")
        k.lab(Lp)
    early = getattr(sp, "early", True)
    if early:
        k.e("s_waitcnt vmcnt(%d)" % ((NS - 2) * nd))
        k.e("s_barrier")
        k.stamp()
        for rd in sp.steps[0]["reads"]:
            read_instr(rd, sp.fset[0])
    else:
        k.stamp()
    gstep = [0]

    def stage(do_dma, last, vm):
        k.e("s_waitcnt vmcnt(%d)" % vm)
        k.e("s_barrier")
        dma_todo = list(range(nd)) if do_dma else []
        if not early:
            for rd in sp.steps[0]["reads"]:
                read_instr(rd, sp.fset[gstep[0] & 1])
            while dma_todo:
                gemm_dma_issue(k, sp, dma_todo.pop(0))
            if do_dma:
                gemm_dma_advance(k, sp)
        for j, st in enumerate(sp.steps):
            cur = sp.fset[gstep[0] & 1]
            nxt = sp.fset[(gstep[0] + 1) & 1]
            lastj = (j == nsteps - 1)
            nreads = [] if (lastj and (last or not early)) else sp.steps[(j + 1) % nsteps]["reads"]
            R = len(st["reads"])
            M = len(st["mfma"])
            issued = 0
            waited = -1
            if lastj and not last and early:
                addr_next()
            for i, (acc, a, b, dep) in enumerate(st["mfma"]):
                if dep > waited:
                    n = (R - 1 - dep) + issued
                    k.e("s_waitcnt lgkmcnt(%d)" % min(n, 15))
                    waited = dep
                if not os.environ.get("NOMFMA"):
                    k.e("v_mfma_f32_32x32x16_bf16 v[%d:%d], v[%d:%d], v[%d:%d], v[%d:%d]" % (
                        acc, acc + 15, cur + a, cur + a + 3, cur + b, cur + b + 3, acc, acc + 15))
                tgt = (len(nreads) * (i + 1) + M - 1) // M
                while issued < tgt:
                    read_instr(nreads[issued], nxt)
                    issued += 1
                if dma_todo:
                    per = (nd + M * nsteps - 1) // (M * nsteps)
                    for _ in range(max(per, 1)):
                        if dma_todo:
                            gemm_dma_issue(k, sp, dma_todo.pop(0))
                    if not dma_todo:
                        gemm_dma_advance(k, sp)
            gstep[0] += 1
        assert not dma_todo
        if not early and not last:
            addr_next()

    U = 1 if nsteps % 2 == 0 else 2
    nmain = nst - (NS - 1)
    nloop = (nmain // U) * U
    L = k.newlab("loop")
    if nloop > 0:
        k.e("s_mov_b32 s%d, %d" % (sp.s_cnt, nloop // U))
        k.lab(L)
        for u in range(U):
            stage(True, False, (NS - (3 if early else 2)) * nd)
        k.e("s_sub_u32 s%d, s%d, 1" % (sp.s_cnt, sp.s_cnt))
        k.e("s_cmp_lg_u32 s%d, 0" % sp.s_cnt)
        k.e("s_cbranch_scc1 %s" % L)
    textra = 0
    for s in range(nloop, nst):
        do_dma = (s + NS - 1) < nst
        issued_upto = min(s + NS - 2, nst - 1)
        need = min(s + 1, nst - 1) if early else s
        vm = (issued_upto - need) * nd + textra
        stage(do_dma, s == nst - 1, min(vm, 63))
        if (not do_dma) and getattr(sp, "tail_hook", None) and textra == 0:
            textra = sp.tail_hook()
    k.stamp()


def phi16(k, A, T, dst, vmask, vc):
    for i in range(8):
        k.e("v_cvt_pk_bf16_f32 v%d, v%d, v%d" % (T + i, A + 2 * i, A + 2 * i + 1))
    for i in range(8):
        k.e("v_lshlrev_b32 v%d, 16, v%d" % (A + 2 * i, T + i))
        k.e("v_and_b32 v%d, v%d, v%d" % (A + 2 * i + 1, vmask, T + i))
    for i in range(8):
        k.e(pk("v_pk_mul_f32", T + 2 * i, A + 2 * i, vc))
    for i in range(16):
        k.e("v_min_f32 v%d, 0, v%d" % (T + i, T + i))
    for i in range(16):
        k.e("v_exp_f32 v%d, v%d" % (T + i, T + i))
    for i in range(16):
        k.e("v_max_f32 v%d, 0, v%d" % (A + i, A + i))
    for i in range(8):
        k.e(pk("v_pk_add_f32", T + 2 * i, T + 2 * i, vc + 2))
    for i in range(8):
        k.e(pk("v_pk_add_f32", A + 2 * i, A + 2 * i, T + 2 * i))
    for i in range(8):
        k.e("v_cvt_pk_bf16_f32 v%d, v%d, v%d" % (dst + i, A + 2 * i, A + 2 * i + 1))


def gen_k1():
    k = KB("k1_qkv_kernel")
    L_end = k.newlab("end")
    BK, NS = 64, 4
    XB = 16384
    WB = (BK // 4) * 6 * 256
    SB = XB + WB
    k.e("s_cmp_ge_u32 s2, 256")
    k.e("s_cbranch_scc1 %s" % L_end)
    k.e("s_load_dwordx2 s[4:5], s[0:1], %d" % KA_WQKV)
    k.e("s_load_dwordx2 s[6:7], s[0:1], %d" % KA_WS)
    k.e("s_and_b32 s20, s2, 7")
    k.e("s_lshr_b32 s21, s2, 3")
    k.e("s_and_b32 s22, s20, 3")
    k.e("s_lshl_b32 s22, s22, 2")
    k.e("s_and_b32 s23, s21, 3")
    k.e("s_add_u32 s22, s22, s23")
    k.e("s_lshr_b32 s23, s20, 2")
    k.e("s_lshl_b32 s23, s23, 3")
    k.e("s_lshr_b32 s24, s21, 2")
    k.e("s_add_u32 s23, s23, s24")
    wave_and_lane(k)
    k.e("s_lshr_b32 s26, s25, 2")
    k.e("s_bfe_u32 s27, s25, 0x10001")
    k.e("s_and_b32 s28, s25, 1")
    dma = []
    k.e("v_lshlrev_b32 v9, 4, v2")
    k.e("s_lshl_b32 s30, s23, 2")
    k.e("s_lshr_b32 s31, s25, 1")
    k.e("s_add_u32 s30, s30, s31")
    k.e("s_lshl_b32 s30, s30, 6")
    k.e("s_lshl_b32 s31, s28, 1")
    k.e("s_add_u32 s30, s30, s31")
    k.e("s_lshl_b32 s30, s30, 10")
    k.e("v_add_u32 v10, s30, v9")
    k.e("v_add_u32 v11, 1024, v10")
    for i in range(2):
        k.e("s_lshl_b32 s%d, s25, 11" % (40 + i))
        k.e("s_add_u32 s%d, s%d, %d" % (40 + i, 40 + i, 1024 * i))
        dma.append((8, 10 + i, 50, 40 + i))
    for i in range(3):
        k.e("s_mul_i32 s30, s25, 12")
        k.e("s_add_u32 s30, s30, %d" % (4 * i))
        k.e("v_lshrrev_b32 v3, 4, v2")
        k.e("v_add_u32 v3, s30, v3")
        k.e("v_mul_u32_u24 v4, 43, v3")
        k.e("v_lshrrev_b32 v4, 8, v4")
        k.e("v_mul_u32_u24 v5, 6, v4")
        k.e("v_sub_u32 v5, v3, v5")
        k.e("v_bfe_u32 v6, v2, 2, 2")
        k.e("v_lshl_add_u32 v6, v4, 2, v6")
        k.e("v_mul_u32_u24 v6, 6144, v6")
        k.e("v_lshrrev_b32 v7, 1, v5")
        k.e("v_lshl_add_u32 v6, v7, 11, v6")
        k.e("v_and_b32 v7, 1, v5")
        k.e("v_lshl_add_u32 v6, v7, 6, v6")
        k.e("v_and_b32 v7, 3, v2")
        k.e("v_lshl_add_u32 v6, v7, 4, v6")
        k.e("s_lshl_b32 s31, s22, 7")
        k.e("v_add_u32 v%d, s31, v6" % (12 + i))
        k.e("s_mul_i32 s%d, s25, 3072" % (42 + i))
        k.e("s_add_u32 s%d, s%d, %d" % (42 + i, 42 + i, XB + 1024 * i))
        dma.append((12, 12 + i, 51, 42 + i))
    k.e("s_mov_b32 s50, 0")
    k.e("s_mov_b32 s51, 0")
    k.e("s_waitcnt lgkmcnt(0)")
    k.srd(8, 6, 2048 * 1024 * 2, WS_XN)
    k.srd(12, 4, 1024 * 3072 * 2)
    sp = Spec()
    sp.NS, sp.nst, sp.stage_bytes = NS, 1024 // BK, SB
    sp.dma = dma
    sp.sadv = [(50, 4096), (51, BK * 6144)]
    sp.s_wr, sp.s_rd, sp.s_cnt = 52, 53, 54
    gemm_prologue(k, sp)
    for tl in range(2):
        k.e("s_xor_b32 s30, s26, %d" % tl)
        k.e("s_lshl_b32 s31, s27, 1")
        k.e("s_add_u32 s30, s30, s31")
        k.e("s_lshl_b32 s30, s30, 2")
        k.e("s_lshl_b32 s31, s26, 1")
        k.e("s_add_u32 s30, s30, s31")
        k.e("s_lshl_b32 s30, s30, 10")
        k.e("v_add_u32 v%d, s30, v9" % (16 + tl))
    wfrag_lanepat(k, 3, 4, 2 * 6 * 256)
    k.e("s_mul_i32 s30, s26, %d" % (8 * 6 * 256))
    k.e("s_lshl_b32 s31, s28, 8")
    k.e("s_add_u32 s30, s30, s31")
    k.e("s_add_u32 s30, s30, %d" % XB)
    k.e("v_add_u32 v18, s30, v3")
    ACC = 32
    for i in range(96):
        k.e("v_mov_b32 v%d, 0" % (ACC + i))
    F0, F1 = 128, 148
    steps = []
    for jj in range(2):
        reads = [("ds_read_b128", 0, 16, 1024 * jj)]
        for p in range(3):
            for i in range(2):
                reads.append(("ds_read_b64_tr_b16", 8 + 4 * p + 2 * i, 18, ((4 * jj + i) * 6 + 2 * p) * 256))
            if p == 0:
                reads.append(("ds_read_b128", 4, 17, 1024 * jj))
        mf = [(ACC + 0 * 16, 8, 0, 2), (ACC + 3 * 16, 8, 4, 3), (ACC + 1 * 16, 0, 12, 5),
              (ACC + 4 * 16, 4, 12, 5), (ACC + 2 * 16, 0, 16, 7), (ACC + 5 * 16, 4, 16, 7)]
        steps.append(dict(reads=reads, mfma=mf))
    sp.addr = [16, 17, 18]
    sp.steps = steps
    sp.fset = [F0, F1]
    gemm_main(k, sp)
    k.e("s_mul_i32 s30, s25, 12288")
    k.e("v_add_u32 v4, s30, v9")
    k.e("s_xor_b32 s31, s25, 4")
    k.e("s_mul_i32 s31, s31, 12288")
    k.e("v_add_u32 v5, s31, v9")
    k.e("v_mov_b32 v20, 0x3fb8aa3b")
    k.e("v_mov_b32 v21, 0x3fb8aa3b")
    k.e("v_mov_b32 v22, 0x358637bd")
    k.e("v_mov_b32 v23, 0x358637bd")
    k.e("v_mov_b32 v24, 0xffff0000")
    k.srd(16, 6, 2048 * 1024 * 2, WS_PQ)
    k.srd(60, 6, 16 * 32 * 4096, WS_KVP)
    k.srd(56, 6, 16 * 32 * 128, WS_ZP)
    k.e("s_barrier")
    for q in range(12):
        k.e("ds_write_b128 v4, v[%d:%d] offset:%d" % (ACC + 48 + 4 * q, ACC + 51 + 4 * q, 1024 * q))
    k.e("s_waitcnt lgkmcnt(0)")
    k.e("s_barrier")
    for q in range(12):
        k.e("ds_read_b128 v[%d:%d], v5 offset:%d" % (ACC + 48 + 4 * q, ACC + 51 + 4 * q, 1024 * q))
    PQ, PK, PV = 128, 136, 144
    T = 152
    for grp in (1, 2, 0):
        k.e("s_waitcnt lgkmcnt(%d)" % {1: 4, 2: 0, 0: 0}[grp])
        for q in range(4 * grp, 4 * grp + 4):
            for i in range(0, 4, 2):
                k.e(pk("v_pk_add_f32", ACC + 4 * q + i, ACC + 4 * q + i, ACC + 48 + 4 * q + i))
        if grp == 1:
            phi16(k, ACC + 16, T, PK, 24, 20)
        elif grp == 2:
            for i in range(8):
                k.e("v_cvt_pk_bf16_f32 v%d, v%d, v%d" % (PV + i, ACC + 32 + 2 * i, ACC + 33 + 2 * i))
            KV = ACC + 64
            k.e("s_nop 1")
            k.e("v_mfma_f32_32x32x16_bf16 v[%d:%d], v[%d:%d], v[%d:%d], 0" % (KV, KV + 15, PK, PK + 3, PV, PV + 3))
            k.e("v_mfma_f32_32x32x16_bf16 v[%d:%d], v[%d:%d], v[%d:%d], v[%d:%d]" % (KV, KV + 15, PK + 4, PK + 7, PV + 4, PV + 7, KV, KV + 15))
            for i in range(8):
                k.e("v_lshlrev_b32 v%d, 16, v%d" % (T + 2 * i, PK + i))
                k.e("v_and_b32 v%d, v24, v%d" % (T + 2 * i + 1, PK + i))
            for st_ in (8, 4, 2):
                for i in range(0, st_, 2):
                    k.e(pk("v_pk_add_f32", T + i, T + i, T + st_ + i))
            k.e("v_add_f32 v25, v%d, v%d" % (T, T + 1))
        else:
            phi16(k, ACC, T, PQ, 24, 20)
    k.e("s_lshl_b32 s30, s23, 2")
    k.e("s_lshl_b32 s31, s27, 1")
    k.e("s_add_u32 s30, s30, s31")
    k.e("s_add_u32 s30, s30, s26")
    k.e("s_lshl_b32 s30, s30, 6")
    k.e("s_lshl_b32 s31, s22, 1")
    k.e("s_add_u32 s31, s31, s28")
    k.e("s_lshl_b32 s32, s31, 1")
    k.e("s_add_u32 s30, s30, s32")
    k.e("s_lshl_b32 s30, s30, 10")
    k.e("v_add_u32 v3, s30, v9")
    k.e("buffer_store_dwordx4 v[%d:%d], v3, s[16:19], 0 offen%s" % (PQ, PQ + 3, WT))
    k.e("buffer_store_dwordx4 v[%d:%d], v3, s[16:19], 0 offen offset:1024%s" % (PQ + 4, PQ + 7, WT))
    KVL = 98304
    ZL = KVL + 32768
    k.e("s_lshl_b32 s30, s25, 12")
    k.e("s_add_u32 s30, s30, %d" % KVL)
    k.e("v_add_u32 v4, s30, v9")
    k.e("s_lshl_b32 s30, s25, 8")
    k.e("s_add_u32 s30, s30, %d" % ZL)
    k.e("v_lshlrev_b32 v5, 2, v2")
    k.e("v_add_u32 v5, s30, v5")
    k.e("ds_write_b32 v5, v25")
    for q in range(4):
        k.e("ds_write_b128 v4, v[%d:%d] offset:%d" % (KV + 4 * q, KV + 4 * q + 3, 1024 * q))
    k.e("s_lshr_b32 s30, s25, 1")
    k.e("s_lshl_b32 s31, s30, 10")
    k.e("s_lshl_b32 s32, s28, 12")
    k.e("s_add_u32 s31, s31, s32")
    k.e("s_add_u32 s31, s31, %d" % KVL)
    k.e("v_add_u32 v4, s31, v9")
    k.e("s_lshl_b32 s32, s28, 8")
    k.e("s_add_u32 s32, s32, %d" % ZL)
    k.e("v_and_b32 v6, 31, v2")
    k.e("v_lshlrev_b32 v6, 2, v6")
    k.e("v_add_u32 v6, s32, v6")
    k.e("s_waitcnt lgkmcnt(0)")
    k.e("s_barrier")
    for j in range(4):
        k.e("ds_read_b128 v[%d:%d], v4 offset:%d" % (ACC + 4 * j, ACC + 4 * j + 3, 8192 * j))
    for j in range(4):
        k.e("ds_read_b32 v%d, v6 offset:%d" % (ACC + 16 + 2 * j, 512 * j))
        k.e("ds_read_b32 v%d, v6 offset:%d" % (ACC + 17 + 2 * j, 512 * j + 128))
    k.e("s_lshl_b32 s33, s23, 5")
    k.e("s_lshl_b32 s34, s22, 1")
    k.e("s_add_u32 s33, s33, s34")
    k.e("s_add_u32 s33, s33, s28")
    k.e("s_lshl_b32 s34, s33, 12")
    k.e("s_lshl_b32 s35, s30, 10")
    k.e("s_add_u32 s34, s34, s35")
    k.e("v_add_u32 v4, s34, v9")
    k.e("s_waitcnt lgkmcnt(8)")
    for i in range(0, 4, 2):
        k.e(pk("v_pk_add_f32", ACC + i, ACC + i, ACC + 4 + i))
        k.e(pk("v_pk_add_f32", ACC + 8 + i, ACC + 8 + i, ACC + 12 + i))
        k.e(pk("v_pk_add_f32", ACC + i, ACC + i, ACC + 8 + i))
    k.e("buffer_store_dwordx4 v[%d:%d], v4, s[60:63], 0 offen%s" % (ACC, ACC + 3, WT))
    L_fin = k.newlab("fin")
    k.e("s_cmp_lg_u32 s30, 0")
    k.e("s_cbranch_scc1 %s" % L_fin)
    k.e("s_waitcnt lgkmcnt(0)")
    for i in range(1, 8):
        k.e("v_add_f32 v%d, v%d, v%d" % (ACC + 16, ACC + 16, ACC + 16 + i))
    k.e("v_cmp_gt_u32 vcc, 32, v2")
    k.e("s_and_saveexec_b64 s[36:37], vcc")
    k.e("s_lshl_b32 s34, s33, 7")
    k.e("v_lshlrev_b32 v6, 2, v2")
    k.e("v_add_u32 v6, s34, v6")
    k.e("buffer_store_dword v%d, v6, s[56:59], 0 offen%s" % (ACC + 16, WT))
    k.lab(L_fin)
    k.stamp_store(1)
    k.lab(L_end)
    k.e("s_endpgm")
    return k, 168, (256, 512, NS * SB)


def gen_k1b():
    k = KB("k1_qkv_kernel")
    L_end = k.newlab("end")
    BK, NS = 64, 4
    XB = 16384
    WB = (BK // 4) * 6 * 256
    SB = XB + WB
    k.e("s_cmp_ge_u32 s2, 256")
    k.e("s_cbranch_scc1 %s" % L_end)
    k.e("s_load_dwordx2 s[4:5], s[0:1], %d" % KA_WQKV)
    k.e("s_load_dwordx2 s[6:7], s[0:1], %d" % KA_WS)
    k.e("s_and_b32 s20, s2, 7")
    k.e("s_lshr_b32 s21, s2, 3")
    k.e("s_and_b32 s22, s20, 3")
    k.e("s_lshl_b32 s22, s22, 2")
    k.e("s_and_b32 s23, s21, 3")
    k.e("s_add_u32 s22, s22, s23")
    k.e("s_lshr_b32 s23, s20, 2")
    k.e("s_lshl_b32 s23, s23, 3")
    k.e("s_lshr_b32 s24, s21, 2")
    k.e("s_add_u32 s23, s23, s24")
    wave_and_lane(k)
    k.e("s_lshr_b32 s27, s25, 1")
    k.e("s_and_b32 s28, s25, 1")
    dma = []
    k.e("v_lshlrev_b32 v9, 4, v2")
    k.e("s_lshl_b32 s30, s23, 2")
    k.e("s_lshr_b32 s31, s25, 1")
    k.e("s_add_u32 s30, s30, s31")
    k.e("s_lshl_b32 s30, s30, 6")
    k.e("s_lshl_b32 s31, s28, 1")
    k.e("s_add_u32 s30, s30, s31")
    k.e("s_lshl_b32 s30, s30, 10")
    k.e("v_add_u32 v10, s30, v9")
    k.e("v_add_u32 v11, 1024, v10")
    for i in range(2):
        k.e("s_lshl_b32 s%d, s25, 11" % (40 + i))
        k.e("s_add_u32 s%d, s%d, %d" % (40 + i, 40 + i, 1024 * i))
        dma.append((8, 10 + i, 50, 40 + i))
    for i in range(3):
        k.e("s_mul_i32 s30, s25, 12")
        k.e("s_add_u32 s30, s30, %d" % (4 * i))
        k.e("v_lshrrev_b32 v3, 4, v2")
        k.e("v_add_u32 v3, s30, v3")
        k.e("v_mul_u32_u24 v4, 43, v3")
        k.e("v_lshrrev_b32 v4, 8, v4")
        k.e("v_mul_u32_u24 v5, 6, v4")
        k.e("v_sub_u32 v5, v3, v5")
        k.e("v_bfe_u32 v6, v2, 2, 2")
        k.e("v_lshl_add_u32 v6, v4, 2, v6")
        k.e("v_mul_u32_u24 v6, 6144, v6")
        k.e("v_lshrrev_b32 v7, 1, v5")
        k.e("v_lshl_add_u32 v6, v7, 11, v6")
        k.e("v_and_b32 v7, 1, v5")
        k.e("v_lshl_add_u32 v6, v7, 6, v6")
        k.e("v_and_b32 v7, 3, v2")
        k.e("v_lshl_add_u32 v6, v7, 4, v6")
        k.e("s_lshl_b32 s31, s22, 7")
        k.e("v_add_u32 v%d, s31, v6" % (12 + i))
        k.e("s_mul_i32 s%d, s25, 3072" % (42 + i))
        k.e("s_add_u32 s%d, s%d, %d" % (42 + i, 42 + i, XB + 1024 * i))
        dma.append((12, 12 + i, 51, 42 + i))
    k.e("s_mov_b32 s50, 0")
    k.e("s_mov_b32 s51, 0")
    k.e("s_waitcnt lgkmcnt(0)")
    k.srd(8, 6, 2048 * 1024 * 2, WS_XN)
    k.srd(12, 4, 1024 * 3072 * 2)
    sp = Spec()
    sp.NS, sp.nst, sp.stage_bytes = NS, 1024 // BK, SB
    sp.dma = dma
    sp.sadv = [(50, 4096), (51, BK * 6144)]
    sp.s_wr, sp.s_rd, sp.s_cnt = 52, 53, 54
    gemm_prologue(k, sp)
    k.e("s_lshl_b32 s30, s27, 12")
    k.e("v_add_u32 v16, s30, v9")
    wfrag_lanepat(k, 3, 4, 2 * 6 * 256)
    k.e("s_lshl_b32 s31, s28, 8")
    k.e("s_add_u32 s30, s31, %d" % XB)
    k.e("v_add_u32 v18, s30, v3")
    ACC = 32
    for i in range(48):
        k.e("v_mov_b32 v%d, 0" % (ACC + i))
    F0, F1 = 128, 148
    steps = []
    for jj in range(4):
        reads = [("ds_read_b128", 0, 16, 1024 * jj)]
        for p in range(3):
            for i in range(2):
                reads.append(("ds_read_b64_tr_b16", 8 + 4 * p + 2 * i, 18, ((4 * jj + i) * 6 + 2 * p) * 256))
        mf = [(ACC + 0 * 16, 8, 0, 2), (ACC + 1 * 16, 0, 12, 4), (ACC + 2 * 16, 0, 16, 6)]
        steps.append(dict(reads=reads, mfma=mf))
    sp.addr = [16, 18]
    sp.steps = steps
    sp.fset = [F0, F1]
    gemm_main(k, sp)
    k.e("v_mov_b32 v20, 0x3fb8aa3b")
    k.e("v_mov_b32 v21, 0x3fb8aa3b")
    k.e("v_mov_b32 v22, 0x358637bd")
    k.e("v_mov_b32 v23, 0x358637bd")
    k.e("v_mov_b32 v24, 0xffff0000")
    k.srd(16, 6, 2048 * 1024 * 2, WS_PQ)
    k.srd(60, 6, 16 * 32 * 4096, WS_KVP)
    k.srd(56, 6, 16 * 32 * 128, WS_ZP)
    k.e("s_nop 7")
    PQ, PK, PV = 128, 136, 144
    T = 152
    for grp in (1, 2, 0):
        if grp == 1:
            phi16(k, ACC + 16, T, PK, 24, 20)
        elif grp == 2:
            for i in range(8):
                k.e("v_cvt_pk_bf16_f32 v%d, v%d, v%d" % (PV + i, ACC + 32 + 2 * i, ACC + 33 + 2 * i))
            KV = ACC + 64
            k.e("s_nop 1")
            k.e("v_mfma_f32_32x32x16_bf16 v[%d:%d], v[%d:%d], v[%d:%d], 0" % (KV, KV + 15, PK, PK + 3, PV, PV + 3))
            k.e("v_mfma_f32_32x32x16_bf16 v[%d:%d], v[%d:%d], v[%d:%d], v[%d:%d]" % (KV, KV + 15, PK + 4, PK + 7, PV + 4, PV + 7, KV, KV + 15))
            for i in range(8):
                k.e("v_lshlrev_b32 v%d, 16, v%d" % (T + 2 * i, PK + i))
                k.e("v_and_b32 v%d, v24, v%d" % (T + 2 * i + 1, PK + i))
            for st_ in (8, 4, 2):
                for i in range(0, st_, 2):
                    k.e(pk("v_pk_add_f32", T + i, T + i, T + st_ + i))
            k.e("v_add_f32 v25, v%d, v%d" % (T, T + 1))
        else:
            phi16(k, ACC, T, PQ, 24, 20)
    k.e("s_lshl_b32 s30, s23, 2")
    k.e("s_add_u32 s30, s30, s27")
    k.e("s_lshl_b32 s30, s30, 6")
    k.e("s_lshl_b32 s31, s22, 1")
    k.e("s_add_u32 s31, s31, s28")
    k.e("s_lshl_b32 s32, s31, 1")
    k.e("s_add_u32 s30, s30, s32")
    k.e("s_lshl_b32 s30, s30, 10")
    k.e("v_add_u32 v3, s30, v9")
    k.e("buffer_store_dwordx4 v[%d:%d], v3, s[16:19], 0 offen%s" % (PQ, PQ + 3, WT))
    k.e("buffer_store_dwordx4 v[%d:%d], v3, s[16:19], 0 offen offset:1024%s" % (PQ + 4, PQ + 7, WT))
    KVL = 98304
    ZL = KVL + 32768
    k.e("s_lshl_b32 s30, s25, 12")
    k.e("s_add_u32 s30, s30, %d" % KVL)
    k.e("v_add_u32 v4, s30, v9")
    k.e("s_lshl_b32 s30, s25, 8")
    k.e("s_add_u32 s30, s30, %d" % ZL)
    k.e("v_lshlrev_b32 v5, 2, v2")
    k.e("v_add_u32 v5, s30, v5")
    k.e("s_barrier")
    k.e("ds_write_b32 v5, v25")
    for q in range(4):
        k.e("ds_write_b128 v4, v[%d:%d] offset:%d" % (KV + 4 * q, KV + 4 * q + 3, 1024 * q))
    k.e("s_lshr_b32 s30, s25, 1")
    k.e("s_lshl_b32 s31, s30, 10")
    k.e("s_lshl_b32 s32, s28, 12")
    k.e("s_add_u32 s31, s31, s32")
    k.e("s_add_u32 s31, s31, %d" % KVL)
    k.e("v_add_u32 v4, s31, v9")
    k.e("s_lshl_b32 s32, s28, 8")
    k.e("s_add_u32 s32, s32, %d" % ZL)
    k.e("v_and_b32 v6, 31, v2")
    k.e("v_lshlrev_b32 v6, 2, v6")
    k.e("v_add_u32 v6, s32, v6")
    k.e("s_waitcnt lgkmcnt(0)")
    k.e("s_barrier")
    for j in range(4):
        k.e("ds_read_b128 v[%d:%d], v4 offset:%d" % (ACC + 4 * j, ACC + 4 * j + 3, 8192 * j))
    for j in range(4):
        k.e("ds_read_b32 v%d, v6 offset:%d" % (ACC + 16 + 2 * j, 512 * j))
        k.e("ds_read_b32 v%d, v6 offset:%d" % (ACC + 17 + 2 * j, 512 * j + 128))
    k.e("s_lshl_b32 s33, s23, 5")
    k.e("s_lshl_b32 s34, s22, 1")
    k.e("s_add_u32 s33, s33, s34")
    k.e("s_add_u32 s33, s33, s28")
    k.e("s_lshl_b32 s34, s33, 12")
    k.e("s_lshl_b32 s35, s30, 10")
    k.e("s_add_u32 s34, s34, s35")
    k.e("v_add_u32 v4, s34, v9")
    k.e("s_waitcnt lgkmcnt(8)")
    for i in range(0, 4, 2):
        k.e(pk("v_pk_add_f32", ACC + i, ACC + i, ACC + 4 + i))
        k.e(pk("v_pk_add_f32", ACC + 8 + i, ACC + 8 + i, ACC + 12 + i))
        k.e(pk("v_pk_add_f32", ACC + i, ACC + i, ACC + 8 + i))
    k.e("buffer_store_dwordx4 v[%d:%d], v4, s[60:63], 0 offen%s" % (ACC, ACC + 3, WT))
    L_fin = k.newlab("fin")
    k.e("s_cmp_lg_u32 s30, 0")
    k.e("s_cbranch_scc1 %s" % L_fin)
    k.e("s_waitcnt lgkmcnt(0)")
    for i in range(1, 8):
        k.e("v_add_f32 v%d, v%d, v%d" % (ACC + 16, ACC + 16, ACC + 16 + i))
    k.e("v_cmp_gt_u32 vcc, 32, v2")
    k.e("s_and_saveexec_b64 s[36:37], vcc")
    k.e("s_lshl_b32 s34, s33, 7")
    k.e("v_lshlrev_b32 v6, 2, v2")
    k.e("v_add_u32 v6, s34, v6")
    k.e("buffer_store_dword v%d, v6, s[56:59], 0 offen%s" % (ACC + 16, WT))
    k.lab(L_fin)
    k.stamp_store(1)
    k.lab(L_end)
    k.e("s_endpgm")
    return k, 168, (256, 512, NS * SB)


def gen_k15():
    k = KB("k15_o_kernel")
    L_end = k.newlab("end")
    L_o = k.newlab("o")
    k.e("s_cmp_ge_u32 s2, 284")
    k.e("s_cbranch_scc1 %s" % L_end)
    k.e("s_load_dwordx2 s[6:7], s[0:1], %d" % KA_WS)
    k.e("s_cmp_lt_u32 s2, 256")
    k.e("s_cbranch_scc1 %s" % L_o)
    k.e("s_waitcnt lgkmcnt(0)")
    k.srd(8, 6, 8 * 2 * 3584 * 4, WS_CS)
    k.srd(12, 6, 2 * 3584 * 4, WS_CS2)
    k.e("s_sub_u32 s3, s2, 256")
    k.e("s_lshl_b32 s3, s3, 10")
    k.e("v_lshlrev_b32 v1, 2, v0")
    k.e("v_add_u32 v1, s3, v1")
    k.e("s_mov_b32 s16, 0")
    for i in range(8):
        k.e("buffer_load_dword v%d, v1, s[8:11], s16 offen" % (2 + i))
        k.e("s_add_u32 s16, s16, %d" % (2 * 3584 * 4))
    k.e("s_waitcnt vmcnt(0)")
    for i in range(1, 8):
        k.e("v_add_f32 v2, v2, v%d" % (2 + i))
    k.e("buffer_store_dword v2, v1, s[12:15], 0 offen")
    k.e("s_endpgm")
    k.lab(L_o)
    k.e("s_and_b32 s20, s2, 31")
    k.e("s_lshr_b32 s21, s2, 5")
    wave_and_lane(k)
    k.e("s_waitcnt lgkmcnt(0)")
    k.srd(8, 6, 2048 * 1024 * 2, WS_PQ)
    k.srd(12, 6, 16 * 32 * 4096, WS_KVP)
    k.srd(16, 6, 16 * 32 * 128, WS_ZP)
    k.srd(28, 6, 2048 * 1024 * 2, WS_O)
    k.e("v_lshlrev_b32 v6, 4, v2")
    k.e("s_lshl_b32 s23, s20, 12")
    k.e("s_lshl_b32 s24, s25, 10")
    k.e("s_add_u32 s23, s23, s24")
    k.e("v_add_u32 v7, s23, v6")
    k.e("s_mov_b32 s24, 0")
    for mb in range(16):
        k.e("buffer_load_dwordx4 v[%d:%d], v7, s[12:15], s24 offen" % (64 + 4 * mb, 67 + 4 * mb))
        if mb != 15:
            k.e("s_add_u32 s24, s24, %d" % (32 * 4096))
    k.e("s_lshl_b32 s23, s20, 7")
    k.e("v_and_b32 v8, 31, v2")
    k.e("v_lshlrev_b32 v8, 2, v8")
    k.e("v_add_u32 v8, s23, v8")
    k.e("v_lshrrev_b32 v9, 5, v2")
    k.e("v_lshl_add_u32 v8, v9, 15, v8")
    k.e("s_mov_b32 s24, 0")
    for mb in range(8):
        k.e("buffer_load_dword v%d, v8, s[16:19], s24 offen" % (128 + mb))
        if mb != 7:
            k.e("s_add_u32 s24, s24, 4096")
    k.e("s_lshl_b32 s22, s21, 3")
    k.e("s_lshl_b32 s23, s25, 1")
    k.e("s_add_u32 s22, s22, s23")
    k.e("s_lshl_b32 s22, s22, 6")
    k.e("s_lshl_b32 s23, s20, 1")
    k.e("s_add_u32 s22, s22, s23")
    k.e("s_lshl_b32 s22, s22, 10")
    k.e("v_add_u32 v3, s22, v6")
    k.e("v_add_u32 v5, 0x10000, v3")
    for t in range(2):
        for s in range(2):
            k.e("buffer_load_dwordx4 v[%d:%d], v%d, s[8:11], 0 offen offset:%d" % (16 + 8 * t + 4 * s, 19 + 8 * t + 4 * s, 3 + 2 * t, 1024 * s))
    k.e("s_waitcnt vmcnt(12)")
    for st_ in (32, 16, 8, 4):
        for i in range(0, st_, 2):
            k.e(pk("v_pk_add_f32", 64 + i, 64 + i, 64 + st_ + i))
    k.e("s_lshl_b32 s23, s25, 10")
    k.e("v_add_u32 v7, s23, v6")
    k.e("ds_write_b128 v7, v[64:67]")
    k.e("s_waitcnt vmcnt(4)")
    for st_ in (4, 2):
        for i in range(0, st_, 2):
            k.e(pk("v_pk_add_f32", 128 + i, 128 + i, 128 + st_ + i))
    k.e("v_add_f32 v128, v128, v129")
    k.e("v_mov_b32 v129, v128")
    k.e("s_nop 1")
    k.e("v_permlane32_swap_b32 v128, v129")
    k.e("s_nop 1")
    k.e("v_add_f32 v128, v128, v129")
    k.e("v_and_b32 v8, 31, v2")
    k.e("v_lshlrev_b32 v8, 2, v8")
    k.e("ds_write_b32 v8, v128 offset:4096")
    k.e("s_waitcnt lgkmcnt(0)")
    k.e("s_barrier")
    for q in range(4):
        k.e("ds_read_b128 v[%d:%d], v6 offset:%d" % (64 + 4 * q, 67 + 4 * q, 1024 * q))
    k.e("v_lshlrev_b32 v9, 4, v9")
    for q in range(4):
        k.e("ds_read_b128 v[%d:%d], v9 offset:%d" % (80 + 4 * q, 83 + 4 * q, 4096 + 32 * q))
    k.e("v_and_b32 v10, 27, v2")
    k.e("v_cmp_eq_u32 vcc, 0, v10")
    k.e("s_waitcnt lgkmcnt(4)")
    KVA, ZA = 96, 104
    for i in range(8):
        k.e("v_cvt_pk_bf16_f32 v%d, v%d, v%d" % (KVA + i, 64 + 2 * i, 65 + 2 * i))
    k.e("s_waitcnt lgkmcnt(0)")
    for i in range(8):
        k.e("v_cvt_pk_bf16_f32 v%d, v%d, v%d" % (ZA + i, 80 + 2 * i, 81 + 2 * i))
    for i in range(8):
        k.e("v_cndmask_b32 v%d, 0, v%d, vcc" % (ZA + i, ZA + i))
    k.e("s_waitcnt vmcnt(0)")
    k.e("s_nop 0")
    for t in range(2):
        N, D = 112 + 32 * t, 128 + 32 * t
        k.e("v_mfma_f32_32x32x16_bf16 v[%d:%d], v[%d:%d], v[%d:%d], 0" % (D, D + 15, ZA, ZA + 3, 16 + 8 * t, 19 + 8 * t))
        k.e("v_mfma_f32_32x32x16_bf16 v[%d:%d], v[%d:%d], v[%d:%d], v[%d:%d]" % (D, D + 15, ZA + 4, ZA + 7, 20 + 8 * t, 23 + 8 * t, D, D + 15))
        k.e("v_mfma_f32_32x32x16_bf16 v[%d:%d], v[%d:%d], v[%d:%d], 0" % (N, N + 15, KVA, KVA + 3, 16 + 8 * t, 19 + 8 * t))
        k.e("v_mfma_f32_32x32x16_bf16 v[%d:%d], v[%d:%d], v[%d:%d], v[%d:%d]" % (N, N + 15, KVA + 4, KVA + 7, 20 + 8 * t, 23 + 8 * t, N, N + 15))
    k.e("s_nop 7")
    for t in range(2):
        D = 128 + 32 * t
        round_bf16(k, 12 + 2 * t, D)
        k.e("v_add_f32 v%d, 0x358637bd, v%d" % (12 + 2 * t, 12 + 2 * t))
        round_bf16(k, 12 + 2 * t, 12 + 2 * t)
        k.e("v_rcp_f32 v%d, v%d" % (12 + 2 * t, 12 + 2 * t))
        k.e("s_nop 0")
        k.e("v_mov_b32 v%d, v%d" % (13 + 2 * t, 12 + 2 * t))
    k.e("s_nop 7")
    for t in range(2):
        N = 112 + 32 * t
        for i in range(8):
            k.e(pk("v_pk_mul_f32", N + 2 * i, N + 2 * i, 12 + 2 * t))
        for i in range(8):
            k.e("v_cvt_pk_bf16_f32 v%d, v%d, v%d" % (32 + 8 * t + i, N + 2 * i, N + 2 * i + 1))
        k.e("buffer_store_dwordx4 v[%d:%d], v%d, s[28:31], 0 offen%s" % (32 + 8 * t, 35 + 8 * t, 3 + 2 * t, WT))
        k.e("buffer_store_dwordx4 v[%d:%d], v%d, s[28:31], 0 offen offset:1024%s" % (36 + 8 * t, 39 + 8 * t, 3 + 2 * t, WT))
    k.lab(L_end)
    k.e("s_endpgm")
    return k, 176, (284, 256, 8192)


def gen_proj(name, mode):
    k = KB(name)
    L_end = k.newlab("end")
    BK, NS = 64, 6
    KD = 1024 if mode == "wo" else 3584
    NBLK = KD // 16
    XOFF = WS_O if mode == "wo" else WS_HH
    XB = 8192
    WB = (BK // 4) * 4 * 256
    SB = XB + WB
    k.e("s_cmp_ge_u32 s2, 256")
    k.e("s_cbranch_scc1 %s" % L_end)
    k.e("s_load_dwordx2 s[4:5], s[0:1], %d" % (KA_WO if mode == "wo" else KA_WD))
    k.e("s_load_dwordx2 s[6:7], s[0:1], %d" % KA_WS)
    k.e("s_load_dwordx2 s[60:61], s[0:1], %d" % (KA_X if mode == "wo" else KA_OUT))
    k.e("s_and_b32 s20, s2, 7")
    k.e("s_lshr_b32 s21, s2, 3")
    k.e("s_and_b32 s22, s20, 1")
    k.e("s_lshl_b32 s22, s22, 2")
    k.e("s_and_b32 s23, s21, 3")
    k.e("s_add_u32 s22, s22, s23")
    k.e("s_lshr_b32 s23, s20, 1")
    k.e("s_lshl_b32 s23, s23, 3")
    k.e("s_lshr_b32 s24, s21, 2")
    k.e("s_add_u32 s23, s23, s24")
    k.e("s_lshl_b32 s24, s23, 6")
    wave_and_lane(k)
    k.e("s_lshr_b32 s26, s25, 1")
    k.e("s_and_b32 s28, s25, 1")
    k.e("s_lshr_b32 s27, s26, 1")
    dma = []
    k.e("v_lshlrev_b32 v9, 4, v2")
    k.e("s_lshl_b32 s30, s23, 1")
    k.e("s_lshr_b32 s31, s25, 2")
    k.e("s_add_u32 s30, s30, s31")
    k.e("s_mul_i32 s30, s30, %d" % NBLK)
    k.e("s_and_b32 s31, s25, 3")
    k.e("s_add_u32 s30, s30, s31")
    k.e("s_lshl_b32 s30, s30, 10")
    k.e("v_add_u32 v10, s30, v9")
    k.e("s_lshl_b32 s40, s25, 10")
    dma.append((8, 10, 50, 40))
    for i in range(2):
        k.e("s_lshl_b32 s30, s25, 3")
        k.e("s_add_u32 s30, s30, %d" % (4 * i))
        k.e("v_bfe_u32 v6, v2, 2, 2")
        k.e("v_add_u32 v6, s30, v6")
        k.e("v_lshlrev_b32 v6, 11, v6")
        k.e("v_lshrrev_b32 v7, 4, v2")
        k.e("v_lshl_add_u32 v6, v7, 6, v6")
        k.e("v_and_b32 v7, 3, v2")
        k.e("v_lshl_add_u32 v6, v7, 4, v6")
        k.e("s_lshl_b32 s31, s22, 8")
        k.e("v_add_u32 v%d, s31, v6" % (12 + i))
        k.e("s_lshl_b32 s%d, s25, 11" % (42 + i))
        k.e("s_add_u32 s%d, s%d, %d" % (42 + i, 42 + i, XB + 1024 * i))
        dma.append((12, 12 + i, 51, 42 + i))
    k.e("s_mov_b32 s50, 0")
    k.e("s_mov_b32 s51, 0")
    k.e("s_waitcnt lgkmcnt(0)")
    k.srd(8, 6, 2048 * KD * 2, XOFF)
    k.srd(12, 4, KD * 1024 * 2)
    sp = Spec()
    sp.NS, sp.nst, sp.stage_bytes = NS, KD // BK, SB
    sp.dma = dma
    sp.sadv = [(50, 4096), (51, BK * 2048)]
    sp.s_wr, sp.s_rd, sp.s_cnt = 52, 53, 54
    gemm_prologue(k, sp)
    for tl in range(2):
        k.e("s_xor_b32 s30, s27, %d" % tl)
        k.e("s_lshl_b32 s30, s30, 2")
        k.e("s_add_u32 s30, s30, s26")
        k.e("s_lshl_b32 s30, s30, 10")
        k.e("v_add_u32 v%d, s30, v9" % (16 + tl))
    wfrag_lanepat(k, 3, 4, 1024)
    for nl in range(2):
        k.e("s_and_b32 s30, s26, 1")
        k.e("s_xor_b32 s30, s30, %d" % nl)
        k.e("s_lshl_b32 s31, s28, 1")
        k.e("s_add_u32 s30, s30, s31")
        k.e("s_lshl_b32 s30, s30, 8")
        k.e("s_lshl_b32 s31, s26, 12")
        k.e("s_add_u32 s30, s30, s31")
        k.e("s_add_u32 s30, s30, %d" % XB)
        k.e("v_add_u32 v%d, s30, v3" % (18 + nl))
    ACC = 64
    for i in range(64):
        k.e("v_mov_b32 v%d, 0" % (ACC + i))
    F0, F1 = 128, 144
    reads = [("ds_read_b128", 0, 16, 0),
             ("ds_read_b64_tr_b16", 8, 18, 0), ("ds_read_b64_tr_b16", 10, 18, 2048),
             ("ds_read_b64_tr_b16", 12, 19, 0), ("ds_read_b64_tr_b16", 14, 19, 2048),
             ("ds_read_b128", 4, 17, 0)]
    mf = [(ACC + 0, 8, 0, 2), (ACC + 16, 12, 0, 4), (ACC + 32, 8, 4, 5), (ACC + 48, 12, 4, 5)]
    sp.addr = [16, 17, 18, 19]
    sp.early = not os.environ.get("NOEARLY")
    sp.steps = [dict(reads=reads, mfma=mf)]
    sp.fset = [F0, F1]
    k.e("s_and_b32 s31, s26, 1")
    k.e("s_lshl_b32 s32, s28, 1")
    k.e("s_add_u32 s29, s31, s32")
    k.e("s_lshl_b32 s32, s22, 2")
    k.e("s_add_u32 s33, s29, s32")
    k.e("s_lshl_b32 s30, s23, 1")
    k.e("s_add_u32 s30, s30, s27")
    k.e("s_lshl_b32 s30, s30, 6")
    k.e("s_lshl_b32 s31, s33, 1")
    k.e("s_add_u32 s30, s30, s31")
    k.e("s_lshl_b32 s30, s30, 10")
    k.e("v_add_u32 v7, s30, v9")
    k.srd(16, 60, 2048 * 1024 * 2)
    k.srd(56, 6, 2048 * 1024 * 2, WS_H)

    def resid():
        if mode == "wo":
            k.e("s_lshl_b32 s30, s27, 5")
            k.e("s_add_u32 s30, s30, s24")
            k.e("v_and_b32 v3, 31, v2")
            k.e("v_add_u32 v3, s30, v3")
            k.e("v_lshlrev_b32 v6, 11, v3")
            k.e("s_lshl_b32 s32, s33, 6")
            k.e("v_add_u32 v6, s32, v6")
            k.e("v_lshrrev_b32 v5, 5, v2")
            k.e("v_lshl_add_u32 v6, v5, 3, v6")
            for q in range(4):
                k.e("buffer_load_dwordx2 v[%d:%d], v6, s[16:19], 0 offen offset:%d" % (32 + 2 * q, 33 + 2 * q, 16 * q))
            return 4
        else:
            for s in range(2):
                k.e("buffer_load_dwordx4 v[%d:%d], v7, s[56:59], 0 offen offset:%d" % (32 + 4 * s, 35 + 4 * s, 1024 * s))
            return 2
    sp.tail_hook = resid
    gemm_main(k, sp)
    for c in range(1, 4):
        k.e("s_xor_b32 s30, s26, %d" % c)
        k.e("s_lshl_b32 s34, s28, 2")
        k.e("s_add_u32 s30, s30, s34")
        k.e("s_mul_i32 s30, s30, 3")
        k.e("s_add_u32 s30, s30, %d" % (c - 1))
        k.e("s_lshl_b32 s30, s30, 12")
        k.e("v_add_u32 v%d, s30, v9" % (20 + c))
    k.e("s_lshl_b32 s34, s28, 2")
    k.e("s_add_u32 s30, s26, s34")
    k.e("s_mul_i32 s30, s30, 12288")
    k.e("v_add_u32 v20, s30, v9")
    k.e("v_mov_b32 v60, 0xffff0000")
    k.e("s_nop 4")
    k.e("s_barrier")
    for c in range(1, 4):
        for q in range(4):
            k.e("ds_write_b128 v%d, v[%d:%d] offset:%d" % (20 + c, ACC + 16 * c + 4 * q, ACC + 16 * c + 4 * q + 3, 1024 * q))
    k.e("s_waitcnt lgkmcnt(0)")
    k.e("s_barrier")
    for c in range(3):
        for q in range(4):
            k.e("ds_read_b128 v[%d:%d], v20 offset:%d" % (ACC + 16 + 16 * c + 4 * q, ACC + 16 + 16 * c + 4 * q + 3, 4096 * c + 1024 * q))
    k.e("s_waitcnt lgkmcnt(8)")
    for i in range(0, 16, 2):
        k.e(pk("v_pk_add_f32", ACC + i, ACC + i, ACC + 16 + i))
    k.e("s_waitcnt lgkmcnt(0)")
    for i in range(0, 16, 2):
        k.e(pk("v_pk_add_f32", ACC + 32 + i, ACC + 32 + i, ACC + 48 + i))
    for i in range(0, 16, 2):
        k.e(pk("v_pk_add_f32", ACC + i, ACC + i, ACC + 32 + i))
    k.e("s_waitcnt vmcnt(0)")
    T = ACC + 16
    R = ACC + 32
    for i in range(8):
        k.e("v_cvt_pk_bf16_f32 v%d, v%d, v%d" % (40 + i, ACC + 2 * i, ACC + 2 * i + 1))
    for i in range(8):
        k.e("v_lshlrev_b32 v%d, 16, v%d" % (T + 2 * i, 40 + i))
        k.e("v_and_b32 v%d, v60, v%d" % (T + 2 * i + 1, 40 + i))
        k.e("v_lshlrev_b32 v%d, 16, v%d" % (R + 2 * i, 32 + i))
        k.e("v_and_b32 v%d, v60, v%d" % (R + 2 * i + 1, 32 + i))
    for i in range(8):
        k.e(pk("v_pk_add_f32", T + 2 * i, T + 2 * i, R + 2 * i))
    for i in range(8):
        k.e("v_cvt_pk_bf16_f32 v%d, v%d, v%d" % (48 + i, T + 2 * i, T + 2 * i + 1))
    EX = 98304
    if mode == "wo":
        for s in range(2):
            k.e("buffer_store_dwordx4 v[%d:%d], v7, s[56:59], 0 offen offset:%d%s" % (48 + 4 * s, 51 + 4 * s, 1024 * s, WT))
        for i in range(8):
            k.e("v_lshlrev_b32 v%d, 16, v%d" % (T + 2 * i, 48 + i))
            k.e("v_and_b32 v%d, v60, v%d" % (T + 2 * i + 1, 48 + i))
        for i in range(8):
            k.e(pk("v_pk_mul_f32", R + 2 * i, T + 2 * i, T + 2 * i))
        for st_ in (8, 4, 2):
            for i in range(0, st_, 2):
                k.e(pk("v_pk_add_f32", T + i, T + i, T + st_ + i))
                k.e(pk("v_pk_add_f32", R + i, R + i, R + st_ + i))
        k.e("v_add_f32 v44, v%d, v%d" % (T, T + 1))
        k.e("v_add_f32 v45, v%d, v%d" % (R, R + 1))
        k.e("v_mov_b32 v46, v44")
        k.e("v_mov_b32 v47, v45")
        k.e("s_nop 1")
        k.e("v_permlane32_swap_b32 v44, v46")
        k.e("v_permlane32_swap_b32 v45, v47")
        k.e("s_nop 1")
        k.e("v_add_f32 v44, v44, v46")
        k.e("v_add_f32 v45, v45, v47")
        k.e("s_lshl_b32 s30, s27, 2")
        k.e("s_add_u32 s30, s30, s29")
        k.e("s_lshl_b32 s30, s30, 8")
        k.e("s_add_u32 s30, s30, %d" % EX)
        k.e("v_and_b32 v3, 31, v2")
        k.e("v_lshlrev_b32 v3, 3, v3")
        k.e("v_add_u32 v4, s30, v3")
        k.e("ds_write_b64 v4, v[44:45]")
        k.srd(16, 6, 8 * 2048 * 8, WS_ST)
        k.e("s_waitcnt lgkmcnt(0)")
        k.e("s_barrier")
        L_fin = k.newlab("fin")
        k.e("s_cmp_ge_u32 s25, 2")
        k.e("s_cbranch_scc1 %s" % L_fin)
        k.e("s_lshl_b32 s30, s25, 10")
        k.e("s_add_u32 s30, s30, %d" % EX)
        k.e("v_add_u32 v4, s30, v3")
        for j in range(4):
            k.e("ds_read_b64 v[%d:%d], v4 offset:%d" % (44 + 2 * j, 45 + 2 * j, 256 * j))
        k.e("s_lshl_b32 s30, s22, 14")
        k.e("s_lshl_b32 s31, s25, 5")
        k.e("s_add_u32 s31, s31, s24")
        k.e("s_lshl_b32 s31, s31, 3")
        k.e("s_add_u32 s30, s30, s31")
        k.e("v_add_u32 v3, s30, v3")
        k.e("s_waitcnt lgkmcnt(0)")
        k.e(pk("v_pk_add_f32", 44, 44, 46))
        k.e(pk("v_pk_add_f32", 48, 48, 50))
        k.e(pk("v_pk_add_f32", 44, 44, 48))
        k.e("v_cmp_gt_u32 vcc, 32, v2")
        k.e("s_and_saveexec_b64 s[36:37], vcc")
        k.e("buffer_store_dwordx2 v[44:45], v3, s[16:19], 0 offen%s" % WT)
        k.lab(L_fin)
    else:
        k.e("s_lshl_b32 s30, s27, 5")
        k.e("v_and_b32 v3, 31, v2")
        k.e("v_add_u32 v3, s30, v3")
        k.e("v_mul_u32_u24 v3, 272, v3")
        k.e("v_lshrrev_b32 v5, 5, v2")
        k.e("v_lshl_add_u32 v3, v5, 3, v3")
        k.e("s_lshl_b32 s30, s29, 6")
        k.e("s_add_u32 s30, s30, %d" % EX)
        k.e("v_add_u32 v3, s30, v3")
        for q in range(4):
            k.e("ds_write_b64 v3, v[%d:%d] offset:%d" % (48 + 2 * q, 49 + 2 * q, 16 * q))
        k.e("v_lshrrev_b32 v4, 4, v2")
        k.e("s_lshl_b32 s30, s25, 3")
        k.e("v_add_u32 v4, s30, v4")
        k.e("v_and_b32 v5, 15, v2")
        k.e("v_mul_u32_u24 v6, 272, v4")
        k.e("v_lshl_add_u32 v6, v5, 4, v6")
        k.e("v_add_u32 v6, %d, v6" % EX)
        k.e("v_add_u32 v4, s24, v4")
        k.e("v_lshlrev_b32 v4, 11, v4")
        k.e("v_lshl_add_u32 v4, v5, 4, v4")
        k.e("s_lshl_b32 s30, s22, 8")
        k.e("v_add_u32 v4, s30, v4")
        k.e("v_add_u32 v5, 8192, v4")
        k.e("s_waitcnt lgkmcnt(0)")
        k.e("s_barrier")
        k.e("ds_read_b128 v[32:35], v6")
        k.e("ds_read_b128 v[36:39], v6 offset:1088")
        k.e("s_waitcnt lgkmcnt(1)")
        k.e("buffer_store_dwordx4 v[32:35], v4, s[16:19], 0 offen%s" % WT)
        k.e("s_waitcnt lgkmcnt(0)")
        k.e("buffer_store_dwordx4 v[36:39], v5, s[16:19], 0 offen%s" % WT)
    k.stamp_store(3 if mode == "wo" else 5)
    k.lab(L_end)
    k.e("s_endpgm")
    return k, 160, (256, 512, NS * SB)


def gen_k3():
    k = KB("k3_glu_kernel")
    L_end = k.newlab("end")
    BK, NS = 32, 5
    XB = 16384
    GB = (BK // 4) * 7 * 128
    UOFF = XB + GB + 128
    SB = XB + 14592
    CSL = NS * SB
    SCR = CSL + 1024
    k.e("s_cmp_ge_u32 s2, 256")
    k.e("s_cbranch_scc1 %s" % L_end)
    k.e("s_load_dwordx4 s[60:63], s[0:1], %d" % KA_WG)
    k.e("s_load_dwordx2 s[6:7], s[0:1], %d" % KA_WS)
    k.e("s_load_dwordx2 s[70:71], s[0:1], %d" % KA_WD)
    k.e("s_and_b32 s20, s2, 7")
    k.e("s_lshr_b32 s21, s2, 3")
    k.e("s_lshr_b32 s23, s20, 2")
    k.e("s_lshl_b32 s23, s23, 2")
    k.e("s_and_b32 s24, s21, 3")
    k.e("s_add_u32 s23, s23, s24")
    k.e("s_and_b32 s22, s20, 3")
    k.e("s_lshl_b32 s22, s22, 3")
    k.e("s_lshr_b32 s24, s21, 2")
    k.e("s_add_u32 s22, s22, s24")
    k.e("s_lshl_b32 s24, s23, 8")
    wave_and_lane(k)
    dma = []
    k.e("v_lshlrev_b32 v9, 4, v2")
    k.e("s_lshl_b32 s29, s23, 3")
    k.e("s_add_u32 s29, s29, s25")
    k.e("s_lshl_b32 s30, s29, 16")
    k.e("v_add_u32 v10, s30, v9")
    k.e("v_add_u32 v11, 1024, v10")
    for i in range(2):
        k.e("s_lshl_b32 s%d, s25, 11" % (40 + i))
        k.e("s_add_u32 s%d, s%d, %d" % (40 + i, 40 + i, 1024 * i))
        dma.append((8, 10 + i, 50, 40 + i))
    k.e("s_lshl_b32 s31, s25, 3")
    k.e("v_lshrrev_b32 v3, 3, v2")
    k.e("v_add_u32 v3, s31, v3")
    k.e("v_mul_u32_u24 v4, 37, v3")
    k.e("v_lshrrev_b32 v4, 8, v4")
    k.e("v_mul_u32_u24 v5, 7, v4")
    k.e("v_sub_u32 v5, v3, v5")
    k.e("v_bfe_u32 v6, v2, 1, 2")
    k.e("v_lshl_add_u32 v6, v4, 2, v6")
    k.e("v_mul_u32_u24 v6, 7168, v6")
    k.e("v_lshl_add_u32 v6, v5, 5, v6")
    k.e("v_and_b32 v7, 1, v2")
    k.e("v_lshl_add_u32 v6, v7, 4, v6")
    k.e("s_mul_i32 s31, s22, 224")
    k.e("v_add_u32 v12, s31, v6")
    k.e("s_mul_i32 s31, s2, 28672")
    k.e("v_add_u32 v7, s31, v9")
    k.e("s_lshl_b32 s42, s25, 10")
    k.e("s_add_u32 s43, s42, %d" % UOFF)
    k.e("s_add_u32 s42, s42, %d" % XB)
    k.e("s_mov_b32 s56, %d" % (BK * 7168))
    k.e("s_cmp_eq_u32 s25, 7")
    k.e("s_cselect_b32 s56, 1024, s56")
    k.e("s_cselect_b32 s57, 0, -1")
    k.e("s_cselect_b32 s42, %d, s42" % SCR)
    k.e("s_cselect_b32 s43, %d, s43" % (SCR + 1024))
    k.e("s_cselect_b64 vcc, -1, 0")
    k.e("s_nop 1")
    k.e("v_cndmask_b32 v12, v12, v7, vcc")
    dma.append((12, 12, 51, 42))
    dma.append((16, 12, 51, 43))
    k.e("s_mov_b32 s50, 0")
    k.e("s_mov_b32 s51, 0")
    k.e("s_waitcnt lgkmcnt(0)")
    k.srd(8, 6, 2048 * 1024 * 2, WS_H)
    k.e("s_cmp_eq_u32 s25, 7")
    k.e("s_cselect_b32 s72, s70, s60")
    k.e("s_cselect_b32 s73, s71, s61")
    k.e("s_cselect_b32 s74, s70, s62")
    k.e("s_cselect_b32 s75, s71, s63")
    k.srd(12, 72, 1024 * 3584 * 2)
    k.srd(16, 74, 1024 * 3584 * 2)
    k.e("s_cmp_eq_u32 s25, 7")
    k.e("s_cselect_b32 s14, 0, s14")
    k.e("s_cselect_b32 s18, 0, s18")
    sp = Spec()
    sp.NS, sp.nst, sp.stage_bytes = NS, 1024 // BK, SB
    sp.dma = dma
    sp.dma_abs = {2: 57, 3: 57}
    sp.sadv = [(50, 2048), (51, "s56")]
    sp.s_wr, sp.s_rd, sp.s_cnt = 52, 53, 54
    gemm_prologue(k, sp)
    k.e("s_mov_b32 s14, %d" % (1024 * 3584 * 2))
    k.e("s_cmp_eq_u32 s25, 7")
    k.e("s_cselect_b32 s51, 0, s51")
    k.e("s_lshl_b32 s30, s25, 11")
    k.e("v_add_u32 v14, s30, v9")
    k.e("v_bfe_u32 v3, v2, 2, 2")
    k.e("v_lshlrev_b32 v3, 5, v3")
    k.e("v_and_b32 v4, 3, v2")
    k.e("v_lshl_add_u32 v3, v4, 3, v3")
    k.e("v_lshrrev_b32 v4, 5, v2")
    k.e("v_mul_u32_u24 v4, %d, v4" % (7 * 128))
    k.e("v_add_u32 v3, v3, v4")
    k.e("v_bfe_u32 v4, v2, 4, 1")
    k.e("v_mul_u32_u24 v4, %d, v4" % (UOFF - XB))
    k.e("v_add_u32 v3, v3, v4")
    k.e("v_add_u32 v16, %d, v3" % XB)
    ACC = 64
    for i in range(112):
        k.e("v_mov_b32 v%d, 0" % (ACC + i))
    F0, F1 = 176, 208
    steps = []
    for jj in range(2):
        reads = [("ds_read_b128", 0, 14, 1024 * jj)]
        mf = []
        for t in range(7):
            for i in range(2):
                reads.append(("ds_read_b64_tr_b16", 4 + 4 * t + 2 * i, 16, ((4 * jj + 2 * i) * 7 + t) * 128))
            mf.append((ACC + 16 * t, 4 + 4 * t, 0, 2 * t + 2))
        steps.append(dict(reads=reads, mfma=mf))
    sp.addr = [14, 16]
    sp.steps = steps
    sp.fset = [F0, F1]
    k.srd(64, 6, 8 * 2048 * 8, WS_ST)
    k.srd(76, 6, 2048 * 3584 * 2, WS_HH)
    k.srd(68, 6, 2 * 3584 * 4, WS_CS2)
    S0 = 24

    def early():
        k.e("s_lshl_b32 s30, s25, 5")
        k.e("s_add_u32 s30, s30, s24")
        k.e("v_and_b32 v3, 31, v2")
        k.e("v_add_u32 v3, s30, v3")
        k.e("v_lshlrev_b32 v4, 3, v3")
        k.e("v_lshrrev_b32 v5, 5, v2")
        k.e("v_lshl_add_u32 v4, v5, 16, v4")
        k.e("s_mov_b32 s31, 0")
        for i in range(4):
            k.e("buffer_load_dwordx2 v[%d:%d], v4, s[64:67], s31 offen" % (S0 + 2 * i, S0 + 2 * i + 1))
            k.e("s_add_u32 s31, s31, 16384")
        k.e("v_cmp_gt_u32 vcc, 28, v2")
        k.e("v_subrev_u32 v6, 28, v2")
        k.e("s_nop 1")
        k.e("v_cndmask_b32 v6, v6, v2, vcc")
        k.e("v_lshlrev_b32 v6, 4, v6")
        k.e("v_mov_b32 v7, %d" % (3584 * 4))
        k.e("v_mov_b32 v8, 0")
        k.e("v_cndmask_b32 v7, v7, v8, vcc")
        k.e("v_add_u32 v6, v6, v7")
        k.e("s_mul_i32 s31, s22, 448")
        k.e("v_add_u32 v6, s31, v6")
        k.e("buffer_load_dwordx4 v[32:35], v6, s[68:71], 0 offen")
        return 5
    sp.tail_hook = early
    gemm_main(k, sp)
    k.e("s_waitcnt vmcnt(0)")
    k.e("v_add_u32 v6, %d, v9" % CSL)
    k.e("v_cmp_gt_u32 vcc, 56, v2")
    k.e("s_and_saveexec_b64 s[36:37], vcc")
    k.e("ds_write_b128 v6, v[32:35]")
    k.e("s_mov_b64 exec, s[36:37]")
    k.e(pk("v_pk_add_f32", S0, S0, S0 + 2))
    k.e(pk("v_pk_add_f32", S0 + 4, S0 + 4, S0 + 6))
    k.e(pk("v_pk_add_f32", S0, S0, S0 + 4))
    k.e("v_mov_b32 v8, v%d" % S0)
    k.e("v_mov_b32 v7, v%d" % (S0 + 1))
    k.e("v_mov_b32 v6, v8")
    k.e("v_mov_b32 v10, v7")
    k.e("s_nop 1")
    k.e("v_permlane32_swap_b32 v8, v6")
    k.e("v_permlane32_swap_b32 v7, v10")
    k.e("s_nop 1")
    k.e("v_add_f32 v8, v8, v6")
    k.e("v_add_f32 v7, v7, v10")
    k.e("s_waitcnt lgkmcnt(0)")
    k.e("s_barrier")
    k.e("v_lshrrev_b32 v6, 5, v2")
    k.e("v_lshlrev_b32 v5, 4, v6")
    k.e("v_add_u32 v5, %d, v5" % CSL)
    C0 = 176
    T = 208

    def csread(tt):
        cbb = C0 + (tt & 1) * 16
        for q in range(2):
            k.e("ds_read_b128 v[%d:%d], v5 offset:%d" % (cbb + 4 * q, cbb + 4 * q + 3, tt * 64 + q * 32))
            k.e("ds_read_b128 v[%d:%d], v5 offset:%d" % (cbb + 8 + 4 * q, cbb + 8 + 4 * q + 3, 448 + tt * 64 + q * 32))
    csread(0)
    csread(1)
    k.e("v_mul_f32 v8, 0x3a800000, v8")
    k.e("v_mul_f32 v7, 0x3a800000, v7")
    k.e("v_fma_f32 v7, -v8, v8, v7")
    k.e("v_max_f32 v7, 0, v7")
    round_bf16(k, 8, 8)
    round_bf16(k, 7, 7)
    k.e("v_add_f32 v7, 0x3727c5ac, v7")
    round_bf16(k, 7, 7)
    k.e("v_sqrt_f32 v7, v7")
    k.e("s_nop 0")
    round_bf16(k, 7, 7)
    k.e("v_rcp_f32 v54, v7")
    k.e("s_nop 0")
    k.e("v_mov_b32 v55, v54")
    k.e("v_mul_f32 v8, v8, v54")
    k.e("v_sub_f32 v52, 0, v8")
    k.e("v_mov_b32 v53, v52")
    k.e("s_mul_i32 s31, s29, 224")
    k.e("s_mul_i32 s30, s22, 7")
    k.e("s_add_u32 s31, s31, s30")
    k.e("s_lshl_b32 s31, s31, 10")
    k.e("v_add_u32 v57, s31, v9")
    k.e("v_add_u32 v56, 4096, v57")
    c1 = -2.0 * math.log2(math.e) * math.sqrt(2.0 / math.pi)
    c2 = c1 * 0.044715
    k.e("v_mov_b32 v60, 0x%08x" % f2u(c1))
    k.e("v_mov_b32 v61, 0x%08x" % f2u(c1))
    k.e("v_mov_b32 v62, 0x%08x" % f2u(c2))
    k.e("v_mov_b32 v63, 0x%08x" % f2u(c2))
    k.e("v_mov_b32 v58, 1.0")
    k.e("v_mov_b32 v59, 1.0")
    for t in range(7):
        cb = C0 + (t & 1) * 16
        k.e("s_waitcnt lgkmcnt(%d)" % (4 if t < 6 else 0))
        A = ACC + 16 * t
        for j in range(8):
            k.e(pk("v_pk_mul_f32", T + 2 * j, cb + 2 * j, 52))
        for j in range(8):
            k.e(pk("v_pk_fma_f32", A + 2 * j, A + 2 * j, 54, T + 2 * j))
        if t + 2 < 7:
            csread(t + 2)
        for j in range(4):
            k.e(pk("v_pk_mul_f32", T + 2 * j, A + 2 * j, A + 2 * j))
        for j in range(4):
            k.e(pk("v_pk_fma_f32", T + 2 * j, T + 2 * j, 62, 60))
        for j in range(4):
            k.e(pk("v_pk_mul_f32", T + 2 * j, T + 2 * j, A + 2 * j))
        for j in range(8):
            k.e("v_exp_f32 v%d, v%d" % (T + j, T + j))
        for j in range(4):
            k.e(pk("v_pk_mul_f32", A + 2 * j, A + 2 * j, A + 8 + 2 * j))
        for j in range(4):
            k.e(pk("v_pk_add_f32", T + 2 * j, T + 2 * j, 58))
        for j in range(8):
            k.e("v_rcp_f32 v%d, v%d" % (T + j, T + j))
        k.e("s_nop 0")
        for j in range(4):
            k.e(pk("v_pk_mul_f32", A + 2 * j, A + 2 * j, T + 2 * j))
        for j in range(4):
            k.e("v_cvt_pk_bf16_f32 v%d, v%d, v%d" % (40 + 4 * (t & 1) + j, A + 2 * j, A + 2 * j + 1))
        k.e("buffer_store_dwordx4 v[%d:%d], v%d, s[76:79], 0 offen offset:%d%s" % (40 + 4 * (t & 1), 43 + 4 * (t & 1), 57 if t < 4 else 56, 1024 * (t & 3), WT))
    k.stamp_store(4)
    k.lab(L_end)
    k.e("s_endpgm")
    return k, 240, (256, 512, SCR + 2048)


def gen_k3b():
    k = KB("k3_glu_kernel")
    L_end = k.newlab("end")
    BK, NS = 32, 5
    XB = 16384
    GB = (BK // 4) * 7 * 128
    UOFF = XB + GB + 128
    SB = XB + 14592
    CSL = NS * SB
    SCR = CSL + 1024
    k.e("s_cmp_ge_u32 s2, 256")
    k.e("s_cbranch_scc1 %s" % L_end)
    k.e("s_load_dwordx4 s[60:63], s[0:1], %d" % KA_WG)
    k.e("s_load_dwordx2 s[6:7], s[0:1], %d" % KA_WS)
    k.e("s_load_dwordx2 s[70:71], s[0:1], %d" % KA_WD)
    k.e("s_and_b32 s20, s2, 7")
    k.e("s_lshr_b32 s21, s2, 3")
    k.e("s_lshr_b32 s23, s20, 2")
    k.e("s_lshl_b32 s23, s23, 2")
    k.e("s_and_b32 s24, s21, 3")
    k.e("s_add_u32 s23, s23, s24")
    k.e("s_and_b32 s22, s20, 3")
    k.e("s_lshl_b32 s22, s22, 3")
    k.e("s_lshr_b32 s24, s21, 2")
    k.e("s_add_u32 s22, s22, s24")
    k.e("s_lshl_b32 s24, s23, 8")
    wave_and_lane(k)
    dma = []
    k.e("v_lshlrev_b32 v9, 4, v2")
    k.e("s_lshl_b32 s29, s23, 3")
    k.e("s_add_u32 s29, s29, s25")
    k.e("s_lshl_b32 s30, s29, 16")
    k.e("v_add_u32 v10, s30, v9")
    k.e("v_add_u32 v11, 1024, v10")
    for i in range(2):
        k.e("s_lshl_b32 s%d, s25, 11" % (40 + i))
        k.e("s_add_u32 s%d, s%d, %d" % (40 + i, 40 + i, 1024 * i))
        dma.append((8, 10 + i, 50, 40 + i))
    k.e("s_lshl_b32 s31, s25, 3")
    k.e("v_lshrrev_b32 v3, 3, v2")
    k.e("v_add_u32 v3, s31, v3")
    k.e("v_mul_u32_u24 v4, 37, v3")
    k.e("v_lshrrev_b32 v4, 8, v4")
    k.e("v_mul_u32_u24 v5, 7, v4")
    k.e("v_sub_u32 v5, v3, v5")
    k.e("v_bfe_u32 v6, v2, 1, 2")
    k.e("v_lshl_add_u32 v6, v4, 2, v6")
    k.e("v_mul_u32_u24 v6, 7168, v6")
    k.e("v_lshl_add_u32 v6, v5, 5, v6")
    k.e("v_and_b32 v7, 1, v2")
    k.e("v_lshl_add_u32 v6, v7, 4, v6")
    k.e("s_mul_i32 s31, s22, 224")
    k.e("v_add_u32 v12, s31, v6")
    k.e("s_mul_i32 s31, s2, 28672")
    k.e("v_add_u32 v7, s31, v9")
    k.e("s_lshl_b32 s42, s25, 10")
    k.e("s_add_u32 s43, s42, %d" % UOFF)
    k.e("s_add_u32 s42, s42, %d" % XB)
    k.e("s_mov_b32 s56, %d" % (BK * 7168))
    k.e("s_cmp_eq_u32 s25, 7")
    k.e("s_cselect_b32 s56, 1024, s56")
    k.e("s_cselect_b32 s57, 0, -1")
    k.e("s_cselect_b32 s42, %d, s42" % SCR)
    k.e("s_cselect_b32 s43, %d, s43" % (SCR + 1024))
    k.e("s_cselect_b64 vcc, -1, 0")
    k.e("s_nop 1")
    k.e("v_cndmask_b32 v12, v12, v7, vcc")
    dma.append((12, 12, 51, 42))
    dma.append((16, 12, 51, 43))
    k.e("s_mov_b32 s50, 0")
    k.e("s_mov_b32 s51, 0")
    k.e("s_waitcnt lgkmcnt(0)")
    k.srd(8, 6, 2048 * 1024 * 2, WS_H)
    k.e("s_cmp_eq_u32 s25, 7")
    k.e("s_cselect_b32 s72, s70, s60")
    k.e("s_cselect_b32 s73, s71, s61")
    k.e("s_cselect_b32 s74, s70, s62")
    k.e("s_cselect_b32 s75, s71, s63")
    k.srd(12, 72, 1024 * 3584 * 2)
    k.srd(16, 74, 1024 * 3584 * 2)
    k.e("s_cmp_eq_u32 s25, 7")
    k.e("s_cselect_b32 s14, 0, s14")
    k.e("s_cselect_b32 s18, 0, s18")
    sp = Spec()
    sp.NS, sp.nst, sp.stage_bytes = NS, 1024 // BK, SB
    sp.dma = dma
    sp.dma_abs = {2: 57, 3: 57}
    sp.sadv = [(50, 2048), (51, "s56")]
    sp.s_wr, sp.s_rd, sp.s_cnt = 52, 53, 54
    gemm_prologue(k, sp)
    k.e("s_mov_b32 s14, %d" % (1024 * 3584 * 2))
    k.e("s_cmp_eq_u32 s25, 7")
    k.e("s_cselect_b32 s51, 0, s51")
    k.e("s_and_b32 s26, s25, 3")
    k.e("s_lshr_b32 s27, s25, 2")
    k.e("s_lshl_b32 s30, s26, 12")
    k.e("v_add_u32 v14, s30, v9")
    k.e("v_bfe_u32 v3, v2, 2, 2")
    k.e("v_lshlrev_b32 v3, 5, v3")
    k.e("v_and_b32 v4, 3, v2")
    k.e("v_lshl_add_u32 v3, v4, 3, v3")
    k.e("v_lshrrev_b32 v4, 5, v2")
    k.e("v_mul_u32_u24 v4, %d, v4" % (7 * 128))
    k.e("v_add_u32 v3, v3, v4")
    k.e("v_bfe_u32 v4, v2, 4, 1")
    k.e("v_mul_u32_u24 v4, %d, v4" % (UOFF - XB))
    k.e("v_add_u32 v3, v3, v4")
    k.e("s_lshl_b32 s30, s27, 9")
    k.e("s_add_u32 s30, s30, %d" % XB)
    k.e("v_add_u32 v16, s30, v3")
    ACC = 64
    for i in range(128):
        k.e("v_mov_b32 v%d, 0" % (ACC + i))
    F0, F1 = 192, 216
    sp.addr = [14, 16]
    sp.fset = [F0, F1]
    k.srd(64, 6, 8 * 2048 * 8, WS_ST)
    k.srd(76, 6, 2048 * 3584 * 2, WS_HH)
    k.srd(68, 6, 2 * 3584 * 4, WS_CS2)
    S0 = 24

    def early():
        k.e("s_lshl_b32 s30, s26, 6")
        k.e("s_add_u32 s30, s30, s24")
        k.e("v_and_b32 v3, 31, v2")
        k.e("v_add_u32 v3, s30, v3")
        k.e("v_lshlrev_b32 v4, 3, v3")
        k.e("v_lshrrev_b32 v5, 5, v2")
        k.e("v_lshl_add_u32 v4, v5, 16, v4")
        k.e("s_mov_b32 s31, 0")
        for i in range(4):
            k.e("buffer_load_dwordx2 v[%d:%d], v4, s[64:67], s31 offen" % (S0 + 2 * i, S0 + 2 * i + 1))
            k.e("buffer_load_dwordx2 v[%d:%d], v4, s[64:67], s31 offen offset:256" % (S0 + 8 + 2 * i, S0 + 8 + 2 * i + 1))
            k.e("s_add_u32 s31, s31, 16384")
        k.e("v_cmp_gt_u32 vcc, 28, v2")
        k.e("v_subrev_u32 v6, 28, v2")
        k.e("s_nop 1")
        k.e("v_cndmask_b32 v6, v6, v2, vcc")
        k.e("v_lshlrev_b32 v6, 4, v6")
        k.e("v_mov_b32 v7, %d" % (3584 * 4))
        k.e("v_mov_b32 v8, 0")
        k.e("v_cndmask_b32 v7, v7, v8, vcc")
        k.e("v_add_u32 v6, v6, v7")
        k.e("s_mul_i32 s31, s22, 448")
        k.e("v_add_u32 v6, s31, v6")
        k.e("buffer_load_dwordx4 v[40:43], v6, s[68:71], 0 offen")
        return 9
    sp.tail_hook = early
    L_b = k.newlab("pathb")
    L_fin = k.newlab("fin")
    k.e("s_cmp_lg_u32 s27, 0")
    k.e("s_cbranch_scc1 %s" % L_b)
    nst0 = k.nstamp
    for fh in range(2):
        NF = 4 if fh == 0 else 3
        if fh == 1:
            k.lab(L_b)
            k.nstamp = nst0
        steps = []
        for jj in range(2):
            reads = [("ds_read_b128", 0, 14, 1024 * jj)]
            mf = []
            for t in range(NF):
                for i in range(2):
                    reads.append(("ds_read_b64_tr_b16", 8 + 4 * t + 2 * i, 16, ((4 * jj + 2 * i) * 7 + t) * 128))
                if t == 0:
                    reads.append(("ds_read_b128", 4, 14, 2048 + 1024 * jj))
                d = 2 * t + 2 + (1 if t > 0 else 0)
                mf.append((ACC + 16 * (2 * t), 8 + 4 * t, 0, d))
                mf.append((ACC + 16 * (2 * t + 1), 8 + 4 * t, 4, max(d, 3)))
            steps.append(dict(reads=reads, mfma=mf))
        sp.steps = steps
        gemm_main(k, sp)
        k.e("s_waitcnt vmcnt(0)")
        k.e("v_add_u32 v6, %d, v9" % CSL)
        k.e("v_cmp_gt_u32 vcc, 56, v2")
        k.e("s_and_saveexec_b64 s[36:37], vcc")
        k.e("ds_write_b128 v6, v[40:43]")
        k.e("s_mov_b64 exec, s[36:37]")
        for tl in range(2):
            B = S0 + 8 * tl
            k.e(pk("v_pk_add_f32", B, B, B + 2))
            k.e(pk("v_pk_add_f32", B + 4, B + 4, B + 6))
            k.e(pk("v_pk_add_f32", B, B, B + 4))
            k.e("v_mov_b32 v%d, v%d" % (B + 2, B))
            k.e("v_mov_b32 v%d, v%d" % (B + 3, B + 1))
        k.e("s_nop 1")
        for tl in range(2):
            B = S0 + 8 * tl
            k.e("v_permlane32_swap_b32 v%d, v%d" % (B, B + 2))
            k.e("v_permlane32_swap_b32 v%d, v%d" % (B + 1, B + 3))
        k.e("s_nop 1")
        for tl in range(2):
            B = S0 + 8 * tl
            k.e(pk("v_pk_add_f32", B, B, B + 2))
        k.e("s_waitcnt lgkmcnt(0)")
        k.e("s_barrier")
        k.e("v_lshrrev_b32 v6, 5, v2")
        k.e("v_lshlrev_b32 v5, 4, v6")
        k.e("v_add_u32 v5, %d, v5" % (CSL + 256 * fh))
        C0 = 192
        T = 224

        def csread(tt):
            cbb = C0 + (tt & 1) * 16
            for q in range(2):
                k.e("ds_read_b128 v[%d:%d], v5 offset:%d" % (cbb + 4 * q, cbb + 4 * q + 3, tt * 64 + q * 32))
                k.e("ds_read_b128 v[%d:%d], v5 offset:%d" % (cbb + 8 + 4 * q, cbb + 8 + 4 * q + 3, 448 + tt * 64 + q * 32))
        csread(0)
        csread(1)
        for tl in range(2):
            B = S0 + 8 * tl
            m, v = B, B + 1
            k.e("v_mul_f32 v%d, 0x3a800000, v%d" % (m, m))
            k.e("v_mul_f32 v%d, 0x3a800000, v%d" % (v, v))
            k.e("v_fma_f32 v%d, -v%d, v%d, v%d" % (v, m, m, v))
            k.e("v_max_f32 v%d, 0, v%d" % (v, v))
            round_bf16(k, m, m)
            round_bf16(k, v, v)
            k.e("v_add_f32 v%d, 0x3727c5ac, v%d" % (v, v))
            round_bf16(k, v, v)
            k.e("v_sqrt_f32 v%d, v%d" % (v, v))
            k.e("s_nop 0")
            round_bf16(k, v, v)
            k.e("v_rcp_f32 v%d, v%d" % (B + 4, v))
            k.e("s_nop 0")
            k.e("v_mov_b32 v%d, v%d" % (B + 5, B + 4))
            k.e("v_mul_f32 v%d, v%d, v%d" % (m, m, B + 4))
            k.e("v_sub_f32 v%d, 0, v%d" % (B + 6, m))
            k.e("v_mov_b32 v%d, v%d" % (B + 7, B + 6))
        k.e("s_lshl_b32 s31, s23, 3")
        k.e("s_lshl_b32 s30, s26, 1")
        k.e("s_add_u32 s31, s31, s30")
        k.e("s_mul_i32 s31, s31, 224")
        k.e("s_mul_i32 s30, s22, 7")
        k.e("s_add_u32 s31, s31, s30")
        k.e("s_add_u32 s31, s31, %d" % (4 * fh))
        k.e("s_lshl_b32 s31, s31, 10")
        k.e("v_add_u32 v56, s31, v9")
        k.e("v_add_u32 v57, %d, v56" % (224 * 1024))
        c1 = -2.0 * math.log2(math.e) * math.sqrt(2.0 / math.pi)
        c2 = c1 * 0.044715
        k.e("v_mov_b32 v60, 0x%08x" % f2u(c1))
        k.e("v_mov_b32 v61, 0x%08x" % f2u(c1))
        k.e("v_mov_b32 v62, 0x%08x" % f2u(c2))
        k.e("v_mov_b32 v63, 0x%08x" % f2u(c2))
        k.e("v_mov_b32 v58, 1.0")
        k.e("v_mov_b32 v59, 1.0")
        cnt = 0
        for t in range(NF):
            cb = C0 + (t & 1) * 16
            k.e("s_waitcnt lgkmcnt(%d)" % (4 if t < NF - 1 else 0))
            for tl in range(2):
                B = S0 + 8 * tl
                A = ACC + 16 * (2 * t + tl)
                for j in range(8):
                    k.e(pk("v_pk_mul_f32", T + 2 * j, cb + 2 * j, B + 6))
                for j in range(8):
                    k.e(pk("v_pk_fma_f32", A + 2 * j, A + 2 * j, B + 4, T + 2 * j))
                if tl == 1 and t + 2 < NF:
                    csread(t + 2)
                for j in range(4):
                    k.e(pk("v_pk_mul_f32", T + 2 * j, A + 2 * j, A + 2 * j))
                for j in range(4):
                    k.e(pk("v_pk_fma_f32", T + 2 * j, T + 2 * j, 62, 60))
                for j in range(4):
                    k.e(pk("v_pk_mul_f32", T + 2 * j, T + 2 * j, A + 2 * j))
                for j in range(8):
                    k.e("v_exp_f32 v%d, v%d" % (T + j, T + j))
                for j in range(4):
                    k.e(pk("v_pk_mul_f32", A + 2 * j, A + 2 * j, A + 8 + 2 * j))
                for j in range(4):
                    k.e(pk("v_pk_add_f32", T + 2 * j, T + 2 * j, 58))
                for j in range(8):
                    k.e("v_rcp_f32 v%d, v%d" % (T + j, T + j))
                k.e("s_nop 0")
                for j in range(4):
                    k.e(pk("v_pk_mul_f32", A + 2 * j, A + 2 * j, T + 2 * j))
                o = 44 + 4 * (cnt & 1)
                for j in range(4):
                    k.e("v_cvt_pk_bf16_f32 v%d, v%d, v%d" % (o + j, A + 2 * j, A + 2 * j + 1))
                k.e("buffer_store_dwordx4 v[%d:%d], v%d, s[76:79], 0 offen offset:%d%s" % (o, o + 3, 56 + tl, 1024 * t, WT))
                cnt += 1
        if fh == 0:
            k.e("s_branch %s" % L_fin)
    k.lab(L_fin)
    k.stamp_store(4)
    k.lab(L_end)
    k.e("s_endpgm")
    return k, 240, (256, 512, SCR + 2048)


WS_P = 40 * MB


def gen_down2():
    k = KB("k4_down_kernel")
    L_end = k.newlab("end")
    BK, NS = 64, 5
    XB = 16384
    WB = 16384
    SB = XB + WB
    k.e("s_cmp_ge_u32 s2, 256")
    k.e("s_cbranch_scc1 %s" % L_end)
    k.e("s_load_dwordx2 s[4:5], s[0:1], %d" % KA_WD)
    k.e("s_load_dwordx2 s[6:7], s[0:1], %d" % KA_WS)
    k.e("s_load_dwordx4 s[60:63], s[0:1], %d" % KA_OUT)
    k.e("s_and_b32 s20, s2, 7")
    k.e("s_lshr_b32 s21, s2, 3")
    k.e("s_and_b32 s38, s21, 1")
    k.e("s_lshr_b32 s21, s21, 1")
    k.e("s_and_b32 s22, s20, 1")
    k.e("s_lshl_b32 s22, s22, 2")
    k.e("s_and_b32 s23, s21, 3")
    k.e("s_add_u32 s22, s22, s23")
    k.e("s_lshr_b32 s23, s20, 1")
    k.e("s_lshl_b32 s23, s23, 2")
    k.e("s_lshr_b32 s24, s21, 2")
    k.e("s_add_u32 s23, s23, s24")
    k.e("s_lshl_b32 s24, s23, 7")
    wave_and_lane(k)
    k.e("s_lshr_b32 s26, s25, 2")
    k.e("s_bfe_u32 s27, s25, 0x10001")
    k.e("s_and_b32 s28, s25, 1")
    dma = []
    k.e("v_lshlrev_b32 v9, 4, v2")
    k.e("s_lshl_b32 s30, s23, 2")
    k.e("s_lshr_b32 s31, s25, 1")
    k.e("s_add_u32 s30, s30, s31")
    k.e("s_mul_i32 s30, s30, 224")
    k.e("s_mul_i32 s31, s38, 112")
    k.e("s_add_u32 s30, s30, s31")
    k.e("s_lshl_b32 s31, s28, 1")
    k.e("s_add_u32 s30, s30, s31")
    k.e("s_lshl_b32 s30, s30, 10")
    k.e("v_add_u32 v10, s30, v9")
    k.e("v_add_u32 v11, 1024, v10")
    for i in range(2):
        k.e("s_lshl_b32 s%d, s25, 11" % (40 + i))
        k.e("s_add_u32 s%d, s%d, %d" % (40 + i, 40 + i, 1024 * i))
        dma.append((8, 10 + i, 50, 40 + i))
    for i in range(2):
        k.e("s_lshl_b32 s30, s25, 3")
        k.e("s_add_u32 s30, s30, %d" % (4 * i))
        k.e("v_bfe_u32 v6, v2, 2, 2")
        k.e("v_add_u32 v6, s30, v6")
        k.e("v_lshlrev_b32 v6, 11, v6")
        k.e("v_lshrrev_b32 v7, 4, v2")
        k.e("v_lshl_add_u32 v6, v7, 6, v6")
        k.e("v_and_b32 v7, 3, v2")
        k.e("v_lshl_add_u32 v6, v7, 4, v6")
        k.e("s_lshl_b32 s31, s22, 8")
        k.e("v_add_u32 v%d, s31, v6" % (12 + i))
        k.e("s_lshl_b32 s%d, s25, 11" % (42 + i))
        k.e("s_add_u32 s%d, s%d, %d" % (42 + i, 42 + i, XB + 1024 * i))
        dma.append((12, 12 + i, 51, 42 + i))
    k.e("s_mov_b32 s50, 0")
    k.e("s_mul_i32 s51, s38, %d" % (1792 * 2048))
    k.e("s_waitcnt lgkmcnt(0)")
    k.srd(8, 6, 2048 * 3584 * 2, WS_HH)
    k.srd(12, 4, 3584 * 1024 * 2)
    sp = Spec()
    sp.NS, sp.nst, sp.stage_bytes = NS, 1792 // BK, SB
    sp.dma = dma
    sp.sadv = [(50, 4096), (51, BK * 2048)]
    sp.s_wr, sp.s_rd, sp.s_cnt = 52, 53, 54
    k.srd(64, 6, 32768, WS_FLAG)
    k.e("s_lshl_b32 s33, s23, 3")
    k.e("s_add_u32 s33, s33, s22")
    k.e("s_lshl_b32 s34, s33, 8")
    k.e("v_mov_b32 v20, s34")
    k.e("v_mov_b32 v21, 1")
    L_na0 = k.newlab("noarr0")
    k.e("s_cmp_lg_u32 s25, 0")
    k.e("s_cbranch_scc1 %s" % L_na0)
    k.e("s_mov_b64 exec, 1")
    k.e("buffer_atomic_add v21, v20, s[64:67], 0 offen sc0 sc1")
    k.e("s_mov_b64 exec, -1")
    k.lab(L_na0)
    gemm_prologue(k, sp)
    for tl in range(2):
        k.e("s_xor_b32 s30, s26, %d" % tl)
        k.e("s_lshl_b32 s31, s27, 1")
        k.e("s_add_u32 s30, s30, s31")
        k.e("s_lshl_b32 s30, s30, 2")
        k.e("s_lshl_b32 s31, s26, 1")
        k.e("s_add_u32 s30, s30, s31")
        k.e("s_lshl_b32 s30, s30, 10")
        k.e("v_add_u32 v%d, s30, v9" % (16 + tl))
    wfrag_lanepat(k, 3, 4, 1024)
    k.e("s_lshl_b32 s30, s26, 13")
    k.e("s_lshl_b32 s31, s28, 9")
    k.e("s_add_u32 s30, s30, s31")
    k.e("s_add_u32 s30, s30, %d" % XB)
    k.e("v_add_u32 v18, s30, v3")
    ACC = 64
    for i in range(64):
        k.e("v_mov_b32 v%d, 0" % (ACC + i))
    F0, F1 = 128, 144
    steps = []
    for jj in range(2):
        reads = [("ds_read_b128", 0, 16, 1024 * jj),
                 ("ds_read_b64_tr_b16", 8, 18, 4096 * jj), ("ds_read_b64_tr_b16", 10, 18, 4096 * jj + 2048),
                 ("ds_read_b64_tr_b16", 12, 18, 4096 * jj + 256), ("ds_read_b64_tr_b16", 14, 18, 4096 * jj + 2048 + 256),
                 ("ds_read_b128", 4, 17, 1024 * jj)]
        mf = [(ACC + 0, 8, 0, 2), (ACC + 16, 12, 0, 4), (ACC + 32, 8, 4, 5), (ACC + 48, 12, 4, 5)]
        steps.append(dict(reads=reads, mfma=mf))
    sp.addr = [16, 17, 18]
    sp.steps = steps
    sp.fset = [F0, F1]
    k.e("s_lshl_b32 s29, s27, 1")
    k.e("s_add_u32 s29, s29, s26")
    k.e("s_lshl_b32 s30, s23, 2")
    k.e("s_add_u32 s30, s30, s29")
    k.e("s_lshl_b32 s30, s30, 6")
    k.e("s_lshl_b32 s31, s22, 3")
    k.e("s_add_u32 s30, s30, s31")
    k.e("s_lshl_b32 s31, s28, 2")
    k.e("s_add_u32 s30, s30, s31")
    k.e("s_lshl_b32 s30, s30, 10")
    k.e("v_add_u32 v7, s30, v9")
    k.srd(16, 60, 2048 * 1024 * 2)
    k.srd(56, 6, 2048 * 1024 * 2, WS_H)
    k.srd(68, 6, 128 * 65536, WS_P)

    def resid():
        for s_ in range(4):
            k.e("buffer_load_dwordx4 v[%d:%d], v7, s[56:59], 0 offen offset:%d" % (32 + 4 * s_, 35 + 4 * s_, 1024 * s_))
        return 4
    sp.tail_hook = resid
    gemm_main(k, sp)
    k.e("s_lshl_b32 s30, s25, 13")
    k.e("v_add_u32 v4, s30, v9")
    k.e("s_xor_b32 s31, s25, 4")
    k.e("s_lshl_b32 s31, s31, 13")
    k.e("v_add_u32 v5, s31, v9")
    k.e("v_mov_b32 v60, 0xffff0000")
    k.e("s_mov_b32 s35, 0")
    k.e("s_mov_b32 s36, 1")
    k.e("s_lshl_b32 s30, s33, 16")
    k.e("s_lshl_b32 s31, s25, 13")
    k.e("s_add_u32 s30, s30, s31")
    k.e("v_add_u32 v22, s30, v9")
    k.e("v_add_u32 v23, 4096, v22")
    k.e("s_barrier")
    for q in range(8):
        k.e("ds_write_b128 v4, v[%d:%d] offset:%d" % (ACC + 32 + 4 * q, ACC + 35 + 4 * q, 1024 * q))
    L_na = k.newlab("noarr")
    k.e("s_cmp_lg_u32 s25, 0")
    k.e("s_cbranch_scc1 %s" % L_na)
    k.e("s_mov_b64 exec, 1")
    k.e("v_mov_b32 v24, %d" % 131072)
    k.e("ds_write_b32 v24, v21")
    k.e("s_mov_b64 exec, -1")
    k.lab(L_na)
    k.e("s_waitcnt lgkmcnt(0)")
    k.e("s_barrier")
    for q in range(8):
        k.e("ds_read_b128 v[%d:%d], v5 offset:%d" % (ACC + 32 + 4 * q, ACC + 35 + 4 * q, 1024 * q))
    k.e("v_mov_b32 v24, %d" % 131072)
    k.e("ds_read_b32 v25, v24")
    k.e("s_waitcnt lgkmcnt(0)")
    for i in range(0, 32, 2):
        k.e(pk("v_pk_add_f32", ACC + i, ACC + i, ACC + 32 + i))
    k.e("v_readfirstlane_b32 s37, v25")
    k.e("s_nop 3")
    k.e("s_lshr_b32 s37, s37, s35")
    k.e("s_and_b32 s37, s37, 0xff")
    L_second = k.newlab("second")
    k.e("s_cmp_lg_u32 s37, 0")
    k.e("s_cbranch_scc1 %s" % L_second)
    for q in range(8):
        k.e("buffer_store_dwordx4 v[%d:%d], v%d, s[68:71], 0 offen offset:%d sc1" % (ACC + 4 * q, ACC + 4 * q + 3, 22 if q < 4 else 23, 1024 * (q & 3)))
    k.e("s_waitcnt vmcnt(0)")
    k.e("s_barrier")
    L_fin = k.newlab("fin")
    k.e("s_cmp_lg_u32 s25, 0")
    k.e("s_cbranch_scc1 %s" % L_fin)
    k.e("s_mov_b64 exec, 1")
    k.e("v_mov_b32 v21, s36")
    k.e("buffer_atomic_add v21, v20, s[64:67], 0 offen offset:128 sc1")
    k.e("s_mov_b64 exec, -1")
    k.e("s_branch %s" % L_fin)
    k.lab(L_second)
    L_wait = k.newlab("wait")
    L_go = k.newlab("go")
    k.e("s_cmp_lg_u32 s25, 0")
    k.e("s_cbranch_scc1 %s" % L_go)
    k.lab(L_wait)
    k.e("buffer_load_dword v25, v20, s[64:67], 0 offen offset:128 sc1")
    k.e("s_waitcnt vmcnt(0)")
    k.e("v_readfirstlane_b32 s37, v25")
    k.e("s_nop 3")
    k.e("s_and_b32 s37, s37, s36")
    k.e("s_cmp_lg_u32 s37, 0")
    k.e("s_cbranch_scc1 %s" % L_go)
    k.e("s_sleep 2")
    k.e("s_branch %s" % L_wait)
    k.lab(L_go)
    k.e("s_barrier")
    for q in range(8):
        k.e("buffer_load_dwordx4 v[%d:%d], v%d, s[68:71], 0 offen offset:%d sc1" % (ACC + 32 + 4 * q, ACC + 35 + 4 * q, 22 if q < 4 else 23, 1024 * (q & 3)))
    EX = 65536
    k.e("s_lshl_b32 s30, s29, 5")
    k.e("v_and_b32 v3, 31, v2")
    k.e("v_add_u32 v3, s30, v3")
    k.e("v_mul_u32_u24 v3, 272, v3")
    k.e("v_lshrrev_b32 v5, 5, v2")
    k.e("v_lshl_add_u32 v3, v5, 3, v3")
    k.e("s_lshl_b32 s30, s28, 7")
    k.e("s_add_u32 s30, s30, %d" % EX)
    k.e("v_add_u32 v3, s30, v3")
    k.e("v_lshrrev_b32 v4, 4, v2")
    k.e("s_lshl_b32 s30, s25, 4")
    k.e("v_add_u32 v4, s30, v4")
    k.e("v_and_b32 v5, 15, v2")
    k.e("v_mul_u32_u24 v6, 272, v4")
    k.e("v_lshl_add_u32 v6, v5, 4, v6")
    k.e("v_add_u32 v6, %d, v6" % EX)
    k.e("v_add_u32 v4, s24, v4")
    k.e("v_lshlrev_b32 v4, 11, v4")
    k.e("v_lshl_add_u32 v4, v5, 4, v4")
    k.e("s_lshl_b32 s30, s22, 8")
    k.e("v_add_u32 v4, s30, v4")
    T = 128
    R = 144
    for nl in range(2):
        k.e("s_waitcnt vmcnt(%d)" % (4 - 4 * nl))
        A = ACC + 16 * nl
        for i in range(0, 16, 2):
            k.e(pk("v_pk_add_f32", A + i, A + i, A + 32 + i))
        for i in range(8):
            k.e("v_cvt_pk_bf16_f32 v%d, v%d, v%d" % (48 + i, A + 2 * i, A + 2 * i + 1))
        for i in range(8):
            k.e("v_lshlrev_b32 v%d, 16, v%d" % (T + 2 * i, 48 + i))
            k.e("v_and_b32 v%d, v60, v%d" % (T + 2 * i + 1, 48 + i))
            k.e("v_lshlrev_b32 v%d, 16, v%d" % (R + 2 * i, 32 + 8 * nl + i))
            k.e("v_and_b32 v%d, v60, v%d" % (R + 2 * i + 1, 32 + 8 * nl + i))
        for i in range(8):
            k.e(pk("v_pk_add_f32", T + 2 * i, T + 2 * i, R + 2 * i))
        for i in range(8):
            k.e("v_cvt_pk_bf16_f32 v%d, v%d, v%d" % (48 + i, T + 2 * i, T + 2 * i + 1))
        for q in range(4):
            k.e("ds_write_b64 v3, v[%d:%d] offset:%d" % (48 + 2 * q, 49 + 2 * q, 64 * nl + 16 * q))
        if nl == 0:
            k.e("s_nop 1")
    k.e("s_waitcnt lgkmcnt(0)")
    k.e("s_barrier")
    for i in range(4):
        k.e("ds_read_b128 v[%d:%d], v6 offset:%d" % (32 + 4 * i, 35 + 4 * i, 1088 * i))
    k.e("s_mov_b32 s30, 0")
    for i in range(4):
        k.e("s_waitcnt lgkmcnt(%d)" % (3 - i))
        k.e("buffer_store_dwordx4 v[%d:%d], v4, s[16:19], s30 offen%s" % (32 + 4 * i, 35 + 4 * i, WT))
        k.e("s_add_u32 s30, s30, 8192")
    k.lab(L_fin)
    k.stamp_store(5)
    k.lab(L_end)
    k.e("s_endpgm")
    return k, 160, (256, 512, NS * SB)


def main():
    kernels = [gen_k0(), gen_k1() if os.environ.get('K1A') else gen_k1b(), gen_k15(), gen_proj("k2_wo_kernel", "wo"), gen_k3b() if os.environ.get("K3B") else gen_k3(),
               gen_down2() if os.environ.get("NEWK4") else gen_proj("k4_down_kernel", "down")]
    hdr = open(REF).read().split("\n")
    out = []
    for ln in hdr:
        if ln.startswith("; @launch"):
            break
        out.append(ln)
    for k, vg, (g, b, lds) in kernels:
        out.append("; @launch kernel=%s grid=(%d,1,1) block=(%d,1,1) lds=%d" % (k.name, g, b, lds))
    out.append('.amdgcn_target "amdgcn-amd-amdhsa--gfx950"')
    out.append(".text")
    descs = []
    for k, vg, _ in kernels:
        t, d = k.text(vg)
        out.append(t)
        descs.append(d)
    out.append('.section .rodata,"a"')
    for d in descs:
        out.append(".p2align 6")
        out.append(d)
    dst = os.environ.get("DST", "stamp.s" if STAMP else OUT)
    open(dst, "w").write("\n".join(out) + "\n")
    print("wrote", dst, sum(len(k.lines) for k, _, _ in kernels), "lines")


if __name__ == "__main__":
    main()
```

```python
import os, math, struct

NAME = "sequential_preLN__linear_attn_block__glu_gated_geglu__prompt"
OUT = "cdna_kernels/%s.s" % NAME
REF = OUT + ".ref"

MB = 1 << 20
WS_XN = 0 * MB
WS_PQ = 4 * MB
WS_KVP = 8 * MB
WS_ZP = 10 * MB
WS_CS = 11 * MB
WS_CS2 = 11 * MB + 512 * 1024
WS_ST = 12 * MB
WS_O = 16 * MB
WS_H = 20 * MB
WS_HH = 24 * MB
WS_FLAG = 13 * MB
WS_SIZE = 268435456

KA_X, KA_WQKV, KA_WO, KA_BX, KA_WG, KA_WU, KA_WD, KA_OUT, KA_DBG, KA_WS = [8 * i for i in range(10)]

STAMP = bool(os.environ.get("STAMP"))
WT = os.environ.get("WT", " sc1")
WS_STAMP = 128 * MB
f2u = lambda f: struct.unpack("<I", struct.pack("<f", f))[0]


class KB:
    def __init__(self, name):
        self.name = name
        self.lines = []
        self.nlab = 0
        self.nstamp = 0

    def stamp(self):
        if not STAMP:
            return
        i = self.nstamp
        self.nstamp += 1
        self.e("s_memtime s[%d:%d]" % (80 + 2 * i, 81 + 2 * i))
        if i == 0:
            self.e("s_memrealtime s[92:93]")
        self.e("s_waitcnt lgkmcnt(0)")

    def stamp_store(self, kidx):
        if not STAMP:
            return
        self.stamp()
        self.e("s_memrealtime s[94:95]")
        self.e("s_waitcnt lgkmcnt(0)")
        self.e("s_mov_b64 exec, -1")
        self.srd(76, 6, 1 << 20, WS_STAMP)
        self.e("s_lshl_b32 s98, s2, 8")
        self.e("s_lshl_b32 s97, s25, 5")
        self.e("s_add_u32 s98, s98, s97")
        self.e("s_add_u32 s98, s98, %d" % (kidx * 65536))
        self.e("v_mov_b32 v1, s98")
        for i in range(self.nstamp):
            self.e("v_mov_b32 v2, s%d" % (80 + 2 * i))
            self.e("buffer_store_dword v2, v1, s[76:79], 0 offen offset:%d" % (4 * i))
        for i, sr in enumerate((92, 94)):
            self.e("v_mov_b32 v2, s%d" % sr)
            self.e("buffer_store_dword v2, v1, s[76:79], 0 offen offset:%d" % (16 + 4 * i))

    def e(self, s):
        self.lines.append("    " + s)

    def lab(self, s):
        self.lines.append(s + ":")

    def newlab(self, s):
        self.nlab += 1
        return "L_%s_%s_%d" % (self.name, s, self.nlab)

    def srd(self, sd, sbase, nbytes, off=0):
        if off:
            self.e("s_add_u32 s%d, s%d, 0x%x" % (sd, sbase, off))
            self.e("s_addc_u32 s%d, s%d, 0" % (sd + 1, sbase + 1))
            self.e("s_and_b32 s%d, s%d, 0xffff" % (sd + 1, sd + 1))
        else:
            self.e("s_mov_b32 s%d, s%d" % (sd, sbase))
            self.e("s_and_b32 s%d, s%d, 0xffff" % (sd + 1, sbase + 1))
        self.e("s_mov_b32 s%d, 0x%x" % (sd + 2, nbytes))
        self.e("s_mov_b32 s%d, 0x00020000" % (sd + 3))

    def text(self, vgprs, sgprs=102):
        acc = (vgprs + 3) // 4 * 4
        out = [".globl %s" % self.name, ".p2align 8", ".type %s,@function" % self.name, "%s:" % self.name]
        out += self.lines
        return "\n".join(out), """.amdhsa_kernel %s
  .amdhsa_next_free_vgpr %d
  .amdhsa_next_free_sgpr %d
  .amdhsa_accum_offset %d
  .amdhsa_group_segment_fixed_size 0
  .amdhsa_kernarg_size 80
  .amdhsa_user_sgpr_count 2
  .amdhsa_user_sgpr_kernarg_segment_ptr 1
  .amdhsa_system_sgpr_workgroup_id_x 1
.end_amdhsa_kernel""" % (self.name, vgprs, sgprs, acc)


def wave_reduce_sum(k, v, stmp):
    k.e("s_nop 1")
    k.e("v_add_f32_dpp v%d, v%d, v%d quad_perm:[1,0,3,2] row_mask:0xf bank_mask:0xf" % (v, v, v))
    k.e("s_nop 1")
    k.e("v_add_f32_dpp v%d, v%d, v%d quad_perm:[2,3,0,1] row_mask:0xf bank_mask:0xf" % (v, v, v))
    k.e("s_nop 1")
    k.e("v_add_f32_dpp v%d, v%d, v%d row_half_mirror row_mask:0xf bank_mask:0xf" % (v, v, v))
    k.e("s_nop 1")
    k.e("v_add_f32_dpp v%d, v%d, v%d row_mirror row_mask:0xf bank_mask:0xf" % (v, v, v))
    k.e("s_nop 1")
    for i in range(4):
        k.e("v_readlane_b32 s%d, v%d, %d" % (stmp + i, v, 16 * i))
    k.e("s_nop 1")
    k.e("v_mov_b32 v%d, s%d" % (v, stmp))
    k.e("v_add_f32 v%d, s%d, v%d" % (v, stmp + 1, v))
    k.e("v_add_f32 v%d, s%d, v%d" % (v, stmp + 2, v))
    k.e("v_add_f32 v%d, s%d, v%d" % (v, stmp + 3, v))


def round_bf16(k, vd, vs):
    k.e("v_cvt_pk_bf16_f32 v%d, v%d, v%d" % (vd, vs, vs))
    k.e("v_lshlrev_b32 v%d, 16, v%d" % (vd, vd))


def pk(op, d, a, b, c=None):
    s = "%s v[%d:%d], v[%d:%d], v[%d:%d]" % (op, d, d + 1, a, a + 1, b, b + 1)
    if c is not None:
        s += ", v[%d:%d]" % (c, c + 1)
    return s


def wave_and_lane(k):
    k.e("v_lshrrev_b32 v1, 6, v0")
    k.e("v_and_b32 v2, 63, v0")
    k.e("s_nop 0")
    k.e("v_readfirstlane_b32 s25, v1")


def wfrag_lanepat(k, vd, vt, hh_stride):
    k.e("v_bfe_u32 v%d, v2, 2, 2" % vd)
    k.e("v_lshlrev_b32 v%d, 6, v%d" % (vd, vd))
    k.e("v_bfe_u32 v%d, v2, 4, 1" % vt)
    k.e("v_lshl_add_u32 v%d, v%d, 5, v%d" % (vd, vt, vd))
    k.e("v_and_b32 v%d, 3, v2" % vt)
    k.e("v_lshl_add_u32 v%d, v%d, 3, v%d" % (vd, vt, vd))
    k.e("v_lshrrev_b32 v%d, 5, v2" % vt)
    k.e("v_mul_u32_u24 v%d, %d, v%d" % (vt, hh_stride, vt))
    k.e("v_add_u32 v%d, v%d, v%d" % (vd, vd, vt))


def emit_colsum(k, L_end, sidx):
    k.e("s_cmp_ge_u32 s%d, 112" % sidx)
    k.e("s_cselect_b32 s28, s62, s60")
    k.e("s_cselect_b32 s29, s63, s61")
    k.e("s_cselect_b32 s30, 112, 0")
    k.e("s_cselect_b32 s38, %d, 0" % (3584 * 4))
    k.e("s_sub_u32 s31, s%d, s30" % sidx)
    k.e("s_mul_i32 s32, s31, 2341")
    k.e("s_lshr_b32 s32, s32, 16")
    k.e("s_mul_i32 s33, s32, 28")
    k.e("s_sub_u32 s33, s31, s33")
    k.srd(8, 28, 1024 * 3584 * 2)
    k.srd(12, 6, 4 * 2 * 3584 * 4, WS_CS)
    k.e("v_and_b32 v1, 15, v0")
    k.e("v_lshrrev_b32 v2, 4, v0")
    k.e("s_lshl_b32 s34, s33, 8")
    k.e("s_mul_i32 s35, s32, %d" % (256 * 7168))
    k.e("s_add_u32 s34, s34, s35")
    k.e("s_movk_i32 s35, 7168")
    k.e("v_mul_lo_u32 v3, v2, s35")
    k.e("v_lshl_add_u32 v3, v1, 4, v3")
    k.e("v_add_u32 v3, s34, v3")
    k.e("s_mov_b32 s34, 0")
    for it in range(16):
        k.e("buffer_load_dwordx4 v[%d:%d], v3, s[8:11], s34 offen" % (16 + 4 * it, 19 + 4 * it))
        if it != 15:
            k.e("s_add_u32 s34, s34, %d" % (16 * 7168))
    k.e("v_mov_b32 v4, 0xffff0000")
    for i in range(8):
        k.e("v_mov_b32 v%d, 0" % (8 + i))
    for it in range(16):
        k.e("s_waitcnt vmcnt(%d)" % (15 - it))
        for i in range(4):
            s_ = 16 + 4 * it + i
            k.e("v_lshlrev_b32 v5, 16, v%d" % s_)
            k.e("v_and_b32 v6, v4, v%d" % s_)
            k.e("v_add_f32 v%d, v%d, v5" % (8 + 2 * i, 8 + 2 * i))
            k.e("v_add_f32 v%d, v%d, v6" % (9 + 2 * i, 9 + 2 * i))
    k.e("v_lshlrev_b32 v5, 5, v0")
    k.e("ds_write_b128 v5, v[8:11]")
    k.e("ds_write_b128 v5, v[12:15] offset:16")
    k.e("s_waitcnt lgkmcnt(0)")
    k.e("s_barrier")
    k.e("v_cmp_gt_u32 vcc, 128, v0")
    k.e("s_and_saveexec_b64 s[36:37], vcc")
    k.e("s_cbranch_execz %s" % L_end)
    k.e("v_lshlrev_b32 v5, 2, v0")
    for rg in range(16):
        k.e("ds_read_b32 v%d, v5 offset:%d" % (16 + rg, rg * 512))
    k.e("s_waitcnt lgkmcnt(0)")
    for rg in range(1, 16):
        k.e("v_add_f32 v16, v16, v%d" % (16 + rg))
    k.e("s_mul_i32 s35, s32, %d" % (2 * 3584 * 4))
    k.e("s_add_u32 s35, s35, s38")
    k.e("s_lshl_b32 s36, s33, 9")
    k.e("s_add_u32 s35, s35, s36")
    k.e("v_add_u32 v5, s35, v5")
    k.e("buffer_store_dword v16, v5, s[12:15], 0 offen")
    k.e("s_branch %s" % L_end)


def gen_k0():
    k = KB("k0_ln_kernel")
    L_end = k.newlab("end")
    L_ln = k.newlab("ln")
    k.e("s_cmp_ge_u32 s2, 256")
    k.e("s_cbranch_scc1 %s" % L_end)
    k.e("s_load_dwordx4 s[4:7], s[0:1], %d" % KA_X)
    k.e("s_load_dwordx2 s[20:21], s[0:1], %d" % KA_WS)
    k.e("s_load_dwordx4 s[60:63], s[0:1], %d" % KA_WG)
    k.e("s_load_dwordx2 s[64:65], s[0:1], %d" % KA_WO)
    k.e("s_waitcnt lgkmcnt(0)")
    k.srd(8, 4, 2048 * 1024 * 2)
    k.srd(12, 20, 2048 * 1024 * 2, WS_XN)
    k.srd(24, 6, 1024 * 3072 * 2)
    k.srd(28, 64, 1024 * 1024 * 2)
    k.e("v_lshrrev_b32 v62, 6, v0")
    k.e("v_and_b32 v2, 63, v0")
    k.e("s_lshl_b32 s3, s2, 3")
    k.e("v_lshlrev_b32 v3, 1, v62")
    k.e("v_add_u32 v3, s3, v3")
    k.e("v_lshlrev_b32 v3, 11, v3")
    k.e("v_lshl_add_u32 v1, v2, 4, v3")
    for r in range(2):
        k.e("buffer_load_dwordx4 v[%d:%d], v1, s[8:11], 0 offen offset:%d" % (4 + 8 * r, 7 + 8 * r, 2048 * r))
        k.e("buffer_load_dwordx4 v[%d:%d], v1, s[8:11], 0 offen offset:%d" % (8 + 8 * r, 11 + 8 * r, 2048 * r + 1024))
    k.e("v_lshrrev_b32 v61, 1, v3")
    k.e("v_mul_u32_u24 v3, 3, v61")
    k.e("v_lshl_add_u32 v3, v2, 7, v3")
    k.e("buffer_load_dword v64, v3, s[24:27], 0 offen")
    k.e("v_lshl_add_u32 v3, v2, 5, v61")
    k.e("buffer_load_dword v65, v3, s[28:31], 0 offen")
    k.e("v_mov_b32 v60, 0xffff0000")
    k.e("v_and_b32 v63, 7, v2")
    for r in range(2):
        k.e("s_waitcnt vmcnt(%d)" % (4 - 2 * r))
        src = 4 + 8 * r
        f = 24
        for i in range(8):
            k.e("v_lshlrev_b32 v%d, 16, v%d" % (f + 2 * i, src + i))
            k.e("v_and_b32 v%d, v60, v%d" % (f + 2 * i + 1, src + i))
        k.e("v_add_f32 v40, v%d, v%d" % (f, f + 1))
        for i in range(2, 16):
            k.e("v_add_f32 v40, v40, v%d" % (f + i))
        wave_reduce_sum(k, 40, 16)
        k.e("v_mul_f32 v40, 0x3a800000, v40")
        k.e("v_mov_b32 v41, 0")
        for i in range(16):
            k.e("v_sub_f32 v42, v%d, v40" % (f + i))
            k.e("v_fmac_f32 v41, v42, v42")
        wave_reduce_sum(k, 41, 16)
        k.e("v_mul_f32 v41, 0x3a800000, v41")
        round_bf16(k, 40, 40)
        round_bf16(k, 41, 41)
        k.e("v_add_f32 v41, 0x3727c5ac, v41")
        round_bf16(k, 41, 41)
        k.e("v_sqrt_f32 v41, v41")
        k.e("s_nop 0")
        round_bf16(k, 41, 41)
        k.e("v_rcp_f32 v41, v41")
        k.e("s_nop 0")
        for i in range(8):
            k.e("v_sub_f32 v42, v%d, v40" % (f + 2 * i))
            k.e("v_sub_f32 v43, v%d, v40" % (f + 2 * i + 1))
            k.e("v_cvt_pk_bf16_f32 v42, v42, v43")
            k.e("v_and_b32 v43, v60, v42")
            k.e("v_lshlrev_b32 v42, 16, v42")
            k.e("v_mul_f32 v42, v42, v41")
            k.e("v_mul_f32 v43, v43, v41")
            k.e("v_cvt_pk_bf16_f32 v%d, v42, v43" % (44 + 8 * r + i))
        k.e("v_lshl_add_u32 v42, v62, 1, %d" % r)
        k.e("v_xor_b32 v42, v42, v63")
        k.e("v_lshlrev_b32 v42, 4, v42")
        k.e("v_lshl_add_u32 v42, v2, 7, v42")
        k.e("ds_write_b128 v42, v[%d:%d]" % (44 + 8 * r, 47 + 8 * r))
        k.e("ds_write_b128 v42, v[%d:%d] offset:8192" % (48 + 8 * r, 51 + 8 * r))
    k.e("s_waitcnt lgkmcnt(0)")
    k.e("s_barrier")
    k.e("v_and_b32 v4, 7, v0")
    k.e("v_lshrrev_b32 v5, 3, v0")
    k.e("v_and_b32 v6, 7, v5")
    k.e("v_xor_b32 v6, v6, v4")
    k.e("v_lshlrev_b32 v6, 4, v6")
    k.e("v_lshl_add_u32 v6, v5, 7, v6")
    for i in range(4):
        k.e("ds_read_b128 v[%d:%d], v6 offset:%d" % (8 + 4 * i, 11 + 4 * i, 4096 * i))
    k.e("s_lshr_b32 s16, s2, 2")
    k.e("s_lshl_b32 s16, s16, 16")
    k.e("s_and_b32 s17, s2, 3")
    k.e("s_lshl_b32 s17, s17, 7")
    k.e("s_add_u32 s16, s16, s17")
    k.e("v_lshlrev_b32 v7, 9, v5")
    k.e("v_lshl_add_u32 v7, v4, 4, v7")
    k.e("v_add_u32 v7, s16, v7")
    k.e("s_mov_b32 s17, 0")
    for i in range(4):
        k.e("s_waitcnt lgkmcnt(%d)" % (3 - i))
        k.e("buffer_store_dwordx4 v[%d:%d], v7, s[12:15], s17 offen%s" % (8 + 4 * i, 11 + 4 * i, WT))
        k.e("s_add_u32 s17, s17, 16384")
    k.lab(L_end)
    k.e("s_endpgm")
    return k, 80, (256, 256, 16384)


class Spec:
    pass


def gemm_dma_issue(k, sp, i):
    srd, voff, soff, sl = sp.dma[i]
    if i in getattr(sp, "dma_abs", {}):
        k.e("s_and_b32 s95, s%d, s%d" % (sp.s_wr, sp.dma_abs[i]))
        k.e("s_add_u32 m0, s95, s%d" % sl)
    else:
        k.e("s_add_u32 m0, s%d, s%d" % (sp.s_wr, sl))
    k.e("s_nop 0")
    k.e("buffer_load_dwordx4 v%d, s[%d:%d], s%d offen lds" % (voff, srd, srd + 3, soff))


def gemm_dma_advance(k, sp):
    for s, inc in sp.sadv:
        if isinstance(inc, str):
            k.e("s_add_u32 s%d, s%d, %s" % (s, s, inc))
        else:
            k.e("s_add_u32 s%d, s%d, 0x%x" % (s, s, inc))
    k.e("s_add_u32 s%d, s%d, %d" % (sp.s_wr, sp.s_wr, sp.stage_bytes))
    k.e("s_cmp_ge_u32 s%d, %d" % (sp.s_wr, sp.stage_bytes * sp.NS))
    k.e("s_cselect_b32 s%d, 0, s%d" % (sp.s_wr, sp.s_wr))


def gemm_prologue(k, sp):
    k.stamp()
    k.e("s_mov_b32 s%d, 0" % sp.s_wr)
    k.e("s_mov_b32 s%d, 0" % sp.s_rd)
    for s in range(sp.NS - 1):
        for i in range(len(sp.dma)):
            gemm_dma_issue(k, sp, i)
        gemm_dma_advance(k, sp)


def gemm_main(k, sp):
    NS, nst, SB = sp.NS, sp.nst, sp.stage_bytes
    nd = len(sp.dma)
    nsteps = len(sp.steps)

    def addr_next():
        k.e("s_add_u32 s%d, s%d, %d" % (sp.s_rd, sp.s_rd, SB))
        k.e("s_cmp_ge_u32 s%d, %d" % (sp.s_rd, SB * NS))
        k.e("s_cselect_b32 s%d, 0, s%d" % (sp.s_rd, sp.s_rd))
        k.e("s_cselect_b32 s96, s97, %d" % SB)
        for vc in sp.addr:
            k.e("v_add_u32 v%d, s96, v%d" % (vc, vc))

    def read_instr(rd, base):
        op, reg, addr, imm = rd
        n = 4 if op == "ds_read_b128" else 2
        if os.environ.get("NOLDS"):
            return
        if os.environ.get("HALFLDS") and k.name.startswith("k3") and op != "ds_read_b128" and ((reg - 4) // 4) % 2 == 1:
            k.e("s_nop 0")
            return
        k.e("%s v[%d:%d], v%d offset:%d" % (op, base + reg, base + reg + n - 1, addr, imm))

    k.e("s_mov_b32 s97, %d" % (-(NS - 1) * SB))
    if os.environ.get("PRIO"):
        Lp = k.newlab("prio")
        k.e("s_cmp_lt_u32 s25, 4")
        k.e("s_cbranch_scc1 %s" % Lp)
        k.e("s_setprio 1")
        k.lab(Lp)
    early = getattr(sp, "early", True)
    if early:
        k.e("s_waitcnt vmcnt(%d)" % ((NS - 2) * nd))
        k.e("s_barrier")
        k.stamp()
        for rd in sp.steps[0]["reads"]:
            read_instr(rd, sp.fset[0])
    else:
        k.stamp()
    gstep = [0]

    def stage(do_dma, last, vm):
        k.e("s_waitcnt vmcnt(%d)" % vm)
        k.e("s_barrier")
        dma_todo = list(range(nd)) if do_dma else []
        if not early:
            for rd in sp.steps[0]["reads"]:
                read_instr(rd, sp.fset[gstep[0] & 1])
            while dma_todo:
                gemm_dma_issue(k, sp, dma_todo.pop(0))
            if do_dma:
                gemm_dma_advance(k, sp)
        for j, st in enumerate(sp.steps):
            cur = sp.fset[gstep[0] & 1]
            nxt = sp.fset[(gstep[0] + 1) & 1]
            lastj = (j == nsteps - 1)
            nreads = [] if (lastj and (last or not early)) else sp.steps[(j + 1) % nsteps]["reads"]
            R = len(st["reads"])
            M = len(st["mfma"])
            issued = 0
            waited = -1
            if lastj and not last and early:
                addr_next()
            for i, (acc, a, b, dep) in enumerate(st["mfma"]):
                if dep > waited:
                    n = (R - 1 - dep) + issued
                    k.e("s_waitcnt lgkmcnt(%d)" % min(n, 15))
                    waited = dep
                if not os.environ.get("NOMFMA"):
                    k.e("v_mfma_f32_32x32x16_bf16 v[%d:%d], v[%d:%d], v[%d:%d], v[%d:%d]" % (
                        acc, acc + 15, cur + a, cur + a + 3, cur + b, cur + b + 3, acc, acc + 15))
                tgt = (len(nreads) * (i + 1) + M - 1) // M
                while issued < tgt:
                    read_instr(nreads[issued], nxt)
                    issued += 1
                if dma_todo:
                    per = (nd + M * nsteps - 1) // (M * nsteps)
                    for _ in range(max(per, 1)):
                        if dma_todo:
                            gemm_dma_issue(k, sp, dma_todo.pop(0))
                    if not dma_todo:
                        gemm_dma_advance(k, sp)
            gstep[0] += 1
        assert not dma_todo
        if not early and not last:
            addr_next()

    U = 1 if nsteps % 2 == 0 else 2
    nmain = nst - (NS - 1)
    nloop = (nmain // U) * U
    L = k.newlab("loop")
    if nloop > 0:
        k.e("s_mov_b32 s%d, %d" % (sp.s_cnt, nloop // U))
        k.lab(L)
        for u in range(U):
            stage(True, False, (NS - (3 if early else 2)) * nd)
        k.e("s_sub_u32 s%d, s%d, 1" % (sp.s_cnt, sp.s_cnt))
        k.e("s_cmp_lg_u32 s%d, 0" % sp.s_cnt)
        k.e("s_cbranch_scc1 %s" % L)
    textra = 0
    for s in range(nloop, nst):
        do_dma = (s + NS - 1) < nst
        issued_upto = min(s + NS - 2, nst - 1)
        need = min(s + 1, nst - 1) if early else s
        vm = (issued_upto - need) * nd + textra
        stage(do_dma, s == nst - 1, min(vm, 63))
        if (not do_dma) and getattr(sp, "tail_hook", None) and textra == 0:
            textra = sp.tail_hook()
    k.stamp()


def phi16(k, A, T, dst, vmask, vc):
    for i in range(8):
        k.e("v_cvt_pk_bf16_f32 v%d, v%d, v%d" % (T + i, A + 2 * i, A + 2 * i + 1))
    for i in range(8):
        k.e("v_lshlrev_b32 v%d, 16, v%d" % (A + 2 * i, T + i))
        k.e("v_and_b32 v%d, v%d, v%d" % (A + 2 * i + 1, vmask, T + i))
    for i in range(8):
        k.e(pk("v_pk_mul_f32", T + 2 * i, A + 2 * i, vc))
    for i in range(16):
        k.e("v_min_f32 v%d, 0, v%d" % (T + i, T + i))
    for i in range(16):
        k.e("v_exp_f32 v%d, v%d" % (T + i, T + i))
    for i in range(16):
        k.e("v_max_f32 v%d, 0, v%d" % (A + i, A + i))
    for i in range(8):
        k.e(pk("v_pk_add_f32", T + 2 * i, T + 2 * i, vc + 2))
    for i in range(8):
        k.e(pk("v_pk_add_f32", A + 2 * i, A + 2 * i, T + 2 * i))
    for i in range(8):
        k.e("v_cvt_pk_bf16_f32 v%d, v%d, v%d" % (dst + i, A + 2 * i, A + 2 * i + 1))


def gen_k1():
    k = KB("k1_qkv_kernel")
    L_end = k.newlab("end")
    BK, NS = 64, 4
    XB = 16384
    WB = (BK // 4) * 6 * 256
    SB = XB + WB
    k.e("s_cmp_ge_u32 s2, 256")
    k.e("s_cbranch_scc1 %s" % L_end)
    k.e("s_load_dwordx2 s[4:5], s[0:1], %d" % KA_WQKV)
    k.e("s_load_dwordx2 s[6:7], s[0:1], %d" % KA_WS)
    k.e("s_and_b32 s20, s2, 7")
    k.e("s_lshr_b32 s21, s2, 3")
    k.e("s_and_b32 s22, s20, 3")
    k.e("s_lshl_b32 s22, s22, 2")
    k.e("s_and_b32 s23, s21, 3")
    k.e("s_add_u32 s22, s22, s23")
    k.e("s_lshr_b32 s23, s20, 2")
    k.e("s_lshl_b32 s23, s23, 3")
    k.e("s_lshr_b32 s24, s21, 2")
    k.e("s_add_u32 s23, s23, s24")
    wave_and_lane(k)
    k.e("s_lshr_b32 s26, s25, 2")
    k.e("s_bfe_u32 s27, s25, 0x10001")
    k.e("s_and_b32 s28, s25, 1")
    dma = []
    k.e("v_lshlrev_b32 v9, 4, v2")
    k.e("s_lshl_b32 s30, s23, 2")
    k.e("s_lshr_b32 s31, s25, 1")
    k.e("s_add_u32 s30, s30, s31")
    k.e("s_lshl_b32 s30, s30, 6")
    k.e("s_lshl_b32 s31, s28, 1")
    k.e("s_add_u32 s30, s30, s31")
    k.e("s_lshl_b32 s30, s30, 10")
    k.e("v_add_u32 v10, s30, v9")
    k.e("v_add_u32 v11, 1024, v10")
    for i in range(2):
        k.e("s_lshl_b32 s%d, s25, 11" % (40 + i))
        k.e("s_add_u32 s%d, s%d, %d" % (40 + i, 40 + i, 1024 * i))
        dma.append((8, 10 + i, 50, 40 + i))
    for i in range(3):
        k.e("s_mul_i32 s30, s25, 12")
        k.e("s_add_u32 s30, s30, %d" % (4 * i))
        k.e("v_lshrrev_b32 v3, 4, v2")
        k.e("v_add_u32 v3, s30, v3")
        k.e("v_mul_u32_u24 v4, 43, v3")
        k.e("v_lshrrev_b32 v4, 8, v4")
        k.e("v_mul_u32_u24 v5, 6, v4")
        k.e("v_sub_u32 v5, v3, v5")
        k.e("v_bfe_u32 v6, v2, 2, 2")
        k.e("v_lshl_add_u32 v6, v4, 2, v6")
        k.e("v_mul_u32_u24 v6, 6144, v6")
        k.e("v_lshrrev_b32 v7, 1, v5")
        k.e("v_lshl_add_u32 v6, v7, 11, v6")
        k.e("v_and_b32 v7, 1, v5")
        k.e("v_lshl_add_u32 v6, v7, 6, v6")
        k.e("v_and_b32 v7, 3, v2")
        k.e("v_lshl_add_u32 v6, v7, 4, v6")
        k.e("s_lshl_b32 s31, s22, 7")
        k.e("v_add_u32 v%d, s31, v6" % (12 + i))
        k.e("s_mul_i32 s%d, s25, 3072" % (42 + i))
        k.e("s_add_u32 s%d, s%d, %d" % (42 + i, 42 + i, XB + 1024 * i))
        dma.append((12, 12 + i, 51, 42 + i))
    k.e("s_mov_b32 s50, 0")
    k.e("s_mov_b32 s51, 0")
    k.e("s_waitcnt lgkmcnt(0)")
    k.srd(8, 6, 2048 * 1024 * 2, WS_XN)
    k.srd(12, 4, 1024 * 3072 * 2)
    sp = Spec()
    sp.NS, sp.nst, sp.stage_bytes = NS, 1024 // BK, SB
    sp.dma = dma
    sp.sadv = [(50, 4096), (51, BK * 6144)]
    sp.s_wr, sp.s_rd, sp.s_cnt = 52, 53, 54
    gemm_prologue(k, sp)
    for tl in range(2):
        k.e("s_xor_b32 s30, s26, %d" % tl)
        k.e("s_lshl_b32 s31, s27, 1")
        k.e("s_add_u32 s30, s30, s31")
        k.e("s_lshl_b32 s30, s30, 2")
        k.e("s_lshl_b32 s31, s26, 1")
        k.e("s_add_u32 s30, s30, s31")
        k.e("s_lshl_b32 s30, s30, 10")
        k.e("v_add_u32 v%d, s30, v9" % (16 + tl))
    wfrag_lanepat(k, 3, 4, 2 * 6 * 256)
    k.e("s_mul_i32 s30, s26, %d" % (8 * 6 * 256))
    k.e("s_lshl_b32 s31, s28, 8")
    k.e("s_add_u32 s30, s30, s31")
    k.e("s_add_u32 s30, s30, %d" % XB)
    k.e("v_add_u32 v18, s30, v3")
    ACC = 32
    for i in range(96):
        k.e("v_mov_b32 v%d, 0" % (ACC + i))
    F0, F1 = 128, 148
    steps = []
    for jj in range(2):
        reads = [("ds_read_b128", 0, 16, 1024 * jj)]
        for p in range(3):
            for i in range(2):
                reads.append(("ds_read_b64_tr_b16", 8 + 4 * p + 2 * i, 18, ((4 * jj + i) * 6 + 2 * p) * 256))
            if p == 0:
                reads.append(("ds_read_b128", 4, 17, 1024 * jj))
        mf = [(ACC + 0 * 16, 8, 0, 2), (ACC + 3 * 16, 8, 4, 3), (ACC + 1 * 16, 0, 12, 5),
              (ACC + 4 * 16, 4, 12, 5), (ACC + 2 * 16, 0, 16, 7), (ACC + 5 * 16, 4, 16, 7)]
        steps.append(dict(reads=reads, mfma=mf))
    sp.addr = [16, 17, 18]
    sp.steps = steps
    sp.fset = [F0, F1]
    gemm_main(k, sp)
    k.e("s_mul_i32 s30, s25, 12288")
    k.e("v_add_u32 v4, s30, v9")
    k.e("s_xor_b32 s31, s25, 4")
    k.e("s_mul_i32 s31, s31, 12288")
    k.e("v_add_u32 v5, s31, v9")
    k.e("v_mov_b32 v20, 0x3fb8aa3b")
    k.e("v_mov_b32 v21, 0x3fb8aa3b")
    k.e("v_mov_b32 v22, 0x358637bd")
    k.e("v_mov_b32 v23, 0x358637bd")
    k.e("v_mov_b32 v24, 0xffff0000")
    k.srd(16, 6, 2048 * 1024 * 2, WS_PQ)
    k.srd(60, 6, 16 * 32 * 4096, WS_KVP)
    k.srd(56, 6, 16 * 32 * 128, WS_ZP)
    k.e("s_barrier")
    for q in range(12):
        k.e("ds_write_b128 v4, v[%d:%d] offset:%d" % (ACC + 48 + 4 * q, ACC + 51 + 4 * q, 1024 * q))
    k.e("s_waitcnt lgkmcnt(0)")
    k.e("s_barrier")
    for q in range(12):
        k.e("ds_read_b128 v[%d:%d], v5 offset:%d" % (ACC + 48 + 4 * q, ACC + 51 + 4 * q, 1024 * q))
    PQ, PK, PV = 128, 136, 144
    T = 152
    for grp in (1, 2, 0):
        k.e("s_waitcnt lgkmcnt(%d)" % {1: 4, 2: 0, 0: 0}[grp])
        for q in range(4 * grp, 4 * grp + 4):
            for i in range(0, 4, 2):
                k.e(pk("v_pk_add_f32", ACC + 4 * q + i, ACC + 4 * q + i, ACC + 48 + 4 * q + i))
        if grp == 1:
            phi16(k, ACC + 16, T, PK, 24, 20)
        elif grp == 2:
            for i in range(8):
                k.e("v_cvt_pk_bf16_f32 v%d, v%d, v%d" % (PV + i, ACC + 32 + 2 * i, ACC + 33 + 2 * i))
            KV = ACC + 64
            k.e("s_nop 1")
            k.e("v_mfma_f32_32x32x16_bf16 v[%d:%d], v[%d:%d], v[%d:%d], 0" % (KV, KV + 15, PK, PK + 3, PV, PV + 3))
            k.e("v_mfma_f32_32x32x16_bf16 v[%d:%d], v[%d:%d], v[%d:%d], v[%d:%d]" % (KV, KV + 15, PK + 4, PK + 7, PV + 4, PV + 7, KV, KV + 15))
            for i in range(8):
                k.e("v_lshlrev_b32 v%d, 16, v%d" % (T + 2 * i, PK + i))
                k.e("v_and_b32 v%d, v24, v%d" % (T + 2 * i + 1, PK + i))
            for st_ in (8, 4, 2):
                for i in range(0, st_, 2):
                    k.e(pk("v_pk_add_f32", T + i, T + i, T + st_ + i))
            k.e("v_add_f32 v25, v%d, v%d" % (T, T + 1))
        else:
            phi16(k, ACC, T, PQ, 24, 20)
    k.e("s_lshl_b32 s30, s23, 2")
    k.e("s_lshl_b32 s31, s27, 1")
    k.e("s_add_u32 s30, s30, s31")
    k.e("s_add_u32 s30, s30, s26")
    k.e("s_lshl_b32 s30, s30, 6")
    k.e("s_lshl_b32 s31, s22, 1")
    k.e("s_add_u32 s31, s31, s28")
    k.e("s_lshl_b32 s32, s31, 1")
    k.e("s_add_u32 s30, s30, s32")
    k.e("s_lshl_b32 s30, s30, 10")
    k.e("v_add_u32 v3, s30, v9")
    k.e("buffer_store_dwordx4 v[%d:%d], v3, s[16:19], 0 offen%s" % (PQ, PQ + 3, WT))
    k.e("buffer_store_dwordx4 v[%d:%d], v3, s[16:19], 0 offen offset:1024%s" % (PQ + 4, PQ + 7, WT))
    KVL = 98304
    ZL = KVL + 32768
    k.e("s_lshl_b32 s30, s25, 12")
    k.e("s_add_u32 s30, s30, %d" % KVL)
    k.e("v_add_u32 v4, s30, v9")
    k.e("s_lshl_b32 s30, s25, 8")
    k.e("s_add_u32 s30, s30, %d" % ZL)
    k.e("v_lshlrev_b32 v5, 2, v2")
    k.e("v_add_u32 v5, s30, v5")
    k.e("ds_write_b32 v5, v25")
    for q in range(4):
        k.e("ds_write_b128 v4, v[%d:%d] offset:%d" % (KV + 4 * q, KV + 4 * q + 3, 1024 * q))
    k.e("s_lshr_b32 s30, s25, 1")
    k.e("s_lshl_b32 s31, s30, 10")
    k.e("s_lshl_b32 s32, s28, 12")
    k.e("s_add_u32 s31, s31, s32")
    k.e("s_add_u32 s31, s31, %d" % KVL)
    k.e("v_add_u32 v4, s31, v9")
    k.e("s_lshl_b32 s32, s28, 8")
    k.e("s_add_u32 s32, s32, %d" % ZL)
    k.e("v_and_b32 v6, 31, v2")
    k.e("v_lshlrev_b32 v6, 2, v6")
    k.e("v_add_u32 v6, s32, v6")
    k.e("s_waitcnt lgkmcnt(0)")
    k.e("s_barrier")
    for j in range(4):
        k.e("ds_read_b128 v[%d:%d], v4 offset:%d" % (ACC + 4 * j, ACC + 4 * j + 3, 8192 * j))
    for j in range(4):
        k.e("ds_read_b32 v%d, v6 offset:%d" % (ACC + 16 + 2 * j, 512 * j))
        k.e("ds_read_b32 v%d, v6 offset:%d" % (ACC + 17 + 2 * j, 512 * j + 128))
    k.e("s_lshl_b32 s33, s23, 5")
    k.e("s_lshl_b32 s34, s22, 1")
    k.e("s_add_u32 s33, s33, s34")
    k.e("s_add_u32 s33, s33, s28")
    k.e("s_lshl_b32 s34, s33, 12")
    k.e("s_lshl_b32 s35, s30, 10")
    k.e("s_add_u32 s34, s34, s35")
    k.e("v_add_u32 v4, s34, v9")
    k.e("s_waitcnt lgkmcnt(8)")
    for i in range(0, 4, 2):
        k.e(pk("v_pk_add_f32", ACC + i, ACC + i, ACC + 4 + i))
        k.e(pk("v_pk_add_f32", ACC + 8 + i, ACC + 8 + i, ACC + 12 + i))
        k.e(pk("v_pk_add_f32", ACC + i, ACC + i, ACC + 8 + i))
    k.e("buffer_store_dwordx4 v[%d:%d], v4, s[60:63], 0 offen%s" % (ACC, ACC + 3, WT))
    L_fin = k.newlab("fin")
    k.e("s_cmp_lg_u32 s30, 0")
    k.e("s_cbranch_scc1 %s" % L_fin)
    k.e("s_waitcnt lgkmcnt(0)")
    for i in range(1, 8):
        k.e("v_add_f32 v%d, v%d, v%d" % (ACC + 16, ACC + 16, ACC + 16 + i))
    k.e("v_cmp_gt_u32 vcc, 32, v2")
    k.e("s_and_saveexec_b64 s[36:37], vcc")
    k.e("s_lshl_b32 s34, s33, 7")
    k.e("v_lshlrev_b32 v6, 2, v2")
    k.e("v_add_u32 v6, s34, v6")
    k.e("buffer_store_dword v%d, v6, s[56:59], 0 offen%s" % (ACC + 16, WT))
    k.lab(L_fin)
    k.stamp_store(1)
    k.lab(L_end)
    k.e("s_endpgm")
    return k, 168, (256, 512, NS * SB)


def gen_k1b():
    k = KB("k1_qkv_kernel")
    L_end = k.newlab("end")
    BK, NS = 64, 4
    XB = 16384
    WB = (BK // 4) * 6 * 256
    SB = XB + WB
    k.e("s_cmp_ge_u32 s2, 256")
    k.e("s_cbranch_scc1 %s" % L_end)
    k.e("s_load_dwordx2 s[4:5], s[0:1], %d" % KA_WQKV)
    k.e("s_load_dwordx2 s[6:7], s[0:1], %d" % KA_WS)
    k.e("s_and_b32 s20, s2, 7")
    k.e("s_lshr_b32 s21, s2, 3")
    k.e("s_and_b32 s22, s20, 3")
    k.e("s_lshl_b32 s22, s22, 2")
    k.e("s_and_b32 s23, s21, 3")
    k.e("s_add_u32 s22, s22, s23")
    k.e("s_lshr_b32 s23, s20, 2")
    k.e("s_lshl_b32 s23, s23, 3")
    k.e("s_lshr_b32 s24, s21, 2")
    k.e("s_add_u32 s23, s23, s24")
    wave_and_lane(k)
    k.e("s_lshr_b32 s27, s25, 1")
    k.e("s_and_b32 s28, s25, 1")
    dma = []
    k.e("v_lshlrev_b32 v9, 4, v2")
    k.e("s_lshl_b32 s30, s23, 2")
    k.e("s_lshr_b32 s31, s25, 1")
    k.e("s_add_u32 s30, s30, s31")
    k.e("s_lshl_b32 s30, s30, 6")
    k.e("s_lshl_b32 s31, s28, 1")
    k.e("s_add_u32 s30, s30, s31")
    k.e("s_lshl_b32 s30, s30, 10")
    k.e("v_add_u32 v10, s30, v9")
    k.e("v_add_u32 v11, 1024, v10")
    for i in range(2):
        k.e("s_lshl_b32 s%d, s25, 11" % (40 + i))
        k.e("s_add_u32 s%d, s%d, %d" % (40 + i, 40 + i, 1024 * i))
        dma.append((8, 10 + i, 50, 40 + i))
    for i in range(3):
        k.e("s_mul_i32 s30, s25, 12")
        k.e("s_add_u32 s30, s30, %d" % (4 * i))
        k.e("v_lshrrev_b32 v3, 4, v2")
        k.e("v_add_u32 v3, s30, v3")
        k.e("v_mul_u32_u24 v4, 43, v3")
        k.e("v_lshrrev_b32 v4, 8, v4")
        k.e("v_mul_u32_u24 v5, 6, v4")
        k.e("v_sub_u32 v5, v3, v5")
        k.e("v_bfe_u32 v6, v2, 2, 2")
        k.e("v_lshl_add_u32 v6, v4, 2, v6")
        k.e("v_mul_u32_u24 v6, 6144, v6")
        k.e("v_lshrrev_b32 v7, 1, v5")
        k.e("v_lshl_add_u32 v6, v7, 11, v6")
        k.e("v_and_b32 v7, 1, v5")
        k.e("v_lshl_add_u32 v6, v7, 6, v6")
        k.e("v_and_b32 v7, 3, v2")
        k.e("v_lshl_add_u32 v6, v7, 4, v6")
        k.e("s_lshl_b32 s31, s22, 7")
        k.e("v_add_u32 v%d, s31, v6" % (12 + i))
        k.e("s_mul_i32 s%d, s25, 3072" % (42 + i))
        k.e("s_add_u32 s%d, s%d, %d" % (42 + i, 42 + i, XB + 1024 * i))
        dma.append((12, 12 + i, 51, 42 + i))
    k.e("s_mov_b32 s50, 0")
    k.e("s_mov_b32 s51, 0")
    k.e("s_waitcnt lgkmcnt(0)")
    k.srd(8, 6, 2048 * 1024 * 2, WS_XN)
    k.srd(12, 4, 1024 * 3072 * 2)
    sp = Spec()
    sp.NS, sp.nst, sp.stage_bytes = NS, 1024 // BK, SB
    sp.dma = dma
    sp.sadv = [(50, 4096), (51, BK * 6144)]
    sp.s_wr, sp.s_rd, sp.s_cnt = 52, 53, 54
    gemm_prologue(k, sp)
    k.e("s_lshl_b32 s30, s27, 12")
    k.e("v_add_u32 v16, s30, v9")
    wfrag_lanepat(k, 3, 4, 2 * 6 * 256)
    k.e("s_lshl_b32 s31, s28, 8")
    k.e("s_add_u32 s30, s31, %d" % XB)
    k.e("v_add_u32 v18, s30, v3")
    ACC = 32
    for i in range(48):
        k.e("v_mov_b32 v%d, 0" % (ACC + i))
    F0, F1 = 128, 148
    steps = []
    for jj in range(4):
        reads = [("ds_read_b128", 0, 16, 1024 * jj)]
        for p in range(3):
            for i in range(2):
                reads.append(("ds_read_b64_tr_b16", 8 + 4 * p + 2 * i, 18, ((4 * jj + i) * 6 + 2 * p) * 256))
        mf = [(ACC + 0 * 16, 8, 0, 2), (ACC + 1 * 16, 0, 12, 4), (ACC + 2 * 16, 0, 16, 6)]
        steps.append(dict(reads=reads, mfma=mf))
    sp.addr = [16, 18]
    sp.steps = steps
    sp.fset = [F0, F1]
    gemm_main(k, sp)
    k.e("v_mov_b32 v20, 0x3fb8aa3b")
    k.e("v_mov_b32 v21, 0x3fb8aa3b")
    k.e("v_mov_b32 v22, 0x358637bd")
    k.e("v_mov_b32 v23, 0x358637bd")
    k.e("v_mov_b32 v24, 0xffff0000")
    k.srd(16, 6, 2048 * 1024 * 2, WS_PQ)
    k.srd(60, 6, 16 * 32 * 4096, WS_KVP)
    k.srd(56, 6, 16 * 32 * 128, WS_ZP)
    k.e("s_nop 7")
    PQ, PK, PV = 128, 136, 144
    T = 152
    for grp in (1, 2, 0):
        if grp == 1:
            phi16(k, ACC + 16, T, PK, 24, 20)
        elif grp == 2:
            for i in range(8):
                k.e("v_cvt_pk_bf16_f32 v%d, v%d, v%d" % (PV + i, ACC + 32 + 2 * i, ACC + 33 + 2 * i))
            KV = ACC + 64
            k.e("s_nop 1")
            k.e("v_mfma_f32_32x32x16_bf16 v[%d:%d], v[%d:%d], v[%d:%d], 0" % (KV, KV + 15, PK, PK + 3, PV, PV + 3))
            k.e("v_mfma_f32_32x32x16_bf16 v[%d:%d], v[%d:%d], v[%d:%d], v[%d:%d]" % (KV, KV + 15, PK + 4, PK + 7, PV + 4, PV + 7, KV, KV + 15))
            for i in range(8):
                k.e("v_lshlrev_b32 v%d, 16, v%d" % (T + 2 * i, PK + i))
                k.e("v_and_b32 v%d, v24, v%d" % (T + 2 * i + 1, PK + i))
            for st_ in (8, 4, 2):
                for i in range(0, st_, 2):
                    k.e(pk("v_pk_add_f32", T + i, T + i, T + st_ + i))
            k.e("v_add_f32 v25, v%d, v%d" % (T, T + 1))
        else:
            phi16(k, ACC, T, PQ, 24, 20)
    k.e("s_lshl_b32 s30, s23, 2")
    k.e("s_add_u32 s30, s30, s27")
    k.e("s_lshl_b32 s30, s30, 6")
    k.e("s_lshl_b32 s31, s22, 1")
    k.e("s_add_u32 s31, s31, s28")
    k.e("s_lshl_b32 s32, s31, 1")
    k.e("s_add_u32 s30, s30, s32")
    k.e("s_lshl_b32 s30, s30, 10")
    k.e("v_add_u32 v3, s30, v9")
    k.e("buffer_store_dwordx4 v[%d:%d], v3, s[16:19], 0 offen%s" % (PQ, PQ + 3, WT))
    k.e("buffer_store_dwordx4 v[%d:%d], v3, s[16:19], 0 offen offset:1024%s" % (PQ + 4, PQ + 7, WT))
    KVL = 98304
    ZL = KVL + 32768
    k.e("s_lshl_b32 s30, s25, 12")
    k.e("s_add_u32 s30, s30, %d" % KVL)
    k.e("v_add_u32 v4, s30, v9")
    k.e("s_lshl_b32 s30, s25, 8")
    k.e("s_add_u32 s30, s30, %d" % ZL)
    k.e("v_lshlrev_b32 v5, 2, v2")
    k.e("v_add_u32 v5, s30, v5")
    k.e("s_barrier")
    k.e("ds_write_b32 v5, v25")
    for q in range(4):
        k.e("ds_write_b128 v4, v[%d:%d] offset:%d" % (KV + 4 * q, KV + 4 * q + 3, 1024 * q))
    k.e("s_lshr_b32 s30, s25, 1")
    k.e("s_lshl_b32 s31, s30, 10")
    k.e("s_lshl_b32 s32, s28, 12")
    k.e("s_add_u32 s31, s31, s32")
    k.e("s_add_u32 s31, s31, %d" % KVL)
    k.e("v_add_u32 v4, s31, v9")
    k.e("s_lshl_b32 s32, s28, 8")
    k.e("s_add_u32 s32, s32, %d" % ZL)
    k.e("v_and_b32 v6, 31, v2")
    k.e("v_lshlrev_b32 v6, 2, v6")
    k.e("v_add_u32 v6, s32, v6")
    k.e("s_waitcnt lgkmcnt(0)")
    k.e("s_barrier")
    for j in range(4):
        k.e("ds_read_b128 v[%d:%d], v4 offset:%d" % (ACC + 4 * j, ACC + 4 * j + 3, 8192 * j))
    for j in range(4):
        k.e("ds_read_b32 v%d, v6 offset:%d" % (ACC + 16 + 2 * j, 512 * j))
        k.e("ds_read_b32 v%d, v6 offset:%d" % (ACC + 17 + 2 * j, 512 * j + 128))
    k.e("s_lshl_b32 s33, s23, 5")
    k.e("s_lshl_b32 s34, s22, 1")
    k.e("s_add_u32 s33, s33, s34")
    k.e("s_add_u32 s33, s33, s28")
    k.e("s_lshl_b32 s34, s33, 12")
    k.e("s_lshl_b32 s35, s30, 10")
    k.e("s_add_u32 s34, s34, s35")
    k.e("v_add_u32 v4, s34, v9")
    k.e("s_waitcnt lgkmcnt(8)")
    for i in range(0, 4, 2):
        k.e(pk("v_pk_add_f32", ACC + i, ACC + i, ACC + 4 + i))
        k.e(pk("v_pk_add_f32", ACC + 8 + i, ACC + 8 + i, ACC + 12 + i))
        k.e(pk("v_pk_add_f32", ACC + i, ACC + i, ACC + 8 + i))
    k.e("buffer_store_dwordx4 v[%d:%d], v4, s[60:63], 0 offen%s" % (ACC, ACC + 3, WT))
    L_fin = k.newlab("fin")
    k.e("s_cmp_lg_u32 s30, 0")
    k.e("s_cbranch_scc1 %s" % L_fin)
    k.e("s_waitcnt lgkmcnt(0)")
    for i in range(1, 8):
        k.e("v_add_f32 v%d, v%d, v%d" % (ACC + 16, ACC + 16, ACC + 16 + i))
    k.e("v_cmp_gt_u32 vcc, 32, v2")
    k.e("s_and_saveexec_b64 s[36:37], vcc")
    k.e("s_lshl_b32 s34, s33, 7")
    k.e("v_lshlrev_b32 v6, 2, v2")
    k.e("v_add_u32 v6, s34, v6")
    k.e("buffer_store_dword v%d, v6, s[56:59], 0 offen%s" % (ACC + 16, WT))
    k.lab(L_fin)
    k.stamp_store(1)
    k.lab(L_end)
    k.e("s_endpgm")
    return k, 168, (256, 512, NS * SB)


def gen_k15():
    k = KB("k15_o_kernel")
    L_end = k.newlab("end")
    L_o = k.newlab("o")
    k.e("s_cmp_ge_u32 s2, 480")
    k.e("s_cbranch_scc1 %s" % L_end)
    k.e("s_load_dwordx2 s[6:7], s[0:1], %d" % KA_WS)
    k.e("s_load_dwordx4 s[60:63], s[0:1], %d" % KA_WG)
    k.e("s_cmp_lt_u32 s2, 256")
    k.e("s_cbranch_scc1 %s" % L_o)
    k.e("s_waitcnt lgkmcnt(0)")
    k.e("s_sub_u32 s3, s2, 256")
    emit_colsum(k, L_end, 3)
    k.lab(L_o)
    k.e("s_and_b32 s20, s2, 31")
    k.e("s_lshr_b32 s21, s2, 5")
    wave_and_lane(k)
    k.e("s_waitcnt lgkmcnt(0)")
    k.srd(8, 6, 2048 * 1024 * 2, WS_PQ)
    k.srd(12, 6, 16 * 32 * 4096, WS_KVP)
    k.srd(16, 6, 16 * 32 * 128, WS_ZP)
    k.srd(28, 6, 2048 * 1024 * 2, WS_O)
    k.e("v_lshlrev_b32 v6, 4, v2")
    k.e("s_lshl_b32 s23, s20, 12")
    k.e("s_lshl_b32 s24, s25, 10")
    k.e("s_add_u32 s23, s23, s24")
    k.e("v_add_u32 v7, s23, v6")
    k.e("s_mov_b32 s24, 0")
    for mb in range(16):
        k.e("buffer_load_dwordx4 v[%d:%d], v7, s[12:15], s24 offen" % (64 + 4 * mb, 67 + 4 * mb))
        if mb != 15:
            k.e("s_add_u32 s24, s24, %d" % (32 * 4096))
    k.e("s_lshl_b32 s23, s20, 7")
    k.e("v_and_b32 v8, 31, v2")
    k.e("v_lshlrev_b32 v8, 2, v8")
    k.e("v_add_u32 v8, s23, v8")
    k.e("v_lshrrev_b32 v9, 5, v2")
    k.e("v_lshl_add_u32 v8, v9, 15, v8")
    k.e("s_mov_b32 s24, 0")
    for mb in range(8):
        k.e("buffer_load_dword v%d, v8, s[16:19], s24 offen" % (128 + mb))
        if mb != 7:
            k.e("s_add_u32 s24, s24, 4096")
    k.e("s_lshl_b32 s22, s21, 3")
    k.e("s_lshl_b32 s23, s25, 1")
    k.e("s_add_u32 s22, s22, s23")
    k.e("s_lshl_b32 s22, s22, 6")
    k.e("s_lshl_b32 s23, s20, 1")
    k.e("s_add_u32 s22, s22, s23")
    k.e("s_lshl_b32 s22, s22, 10")
    k.e("v_add_u32 v3, s22, v6")
    k.e("v_add_u32 v5, 0x10000, v3")
    for t in range(2):
        for s in range(2):
            k.e("buffer_load_dwordx4 v[%d:%d], v%d, s[8:11], 0 offen offset:%d" % (16 + 8 * t + 4 * s, 19 + 8 * t + 4 * s, 3 + 2 * t, 1024 * s))
    k.e("s_waitcnt vmcnt(12)")
    for st_ in (32, 16, 8, 4):
        for i in range(0, st_, 2):
            k.e(pk("v_pk_add_f32", 64 + i, 64 + i, 64 + st_ + i))
    k.e("s_lshl_b32 s23, s25, 10")
    k.e("v_add_u32 v7, s23, v6")
    k.e("ds_write_b128 v7, v[64:67]")
    k.e("s_waitcnt vmcnt(4)")
    for st_ in (4, 2):
        for i in range(0, st_, 2):
            k.e(pk("v_pk_add_f32", 128 + i, 128 + i, 128 + st_ + i))
    k.e("v_add_f32 v128, v128, v129")
    k.e("v_mov_b32 v129, v128")
    k.e("s_nop 1")
    k.e("v_permlane32_swap_b32 v128, v129")
    k.e("s_nop 1")
    k.e("v_add_f32 v128, v128, v129")
    k.e("v_and_b32 v8, 31, v2")
    k.e("v_lshlrev_b32 v8, 2, v8")
    k.e("ds_write_b32 v8, v128 offset:4096")
    k.e("s_waitcnt lgkmcnt(0)")
    k.e("s_barrier")
    for q in range(4):
        k.e("ds_read_b128 v[%d:%d], v6 offset:%d" % (64 + 4 * q, 67 + 4 * q, 1024 * q))
    k.e("v_lshlrev_b32 v9, 4, v9")
    for q in range(4):
        k.e("ds_read_b128 v[%d:%d], v9 offset:%d" % (80 + 4 * q, 83 + 4 * q, 4096 + 32 * q))
    k.e("v_and_b32 v10, 27, v2")
    k.e("v_cmp_eq_u32 vcc, 0, v10")
    k.e("s_waitcnt lgkmcnt(4)")
    KVA, ZA = 96, 104
    for i in range(8):
        k.e("v_cvt_pk_bf16_f32 v%d, v%d, v%d" % (KVA + i, 64 + 2 * i, 65 + 2 * i))
    k.e("s_waitcnt lgkmcnt(0)")
    for i in range(8):
        k.e("v_cvt_pk_bf16_f32 v%d, v%d, v%d" % (ZA + i, 80 + 2 * i, 81 + 2 * i))
    for i in range(8):
        k.e("v_cndmask_b32 v%d, 0, v%d, vcc" % (ZA + i, ZA + i))
    k.e("s_waitcnt vmcnt(0)")
    k.e("s_nop 0")
    for t in range(2):
        N, D = 112 + 32 * t, 128 + 32 * t
        k.e("v_mfma_f32_32x32x16_bf16 v[%d:%d], v[%d:%d], v[%d:%d], 0" % (D, D + 15, ZA, ZA + 3, 16 + 8 * t, 19 + 8 * t))
        k.e("v_mfma_f32_32x32x16_bf16 v[%d:%d], v[%d:%d], v[%d:%d], v[%d:%d]" % (D, D + 15, ZA + 4, ZA + 7, 20 + 8 * t, 23 + 8 * t, D, D + 15))
        k.e("v_mfma_f32_32x32x16_bf16 v[%d:%d], v[%d:%d], v[%d:%d], 0" % (N, N + 15, KVA, KVA + 3, 16 + 8 * t, 19 + 8 * t))
        k.e("v_mfma_f32_32x32x16_bf16 v[%d:%d], v[%d:%d], v[%d:%d], v[%d:%d]" % (N, N + 15, KVA + 4, KVA + 7, 20 + 8 * t, 23 + 8 * t, N, N + 15))
    k.e("s_nop 7")
    for t in range(2):
        D = 128 + 32 * t
        round_bf16(k, 12 + 2 * t, D)
        k.e("v_add_f32 v%d, 0x358637bd, v%d" % (12 + 2 * t, 12 + 2 * t))
        round_bf16(k, 12 + 2 * t, 12 + 2 * t)
        k.e("v_rcp_f32 v%d, v%d" % (12 + 2 * t, 12 + 2 * t))
        k.e("s_nop 0")
        k.e("v_mov_b32 v%d, v%d" % (13 + 2 * t, 12 + 2 * t))
    k.e("s_nop 7")
    for t in range(2):
        N = 112 + 32 * t
        for i in range(8):
            k.e(pk("v_pk_mul_f32", N + 2 * i, N + 2 * i, 12 + 2 * t))
        for i in range(8):
            k.e("v_cvt_pk_bf16_f32 v%d, v%d, v%d" % (32 + 8 * t + i, N + 2 * i, N + 2 * i + 1))
        k.e("buffer_store_dwordx4 v[%d:%d], v%d, s[28:31], 0 offen%s" % (32 + 8 * t, 35 + 8 * t, 3 + 2 * t, WT))
        k.e("buffer_store_dwordx4 v[%d:%d], v%d, s[28:31], 0 offen offset:1024%s" % (36 + 8 * t, 39 + 8 * t, 3 + 2 * t, WT))
    k.lab(L_end)
    k.e("s_endpgm")
    return k, 176, (480, 256, 8192)


def gen_proj(name, mode):
    k = KB(name)
    L_end = k.newlab("end")
    BK, NS = 64, 6
    KD = 1024 if mode == "wo" else 3584
    NBLK = KD // 16
    XOFF = WS_O if mode == "wo" else WS_HH
    XB = 8192
    WB = (BK // 4) * 4 * 256
    SB = XB + WB
    k.e("s_cmp_ge_u32 s2, 256")
    k.e("s_cbranch_scc1 %s" % L_end)
    k.e("s_load_dwordx2 s[4:5], s[0:1], %d" % (KA_WO if mode == "wo" else KA_WD))
    k.e("s_load_dwordx2 s[6:7], s[0:1], %d" % KA_WS)
    k.e("s_load_dwordx2 s[60:61], s[0:1], %d" % (KA_X if mode == "wo" else KA_OUT))
    k.e("s_and_b32 s20, s2, 7")
    k.e("s_lshr_b32 s21, s2, 3")
    k.e("s_and_b32 s22, s20, 1")
    k.e("s_lshl_b32 s22, s22, 2")
    k.e("s_and_b32 s23, s21, 3")
    k.e("s_add_u32 s22, s22, s23")
    k.e("s_lshr_b32 s23, s20, 1")
    k.e("s_lshl_b32 s23, s23, 3")
    k.e("s_lshr_b32 s24, s21, 2")
    k.e("s_add_u32 s23, s23, s24")
    k.e("s_lshl_b32 s24, s23, 6")
    wave_and_lane(k)
    k.e("s_lshr_b32 s26, s25, 1")
    k.e("s_and_b32 s28, s25, 1")
    k.e("s_lshr_b32 s27, s26, 1")
    dma = []
    k.e("v_lshlrev_b32 v9, 4, v2")
    k.e("s_lshl_b32 s30, s23, 1")
    k.e("s_lshr_b32 s31, s25, 2")
    k.e("s_add_u32 s30, s30, s31")
    k.e("s_mul_i32 s30, s30, %d" % NBLK)
    k.e("s_and_b32 s31, s25, 3")
    k.e("s_add_u32 s30, s30, s31")
    k.e("s_lshl_b32 s30, s30, 10")
    k.e("v_add_u32 v10, s30, v9")
    k.e("s_lshl_b32 s40, s25, 10")
    dma.append((8, 10, 50, 40))
    for i in range(2):
        k.e("s_lshl_b32 s30, s25, 3")
        k.e("s_add_u32 s30, s30, %d" % (4 * i))
        k.e("v_bfe_u32 v6, v2, 2, 2")
        k.e("v_add_u32 v6, s30, v6")
        k.e("v_lshlrev_b32 v6, 11, v6")
        k.e("v_lshrrev_b32 v7, 4, v2")
        k.e("v_lshl_add_u32 v6, v7, 6, v6")
        k.e("v_and_b32 v7, 3, v2")
        k.e("v_lshl_add_u32 v6, v7, 4, v6")
        k.e("s_lshl_b32 s31, s22, 8")
        k.e("v_add_u32 v%d, s31, v6" % (12 + i))
        k.e("s_lshl_b32 s%d, s25, 11" % (42 + i))
        k.e("s_add_u32 s%d, s%d, %d" % (42 + i, 42 + i, XB + 1024 * i))
        dma.append((12, 12 + i, 51, 42 + i))
    k.e("s_mov_b32 s50, 0")
    k.e("s_mov_b32 s51, 0")
    k.e("s_waitcnt lgkmcnt(0)")
    k.srd(8, 6, 2048 * KD * 2, XOFF)
    k.srd(12, 4, KD * 1024 * 2)
    sp = Spec()
    sp.NS, sp.nst, sp.stage_bytes = NS, KD // BK, SB
    sp.dma = dma
    sp.sadv = [(50, 4096), (51, BK * 2048)]
    sp.s_wr, sp.s_rd, sp.s_cnt = 52, 53, 54
    gemm_prologue(k, sp)
    for tl in range(2):
        k.e("s_xor_b32 s30, s27, %d" % tl)
        k.e("s_lshl_b32 s30, s30, 2")
        k.e("s_add_u32 s30, s30, s26")
        k.e("s_lshl_b32 s30, s30, 10")
        k.e("v_add_u32 v%d, s30, v9" % (16 + tl))
    wfrag_lanepat(k, 3, 4, 1024)
    for nl in range(2):
        k.e("s_and_b32 s30, s26, 1")
        k.e("s_xor_b32 s30, s30, %d" % nl)
        k.e("s_lshl_b32 s31, s28, 1")
        k.e("s_add_u32 s30, s30, s31")
        k.e("s_lshl_b32 s30, s30, 8")
        k.e("s_lshl_b32 s31, s26, 12")
        k.e("s_add_u32 s30, s30, s31")
        k.e("s_add_u32 s30, s30, %d" % XB)
        k.e("v_add_u32 v%d, s30, v3" % (18 + nl))
    ACC = 64
    for i in range(64):
        k.e("v_mov_b32 v%d, 0" % (ACC + i))
    F0, F1 = 128, 144
    reads = [("ds_read_b128", 0, 16, 0),
             ("ds_read_b64_tr_b16", 8, 18, 0), ("ds_read_b64_tr_b16", 10, 18, 2048),
             ("ds_read_b64_tr_b16", 12, 19, 0), ("ds_read_b64_tr_b16", 14, 19, 2048),
             ("ds_read_b128", 4, 17, 0)]
    mf = [(ACC + 0, 8, 0, 2), (ACC + 16, 12, 0, 4), (ACC + 32, 8, 4, 5), (ACC + 48, 12, 4, 5)]
    sp.addr = [16, 17, 18, 19]
    sp.early = not os.environ.get("NOEARLY")
    sp.steps = [dict(reads=reads, mfma=mf)]
    sp.fset = [F0, F1]
    k.e("s_and_b32 s31, s26, 1")
    k.e("s_lshl_b32 s32, s28, 1")
    k.e("s_add_u32 s29, s31, s32")
    k.e("s_lshl_b32 s32, s22, 2")
    k.e("s_add_u32 s33, s29, s32")
    k.e("s_lshl_b32 s30, s23, 1")
    k.e("s_add_u32 s30, s30, s27")
    k.e("s_lshl_b32 s30, s30, 6")
    k.e("s_lshl_b32 s31, s33, 1")
    k.e("s_add_u32 s30, s30, s31")
    k.e("s_lshl_b32 s30, s30, 10")
    k.e("v_add_u32 v7, s30, v9")
    k.srd(16, 60, 2048 * 1024 * 2)
    k.srd(56, 6, 2048 * 1024 * 2, WS_H)

    def resid():
        if mode == "wo":
            k.e("s_lshl_b32 s30, s27, 5")
            k.e("s_add_u32 s30, s30, s24")
            k.e("v_and_b32 v3, 31, v2")
            k.e("v_add_u32 v3, s30, v3")
            k.e("v_lshlrev_b32 v6, 11, v3")
            k.e("s_lshl_b32 s32, s33, 6")
            k.e("v_add_u32 v6, s32, v6")
            k.e("v_lshrrev_b32 v5, 5, v2")
            k.e("v_lshl_add_u32 v6, v5, 3, v6")
            for q in range(4):
                k.e("buffer_load_dwordx2 v[%d:%d], v6, s[16:19], 0 offen offset:%d" % (32 + 2 * q, 33 + 2 * q, 16 * q))
            return 4
        else:
            for s in range(2):
                k.e("buffer_load_dwordx4 v[%d:%d], v7, s[56:59], 0 offen offset:%d" % (32 + 4 * s, 35 + 4 * s, 1024 * s))
            return 2
    sp.tail_hook = resid
    gemm_main(k, sp)
    for c in range(1, 4):
        k.e("s_xor_b32 s30, s26, %d" % c)
        k.e("s_lshl_b32 s34, s28, 2")
        k.e("s_add_u32 s30, s30, s34")
        k.e("s_mul_i32 s30, s30, 3")
        k.e("s_add_u32 s30, s30, %d" % (c - 1))
        k.e("s_lshl_b32 s30, s30, 12")
        k.e("v_add_u32 v%d, s30, v9" % (20 + c))
    k.e("s_lshl_b32 s34, s28, 2")
    k.e("s_add_u32 s30, s26, s34")
    k.e("s_mul_i32 s30, s30, 12288")
    k.e("v_add_u32 v20, s30, v9")
    k.e("v_mov_b32 v60, 0xffff0000")
    k.e("s_nop 4")
    k.e("s_barrier")
    for c in range(1, 4):
        for q in range(4):
            k.e("ds_write_b128 v%d, v[%d:%d] offset:%d" % (20 + c, ACC + 16 * c + 4 * q, ACC + 16 * c + 4 * q + 3, 1024 * q))
    k.e("s_waitcnt lgkmcnt(0)")
    k.e("s_barrier")
    for c in range(3):
        for q in range(4):
            k.e("ds_read_b128 v[%d:%d], v20 offset:%d" % (ACC + 16 + 16 * c + 4 * q, ACC + 16 + 16 * c + 4 * q + 3, 4096 * c + 1024 * q))
    k.e("s_waitcnt lgkmcnt(8)")
    for i in range(0, 16, 2):
        k.e(pk("v_pk_add_f32", ACC + i, ACC + i, ACC + 16 + i))
    k.e("s_waitcnt lgkmcnt(0)")
    for i in range(0, 16, 2):
        k.e(pk("v_pk_add_f32", ACC + 32 + i, ACC + 32 + i, ACC + 48 + i))
    for i in range(0, 16, 2):
        k.e(pk("v_pk_add_f32", ACC + i, ACC + i, ACC + 32 + i))
    k.e("s_waitcnt vmcnt(0)")
    T = ACC + 16
    R = ACC + 32
    for i in range(8):
        k.e("v_cvt_pk_bf16_f32 v%d, v%d, v%d" % (40 + i, ACC + 2 * i, ACC + 2 * i + 1))
    for i in range(8):
        k.e("v_lshlrev_b32 v%d, 16, v%d" % (T + 2 * i, 40 + i))
        k.e("v_and_b32 v%d, v60, v%d" % (T + 2 * i + 1, 40 + i))
        k.e("v_lshlrev_b32 v%d, 16, v%d" % (R + 2 * i, 32 + i))
        k.e("v_and_b32 v%d, v60, v%d" % (R + 2 * i + 1, 32 + i))
    for i in range(8):
        k.e(pk("v_pk_add_f32", T + 2 * i, T + 2 * i, R + 2 * i))
    for i in range(8):
        k.e("v_cvt_pk_bf16_f32 v%d, v%d, v%d" % (48 + i, T + 2 * i, T + 2 * i + 1))
    EX = 98304
    if mode == "wo":
        for s in range(2):
            k.e("buffer_store_dwordx4 v[%d:%d], v7, s[56:59], 0 offen offset:%d%s" % (48 + 4 * s, 51 + 4 * s, 1024 * s, WT))
        for i in range(8):
            k.e("v_lshlrev_b32 v%d, 16, v%d" % (T + 2 * i, 48 + i))
            k.e("v_and_b32 v%d, v60, v%d" % (T + 2 * i + 1, 48 + i))
        for i in range(8):
            k.e(pk("v_pk_mul_f32", R + 2 * i, T + 2 * i, T + 2 * i))
        for st_ in (8, 4, 2):
            for i in range(0, st_, 2):
                k.e(pk("v_pk_add_f32", T + i, T + i, T + st_ + i))
                k.e(pk("v_pk_add_f32", R + i, R + i, R + st_ + i))
        k.e("v_add_f32 v44, v%d, v%d" % (T, T + 1))
        k.e("v_add_f32 v45, v%d, v%d" % (R, R + 1))
        k.e("v_mov_b32 v46, v44")
        k.e("v_mov_b32 v47, v45")
        k.e("s_nop 1")
        k.e("v_permlane32_swap_b32 v44, v46")
        k.e("v_permlane32_swap_b32 v45, v47")
        k.e("s_nop 1")
        k.e("v_add_f32 v44, v44, v46")
        k.e("v_add_f32 v45, v45, v47")
        k.e("s_lshl_b32 s30, s27, 2")
        k.e("s_add_u32 s30, s30, s29")
        k.e("s_lshl_b32 s30, s30, 8")
        k.e("s_add_u32 s30, s30, %d" % EX)
        k.e("v_and_b32 v3, 31, v2")
        k.e("v_lshlrev_b32 v3, 3, v3")
        k.e("v_add_u32 v4, s30, v3")
        k.e("ds_write_b64 v4, v[44:45]")
        k.srd(16, 6, 8 * 2048 * 8, WS_ST)
        k.e("s_waitcnt lgkmcnt(0)")
        k.e("s_barrier")
        L_fin = k.newlab("fin")
        k.e("s_cmp_ge_u32 s25, 2")
        k.e("s_cbranch_scc1 %s" % L_fin)
        k.e("s_lshl_b32 s30, s25, 10")
        k.e("s_add_u32 s30, s30, %d" % EX)
        k.e("v_add_u32 v4, s30, v3")
        for j in range(4):
            k.e("ds_read_b64 v[%d:%d], v4 offset:%d" % (44 + 2 * j, 45 + 2 * j, 256 * j))
        k.e("s_lshl_b32 s30, s22, 14")
        k.e("s_lshl_b32 s31, s25, 5")
        k.e("s_add_u32 s31, s31, s24")
        k.e("s_lshl_b32 s31, s31, 3")
        k.e("s_add_u32 s30, s30, s31")
        k.e("v_add_u32 v3, s30, v3")
        k.e("s_waitcnt lgkmcnt(0)")
        k.e(pk("v_pk_add_f32", 44, 44, 46))
        k.e(pk("v_pk_add_f32", 48, 48, 50))
        k.e(pk("v_pk_add_f32", 44, 44, 48))
        k.e("v_cmp_gt_u32 vcc, 32, v2")
        k.e("s_and_saveexec_b64 s[36:37], vcc")
        k.e("buffer_store_dwordx2 v[44:45], v3, s[16:19], 0 offen%s" % WT)
        k.lab(L_fin)
    else:
        k.e("s_lshl_b32 s30, s27, 5")
        k.e("v_and_b32 v3, 31, v2")
        k.e("v_add_u32 v3, s30, v3")
        k.e("v_mul_u32_u24 v3, 272, v3")
        k.e("v_lshrrev_b32 v5, 5, v2")
        k.e("v_lshl_add_u32 v3, v5, 3, v3")
        k.e("s_lshl_b32 s30, s29, 6")
        k.e("s_add_u32 s30, s30, %d" % EX)
        k.e("v_add_u32 v3, s30, v3")
        for q in range(4):
            k.e("ds_write_b64 v3, v[%d:%d] offset:%d" % (48 + 2 * q, 49 + 2 * q, 16 * q))
        k.e("v_lshrrev_b32 v4, 4, v2")
        k.e("s_lshl_b32 s30, s25, 3")
        k.e("v_add_u32 v4, s30, v4")
        k.e("v_and_b32 v5, 15, v2")
        k.e("v_mul_u32_u24 v6, 272, v4")
        k.e("v_lshl_add_u32 v6, v5, 4, v6")
        k.e("v_add_u32 v6, %d, v6" % EX)
        k.e("v_add_u32 v4, s24, v4")
        k.e("v_lshlrev_b32 v4, 11, v4")
        k.e("v_lshl_add_u32 v4, v5, 4, v4")
        k.e("s_lshl_b32 s30, s22, 8")
        k.e("v_add_u32 v4, s30, v4")
        k.e("v_add_u32 v5, 8192, v4")
        k.e("s_waitcnt lgkmcnt(0)")
        k.e("s_barrier")
        k.e("ds_read_b128 v[32:35], v6")
        k.e("ds_read_b128 v[36:39], v6 offset:1088")
        k.e("s_waitcnt lgkmcnt(1)")
        k.e("buffer_store_dwordx4 v[32:35], v4, s[16:19], 0 offen%s" % WT)
        k.e("s_waitcnt lgkmcnt(0)")
        k.e("buffer_store_dwordx4 v[36:39], v5, s[16:19], 0 offen%s" % WT)
    k.stamp_store(3 if mode == "wo" else 5)
    k.lab(L_end)
    k.e("s_endpgm")
    return k, 160, (256, 512, NS * SB)


def gen_k3():
    k = KB("k3_glu_kernel")
    L_end = k.newlab("end")
    BK, NS = 32, 5
    XB = 16384
    GB = (BK // 4) * 7 * 128
    UOFF = XB + GB + 128
    SB = XB + 14592
    CSL = NS * SB
    SCR = CSL + 1024
    k.e("s_cmp_ge_u32 s2, 256")
    k.e("s_cbranch_scc1 %s" % L_end)
    k.e("s_load_dwordx4 s[60:63], s[0:1], %d" % KA_WG)
    k.e("s_load_dwordx2 s[6:7], s[0:1], %d" % KA_WS)
    k.e("s_load_dwordx2 s[70:71], s[0:1], %d" % KA_WD)
    k.e("s_and_b32 s20, s2, 7")
    k.e("s_lshr_b32 s21, s2, 3")
    k.e("s_lshr_b32 s23, s20, 2")
    k.e("s_lshl_b32 s23, s23, 2")
    k.e("s_and_b32 s24, s21, 3")
    k.e("s_add_u32 s23, s23, s24")
    k.e("s_and_b32 s22, s20, 3")
    k.e("s_lshl_b32 s22, s22, 3")
    k.e("s_lshr_b32 s24, s21, 2")
    k.e("s_add_u32 s22, s22, s24")
    k.e("s_lshl_b32 s24, s23, 8")
    wave_and_lane(k)
    dma = []
    k.e("v_lshlrev_b32 v9, 4, v2")
    k.e("s_lshl_b32 s29, s23, 3")
    k.e("s_add_u32 s29, s29, s25")
    k.e("s_lshl_b32 s30, s29, 16")
    k.e("v_add_u32 v10, s30, v9")
    k.e("v_add_u32 v11, 1024, v10")
    for i in range(2):
        k.e("s_lshl_b32 s%d, s25, 11" % (40 + i))
        k.e("s_add_u32 s%d, s%d, %d" % (40 + i, 40 + i, 1024 * i))
        dma.append((8, 10 + i, 50, 40 + i))
    k.e("s_lshl_b32 s31, s25, 3")
    k.e("v_lshrrev_b32 v3, 3, v2")
    k.e("v_add_u32 v3, s31, v3")
    k.e("v_mul_u32_u24 v4, 37, v3")
    k.e("v_lshrrev_b32 v4, 8, v4")
    k.e("v_mul_u32_u24 v5, 7, v4")
    k.e("v_sub_u32 v5, v3, v5")
    k.e("v_bfe_u32 v6, v2, 1, 2")
    k.e("v_lshl_add_u32 v6, v4, 2, v6")
    k.e("v_mul_u32_u24 v6, 7168, v6")
    k.e("v_lshl_add_u32 v6, v5, 5, v6")
    k.e("v_and_b32 v7, 1, v2")
    k.e("v_lshl_add_u32 v6, v7, 4, v6")
    k.e("s_mul_i32 s31, s22, 224")
    k.e("v_add_u32 v12, s31, v6")
    k.e("s_mul_i32 s31, s2, 28672")
    k.e("v_add_u32 v7, s31, v9")
    k.e("s_lshl_b32 s42, s25, 10")
    k.e("s_add_u32 s43, s42, %d" % UOFF)
    k.e("s_add_u32 s42, s42, %d" % XB)
    k.e("s_mov_b32 s56, %d" % (BK * 7168))
    k.e("s_cmp_eq_u32 s25, 7")
    k.e("s_cselect_b32 s56, 1024, s56")
    k.e("s_cselect_b32 s57, 0, -1")
    k.e("s_cselect_b32 s42, %d, s42" % SCR)
    k.e("s_cselect_b32 s43, %d, s43" % (SCR + 1024))
    k.e("s_cselect_b64 vcc, -1, 0")
    k.e("s_nop 1")
    k.e("v_cndmask_b32 v12, v12, v7, vcc")
    dma.append((12, 12, 51, 42))
    dma.append((16, 12, 51, 43))
    k.e("s_mov_b32 s50, 0")
    k.e("s_mov_b32 s51, 0")
    k.e("s_waitcnt lgkmcnt(0)")
    k.srd(8, 6, 2048 * 1024 * 2, WS_H)
    k.e("s_cmp_eq_u32 s25, 7")
    k.e("s_cselect_b32 s72, s70, s60")
    k.e("s_cselect_b32 s73, s71, s61")
    k.e("s_cselect_b32 s74, s70, s62")
    k.e("s_cselect_b32 s75, s71, s63")
    k.srd(12, 72, 1024 * 3584 * 2)
    k.srd(16, 74, 1024 * 3584 * 2)
    k.e("s_cmp_eq_u32 s25, 7")
    k.e("s_cselect_b32 s14, 0, s14")
    k.e("s_cselect_b32 s18, 0, s18")
    sp = Spec()
    sp.NS, sp.nst, sp.stage_bytes = NS, 1024 // BK, SB
    sp.dma = dma
    sp.dma_abs = {2: 57, 3: 57}
    sp.sadv = [(50, 2048), (51, "s56")]
    sp.s_wr, sp.s_rd, sp.s_cnt = 52, 53, 54
    gemm_prologue(k, sp)
    k.e("s_mov_b32 s14, %d" % (1024 * 3584 * 2))
    k.e("s_cmp_eq_u32 s25, 7")
    k.e("s_cselect_b32 s51, 0, s51")
    k.e("s_lshl_b32 s30, s25, 11")
    k.e("v_add_u32 v14, s30, v9")
    k.e("v_bfe_u32 v3, v2, 2, 2")
    k.e("v_lshlrev_b32 v3, 5, v3")
    k.e("v_and_b32 v4, 3, v2")
    k.e("v_lshl_add_u32 v3, v4, 3, v3")
    k.e("v_lshrrev_b32 v4, 5, v2")
    k.e("v_mul_u32_u24 v4, %d, v4" % (7 * 128))
    k.e("v_add_u32 v3, v3, v4")
    k.e("v_bfe_u32 v4, v2, 4, 1")
    k.e("v_mul_u32_u24 v4, %d, v4" % (UOFF - XB))
    k.e("v_add_u32 v3, v3, v4")
    k.e("v_add_u32 v16, %d, v3" % XB)
    ACC = 64
    for i in range(112):
        k.e("v_mov_b32 v%d, 0" % (ACC + i))
    F0, F1 = 176, 208
    steps = []
    for jj in range(2):
        reads = [("ds_read_b128", 0, 14, 1024 * jj)]
        mf = []
        for t in range(7):
            for i in range(2):
                reads.append(("ds_read_b64_tr_b16", 4 + 4 * t + 2 * i, 16, ((4 * jj + 2 * i) * 7 + t) * 128))
            mf.append((ACC + 16 * t, 4 + 4 * t, 0, 2 * t + 2))
        steps.append(dict(reads=reads, mfma=mf))
    sp.addr = [14, 16]
    sp.steps = steps
    sp.fset = [F0, F1]
    k.srd(64, 6, 8 * 2048 * 8, WS_ST)
    k.srd(76, 6, 2048 * 3584 * 2, WS_HH)
    k.srd(68, 6, 2 * 3584 * 4, WS_CS2)
    S0 = 24

    def early():
        k.e("s_lshl_b32 s30, s25, 5")
        k.e("s_add_u32 s30, s30, s24")
        k.e("v_and_b32 v3, 31, v2")
        k.e("v_add_u32 v3, s30, v3")
        k.e("v_lshlrev_b32 v4, 3, v3")
        k.e("v_lshrrev_b32 v5, 5, v2")
        k.e("v_lshl_add_u32 v4, v5, 16, v4")
        k.e("s_mov_b32 s31, 0")
        for i in range(4):
            k.e("buffer_load_dwordx2 v[%d:%d], v4, s[64:67], s31 offen" % (S0 + 2 * i, S0 + 2 * i + 1))
            k.e("s_add_u32 s31, s31, 16384")
        k.e("v_cmp_gt_u32 vcc, 28, v2")
        k.e("v_subrev_u32 v6, 28, v2")
        k.e("s_nop 1")
        k.e("v_cndmask_b32 v6, v6, v2, vcc")
        k.e("v_lshlrev_b32 v6, 4, v6")
        k.e("v_mov_b32 v7, %d" % (3584 * 4))
        k.e("v_mov_b32 v8, 0")
        k.e("v_cndmask_b32 v7, v7, v8, vcc")
        k.e("v_add_u32 v6, v6, v7")
        k.e("s_mul_i32 s31, s22, 448")
        k.e("v_add_u32 v6, s31, v6")
        k.e("buffer_load_dwordx4 v[32:35], v6, s[68:71], 0 offen")
        return 5
    sp.tail_hook = early
    gemm_main(k, sp)
    k.e("s_waitcnt vmcnt(0)")
    k.e("v_add_u32 v6, %d, v9" % CSL)
    k.e("v_cmp_gt_u32 vcc, 56, v2")
    k.e("s_and_saveexec_b64 s[36:37], vcc")
    k.e("ds_write_b128 v6, v[32:35]")
    k.e("s_mov_b64 exec, s[36:37]")
    k.e(pk("v_pk_add_f32", S0, S0, S0 + 2))
    k.e(pk("v_pk_add_f32", S0 + 4, S0 + 4, S0 + 6))
    k.e(pk("v_pk_add_f32", S0, S0, S0 + 4))
    k.e("v_mov_b32 v8, v%d" % S0)
    k.e("v_mov_b32 v7, v%d" % (S0 + 1))
    k.e("v_mov_b32 v6, v8")
    k.e("v_mov_b32 v10, v7")
    k.e("s_nop 1")
    k.e("v_permlane32_swap_b32 v8, v6")
    k.e("v_permlane32_swap_b32 v7, v10")
    k.e("s_nop 1")
    k.e("v_add_f32 v8, v8, v6")
    k.e("v_add_f32 v7, v7, v10")
    k.e("s_waitcnt lgkmcnt(0)")
    k.e("s_barrier")
    k.e("v_lshrrev_b32 v6, 5, v2")
    k.e("v_lshlrev_b32 v5, 4, v6")
    k.e("v_add_u32 v5, %d, v5" % CSL)
    C0 = 176
    T = 208

    def csread(tt):
        cbb = C0 + (tt & 1) * 16
        for q in range(2):
            k.e("ds_read_b128 v[%d:%d], v5 offset:%d" % (cbb + 4 * q, cbb + 4 * q + 3, tt * 64 + q * 32))
            k.e("ds_read_b128 v[%d:%d], v5 offset:%d" % (cbb + 8 + 4 * q, cbb + 8 + 4 * q + 3, 448 + tt * 64 + q * 32))
    csread(0)
    csread(1)
    k.e("v_mul_f32 v8, 0x3a800000, v8")
    k.e("v_mul_f32 v7, 0x3a800000, v7")
    k.e("v_fma_f32 v7, -v8, v8, v7")
    k.e("v_max_f32 v7, 0, v7")
    round_bf16(k, 8, 8)
    round_bf16(k, 7, 7)
    k.e("v_add_f32 v7, 0x3727c5ac, v7")
    round_bf16(k, 7, 7)
    k.e("v_sqrt_f32 v7, v7")
    k.e("s_nop 0")
    round_bf16(k, 7, 7)
    k.e("v_rcp_f32 v54, v7")
    k.e("s_nop 0")
    k.e("v_mov_b32 v55, v54")
    k.e("v_mul_f32 v8, v8, v54")
    k.e("v_sub_f32 v52, 0, v8")
    k.e("v_mov_b32 v53, v52")
    k.e("s_mul_i32 s31, s29, 224")
    k.e("s_mul_i32 s30, s22, 7")
    k.e("s_add_u32 s31, s31, s30")
    k.e("s_lshl_b32 s31, s31, 10")
    k.e("v_add_u32 v57, s31, v9")
    k.e("v_add_u32 v56, 4096, v57")
    c1 = -2.0 * math.log2(math.e) * math.sqrt(2.0 / math.pi)
    c2 = c1 * 0.044715
    k.e("v_mov_b32 v60, 0x%08x" % f2u(c1))
    k.e("v_mov_b32 v61, 0x%08x" % f2u(c1))
    k.e("v_mov_b32 v62, 0x%08x" % f2u(c2))
    k.e("v_mov_b32 v63, 0x%08x" % f2u(c2))
    k.e("v_mov_b32 v58, 1.0")
    k.e("v_mov_b32 v59, 1.0")
    for t in range(7):
        cb = C0 + (t & 1) * 16
        k.e("s_waitcnt lgkmcnt(%d)" % (4 if t < 6 else 0))
        A = ACC + 16 * t
        for j in range(8):
            k.e(pk("v_pk_mul_f32", T + 2 * j, cb + 2 * j, 52))
        for j in range(8):
            k.e(pk("v_pk_fma_f32", A + 2 * j, A + 2 * j, 54, T + 2 * j))
        if t + 2 < 7:
            csread(t + 2)
        for j in range(4):
            k.e(pk("v_pk_mul_f32", T + 2 * j, A + 2 * j, A + 2 * j))
        for j in range(4):
            k.e(pk("v_pk_fma_f32", T + 2 * j, T + 2 * j, 62, 60))
        for j in range(4):
            k.e(pk("v_pk_mul_f32", T + 2 * j, T + 2 * j, A + 2 * j))
        for j in range(8):
            k.e("v_exp_f32 v%d, v%d" % (T + j, T + j))
        for j in range(4):
            k.e(pk("v_pk_mul_f32", A + 2 * j, A + 2 * j, A + 8 + 2 * j))
        for j in range(4):
            k.e(pk("v_pk_add_f32", T + 2 * j, T + 2 * j, 58))
        for j in range(8):
            k.e("v_rcp_f32 v%d, v%d" % (T + j, T + j))
        k.e("s_nop 0")
        for j in range(4):
            k.e(pk("v_pk_mul_f32", A + 2 * j, A + 2 * j, T + 2 * j))
        for j in range(4):
            k.e("v_cvt_pk_bf16_f32 v%d, v%d, v%d" % (40 + 4 * (t & 1) + j, A + 2 * j, A + 2 * j + 1))
        k.e("buffer_store_dwordx4 v[%d:%d], v%d, s[76:79], 0 offen offset:%d%s" % (40 + 4 * (t & 1), 43 + 4 * (t & 1), 57 if t < 4 else 56, 1024 * (t & 3), WT))
    k.stamp_store(4)
    k.lab(L_end)
    k.e("s_endpgm")
    return k, 240, (256, 512, SCR + 2048)


def gen_k3b():
    k = KB("k3_glu_kernel")
    L_end = k.newlab("end")
    BK, NS = 32, 5
    XB = 16384
    GB = (BK // 4) * 7 * 128
    UOFF = XB + GB + 128
    SB = XB + 14592
    CSL = NS * SB
    SCR = CSL + 1024
    k.e("s_cmp_ge_u32 s2, 256")
    k.e("s_cbranch_scc1 %s" % L_end)
    k.e("s_load_dwordx4 s[60:63], s[0:1], %d" % KA_WG)
    k.e("s_load_dwordx2 s[6:7], s[0:1], %d" % KA_WS)
    k.e("s_load_dwordx2 s[70:71], s[0:1], %d" % KA_WD)
    k.e("s_and_b32 s20, s2, 7")
    k.e("s_lshr_b32 s21, s2, 3")
    k.e("s_lshr_b32 s23, s20, 2")
    k.e("s_lshl_b32 s23, s23, 2")
    k.e("s_and_b32 s24, s21, 3")
    k.e("s_add_u32 s23, s23, s24")
    k.e("s_and_b32 s22, s20, 3")
    k.e("s_lshl_b32 s22, s22, 3")
    k.e("s_lshr_b32 s24, s21, 2")
    k.e("s_add_u32 s22, s22, s24")
    k.e("s_lshl_b32 s24, s23, 8")
    wave_and_lane(k)
    dma = []
    k.e("v_lshlrev_b32 v9, 4, v2")
    k.e("s_lshl_b32 s29, s23, 3")
    k.e("s_add_u32 s29, s29, s25")
    k.e("s_lshl_b32 s30, s29, 16")
    k.e("v_add_u32 v10, s30, v9")
    k.e("v_add_u32 v11, 1024, v10")
    for i in range(2):
        k.e("s_lshl_b32 s%d, s25, 11" % (40 + i))
        k.e("s_add_u32 s%d, s%d, %d" % (40 + i, 40 + i, 1024 * i))
        dma.append((8, 10 + i, 50, 40 + i))
    k.e("s_lshl_b32 s31, s25, 3")
    k.e("v_lshrrev_b32 v3, 3, v2")
    k.e("v_add_u32 v3, s31, v3")
    k.e("v_mul_u32_u24 v4, 37, v3")
    k.e("v_lshrrev_b32 v4, 8, v4")
    k.e("v_mul_u32_u24 v5, 7, v4")
    k.e("v_sub_u32 v5, v3, v5")
    k.e("v_bfe_u32 v6, v2, 1, 2")
    k.e("v_lshl_add_u32 v6, v4, 2, v6")
    k.e("v_mul_u32_u24 v6, 7168, v6")
    k.e("v_lshl_add_u32 v6, v5, 5, v6")
    k.e("v_and_b32 v7, 1, v2")
    k.e("v_lshl_add_u32 v6, v7, 4, v6")
    k.e("s_mul_i32 s31, s22, 224")
    k.e("v_add_u32 v12, s31, v6")
    k.e("s_mul_i32 s31, s2, 28672")
    k.e("v_add_u32 v7, s31, v9")
    k.e("s_lshl_b32 s42, s25, 10")
    k.e("s_add_u32 s43, s42, %d" % UOFF)
    k.e("s_add_u32 s42, s42, %d" % XB)
    k.e("s_mov_b32 s56, %d" % (BK * 7168))
    k.e("s_cmp_eq_u32 s25, 7")
    k.e("s_cselect_b32 s56, 1024, s56")
    k.e("s_cselect_b32 s57, 0, -1")
    k.e("s_cselect_b32 s42, %d, s42" % SCR)
    k.e("s_cselect_b32 s43, %d, s43" % (SCR + 1024))
    k.e("s_cselect_b64 vcc, -1, 0")
    k.e("s_nop 1")
    k.e("v_cndmask_b32 v12, v12, v7, vcc")
    dma.append((12, 12, 51, 42))
    dma.append((16, 12, 51, 43))
    k.e("s_mov_b32 s50, 0")
    k.e("s_mov_b32 s51, 0")
    k.e("s_waitcnt lgkmcnt(0)")
    k.srd(8, 6, 2048 * 1024 * 2, WS_H)
    k.e("s_cmp_eq_u32 s25, 7")
    k.e("s_cselect_b32 s72, s70, s60")
    k.e("s_cselect_b32 s73, s71, s61")
    k.e("s_cselect_b32 s74, s70, s62")
    k.e("s_cselect_b32 s75, s71, s63")
    k.srd(12, 72, 1024 * 3584 * 2)
    k.srd(16, 74, 1024 * 3584 * 2)
    k.e("s_cmp_eq_u32 s25, 7")
    k.e("s_cselect_b32 s14, 0, s14")
    k.e("s_cselect_b32 s18, 0, s18")
    sp = Spec()
    sp.NS, sp.nst, sp.stage_bytes = NS, 1024 // BK, SB
    sp.dma = dma
    sp.dma_abs = {2: 57, 3: 57}
    sp.sadv = [(50, 2048), (51, "s56")]
    sp.s_wr, sp.s_rd, sp.s_cnt = 52, 53, 54
    gemm_prologue(k, sp)
    k.e("s_mov_b32 s14, %d" % (1024 * 3584 * 2))
    k.e("s_cmp_eq_u32 s25, 7")
    k.e("s_cselect_b32 s51, 0, s51")
    k.e("s_and_b32 s26, s25, 3")
    k.e("s_lshr_b32 s27, s25, 2")
    k.e("s_lshl_b32 s30, s26, 12")
    k.e("v_add_u32 v14, s30, v9")
    k.e("v_bfe_u32 v3, v2, 2, 2")
    k.e("v_lshlrev_b32 v3, 5, v3")
    k.e("v_and_b32 v4, 3, v2")
    k.e("v_lshl_add_u32 v3, v4, 3, v3")
    k.e("v_lshrrev_b32 v4, 5, v2")
    k.e("v_mul_u32_u24 v4, %d, v4" % (7 * 128))
    k.e("v_add_u32 v3, v3, v4")
    k.e("v_bfe_u32 v4, v2, 4, 1")
    k.e("v_mul_u32_u24 v4, %d, v4" % (UOFF - XB))
    k.e("v_add_u32 v3, v3, v4")
    k.e("s_lshl_b32 s30, s27, 9")
    k.e("s_add_u32 s30, s30, %d" % XB)
    k.e("v_add_u32 v16, s30, v3")
    ACC = 64
    for i in range(128):
        k.e("v_mov_b32 v%d, 0" % (ACC + i))
    F0, F1 = 192, 216
    sp.addr = [14, 16]
    sp.fset = [F0, F1]
    k.srd(64, 6, 8 * 2048 * 8, WS_ST)
    k.srd(76, 6, 2048 * 3584 * 2, WS_HH)
    k.srd(68, 6, 4 * 2 * 3584 * 4, WS_CS)
    S0 = 24

    def early():
        k.e("s_lshl_b32 s30, s26, 6")
        k.e("s_add_u32 s30, s30, s24")
        k.e("v_and_b32 v3, 31, v2")
        k.e("v_add_u32 v3, s30, v3")
        k.e("v_lshlrev_b32 v4, 3, v3")
        k.e("v_lshrrev_b32 v5, 5, v2")
        k.e("v_lshl_add_u32 v4, v5, 16, v4")
        k.e("s_mov_b32 s31, 0")
        for i in range(4):
            k.e("buffer_load_dwordx2 v[%d:%d], v4, s[64:67], s31 offen" % (S0 + 2 * i, S0 + 2 * i + 1))
            k.e("buffer_load_dwordx2 v[%d:%d], v4, s[64:67], s31 offen offset:256" % (S0 + 8 + 2 * i, S0 + 8 + 2 * i + 1))
            k.e("s_add_u32 s31, s31, 16384")
        k.e("v_cmp_gt_u32 vcc, 28, v2")
        k.e("v_subrev_u32 v6, 28, v2")
        k.e("s_nop 1")
        k.e("v_cndmask_b32 v6, v6, v2, vcc")
        k.e("v_lshlrev_b32 v6, 4, v6")
        k.e("v_mov_b32 v7, %d" % (3584 * 4))
        k.e("v_mov_b32 v8, 0")
        k.e("v_cndmask_b32 v7, v7, v8, vcc")
        k.e("v_add_u32 v6, v6, v7")
        k.e("s_mul_i32 s31, s22, 448")
        k.e("v_add_u32 v6, s31, v6")
        k.e("s_mov_b32 s31, 0")
        for i in range(4):
            k.e("buffer_load_dwordx4 v[%d:%d], v6, s[68:71], s31 offen" % (40 + 4 * i, 43 + 4 * i))
            k.e("s_add_u32 s31, s31, %d" % (2 * 3584 * 4))
        return 12
    sp.tail_hook = early
    L_b = k.newlab("pathb")
    L_fin = k.newlab("fin")
    k.e("s_cmp_lg_u32 s27, 0")
    k.e("s_cbranch_scc1 %s" % L_b)
    nst0 = k.nstamp
    for fh in range(2):
        NF = 4 if fh == 0 else 3
        if fh == 1:
            k.lab(L_b)
            k.nstamp = nst0
        steps = []
        for jj in range(2):
            reads = [("ds_read_b128", 0, 14, 1024 * jj)]
            mf = []
            for t in range(NF):
                for i in range(2):
                    reads.append(("ds_read_b64_tr_b16", 8 + 4 * t + 2 * i, 16, ((4 * jj + 2 * i) * 7 + t) * 128))
                if t == 0:
                    reads.append(("ds_read_b128", 4, 14, 2048 + 1024 * jj))
                d = 2 * t + 2 + (1 if t > 0 else 0)
                mf.append((ACC + 16 * (2 * t), 8 + 4 * t, 0, d))
                mf.append((ACC + 16 * (2 * t + 1), 8 + 4 * t, 4, max(d, 3)))
            steps.append(dict(reads=reads, mfma=mf))
        sp.steps = steps
        gemm_main(k, sp)
        k.e("s_waitcnt vmcnt(0)")
        for i in (0, 2):
            k.e(pk("v_pk_add_f32", 40 + i, 40 + i, 44 + i))
            k.e(pk("v_pk_add_f32", 48 + i, 48 + i, 52 + i))
            k.e(pk("v_pk_add_f32", 40 + i, 40 + i, 48 + i))
        k.e("v_add_u32 v6, %d, v9" % CSL)
        k.e("v_cmp_gt_u32 vcc, 56, v2")
        k.e("s_and_saveexec_b64 s[36:37], vcc")
        k.e("ds_write_b128 v6, v[40:43]")
        k.e("s_mov_b64 exec, s[36:37]")
        for tl in range(2):
            B = S0 + 8 * tl
            k.e(pk("v_pk_add_f32", B, B, B + 2))
            k.e(pk("v_pk_add_f32", B + 4, B + 4, B + 6))
            k.e(pk("v_pk_add_f32", B, B, B + 4))
            k.e("v_mov_b32 v%d, v%d" % (B + 2, B))
            k.e("v_mov_b32 v%d, v%d" % (B + 3, B + 1))
        k.e("s_nop 1")
        for tl in range(2):
            B = S0 + 8 * tl
            k.e("v_permlane32_swap_b32 v%d, v%d" % (B, B + 2))
            k.e("v_permlane32_swap_b32 v%d, v%d" % (B + 1, B + 3))
        k.e("s_nop 1")
        for tl in range(2):
            B = S0 + 8 * tl
            k.e(pk("v_pk_add_f32", B, B, B + 2))
        k.e("s_waitcnt lgkmcnt(0)")
        k.e("s_barrier")
        k.e("v_lshrrev_b32 v6, 5, v2")
        k.e("v_lshlrev_b32 v5, 4, v6")
        k.e("v_add_u32 v5, %d, v5" % (CSL + 256 * fh))
        C0 = 192
        T = 224

        def csread(tt):
            cbb = C0 + (tt & 1) * 16
            for q in range(2):
                k.e("ds_read_b128 v[%d:%d], v5 offset:%d" % (cbb + 4 * q, cbb + 4 * q + 3, tt * 64 + q * 32))
                k.e("ds_read_b128 v[%d:%d], v5 offset:%d" % (cbb + 8 + 4 * q, cbb + 8 + 4 * q + 3, 448 + tt * 64 + q * 32))
        csread(0)
        csread(1)
        for tl in range(2):
            B = S0 + 8 * tl
            m, v = B, B + 1
            k.e("v_mul_f32 v%d, 0x3a800000, v%d" % (m, m))
            k.e("v_mul_f32 v%d, 0x3a800000, v%d" % (v, v))
            k.e("v_fma_f32 v%d, -v%d, v%d, v%d" % (v, m, m, v))
            k.e("v_max_f32 v%d, 0, v%d" % (v, v))
            round_bf16(k, m, m)
            round_bf16(k, v, v)
            k.e("v_add_f32 v%d, 0x3727c5ac, v%d" % (v, v))
            round_bf16(k, v, v)
            k.e("v_sqrt_f32 v%d, v%d" % (v, v))
            k.e("s_nop 0")
            round_bf16(k, v, v)
            k.e("v_rcp_f32 v%d, v%d" % (B + 4, v))
            k.e("s_nop 0")
            k.e("v_mov_b32 v%d, v%d" % (B + 5, B + 4))
            k.e("v_mul_f32 v%d, v%d, v%d" % (m, m, B + 4))
            k.e("v_sub_f32 v%d, 0, v%d" % (B + 6, m))
            k.e("v_mov_b32 v%d, v%d" % (B + 7, B + 6))
        k.e("s_lshl_b32 s31, s23, 3")
        k.e("s_lshl_b32 s30, s26, 1")
        k.e("s_add_u32 s31, s31, s30")
        k.e("s_mul_i32 s31, s31, 224")
        k.e("s_mul_i32 s30, s22, 7")
        k.e("s_add_u32 s31, s31, s30")
        k.e("s_add_u32 s31, s31, %d" % (4 * fh))
        k.e("s_lshl_b32 s31, s31, 10")
        k.e("v_add_u32 v56, s31, v9")
        k.e("v_add_u32 v57, %d, v56" % (224 * 1024))
        c1 = -2.0 * math.log2(math.e) * math.sqrt(2.0 / math.pi)
        c2 = c1 * 0.044715
        k.e("v_mov_b32 v60, 0x%08x" % f2u(c1))
        k.e("v_mov_b32 v61, 0x%08x" % f2u(c1))
        k.e("v_mov_b32 v62, 0x%08x" % f2u(c2))
        k.e("v_mov_b32 v63, 0x%08x" % f2u(c2))
        k.e("v_mov_b32 v58, 1.0")
        k.e("v_mov_b32 v59, 1.0")
        cnt = 0
        for t in range(NF):
            cb = C0 + (t & 1) * 16
            k.e("s_waitcnt lgkmcnt(%d)" % (4 if t < NF - 1 else 0))
            for tl in range(2):
                B = S0 + 8 * tl
                A = ACC + 16 * (2 * t + tl)
                for j in range(8):
                    k.e(pk("v_pk_mul_f32", T + 2 * j, cb + 2 * j, B + 6))
                for j in range(8):
                    k.e(pk("v_pk_fma_f32", A + 2 * j, A + 2 * j, B + 4, T + 2 * j))
                if tl == 1 and t + 2 < NF:
                    csread(t + 2)
                for j in range(4):
                    k.e(pk("v_pk_mul_f32", T + 2 * j, A + 2 * j, A + 2 * j))
                for j in range(4):
                    k.e(pk("v_pk_fma_f32", T + 2 * j, T + 2 * j, 62, 60))
                for j in range(4):
                    k.e(pk("v_pk_mul_f32", T + 2 * j, T + 2 * j, A + 2 * j))
                for j in range(8):
                    k.e("v_exp_f32 v%d, v%d" % (T + j, T + j))
                for j in range(4):
                    k.e(pk("v_pk_mul_f32", A + 2 * j, A + 2 * j, A + 8 + 2 * j))
                for j in range(4):
                    k.e(pk("v_pk_add_f32", T + 2 * j, T + 2 * j, 58))
                for j in range(8):
                    k.e("v_rcp_f32 v%d, v%d" % (T + j, T + j))
                k.e("s_nop 0")
                for j in range(4):
                    k.e(pk("v_pk_mul_f32", A + 2 * j, A + 2 * j, T + 2 * j))
                o = 44 + 4 * (cnt & 1)
                for j in range(4):
                    k.e("v_cvt_pk_bf16_f32 v%d, v%d, v%d" % (o + j, A + 2 * j, A + 2 * j + 1))
                k.e("buffer_store_dwordx4 v[%d:%d], v%d, s[76:79], 0 offen offset:%d%s" % (o, o + 3, 56 + tl, 1024 * t, WT))
                cnt += 1
        if fh == 0:
            k.e("s_branch %s" % L_fin)
    k.lab(L_fin)
    k.stamp_store(4)
    k.lab(L_end)
    k.e("s_endpgm")
    return k, 240, (256, 512, SCR + 2048)


WS_P = 40 * MB


def gen_down2():
    k = KB("k4_down_kernel")
    L_end = k.newlab("end")
    BK, NS = 64, 5
    XB = 16384
    WB = 16384
    SB = XB + WB
    k.e("s_cmp_ge_u32 s2, 256")
    k.e("s_cbranch_scc1 %s" % L_end)
    k.e("s_load_dwordx2 s[4:5], s[0:1], %d" % KA_WD)
    k.e("s_load_dwordx2 s[6:7], s[0:1], %d" % KA_WS)
    k.e("s_load_dwordx4 s[60:63], s[0:1], %d" % KA_OUT)
    k.e("s_and_b32 s20, s2, 7")
    k.e("s_lshr_b32 s21, s2, 3")
    k.e("s_and_b32 s38, s21, 1")
    k.e("s_lshr_b32 s21, s21, 1")
    k.e("s_and_b32 s22, s20, 1")
    k.e("s_lshl_b32 s22, s22, 2")
    k.e("s_and_b32 s23, s21, 3")
    k.e("s_add_u32 s22, s22, s23")
    k.e("s_lshr_b32 s23, s20, 1")
    k.e("s_lshl_b32 s23, s23, 2")
    k.e("s_lshr_b32 s24, s21, 2")
    k.e("s_add_u32 s23, s23, s24")
    k.e("s_lshl_b32 s24, s23, 7")
    wave_and_lane(k)
    k.e("s_lshr_b32 s26, s25, 2")
    k.e("s_bfe_u32 s27, s25, 0x10001")
    k.e("s_and_b32 s28, s25, 1")
    dma = []
    k.e("v_lshlrev_b32 v9, 4, v2")
    k.e("s_lshl_b32 s30, s23, 2")
    k.e("s_lshr_b32 s31, s25, 1")
    k.e("s_add_u32 s30, s30, s31")
    k.e("s_mul_i32 s30, s30, 224")
    k.e("s_mul_i32 s31, s38, 112")
    k.e("s_add_u32 s30, s30, s31")
    k.e("s_lshl_b32 s31, s28, 1")
    k.e("s_add_u32 s30, s30, s31")
    k.e("s_lshl_b32 s30, s30, 10")
    k.e("v_add_u32 v10, s30, v9")
    k.e("v_add_u32 v11, 1024, v10")
    for i in range(2):
        k.e("s_lshl_b32 s%d, s25, 11" % (40 + i))
        k.e("s_add_u32 s%d, s%d, %d" % (40 + i, 40 + i, 1024 * i))
        dma.append((8, 10 + i, 50, 40 + i))
    for i in range(2):
        k.e("s_lshl_b32 s30, s25, 3")
        k.e("s_add_u32 s30, s30, %d" % (4 * i))
        k.e("v_bfe_u32 v6, v2, 2, 2")
        k.e("v_add_u32 v6, s30, v6")
        k.e("v_lshlrev_b32 v6, 11, v6")
        k.e("v_lshrrev_b32 v7, 4, v2")
        k.e("v_lshl_add_u32 v6, v7, 6, v6")
        k.e("v_and_b32 v7, 3, v2")
        k.e("v_lshl_add_u32 v6, v7, 4, v6")
        k.e("s_lshl_b32 s31, s22, 8")
        k.e("v_add_u32 v%d, s31, v6" % (12 + i))
        k.e("s_lshl_b32 s%d, s25, 11" % (42 + i))
        k.e("s_add_u32 s%d, s%d, %d" % (42 + i, 42 + i, XB + 1024 * i))
        dma.append((12, 12 + i, 51, 42 + i))
    k.e("s_mov_b32 s50, 0")
    k.e("s_mul_i32 s51, s38, %d" % (1792 * 2048))
    k.e("s_waitcnt lgkmcnt(0)")
    k.srd(8, 6, 2048 * 3584 * 2, WS_HH)
    k.srd(12, 4, 3584 * 1024 * 2)
    sp = Spec()
    sp.NS, sp.nst, sp.stage_bytes = NS, 1792 // BK, SB
    sp.dma = dma
    sp.sadv = [(50, 4096), (51, BK * 2048)]
    sp.s_wr, sp.s_rd, sp.s_cnt = 52, 53, 54
    k.srd(64, 6, 32768, WS_FLAG)
    k.e("s_lshl_b32 s33, s23, 3")
    k.e("s_add_u32 s33, s33, s22")
    k.e("s_lshl_b32 s34, s33, 8")
    k.e("v_mov_b32 v20, s34")
    k.e("v_mov_b32 v21, 1")
    L_na0 = k.newlab("noarr0")
    k.e("s_cmp_lg_u32 s25, 0")
    k.e("s_cbranch_scc1 %s" % L_na0)
    k.e("s_mov_b64 exec, 1")
    k.e("buffer_atomic_add v21, v20, s[64:67], 0 offen sc0 sc1")
    k.e("s_mov_b64 exec, -1")
    k.lab(L_na0)
    gemm_prologue(k, sp)
    for tl in range(2):
        k.e("s_xor_b32 s30, s26, %d" % tl)
        k.e("s_lshl_b32 s31, s27, 1")
        k.e("s_add_u32 s30, s30, s31")
        k.e("s_lshl_b32 s30, s30, 2")
        k.e("s_lshl_b32 s31, s26, 1")
        k.e("s_add_u32 s30, s30, s31")
        k.e("s_lshl_b32 s30, s30, 10")
        k.e("v_add_u32 v%d, s30, v9" % (16 + tl))
    wfrag_lanepat(k, 3, 4, 1024)
    k.e("s_lshl_b32 s30, s26, 13")
    k.e("s_lshl_b32 s31, s28, 9")
    k.e("s_add_u32 s30, s30, s31")
    k.e("s_add_u32 s30, s30, %d" % XB)
    k.e("v_add_u32 v18, s30, v3")
    ACC = 64
    for i in range(64):
        k.e("v_mov_b32 v%d, 0" % (ACC + i))
    F0, F1 = 128, 144
    steps = []
    for jj in range(2):
        reads = [("ds_read_b128", 0, 16, 1024 * jj),
                 ("ds_read_b64_tr_b16", 8, 18, 4096 * jj), ("ds_read_b64_tr_b16", 10, 18, 4096 * jj + 2048),
                 ("ds_read_b64_tr_b16", 12, 18, 4096 * jj + 256), ("ds_read_b64_tr_b16", 14, 18, 4096 * jj + 2048 + 256),
                 ("ds_read_b128", 4, 17, 1024 * jj)]
        mf = [(ACC + 0, 8, 0, 2), (ACC + 16, 12, 0, 4), (ACC + 32, 8, 4, 5), (ACC + 48, 12, 4, 5)]
        steps.append(dict(reads=reads, mfma=mf))
    sp.addr = [16, 17, 18]
    sp.steps = steps
    sp.fset = [F0, F1]
    k.e("s_lshl_b32 s29, s27, 1")
    k.e("s_add_u32 s29, s29, s26")
    k.e("s_lshl_b32 s30, s23, 2")
    k.e("s_add_u32 s30, s30, s29")
    k.e("s_lshl_b32 s30, s30, 6")
    k.e("s_lshl_b32 s31, s22, 3")
    k.e("s_add_u32 s30, s30, s31")
    k.e("s_lshl_b32 s31, s28, 2")
    k.e("s_add_u32 s30, s30, s31")
    k.e("s_lshl_b32 s30, s30, 10")
    k.e("v_add_u32 v7, s30, v9")
    k.srd(16, 60, 2048 * 1024 * 2)
    k.srd(56, 6, 2048 * 1024 * 2, WS_H)
    k.srd(68, 6, 128 * 65536, WS_P)

    def resid():
        for s_ in range(4):
            k.e("buffer_load_dwordx4 v[%d:%d], v7, s[56:59], 0 offen offset:%d" % (32 + 4 * s_, 35 + 4 * s_, 1024 * s_))
        return 4
    sp.tail_hook = resid
    gemm_main(k, sp)
    k.e("s_lshl_b32 s30, s25, 13")
    k.e("v_add_u32 v4, s30, v9")
    k.e("s_xor_b32 s31, s25, 4")
    k.e("s_lshl_b32 s31, s31, 13")
    k.e("v_add_u32 v5, s31, v9")
    k.e("v_mov_b32 v60, 0xffff0000")
    k.e("s_mov_b32 s35, 0")
    k.e("s_mov_b32 s36, 1")
    k.e("s_lshl_b32 s30, s33, 16")
    k.e("s_lshl_b32 s31, s25, 13")
    k.e("s_add_u32 s30, s30, s31")
    k.e("v_add_u32 v22, s30, v9")
    k.e("v_add_u32 v23, 4096, v22")
    k.e("s_barrier")
    for q in range(8):
        k.e("ds_write_b128 v4, v[%d:%d] offset:%d" % (ACC + 32 + 4 * q, ACC + 35 + 4 * q, 1024 * q))
    L_na = k.newlab("noarr")
    k.e("s_cmp_lg_u32 s25, 0")
    k.e("s_cbranch_scc1 %s" % L_na)
    k.e("s_mov_b64 exec, 1")
    k.e("v_mov_b32 v24, %d" % 131072)
    k.e("ds_write_b32 v24, v21")
    k.e("s_mov_b64 exec, -1")
    k.lab(L_na)
    k.e("s_waitcnt lgkmcnt(0)")
    k.e("s_barrier")
    for q in range(8):
        k.e("ds_read_b128 v[%d:%d], v5 offset:%d" % (ACC + 32 + 4 * q, ACC + 35 + 4 * q, 1024 * q))
    k.e("v_mov_b32 v24, %d" % 131072)
    k.e("ds_read_b32 v25, v24")
    k.e("s_waitcnt lgkmcnt(0)")
    for i in range(0, 32, 2):
        k.e(pk("v_pk_add_f32", ACC + i, ACC + i, ACC + 32 + i))
    k.e("v_readfirstlane_b32 s37, v25")
    k.e("s_nop 3")
    k.e("s_lshr_b32 s37, s37, s35")
    k.e("s_and_b32 s37, s37, 0xff")
    L_second = k.newlab("second")
    k.e("s_cmp_lg_u32 s37, 0")
    k.e("s_cbranch_scc1 %s" % L_second)
    for q in range(8):
        k.e("buffer_store_dwordx4 v[%d:%d], v%d, s[68:71], 0 offen offset:%d sc1" % (ACC + 4 * q, ACC + 4 * q + 3, 22 if q < 4 else 23, 1024 * (q & 3)))
    k.e("s_waitcnt vmcnt(0)")
    k.e("s_barrier")
    L_fin = k.newlab("fin")
    k.e("s_cmp_lg_u32 s25, 0")
    k.e("s_cbranch_scc1 %s" % L_fin)
    k.e("s_mov_b64 exec, 1")
    k.e("v_mov_b32 v21, s36")
    k.e("buffer_atomic_add v21, v20, s[64:67], 0 offen offset:128 sc1")
    k.e("s_mov_b64 exec, -1")
    k.e("s_branch %s" % L_fin)
    k.lab(L_second)
    L_wait = k.newlab("wait")
    L_go = k.newlab("go")
    k.e("s_cmp_lg_u32 s25, 0")
    k.e("s_cbranch_scc1 %s" % L_go)
    k.lab(L_wait)
    k.e("buffer_load_dword v25, v20, s[64:67], 0 offen offset:128 sc1")
    k.e("s_waitcnt vmcnt(0)")
    k.e("v_readfirstlane_b32 s37, v25")
    k.e("s_nop 3")
    k.e("s_and_b32 s37, s37, s36")
    k.e("s_cmp_lg_u32 s37, 0")
    k.e("s_cbranch_scc1 %s" % L_go)
    k.e("s_sleep 2")
    k.e("s_branch %s" % L_wait)
    k.lab(L_go)
    k.e("s_barrier")
    for q in range(8):
        k.e("buffer_load_dwordx4 v[%d:%d], v%d, s[68:71], 0 offen offset:%d sc1" % (ACC + 32 + 4 * q, ACC + 35 + 4 * q, 22 if q < 4 else 23, 1024 * (q & 3)))
    EX = 65536
    k.e("s_lshl_b32 s30, s29, 5")
    k.e("v_and_b32 v3, 31, v2")
    k.e("v_add_u32 v3, s30, v3")
    k.e("v_mul_u32_u24 v3, 272, v3")
    k.e("v_lshrrev_b32 v5, 5, v2")
    k.e("v_lshl_add_u32 v3, v5, 3, v3")
    k.e("s_lshl_b32 s30, s28, 7")
    k.e("s_add_u32 s30, s30, %d" % EX)
    k.e("v_add_u32 v3, s30, v3")
    k.e("v_lshrrev_b32 v4, 4, v2")
    k.e("s_lshl_b32 s30, s25, 4")
    k.e("v_add_u32 v4, s30, v4")
    k.e("v_and_b32 v5, 15, v2")
    k.e("v_mul_u32_u24 v6, 272, v4")
    k.e("v_lshl_add_u32 v6, v5, 4, v6")
    k.e("v_add_u32 v6, %d, v6" % EX)
    k.e("v_add_u32 v4, s24, v4")
    k.e("v_lshlrev_b32 v4, 11, v4")
    k.e("v_lshl_add_u32 v4, v5, 4, v4")
    k.e("s_lshl_b32 s30, s22, 8")
    k.e("v_add_u32 v4, s30, v4")
    T = 128
    R = 144
    for nl in range(2):
        k.e("s_waitcnt vmcnt(%d)" % (4 - 4 * nl))
        A = ACC + 16 * nl
        for i in range(0, 16, 2):
            k.e(pk("v_pk_add_f32", A + i, A + i, A + 32 + i))
        for i in range(8):
            k.e("v_cvt_pk_bf16_f32 v%d, v%d, v%d" % (48 + i, A + 2 * i, A + 2 * i + 1))
        for i in range(8):
            k.e("v_lshlrev_b32 v%d, 16, v%d" % (T + 2 * i, 48 + i))
            k.e("v_and_b32 v%d, v60, v%d" % (T + 2 * i + 1, 48 + i))
            k.e("v_lshlrev_b32 v%d, 16, v%d" % (R + 2 * i, 32 + 8 * nl + i))
            k.e("v_and_b32 v%d, v60, v%d" % (R + 2 * i + 1, 32 + 8 * nl + i))
        for i in range(8):
            k.e(pk("v_pk_add_f32", T + 2 * i, T + 2 * i, R + 2 * i))
        for i in range(8):
            k.e("v_cvt_pk_bf16_f32 v%d, v%d, v%d" % (48 + i, T + 2 * i, T + 2 * i + 1))
        for q in range(4):
            k.e("ds_write_b64 v3, v[%d:%d] offset:%d" % (48 + 2 * q, 49 + 2 * q, 64 * nl + 16 * q))
        if nl == 0:
            k.e("s_nop 1")
    k.e("s_waitcnt lgkmcnt(0)")
    k.e("s_barrier")
    for i in range(4):
        k.e("ds_read_b128 v[%d:%d], v6 offset:%d" % (32 + 4 * i, 35 + 4 * i, 1088 * i))
    k.e("s_mov_b32 s30, 0")
    for i in range(4):
        k.e("s_waitcnt lgkmcnt(%d)" % (3 - i))
        k.e("buffer_store_dwordx4 v[%d:%d], v4, s[16:19], s30 offen%s" % (32 + 4 * i, 35 + 4 * i, WT))
        k.e("s_add_u32 s30, s30, 8192")
    k.lab(L_fin)
    k.stamp_store(5)
    k.lab(L_end)
    k.e("s_endpgm")
    return k, 160, (256, 512, NS * SB)


def main():
    kernels = [gen_k0(), gen_k1() if os.environ.get('K1A') else gen_k1b(), gen_k15(), gen_proj("k2_wo_kernel", "wo"), gen_k3() if os.environ.get("K3A") else gen_k3b(),
               gen_down2() if os.environ.get("NEWK4") else gen_proj("k4_down_kernel", "down")]
    hdr = open(REF).read().split("\n")
    out = []
    for ln in hdr:
        if ln.startswith("; @launch"):
            break
        out.append(ln)
    for k, vg, (g, b, lds) in kernels:
        out.append("; @launch kernel=%s grid=(%d,1,1) block=(%d,1,1) lds=%d" % (k.name, g, b, lds))
    out.append('.amdgcn_target "amdgcn-amd-amdhsa--gfx950"')
    out.append(".text")
    descs = []
    for k, vg, _ in kernels:
        t, d = k.text(vg)
        out.append(t)
        descs.append(d)
    out.append('.section .rodata,"a"')
    for d in descs:
        out.append(".p2align 6")
        out.append(d)
    dst = os.environ.get("DST", "stamp.s" if STAMP else OUT)
    open(dst, "w").write("\n".join(out) + "\n")
    print("wrote", dst, sum(len(k.lines) for k, _, _ in kernels), "lines")


if __name__ == "__main__":
    main()
```

```python
import os, math, struct

NAME = "sequential_preLN__linear_attn_block__glu_gated_geglu__prompt"
OUT = "cdna_kernels/%s.s" % NAME
REF = OUT + ".ref"

MB = 1 << 20
WS_XN = 0 * MB
WS_PQ = 4 * MB
WS_KVP = 8 * MB
WS_ZP = 10 * MB
WS_CS = 11 * MB
WS_CS2 = 11 * MB + 512 * 1024
WS_ST = 12 * MB
WS_O = 16 * MB
WS_H = 20 * MB
WS_HH = 24 * MB
WS_FLAG = 13 * MB
WS_SIZE = 268435456

KA_X, KA_WQKV, KA_WO, KA_BX, KA_WG, KA_WU, KA_WD, KA_OUT, KA_DBG, KA_WS = [8 * i for i in range(10)]

STAMP = bool(os.environ.get("STAMP"))
WT = os.environ.get("WT", " sc1")
WS_STAMP = 128 * MB
CODE_BYTES = int(os.environ.get("CODEB", "32768"))
f2u = lambda f: struct.unpack("<I", struct.pack("<f", f))[0]


class KB:
    def __init__(self, name):
        self.name = name
        self.lines = []
        self.nlab = 0
        self.nstamp = 0

    def stamp(self):
        if not STAMP:
            return
        i = self.nstamp
        self.nstamp += 1
        self.e("s_memtime s[%d:%d]" % (80 + 2 * i, 81 + 2 * i))
        if i == 0:
            self.e("s_memrealtime s[92:93]")
        self.e("s_waitcnt lgkmcnt(0)")

    def stamp_store(self, kidx):
        if not STAMP:
            return
        self.stamp()
        self.e("s_memrealtime s[94:95]")
        self.e("s_waitcnt lgkmcnt(0)")
        self.e("s_mov_b64 exec, -1")
        self.srd(76, 6, 1 << 20, WS_STAMP)
        self.e("s_lshl_b32 s98, s2, 8")
        self.e("s_lshl_b32 s97, s25, 5")
        self.e("s_add_u32 s98, s98, s97")
        self.e("s_add_u32 s98, s98, %d" % (kidx * 65536))
        self.e("v_mov_b32 v1, s98")
        for i in range(self.nstamp):
            self.e("v_mov_b32 v2, s%d" % (80 + 2 * i))
            self.e("buffer_store_dword v2, v1, s[76:79], 0 offen offset:%d" % (4 * i))
        for i, sr in enumerate((92, 94)):
            self.e("v_mov_b32 v2, s%d" % sr)
            self.e("buffer_store_dword v2, v1, s[76:79], 0 offen offset:%d" % (16 + 4 * i))

    def e(self, s):
        self.lines.append("    " + s)

    def lab(self, s):
        self.lines.append(s + ":")

    def newlab(self, s):
        self.nlab += 1
        return "L_%s_%s_%d" % (self.name, s, self.nlab)

    def srd(self, sd, sbase, nbytes, off=0):
        if off:
            self.e("s_add_u32 s%d, s%d, 0x%x" % (sd, sbase, off))
            self.e("s_addc_u32 s%d, s%d, 0" % (sd + 1, sbase + 1))
            self.e("s_and_b32 s%d, s%d, 0xffff" % (sd + 1, sd + 1))
        else:
            self.e("s_mov_b32 s%d, s%d" % (sd, sbase))
            self.e("s_and_b32 s%d, s%d, 0xffff" % (sd + 1, sbase + 1))
        self.e("s_mov_b32 s%d, 0x%x" % (sd + 2, nbytes))
        self.e("s_mov_b32 s%d, 0x00020000" % (sd + 3))

    def text(self, vgprs, sgprs=102):
        acc = (vgprs + 3) // 4 * 4
        out = [".globl %s" % self.name, ".p2align 8", ".type %s,@function" % self.name, "%s:" % self.name]
        out += self.lines
        return "\n".join(out), """.amdhsa_kernel %s
  .amdhsa_next_free_vgpr %d
  .amdhsa_next_free_sgpr %d
  .amdhsa_accum_offset %d
  .amdhsa_group_segment_fixed_size 0
  .amdhsa_kernarg_size 80
  .amdhsa_user_sgpr_count 2
  .amdhsa_user_sgpr_kernarg_segment_ptr 1
  .amdhsa_system_sgpr_workgroup_id_x 1
.end_amdhsa_kernel""" % (self.name, vgprs, sgprs, acc)


def wave_reduce_sum(k, v, stmp):
    k.e("s_nop 1")
    k.e("v_add_f32_dpp v%d, v%d, v%d quad_perm:[1,0,3,2] row_mask:0xf bank_mask:0xf" % (v, v, v))
    k.e("s_nop 1")
    k.e("v_add_f32_dpp v%d, v%d, v%d quad_perm:[2,3,0,1] row_mask:0xf bank_mask:0xf" % (v, v, v))
    k.e("s_nop 1")
    k.e("v_add_f32_dpp v%d, v%d, v%d row_half_mirror row_mask:0xf bank_mask:0xf" % (v, v, v))
    k.e("s_nop 1")
    k.e("v_add_f32_dpp v%d, v%d, v%d row_mirror row_mask:0xf bank_mask:0xf" % (v, v, v))
    k.e("s_nop 1")
    for i in range(4):
        k.e("v_readlane_b32 s%d, v%d, %d" % (stmp + i, v, 16 * i))
    k.e("s_nop 1")
    k.e("v_mov_b32 v%d, s%d" % (v, stmp))
    k.e("v_add_f32 v%d, s%d, v%d" % (v, stmp + 1, v))
    k.e("v_add_f32 v%d, s%d, v%d" % (v, stmp + 2, v))
    k.e("v_add_f32 v%d, s%d, v%d" % (v, stmp + 3, v))


def round_bf16(k, vd, vs):
    k.e("v_cvt_pk_bf16_f32 v%d, v%d, v%d" % (vd, vs, vs))
    k.e("v_lshlrev_b32 v%d, 16, v%d" % (vd, vd))


def pk(op, d, a, b, c=None):
    s = "%s v[%d:%d], v[%d:%d], v[%d:%d]" % (op, d, d + 1, a, a + 1, b, b + 1)
    if c is not None:
        s += ", v[%d:%d]" % (c, c + 1)
    return s


def wave_and_lane(k):
    k.e("v_lshrrev_b32 v1, 6, v0")
    k.e("v_and_b32 v2, 63, v0")
    k.e("s_nop 0")
    k.e("v_readfirstlane_b32 s25, v1")


def wfrag_lanepat(k, vd, vt, hh_stride):
    k.e("v_bfe_u32 v%d, v2, 2, 2" % vd)
    k.e("v_lshlrev_b32 v%d, 6, v%d" % (vd, vd))
    k.e("v_bfe_u32 v%d, v2, 4, 1" % vt)
    k.e("v_lshl_add_u32 v%d, v%d, 5, v%d" % (vd, vt, vd))
    k.e("v_and_b32 v%d, 3, v2" % vt)
    k.e("v_lshl_add_u32 v%d, v%d, 3, v%d" % (vd, vt, vd))
    k.e("v_lshrrev_b32 v%d, 5, v2" % vt)
    k.e("v_mul_u32_u24 v%d, %d, v%d" % (vt, hh_stride, vt))
    k.e("v_add_u32 v%d, v%d, v%d" % (vd, vd, vt))


def emit_colsum(k, L_end, sidx):
    k.e("s_cmp_ge_u32 s%d, 112" % sidx)
    k.e("s_cselect_b32 s28, s62, s60")
    k.e("s_cselect_b32 s29, s63, s61")
    k.e("s_cselect_b32 s30, 112, 0")
    k.e("s_cselect_b32 s38, %d, 0" % (3584 * 4))
    k.e("s_sub_u32 s31, s%d, s30" % sidx)
    k.e("s_mul_i32 s32, s31, 2341")
    k.e("s_lshr_b32 s32, s32, 16")
    k.e("s_mul_i32 s33, s32, 28")
    k.e("s_sub_u32 s33, s31, s33")
    k.srd(8, 28, 1024 * 3584 * 2)
    k.srd(12, 6, 4 * 2 * 3584 * 4, WS_CS)
    k.e("v_and_b32 v1, 15, v0")
    k.e("v_lshrrev_b32 v2, 4, v0")
    k.e("s_lshl_b32 s34, s33, 8")
    k.e("s_mul_i32 s35, s32, %d" % (256 * 7168))
    k.e("s_add_u32 s34, s34, s35")
    k.e("s_movk_i32 s35, 7168")
    k.e("v_mul_lo_u32 v3, v2, s35")
    k.e("v_lshl_add_u32 v3, v1, 4, v3")
    k.e("v_add_u32 v3, s34, v3")
    k.e("s_mov_b32 s34, 0")
    for it in range(16):
        k.e("buffer_load_dwordx4 v[%d:%d], v3, s[8:11], s34 offen" % (16 + 4 * it, 19 + 4 * it))
        if it != 15:
            k.e("s_add_u32 s34, s34, %d" % (16 * 7168))
    k.e("v_mov_b32 v4, 0xffff0000")
    for i in range(8):
        k.e("v_mov_b32 v%d, 0" % (8 + i))
    for it in range(16):
        k.e("s_waitcnt vmcnt(%d)" % (15 - it))
        for i in range(4):
            s_ = 16 + 4 * it + i
            k.e("v_lshlrev_b32 v5, 16, v%d" % s_)
            k.e("v_and_b32 v6, v4, v%d" % s_)
            k.e("v_add_f32 v%d, v%d, v5" % (8 + 2 * i, 8 + 2 * i))
            k.e("v_add_f32 v%d, v%d, v6" % (9 + 2 * i, 9 + 2 * i))
    k.e("v_lshlrev_b32 v5, 5, v0")
    k.e("ds_write_b128 v5, v[8:11]")
    k.e("ds_write_b128 v5, v[12:15] offset:16")
    k.e("s_waitcnt lgkmcnt(0)")
    k.e("s_barrier")
    k.e("v_cmp_gt_u32 vcc, 128, v0")
    k.e("s_and_saveexec_b64 s[36:37], vcc")
    k.e("s_cbranch_execz %s" % L_end)
    k.e("v_lshlrev_b32 v5, 2, v0")
    for rg in range(16):
        k.e("ds_read_b32 v%d, v5 offset:%d" % (16 + rg, rg * 512))
    k.e("s_waitcnt lgkmcnt(0)")
    for rg in range(1, 16):
        k.e("v_add_f32 v16, v16, v%d" % (16 + rg))
    k.e("s_mul_i32 s35, s32, %d" % (2 * 3584 * 4))
    k.e("s_add_u32 s35, s35, s38")
    k.e("s_lshl_b32 s36, s33, 9")
    k.e("s_add_u32 s35, s35, s36")
    k.e("v_add_u32 v5, s35, v5")
    k.e("buffer_store_dword v16, v5, s[12:15], 0 offen")
    k.e("s_branch %s" % L_end)


def gen_k0():
    k = KB("k0_ln_kernel")
    L_end = k.newlab("end")
    L_ln = k.newlab("ln")
    NCS0 = int(os.environ.get("CSK0", "0"))
    k.e("s_cmp_ge_u32 s2, %d" % (256 + NCS0))
    k.e("s_cbranch_scc1 %s" % L_end)
    k.e("s_load_dwordx4 s[4:7], s[0:1], %d" % KA_X)
    k.e("s_load_dwordx2 s[20:21], s[0:1], %d" % KA_WS)
    k.e("s_load_dwordx4 s[60:63], s[0:1], %d" % KA_WG)
    k.e("s_load_dwordx2 s[64:65], s[0:1], %d" % KA_WO)
    k.e("s_waitcnt lgkmcnt(0)")
    if NCS0:
        k.e("s_cmp_lt_u32 s2, 256")
        k.e("s_cbranch_scc1 %s" % L_ln)
        k.e("s_sub_u32 s3, s2, 256")
        k.e("s_mov_b32 s6, s20")
        k.e("s_mov_b32 s7, s21")
        emit_colsum(k, L_end, 3)
        k.lab(L_ln)
    k.srd(8, 4, 2048 * 1024 * 2)
    k.srd(12, 20, 2048 * 1024 * 2, WS_XN)
    k.srd(24, 6, 1024 * 3072 * 2)
    k.srd(28, 64, 1024 * 1024 * 2)
    k.e("v_lshrrev_b32 v62, 6, v0")
    k.e("v_and_b32 v2, 63, v0")
    k.e("s_lshl_b32 s3, s2, 3")
    k.e("v_lshlrev_b32 v3, 1, v62")
    k.e("v_add_u32 v3, s3, v3")
    k.e("v_lshlrev_b32 v3, 11, v3")
    k.e("v_lshl_add_u32 v1, v2, 4, v3")
    for r in range(2):
        k.e("buffer_load_dwordx4 v[%d:%d], v1, s[8:11], 0 offen offset:%d" % (4 + 8 * r, 7 + 8 * r, 2048 * r))
        k.e("buffer_load_dwordx4 v[%d:%d], v1, s[8:11], 0 offen offset:%d" % (8 + 8 * r, 11 + 8 * r, 2048 * r + 1024))
    k.e("v_lshrrev_b32 v61, 1, v3")
    k.e("v_mul_u32_u24 v3, 3, v61")
    k.e("v_lshl_add_u32 v3, v2, 7, v3")
    k.e("buffer_load_dword v64, v3, s[24:27], 0 offen" if not os.environ.get("NOTOUCH") else "buffer_load_dword v64, v1, s[8:11], 0 offen")
    k.e("v_lshl_add_u32 v3, v2, 5, v61")
    k.e("buffer_load_dword v65, v3, s[28:31], 0 offen" if not os.environ.get("NOTOUCH") else "buffer_load_dword v65, v1, s[8:11], 0 offen")
    k.e("v_mov_b32 v60, 0xffff0000")
    k.e("v_and_b32 v63, 7, v2")
    for r in range(2):
        k.e("s_waitcnt vmcnt(%d)" % (4 - 2 * r))
        src = 4 + 8 * r
        f = 24
        for i in range(8):
            k.e("v_lshlrev_b32 v%d, 16, v%d" % (f + 2 * i, src + i))
            k.e("v_and_b32 v%d, v60, v%d" % (f + 2 * i + 1, src + i))
        k.e("v_add_f32 v40, v%d, v%d" % (f, f + 1))
        for i in range(2, 16):
            k.e("v_add_f32 v40, v40, v%d" % (f + i))
        wave_reduce_sum(k, 40, 16)
        k.e("v_mul_f32 v40, 0x3a800000, v40")
        k.e("v_mov_b32 v41, 0")
        for i in range(16):
            k.e("v_sub_f32 v42, v%d, v40" % (f + i))
            k.e("v_fmac_f32 v41, v42, v42")
        wave_reduce_sum(k, 41, 16)
        k.e("v_mul_f32 v41, 0x3a800000, v41")
        round_bf16(k, 40, 40)
        round_bf16(k, 41, 41)
        k.e("v_add_f32 v41, 0x3727c5ac, v41")
        round_bf16(k, 41, 41)
        k.e("v_sqrt_f32 v41, v41")
        k.e("s_nop 0")
        round_bf16(k, 41, 41)
        k.e("v_rcp_f32 v41, v41")
        k.e("s_nop 0")
        for i in range(8):
            k.e("v_sub_f32 v42, v%d, v40" % (f + 2 * i))
            k.e("v_sub_f32 v43, v%d, v40" % (f + 2 * i + 1))
            k.e("v_cvt_pk_bf16_f32 v42, v42, v43")
            k.e("v_and_b32 v43, v60, v42")
            k.e("v_lshlrev_b32 v42, 16, v42")
            k.e("v_mul_f32 v42, v42, v41")
            k.e("v_mul_f32 v43, v43, v41")
            k.e("v_cvt_pk_bf16_f32 v%d, v42, v43" % (44 + 8 * r + i))
        k.e("v_lshl_add_u32 v42, v62, 1, %d" % r)
        k.e("v_xor_b32 v42, v42, v63")
        k.e("v_lshlrev_b32 v42, 4, v42")
        k.e("v_lshl_add_u32 v42, v2, 7, v42")
        k.e("ds_write_b128 v42, v[%d:%d]" % (44 + 8 * r, 47 + 8 * r))
        k.e("ds_write_b128 v42, v[%d:%d] offset:8192" % (48 + 8 * r, 51 + 8 * r))
    k.e("s_waitcnt lgkmcnt(0)")
    k.e("s_barrier")
    k.e("v_and_b32 v4, 7, v0")
    k.e("v_lshrrev_b32 v5, 3, v0")
    k.e("v_and_b32 v6, 7, v5")
    k.e("v_xor_b32 v6, v6, v4")
    k.e("v_lshlrev_b32 v6, 4, v6")
    k.e("v_lshl_add_u32 v6, v5, 7, v6")
    for i in range(4):
        k.e("ds_read_b128 v[%d:%d], v6 offset:%d" % (8 + 4 * i, 11 + 4 * i, 4096 * i))
    k.e("s_lshr_b32 s16, s2, 2")
    k.e("s_lshl_b32 s16, s16, 16")
    k.e("s_and_b32 s17, s2, 3")
    k.e("s_lshl_b32 s17, s17, 7")
    k.e("s_add_u32 s16, s16, s17")
    k.e("v_lshlrev_b32 v7, 9, v5")
    k.e("v_lshl_add_u32 v7, v4, 4, v7")
    k.e("v_add_u32 v7, s16, v7")
    k.e("s_mov_b32 s17, 0")
    for i in range(4):
        k.e("s_waitcnt lgkmcnt(%d)" % (3 - i))
        k.e("buffer_store_dwordx4 v[%d:%d], v7, s[12:15], s17 offen%s" % (8 + 4 * i, 11 + 4 * i, WT))
        k.e("s_add_u32 s17, s17, 16384")
    if os.environ.get("CODEPF"):
        Lc = k.newlab("nocode")
        k.e("s_cmp_ge_u32 s2, 16")
        k.e("s_cbranch_scc1 %s" % Lc)
        k.e("s_getpc_b64 s[40:41]")
        k.e("s_mov_b32 s44, s40")
        k.e("s_and_b32 s45, s41, 0xffff")
        k.e("s_mov_b32 s46, %d" % CODE_BYTES)
        k.e("s_mov_b32 s47, 0x00020000")
        k.e("v_lshlrev_b32 v3, 6, v0")
        for i in range((CODE_BYTES + 16383) // 16384):
            k.e("s_mov_b32 s48, %d" % (16384 * i))
            k.e("buffer_load_dword v%d, v3, s[44:47], s48 offen" % (66 + i))
        k.lab(Lc)
    k.lab(L_end)
    k.e("s_endpgm")
    return k, 80, (256 + NCS0, 256, 16384)


class Spec:
    pass


def gemm_dma_issue(k, sp, i):
    srd, voff, soff, sl = sp.dma[i]
    if i in getattr(sp, "dma_abs", {}):
        k.e("s_and_b32 s95, s%d, s%d" % (sp.s_wr, sp.dma_abs[i]))
        k.e("s_add_u32 m0, s95, s%d" % sl)
    else:
        k.e("s_add_u32 m0, s%d, s%d" % (sp.s_wr, sl))
    k.e("s_nop 0")
    k.e("buffer_load_dwordx4 v%d, s[%d:%d], s%d offen lds" % (voff, srd, srd + 3, soff))


def gemm_dma_advance(k, sp):
    for s, inc in sp.sadv:
        if isinstance(inc, str):
            k.e("s_add_u32 s%d, s%d, %s" % (s, s, inc))
        else:
            k.e("s_add_u32 s%d, s%d, 0x%x" % (s, s, inc))
    k.e("s_add_u32 s%d, s%d, %d" % (sp.s_wr, sp.s_wr, sp.stage_bytes))
    k.e("s_cmp_ge_u32 s%d, %d" % (sp.s_wr, sp.stage_bytes * sp.NS))
    k.e("s_cselect_b32 s%d, 0, s%d" % (sp.s_wr, sp.s_wr))


def gemm_prologue(k, sp):
    k.stamp()
    k.e("s_mov_b32 s%d, 0" % sp.s_wr)
    k.e("s_mov_b32 s%d, 0" % sp.s_rd)
    for s in range(sp.NS - 1):
        for i in range(len(sp.dma)):
            gemm_dma_issue(k, sp, i)
        gemm_dma_advance(k, sp)


def gemm_main(k, sp):
    NS, nst, SB = sp.NS, sp.nst, sp.stage_bytes
    nd = len(sp.dma)
    nsteps = len(sp.steps)

    def addr_next():
        k.e("s_add_u32 s%d, s%d, %d" % (sp.s_rd, sp.s_rd, SB))
        k.e("s_cmp_ge_u32 s%d, %d" % (sp.s_rd, SB * NS))
        k.e("s_cselect_b32 s%d, 0, s%d" % (sp.s_rd, sp.s_rd))
        k.e("s_cselect_b32 s96, s97, %d" % SB)
        for vc in sp.addr:
            k.e("v_add_u32 v%d, s96, v%d" % (vc, vc))

    def read_instr(rd, base):
        op, reg, addr, imm = rd
        n = 4 if op == "ds_read_b128" else 2
        if os.environ.get("NOLDS"):
            return
        if os.environ.get("HALFLDS") and k.name.startswith("k3") and op != "ds_read_b128" and ((reg - 4) // 4) % 2 == 1:
            k.e("s_nop 0")
            return
        k.e("%s v[%d:%d], v%d offset:%d" % (op, base + reg, base + reg + n - 1, addr, imm))

    k.e("s_mov_b32 s97, %d" % (-(NS - 1) * SB))
    if os.environ.get("PRIO"):
        Lp = k.newlab("prio")
        k.e("s_cmp_lt_u32 s25, 4")
        k.e("s_cbranch_scc1 %s" % Lp)
        k.e("s_setprio 1")
        k.lab(Lp)
    early = getattr(sp, "early", True)
    if early:
        k.e("s_waitcnt vmcnt(%d)" % ((NS - 2) * nd))
        k.e("s_barrier")
        k.stamp()
        for rd in sp.steps[0]["reads"]:
            read_instr(rd, sp.fset[0])
    else:
        k.stamp()
    gstep = [0]

    def stage(do_dma, last, vm):
        k.e("s_waitcnt vmcnt(%d)" % vm)
        k.e("s_barrier")
        dma_todo = list(range(nd)) if do_dma else []
        if not early:
            for rd in sp.steps[0]["reads"]:
                read_instr(rd, sp.fset[gstep[0] & 1])
            while dma_todo:
                gemm_dma_issue(k, sp, dma_todo.pop(0))
            if do_dma:
                gemm_dma_advance(k, sp)
        for j, st in enumerate(sp.steps):
            cur = sp.fset[gstep[0] & 1]
            nxt = sp.fset[(gstep[0] + 1) & 1]
            lastj = (j == nsteps - 1)
            nreads = [] if (lastj and (last or not early)) else sp.steps[(j + 1) % nsteps]["reads"]
            R = len(st["reads"])
            M = len(st["mfma"])
            issued = 0
            waited = -1
            if lastj and not last and early:
                addr_next()
            for i, (acc, a, b, dep) in enumerate(st["mfma"]):
                if dep > waited:
                    n = (R - 1 - dep) + issued
                    k.e("s_waitcnt lgkmcnt(%d)" % min(n, 15))
                    waited = dep
                if not os.environ.get("NOMFMA"):
                    k.e("v_mfma_f32_32x32x16_bf16 v[%d:%d], v[%d:%d], v[%d:%d], v[%d:%d]" % (
                        acc, acc + 15, cur + a, cur + a + 3, cur + b, cur + b + 3, acc, acc + 15))
                tgt = (len(nreads) * (i + 1) + M - 1) // M
                while issued < tgt:
                    read_instr(nreads[issued], nxt)
                    issued += 1
                if dma_todo:
                    per = (nd + M * nsteps - 1) // (M * nsteps)
                    for _ in range(max(per, 1)):
                        if dma_todo:
                            gemm_dma_issue(k, sp, dma_todo.pop(0))
                    if not dma_todo:
                        gemm_dma_advance(k, sp)
            gstep[0] += 1
        assert not dma_todo
        if not early and not last:
            addr_next()

    U = 1 if nsteps % 2 == 0 else 2
    nmain = nst - (NS - 1)
    nloop = (nmain // U) * U
    L = k.newlab("loop")
    if nloop > 0:
        k.e("s_mov_b32 s%d, %d" % (sp.s_cnt, nloop // U))
        k.lab(L)
        for u in range(U):
            stage(True, False, (NS - (3 if early else 2)) * nd)
        k.e("s_sub_u32 s%d, s%d, 1" % (sp.s_cnt, sp.s_cnt))
        k.e("s_cmp_lg_u32 s%d, 0" % sp.s_cnt)
        k.e("s_cbranch_scc1 %s" % L)
    textra = 0
    for s in range(nloop, nst):
        do_dma = (s + NS - 1) < nst
        issued_upto = min(s + NS - 2, nst - 1)
        need = min(s + 1, nst - 1) if early else s
        vm = (issued_upto - need) * nd + textra
        stage(do_dma, s == nst - 1, min(vm, 63))
        if (not do_dma) and getattr(sp, "tail_hook", None) and textra == 0:
            textra = sp.tail_hook()
    k.stamp()


def phi16(k, A, T, dst, vmask, vc):
    for i in range(8):
        k.e("v_cvt_pk_bf16_f32 v%d, v%d, v%d" % (T + i, A + 2 * i, A + 2 * i + 1))
    for i in range(8):
        k.e("v_lshlrev_b32 v%d, 16, v%d" % (A + 2 * i, T + i))
        k.e("v_and_b32 v%d, v%d, v%d" % (A + 2 * i + 1, vmask, T + i))
    for i in range(8):
        k.e(pk("v_pk_mul_f32", T + 2 * i, A + 2 * i, vc))
    for i in range(16):
        k.e("v_min_f32 v%d, 0, v%d" % (T + i, T + i))
    for i in range(16):
        k.e("v_exp_f32 v%d, v%d" % (T + i, T + i))
    for i in range(16):
        k.e("v_max_f32 v%d, 0, v%d" % (A + i, A + i))
    for i in range(8):
        k.e(pk("v_pk_add_f32", T + 2 * i, T + 2 * i, vc + 2))
    for i in range(8):
        k.e(pk("v_pk_add_f32", A + 2 * i, A + 2 * i, T + 2 * i))
    for i in range(8):
        k.e("v_cvt_pk_bf16_f32 v%d, v%d, v%d" % (dst + i, A + 2 * i, A + 2 * i + 1))


def gen_k1():
    k = KB("k1_qkv_kernel")
    L_end = k.newlab("end")
    BK, NS = 64, 4
    XB = 16384
    WB = (BK // 4) * 6 * 256
    SB = XB + WB
    k.e("s_cmp_ge_u32 s2, 256")
    k.e("s_cbranch_scc1 %s" % L_end)
    k.e("s_load_dwordx2 s[4:5], s[0:1], %d" % KA_WQKV)
    k.e("s_load_dwordx2 s[6:7], s[0:1], %d" % KA_WS)
    k.e("s_and_b32 s20, s2, 7")
    k.e("s_lshr_b32 s21, s2, 3")
    k.e("s_and_b32 s22, s20, 3")
    k.e("s_lshl_b32 s22, s22, 2")
    k.e("s_and_b32 s23, s21, 3")
    k.e("s_add_u32 s22, s22, s23")
    k.e("s_lshr_b32 s23, s20, 2")
    k.e("s_lshl_b32 s23, s23, 3")
    k.e("s_lshr_b32 s24, s21, 2")
    k.e("s_add_u32 s23, s23, s24")
    wave_and_lane(k)
    k.e("s_lshr_b32 s26, s25, 2")
    k.e("s_bfe_u32 s27, s25, 0x10001")
    k.e("s_and_b32 s28, s25, 1")
    dma = []
    k.e("v_lshlrev_b32 v9, 4, v2")
    k.e("s_lshl_b32 s30, s23, 2")
    k.e("s_lshr_b32 s31, s25, 1")
    k.e("s_add_u32 s30, s30, s31")
    k.e("s_lshl_b32 s30, s30, 6")
    k.e("s_lshl_b32 s31, s28, 1")
    k.e("s_add_u32 s30, s30, s31")
    k.e("s_lshl_b32 s30, s30, 10")
    k.e("v_add_u32 v10, s30, v9")
    k.e("v_add_u32 v11, 1024, v10")
    for i in range(2):
        k.e("s_lshl_b32 s%d, s25, 11" % (40 + i))
        k.e("s_add_u32 s%d, s%d, %d" % (40 + i, 40 + i, 1024 * i))
        dma.append((8, 10 + i, 50, 40 + i))
    for i in range(3):
        k.e("s_mul_i32 s30, s25, 12")
        k.e("s_add_u32 s30, s30, %d" % (4 * i))
        k.e("v_lshrrev_b32 v3, 4, v2")
        k.e("v_add_u32 v3, s30, v3")
        k.e("v_mul_u32_u24 v4, 43, v3")
        k.e("v_lshrrev_b32 v4, 8, v4")
        k.e("v_mul_u32_u24 v5, 6, v4")
        k.e("v_sub_u32 v5, v3, v5")
        k.e("v_bfe_u32 v6, v2, 2, 2")
        k.e("v_lshl_add_u32 v6, v4, 2, v6")
        k.e("v_mul_u32_u24 v6, 6144, v6")
        k.e("v_lshrrev_b32 v7, 1, v5")
        k.e("v_lshl_add_u32 v6, v7, 11, v6")
        k.e("v_and_b32 v7, 1, v5")
        k.e("v_lshl_add_u32 v6, v7, 6, v6")
        k.e("v_and_b32 v7, 3, v2")
        k.e("v_lshl_add_u32 v6, v7, 4, v6")
        k.e("s_lshl_b32 s31, s22, 7")
        k.e("v_add_u32 v%d, s31, v6" % (12 + i))
        k.e("s_mul_i32 s%d, s25, 3072" % (42 + i))
        k.e("s_add_u32 s%d, s%d, %d" % (42 + i, 42 + i, XB + 1024 * i))
        dma.append((12, 12 + i, 51, 42 + i))
    k.e("s_mov_b32 s50, 0")
    k.e("s_mov_b32 s51, 0")
    k.e("s_waitcnt lgkmcnt(0)")
    k.srd(8, 6, 2048 * 1024 * 2, WS_XN)
    k.srd(12, 4, 1024 * 3072 * 2)
    sp = Spec()
    sp.NS, sp.nst, sp.stage_bytes = NS, 1024 // BK, SB
    sp.dma = dma
    sp.sadv = [(50, 4096), (51, BK * 6144)]
    sp.s_wr, sp.s_rd, sp.s_cnt = 52, 53, 54
    gemm_prologue(k, sp)
    for tl in range(2):
        k.e("s_xor_b32 s30, s26, %d" % tl)
        k.e("s_lshl_b32 s31, s27, 1")
        k.e("s_add_u32 s30, s30, s31")
        k.e("s_lshl_b32 s30, s30, 2")
        k.e("s_lshl_b32 s31, s26, 1")
        k.e("s_add_u32 s30, s30, s31")
        k.e("s_lshl_b32 s30, s30, 10")
        k.e("v_add_u32 v%d, s30, v9" % (16 + tl))
    wfrag_lanepat(k, 3, 4, 2 * 6 * 256)
    k.e("s_mul_i32 s30, s26, %d" % (8 * 6 * 256))
    k.e("s_lshl_b32 s31, s28, 8")
    k.e("s_add_u32 s30, s30, s31")
    k.e("s_add_u32 s30, s30, %d" % XB)
    k.e("v_add_u32 v18, s30, v3")
    ACC = 32
    for i in range(96):
        k.e("v_mov_b32 v%d, 0" % (ACC + i))
    F0, F1 = 128, 148
    steps = []
    for jj in range(2):
        reads = [("ds_read_b128", 0, 16, 1024 * jj)]
        for p in range(3):
            for i in range(2):
                reads.append(("ds_read_b64_tr_b16", 8 + 4 * p + 2 * i, 18, ((4 * jj + i) * 6 + 2 * p) * 256))
            if p == 0:
                reads.append(("ds_read_b128", 4, 17, 1024 * jj))
        mf = [(ACC + 0 * 16, 8, 0, 2), (ACC + 3 * 16, 8, 4, 3), (ACC + 1 * 16, 0, 12, 5),
              (ACC + 4 * 16, 4, 12, 5), (ACC + 2 * 16, 0, 16, 7), (ACC + 5 * 16, 4, 16, 7)]
        steps.append(dict(reads=reads, mfma=mf))
    sp.addr = [16, 17, 18]
    sp.steps = steps
    sp.fset = [F0, F1]
    gemm_main(k, sp)
    k.e("s_mul_i32 s30, s25, 12288")
    k.e("v_add_u32 v4, s30, v9")
    k.e("s_xor_b32 s31, s25, 4")
    k.e("s_mul_i32 s31, s31, 12288")
    k.e("v_add_u32 v5, s31, v9")
    k.e("v_mov_b32 v20, 0x3fb8aa3b")
    k.e("v_mov_b32 v21, 0x3fb8aa3b")
    k.e("v_mov_b32 v22, 0x358637bd")
    k.e("v_mov_b32 v23, 0x358637bd")
    k.e("v_mov_b32 v24, 0xffff0000")
    k.srd(16, 6, 2048 * 1024 * 2, WS_PQ)
    k.srd(60, 6, 16 * 32 * 4096, WS_KVP)
    k.srd(56, 6, 16 * 32 * 128, WS_ZP)
    k.e("s_barrier")
    for q in range(12):
        k.e("ds_write_b128 v4, v[%d:%d] offset:%d" % (ACC + 48 + 4 * q, ACC + 51 + 4 * q, 1024 * q))
    k.e("s_waitcnt lgkmcnt(0)")
    k.e("s_barrier")
    for q in range(12):
        k.e("ds_read_b128 v[%d:%d], v5 offset:%d" % (ACC + 48 + 4 * q, ACC + 51 + 4 * q, 1024 * q))
    PQ, PK, PV = 128, 136, 144
    T = 152
    for grp in (1, 2, 0):
        k.e("s_waitcnt lgkmcnt(%d)" % {1: 4, 2: 0, 0: 0}[grp])
        for q in range(4 * grp, 4 * grp + 4):
            for i in range(0, 4, 2):
                k.e(pk("v_pk_add_f32", ACC + 4 * q + i, ACC + 4 * q + i, ACC + 48 + 4 * q + i))
        if grp == 1:
            phi16(k, ACC + 16, T, PK, 24, 20)
        elif grp == 2:
            for i in range(8):
                k.e("v_cvt_pk_bf16_f32 v%d, v%d, v%d" % (PV + i, ACC + 32 + 2 * i, ACC + 33 + 2 * i))
            KV = ACC + 64
            k.e("s_nop 1")
            k.e("v_mfma_f32_32x32x16_bf16 v[%d:%d], v[%d:%d], v[%d:%d], 0" % (KV, KV + 15, PK, PK + 3, PV, PV + 3))
            k.e("v_mfma_f32_32x32x16_bf16 v[%d:%d], v[%d:%d], v[%d:%d], v[%d:%d]" % (KV, KV + 15, PK + 4, PK + 7, PV + 4, PV + 7, KV, KV + 15))
            for i in range(8):
                k.e("v_lshlrev_b32 v%d, 16, v%d" % (T + 2 * i, PK + i))
                k.e("v_and_b32 v%d, v24, v%d" % (T + 2 * i + 1, PK + i))
            for st_ in (8, 4, 2):
                for i in range(0, st_, 2):
                    k.e(pk("v_pk_add_f32", T + i, T + i, T + st_ + i))
            k.e("v_add_f32 v25, v%d, v%d" % (T, T + 1))
        else:
            phi16(k, ACC, T, PQ, 24, 20)
    k.e("s_lshl_b32 s30, s23, 2")
    k.e("s_lshl_b32 s31, s27, 1")
    k.e("s_add_u32 s30, s30, s31")
    k.e("s_add_u32 s30, s30, s26")
    k.e("s_lshl_b32 s30, s30, 6")
    k.e("s_lshl_b32 s31, s22, 1")
    k.e("s_add_u32 s31, s31, s28")
    k.e("s_lshl_b32 s32, s31, 1")
    k.e("s_add_u32 s30, s30, s32")
    k.e("s_lshl_b32 s30, s30, 10")
    k.e("v_add_u32 v3, s30, v9")
    k.e("buffer_store_dwordx4 v[%d:%d], v3, s[16:19], 0 offen%s" % (PQ, PQ + 3, WT))
    k.e("buffer_store_dwordx4 v[%d:%d], v3, s[16:19], 0 offen offset:1024%s" % (PQ + 4, PQ + 7, WT))
    KVL = 98304
    ZL = KVL + 32768
    k.e("s_lshl_b32 s30, s25, 12")
    k.e("s_add_u32 s30, s30, %d" % KVL)
    k.e("v_add_u32 v4, s30, v9")
    k.e("s_lshl_b32 s30, s25, 8")
    k.e("s_add_u32 s30, s30, %d" % ZL)
    k.e("v_lshlrev_b32 v5, 2, v2")
    k.e("v_add_u32 v5, s30, v5")
    k.e("ds_write_b32 v5, v25")
    for q in range(4):
        k.e("ds_write_b128 v4, v[%d:%d] offset:%d" % (KV + 4 * q, KV + 4 * q + 3, 1024 * q))
    k.e("s_lshr_b32 s30, s25, 1")
    k.e("s_lshl_b32 s31, s30, 10")
    k.e("s_lshl_b32 s32, s28, 12")
    k.e("s_add_u32 s31, s31, s32")
    k.e("s_add_u32 s31, s31, %d" % KVL)
    k.e("v_add_u32 v4, s31, v9")
    k.e("s_lshl_b32 s32, s28, 8")
    k.e("s_add_u32 s32, s32, %d" % ZL)
    k.e("v_and_b32 v6, 31, v2")
    k.e("v_lshlrev_b32 v6, 2, v6")
    k.e("v_add_u32 v6, s32, v6")
    k.e("s_waitcnt lgkmcnt(0)")
    k.e("s_barrier")
    for j in range(4):
        k.e("ds_read_b128 v[%d:%d], v4 offset:%d" % (ACC + 4 * j, ACC + 4 * j + 3, 8192 * j))
    for j in range(4):
        k.e("ds_read_b32 v%d, v6 offset:%d" % (ACC + 16 + 2 * j, 512 * j))
        k.e("ds_read_b32 v%d, v6 offset:%d" % (ACC + 17 + 2 * j, 512 * j + 128))
    k.e("s_lshl_b32 s33, s23, 5")
    k.e("s_lshl_b32 s34, s22, 1")
    k.e("s_add_u32 s33, s33, s34")
    k.e("s_add_u32 s33, s33, s28")
    k.e("s_lshl_b32 s34, s33, 12")
    k.e("s_lshl_b32 s35, s30, 10")
    k.e("s_add_u32 s34, s34, s35")
    k.e("v_add_u32 v4, s34, v9")
    k.e("s_waitcnt lgkmcnt(8)")
    for i in range(0, 4, 2):
        k.e(pk("v_pk_add_f32", ACC + i, ACC + i, ACC + 4 + i))
        k.e(pk("v_pk_add_f32", ACC + 8 + i, ACC + 8 + i, ACC + 12 + i))
        k.e(pk("v_pk_add_f32", ACC + i, ACC + i, ACC + 8 + i))
    k.e("buffer_store_dwordx4 v[%d:%d], v4, s[60:63], 0 offen%s" % (ACC, ACC + 3, WT))
    L_fin = k.newlab("fin")
    k.e("s_cmp_lg_u32 s30, 0")
    k.e("s_cbranch_scc1 %s" % L_fin)
    k.e("s_waitcnt lgkmcnt(0)")
    for i in range(1, 8):
        k.e("v_add_f32 v%d, v%d, v%d" % (ACC + 16, ACC + 16, ACC + 16 + i))
    k.e("v_cmp_gt_u32 vcc, 32, v2")
    k.e("s_and_saveexec_b64 s[36:37], vcc")
    k.e("s_lshl_b32 s34, s33, 7")
    k.e("v_lshlrev_b32 v6, 2, v2")
    k.e("v_add_u32 v6, s34, v6")
    k.e("buffer_store_dword v%d, v6, s[56:59], 0 offen%s" % (ACC + 16, WT))
    k.lab(L_fin)
    k.stamp_store(1)
    k.lab(L_end)
    k.e("s_endpgm")
    return k, 168, (256, 512, NS * SB)


def gen_k1b():
    k = KB("k1_qkv_kernel")
    L_end = k.newlab("end")
    BK, NS = 64, 4
    XB = 16384
    WB = (BK // 4) * 6 * 256
    SB = XB + WB
    k.e("s_cmp_ge_u32 s2, 256")
    k.e("s_cbranch_scc1 %s" % L_end)
    k.e("s_load_dwordx2 s[4:5], s[0:1], %d" % KA_WQKV)
    k.e("s_load_dwordx2 s[6:7], s[0:1], %d" % KA_WS)
    k.e("s_and_b32 s20, s2, 7")
    k.e("s_lshr_b32 s21, s2, 3")
    k.e("s_and_b32 s22, s20, 3")
    k.e("s_lshl_b32 s22, s22, 2")
    k.e("s_and_b32 s23, s21, 3")
    k.e("s_add_u32 s22, s22, s23")
    k.e("s_lshr_b32 s23, s20, 2")
    k.e("s_lshl_b32 s23, s23, 3")
    k.e("s_lshr_b32 s24, s21, 2")
    k.e("s_add_u32 s23, s23, s24")
    wave_and_lane(k)
    k.e("s_lshr_b32 s27, s25, 1")
    k.e("s_and_b32 s28, s25, 1")
    dma = []
    k.e("v_lshlrev_b32 v9, 4, v2")
    k.e("s_lshl_b32 s30, s23, 2")
    k.e("s_lshr_b32 s31, s25, 1")
    k.e("s_add_u32 s30, s30, s31")
    k.e("s_lshl_b32 s30, s30, 6")
    k.e("s_lshl_b32 s31, s28, 1")
    k.e("s_add_u32 s30, s30, s31")
    k.e("s_lshl_b32 s30, s30, 10")
    k.e("v_add_u32 v10, s30, v9")
    k.e("v_add_u32 v11, 1024, v10")
    for i in range(2):
        k.e("s_lshl_b32 s%d, s25, 11" % (40 + i))
        k.e("s_add_u32 s%d, s%d, %d" % (40 + i, 40 + i, 1024 * i))
        dma.append((8, 10 + i, 50, 40 + i))
    for i in range(3):
        k.e("s_mul_i32 s30, s25, 12")
        k.e("s_add_u32 s30, s30, %d" % (4 * i))
        k.e("v_lshrrev_b32 v3, 4, v2")
        k.e("v_add_u32 v3, s30, v3")
        k.e("v_mul_u32_u24 v4, 43, v3")
        k.e("v_lshrrev_b32 v4, 8, v4")
        k.e("v_mul_u32_u24 v5, 6, v4")
        k.e("v_sub_u32 v5, v3, v5")
        k.e("v_bfe_u32 v6, v2, 2, 2")
        k.e("v_lshl_add_u32 v6, v4, 2, v6")
        k.e("v_mul_u32_u24 v6, 6144, v6")
        k.e("v_lshrrev_b32 v7, 1, v5")
        k.e("v_lshl_add_u32 v6, v7, 11, v6")
        k.e("v_and_b32 v7, 1, v5")
        k.e("v_lshl_add_u32 v6, v7, 6, v6")
        k.e("v_and_b32 v7, 3, v2")
        k.e("v_lshl_add_u32 v6, v7, 4, v6")
        k.e("s_lshl_b32 s31, s22, 7")
        k.e("v_add_u32 v%d, s31, v6" % (12 + i))
        k.e("s_mul_i32 s%d, s25, 3072" % (42 + i))
        k.e("s_add_u32 s%d, s%d, %d" % (42 + i, 42 + i, XB + 1024 * i))
        dma.append((12, 12 + i, 51, 42 + i))
    k.e("s_mov_b32 s50, 0")
    k.e("s_mov_b32 s51, 0")
    k.e("s_waitcnt lgkmcnt(0)")
    k.srd(8, 6, 2048 * 1024 * 2, WS_XN)
    k.srd(12, 4, 1024 * 3072 * 2)
    sp = Spec()
    sp.NS, sp.nst, sp.stage_bytes = NS, 1024 // BK, SB
    sp.dma = dma
    sp.sadv = [(50, 4096), (51, BK * 6144)]
    sp.s_wr, sp.s_rd, sp.s_cnt = 52, 53, 54
    gemm_prologue(k, sp)
    k.e("s_lshl_b32 s30, s27, 12")
    k.e("v_add_u32 v16, s30, v9")
    wfrag_lanepat(k, 3, 4, 2 * 6 * 256)
    k.e("s_lshl_b32 s31, s28, 8")
    k.e("s_add_u32 s30, s31, %d" % XB)
    k.e("v_add_u32 v18, s30, v3")
    ACC = 32
    for i in range(48):
        k.e("v_mov_b32 v%d, 0" % (ACC + i))
    F0, F1 = 128, 148
    steps = []
    for jj in range(4):
        reads = [("ds_read_b128", 0, 16, 1024 * jj)]
        for p in range(3):
            for i in range(2):
                reads.append(("ds_read_b64_tr_b16", 8 + 4 * p + 2 * i, 18, ((4 * jj + i) * 6 + 2 * p) * 256))
        mf = [(ACC + 0 * 16, 8, 0, 2), (ACC + 1 * 16, 0, 12, 4), (ACC + 2 * 16, 0, 16, 6)]
        steps.append(dict(reads=reads, mfma=mf))
    sp.addr = [16, 18]
    sp.steps = steps
    sp.fset = [F0, F1]
    gemm_main(k, sp)
    k.e("v_mov_b32 v20, 0x3fb8aa3b")
    k.e("v_mov_b32 v21, 0x3fb8aa3b")
    k.e("v_mov_b32 v22, 0x358637bd")
    k.e("v_mov_b32 v23, 0x358637bd")
    k.e("v_mov_b32 v24, 0xffff0000")
    k.srd(16, 6, 2048 * 1024 * 2, WS_PQ)
    k.srd(60, 6, 16 * 32 * 4096, WS_KVP)
    k.srd(56, 6, 16 * 32 * 128, WS_ZP)
    k.e("s_nop 7")
    PQ, PK, PV = 128, 136, 144
    T = 152
    for grp in (1, 2, 0):
        if grp == 1:
            phi16(k, ACC + 16, T, PK, 24, 20)
        elif grp == 2:
            for i in range(8):
                k.e("v_cvt_pk_bf16_f32 v%d, v%d, v%d" % (PV + i, ACC + 32 + 2 * i, ACC + 33 + 2 * i))
            KV = ACC + 64
            k.e("s_nop 1")
            k.e("v_mfma_f32_32x32x16_bf16 v[%d:%d], v[%d:%d], v[%d:%d], 0" % (KV, KV + 15, PK, PK + 3, PV, PV + 3))
            k.e("v_mfma_f32_32x32x16_bf16 v[%d:%d], v[%d:%d], v[%d:%d], v[%d:%d]" % (KV, KV + 15, PK + 4, PK + 7, PV + 4, PV + 7, KV, KV + 15))
            for i in range(8):
                k.e("v_lshlrev_b32 v%d, 16, v%d" % (T + 2 * i, PK + i))
                k.e("v_and_b32 v%d, v24, v%d" % (T + 2 * i + 1, PK + i))
            for st_ in (8, 4, 2):
                for i in range(0, st_, 2):
                    k.e(pk("v_pk_add_f32", T + i, T + i, T + st_ + i))
            k.e("v_add_f32 v25, v%d, v%d" % (T, T + 1))
        else:
            phi16(k, ACC, T, PQ, 24, 20)
    k.e("s_lshl_b32 s30, s23, 2")
    k.e("s_add_u32 s30, s30, s27")
    k.e("s_lshl_b32 s30, s30, 6")
    k.e("s_lshl_b32 s31, s22, 1")
    k.e("s_add_u32 s31, s31, s28")
    k.e("s_lshl_b32 s32, s31, 1")
    k.e("s_add_u32 s30, s30, s32")
    k.e("s_lshl_b32 s30, s30, 10")
    k.e("v_add_u32 v3, s30, v9")
    k.e("buffer_store_dwordx4 v[%d:%d], v3, s[16:19], 0 offen%s" % (PQ, PQ + 3, WT))
    k.e("buffer_store_dwordx4 v[%d:%d], v3, s[16:19], 0 offen offset:1024%s" % (PQ + 4, PQ + 7, WT))
    KVL = 98304
    ZL = KVL + 32768
    k.e("s_lshl_b32 s30, s25, 12")
    k.e("s_add_u32 s30, s30, %d" % KVL)
    k.e("v_add_u32 v4, s30, v9")
    k.e("s_lshl_b32 s30, s25, 8")
    k.e("s_add_u32 s30, s30, %d" % ZL)
    k.e("v_lshlrev_b32 v5, 2, v2")
    k.e("v_add_u32 v5, s30, v5")
    k.e("s_barrier")
    k.e("ds_write_b32 v5, v25")
    for q in range(4):
        k.e("ds_write_b128 v4, v[%d:%d] offset:%d" % (KV + 4 * q, KV + 4 * q + 3, 1024 * q))
    k.e("s_lshr_b32 s30, s25, 1")
    k.e("s_lshl_b32 s31, s30, 10")
    k.e("s_lshl_b32 s32, s28, 12")
    k.e("s_add_u32 s31, s31, s32")
    k.e("s_add_u32 s31, s31, %d" % KVL)
    k.e("v_add_u32 v4, s31, v9")
    k.e("s_lshl_b32 s32, s28, 8")
    k.e("s_add_u32 s32, s32, %d" % ZL)
    k.e("v_and_b32 v6, 31, v2")
    k.e("v_lshlrev_b32 v6, 2, v6")
    k.e("v_add_u32 v6, s32, v6")
    k.e("s_waitcnt lgkmcnt(0)")
    k.e("s_barrier")
    for j in range(4):
        k.e("ds_read_b128 v[%d:%d], v4 offset:%d" % (ACC + 4 * j, ACC + 4 * j + 3, 8192 * j))
    for j in range(4):
        k.e("ds_read_b32 v%d, v6 offset:%d" % (ACC + 16 + 2 * j, 512 * j))
        k.e("ds_read_b32 v%d, v6 offset:%d" % (ACC + 17 + 2 * j, 512 * j + 128))
    k.e("s_lshl_b32 s33, s23, 5")
    k.e("s_lshl_b32 s34, s22, 1")
    k.e("s_add_u32 s33, s33, s34")
    k.e("s_add_u32 s33, s33, s28")
    k.e("s_lshl_b32 s34, s33, 12")
    k.e("s_lshl_b32 s35, s30, 10")
    k.e("s_add_u32 s34, s34, s35")
    k.e("v_add_u32 v4, s34, v9")
    k.e("s_waitcnt lgkmcnt(8)")
    for i in range(0, 4, 2):
        k.e(pk("v_pk_add_f32", ACC + i, ACC + i, ACC + 4 + i))
        k.e(pk("v_pk_add_f32", ACC + 8 + i, ACC + 8 + i, ACC + 12 + i))
        k.e(pk("v_pk_add_f32", ACC + i, ACC + i, ACC + 8 + i))
    k.e("buffer_store_dwordx4 v[%d:%d], v4, s[60:63], 0 offen%s" % (ACC, ACC + 3, WT))
    L_fin = k.newlab("fin")
    k.e("s_cmp_lg_u32 s30, 0")
    k.e("s_cbranch_scc1 %s" % L_fin)
    k.e("s_waitcnt lgkmcnt(0)")
    for i in range(1, 8):
        k.e("v_add_f32 v%d, v%d, v%d" % (ACC + 16, ACC + 16, ACC + 16 + i))
    k.e("v_cmp_gt_u32 vcc, 32, v2")
    k.e("s_and_saveexec_b64 s[36:37], vcc")
    k.e("s_lshl_b32 s34, s33, 7")
    k.e("v_lshlrev_b32 v6, 2, v2")
    k.e("v_add_u32 v6, s34, v6")
    k.e("buffer_store_dword v%d, v6, s[56:59], 0 offen%s" % (ACC + 16, WT))
    k.lab(L_fin)
    k.stamp_store(1)
    k.lab(L_end)
    k.e("s_endpgm")
    return k, 168, (256, 512, NS * SB)


def gen_k15():
    k = KB("k15_o_kernel")
    L_end = k.newlab("end")
    L_o = k.newlab("o")
    NCS0 = int(os.environ.get("CSK0", "0"))
    k.e("s_cmp_ge_u32 s2, %d" % (480 - NCS0))
    k.e("s_cbranch_scc1 %s" % L_end)
    k.e("s_load_dwordx2 s[6:7], s[0:1], %d" % KA_WS)
    k.e("s_load_dwordx4 s[60:63], s[0:1], %d" % KA_WG)
    k.e("s_cmp_lt_u32 s2, 256")
    k.e("s_cbranch_scc1 %s" % L_o)
    k.e("s_waitcnt lgkmcnt(0)")
    k.e("s_sub_u32 s3, s2, %d" % (256 - NCS0))
    emit_colsum(k, L_end, 3)
    k.lab(L_o)
    k.e("s_and_b32 s20, s2, 31")
    k.e("s_lshr_b32 s21, s2, 5")
    wave_and_lane(k)
    k.e("s_waitcnt lgkmcnt(0)")
    k.srd(8, 6, 2048 * 1024 * 2, WS_PQ)
    k.srd(12, 6, 16 * 32 * 4096, WS_KVP)
    k.srd(16, 6, 16 * 32 * 128, WS_ZP)
    k.srd(28, 6, 2048 * 1024 * 2, WS_O)
    k.e("v_lshlrev_b32 v6, 4, v2")
    k.e("s_lshl_b32 s23, s20, 12")
    k.e("s_lshl_b32 s24, s25, 10")
    k.e("s_add_u32 s23, s23, s24")
    k.e("v_add_u32 v7, s23, v6")
    k.e("s_mov_b32 s24, 0")
    for mb in range(16):
        k.e("buffer_load_dwordx4 v[%d:%d], v7, s[12:15], s24 offen" % (64 + 4 * mb, 67 + 4 * mb))
        if mb != 15:
            k.e("s_add_u32 s24, s24, %d" % (32 * 4096))
    k.e("s_lshl_b32 s23, s20, 7")
    k.e("v_and_b32 v8, 31, v2")
    k.e("v_lshlrev_b32 v8, 2, v8")
    k.e("v_add_u32 v8, s23, v8")
    k.e("v_lshrrev_b32 v9, 5, v2")
    k.e("v_lshl_add_u32 v8, v9, 15, v8")
    k.e("s_mov_b32 s24, 0")
    for mb in range(8):
        k.e("buffer_load_dword v%d, v8, s[16:19], s24 offen" % (128 + mb))
        if mb != 7:
            k.e("s_add_u32 s24, s24, 4096")
    k.e("s_lshl_b32 s22, s21, 3")
    k.e("s_lshl_b32 s23, s25, 1")
    k.e("s_add_u32 s22, s22, s23")
    k.e("s_lshl_b32 s22, s22, 6")
    k.e("s_lshl_b32 s23, s20, 1")
    k.e("s_add_u32 s22, s22, s23")
    k.e("s_lshl_b32 s22, s22, 10")
    k.e("v_add_u32 v3, s22, v6")
    k.e("v_add_u32 v5, 0x10000, v3")
    for t in range(2):
        for s in range(2):
            k.e("buffer_load_dwordx4 v[%d:%d], v%d, s[8:11], 0 offen offset:%d" % (16 + 8 * t + 4 * s, 19 + 8 * t + 4 * s, 3 + 2 * t, 1024 * s))
    k.e("s_waitcnt vmcnt(12)")
    for st_ in (32, 16, 8, 4):
        for i in range(0, st_, 2):
            k.e(pk("v_pk_add_f32", 64 + i, 64 + i, 64 + st_ + i))
    k.e("s_lshl_b32 s23, s25, 10")
    k.e("v_add_u32 v7, s23, v6")
    k.e("ds_write_b128 v7, v[64:67]")
    k.e("s_waitcnt vmcnt(4)")
    for st_ in (4, 2):
        for i in range(0, st_, 2):
            k.e(pk("v_pk_add_f32", 128 + i, 128 + i, 128 + st_ + i))
    k.e("v_add_f32 v128, v128, v129")
    k.e("v_mov_b32 v129, v128")
    k.e("s_nop 1")
    k.e("v_permlane32_swap_b32 v128, v129")
    k.e("s_nop 1")
    k.e("v_add_f32 v128, v128, v129")
    k.e("v_and_b32 v8, 31, v2")
    k.e("v_lshlrev_b32 v8, 2, v8")
    k.e("ds_write_b32 v8, v128 offset:4096")
    k.e("s_waitcnt lgkmcnt(0)")
    k.e("s_barrier")
    for q in range(4):
        k.e("ds_read_b128 v[%d:%d], v6 offset:%d" % (64 + 4 * q, 67 + 4 * q, 1024 * q))
    k.e("v_lshlrev_b32 v9, 4, v9")
    for q in range(4):
        k.e("ds_read_b128 v[%d:%d], v9 offset:%d" % (80 + 4 * q, 83 + 4 * q, 4096 + 32 * q))
    k.e("v_and_b32 v10, 27, v2")
    k.e("v_cmp_eq_u32 vcc, 0, v10")
    k.e("s_waitcnt lgkmcnt(4)")
    KVA, ZA = 96, 104
    for i in range(8):
        k.e("v_cvt_pk_bf16_f32 v%d, v%d, v%d" % (KVA + i, 64 + 2 * i, 65 + 2 * i))
    k.e("s_waitcnt lgkmcnt(0)")
    for i in range(8):
        k.e("v_cvt_pk_bf16_f32 v%d, v%d, v%d" % (ZA + i, 80 + 2 * i, 81 + 2 * i))
    for i in range(8):
        k.e("v_cndmask_b32 v%d, 0, v%d, vcc" % (ZA + i, ZA + i))
    k.e("s_waitcnt vmcnt(0)")
    k.e("s_nop 0")
    for t in range(2):
        N, D = 112 + 32 * t, 128 + 32 * t
        k.e("v_mfma_f32_32x32x16_bf16 v[%d:%d], v[%d:%d], v[%d:%d], 0" % (D, D + 15, ZA, ZA + 3, 16 + 8 * t, 19 + 8 * t))
        k.e("v_mfma_f32_32x32x16_bf16 v[%d:%d], v[%d:%d], v[%d:%d], v[%d:%d]" % (D, D + 15, ZA + 4, ZA + 7, 20 + 8 * t, 23 + 8 * t, D, D + 15))
        k.e("v_mfma_f32_32x32x16_bf16 v[%d:%d], v[%d:%d], v[%d:%d], 0" % (N, N + 15, KVA, KVA + 3, 16 + 8 * t, 19 + 8 * t))
        k.e("v_mfma_f32_32x32x16_bf16 v[%d:%d], v[%d:%d], v[%d:%d], v[%d:%d]" % (N, N + 15, KVA + 4, KVA + 7, 20 + 8 * t, 23 + 8 * t, N, N + 15))
    k.e("s_nop 7")
    for t in range(2):
        D = 128 + 32 * t
        round_bf16(k, 12 + 2 * t, D)
        k.e("v_add_f32 v%d, 0x358637bd, v%d" % (12 + 2 * t, 12 + 2 * t))
        round_bf16(k, 12 + 2 * t, 12 + 2 * t)
        k.e("v_rcp_f32 v%d, v%d" % (12 + 2 * t, 12 + 2 * t))
        k.e("s_nop 0")
        k.e("v_mov_b32 v%d, v%d" % (13 + 2 * t, 12 + 2 * t))
    k.e("s_nop 7")
    for t in range(2):
        N = 112 + 32 * t
        for i in range(8):
            k.e(pk("v_pk_mul_f32", N + 2 * i, N + 2 * i, 12 + 2 * t))
        for i in range(8):
            k.e("v_cvt_pk_bf16_f32 v%d, v%d, v%d" % (32 + 8 * t + i, N + 2 * i, N + 2 * i + 1))
        k.e("buffer_store_dwordx4 v[%d:%d], v%d, s[28:31], 0 offen%s" % (32 + 8 * t, 35 + 8 * t, 3 + 2 * t, WT))
        k.e("buffer_store_dwordx4 v[%d:%d], v%d, s[28:31], 0 offen offset:1024%s" % (36 + 8 * t, 39 + 8 * t, 3 + 2 * t, WT))
    k.lab(L_end)
    k.e("s_endpgm")
    return k, 176, (480 - NCS0, 256, 8192)


def gen_proj(name, mode):
    k = KB(name)
    L_end = k.newlab("end")
    BK, NS = 64, 6
    KD = 1024 if mode == "wo" else 3584
    NBLK = KD // 16
    XOFF = WS_O if mode == "wo" else WS_HH
    XB = 8192
    WB = (BK // 4) * 4 * 256
    SB = XB + WB
    k.e("s_cmp_ge_u32 s2, 256")
    k.e("s_cbranch_scc1 %s" % L_end)
    k.e("s_load_dwordx2 s[4:5], s[0:1], %d" % (KA_WO if mode == "wo" else KA_WD))
    k.e("s_load_dwordx2 s[6:7], s[0:1], %d" % KA_WS)
    k.e("s_load_dwordx2 s[60:61], s[0:1], %d" % (KA_X if mode == "wo" else KA_OUT))
    k.e("s_and_b32 s20, s2, 7")
    k.e("s_lshr_b32 s21, s2, 3")
    k.e("s_and_b32 s22, s20, 1")
    k.e("s_lshl_b32 s22, s22, 2")
    k.e("s_and_b32 s23, s21, 3")
    k.e("s_add_u32 s22, s22, s23")
    k.e("s_lshr_b32 s23, s20, 1")
    k.e("s_lshl_b32 s23, s23, 3")
    k.e("s_lshr_b32 s24, s21, 2")
    k.e("s_add_u32 s23, s23, s24")
    k.e("s_lshl_b32 s24, s23, 6")
    wave_and_lane(k)
    k.e("s_lshr_b32 s26, s25, 1")
    k.e("s_and_b32 s28, s25, 1")
    k.e("s_lshr_b32 s27, s26, 1")
    dma = []
    k.e("v_lshlrev_b32 v9, 4, v2")
    k.e("s_lshl_b32 s30, s23, 1")
    k.e("s_lshr_b32 s31, s25, 2")
    k.e("s_add_u32 s30, s30, s31")
    k.e("s_mul_i32 s30, s30, %d" % NBLK)
    k.e("s_and_b32 s31, s25, 3")
    k.e("s_add_u32 s30, s30, s31")
    k.e("s_lshl_b32 s30, s30, 10")
    k.e("v_add_u32 v10, s30, v9")
    k.e("s_lshl_b32 s40, s25, 10")
    dma.append((8, 10, 50, 40))
    for i in range(2):
        k.e("s_lshl_b32 s30, s25, 3")
        k.e("s_add_u32 s30, s30, %d" % (4 * i))
        k.e("v_bfe_u32 v6, v2, 2, 2")
        k.e("v_add_u32 v6, s30, v6")
        k.e("v_lshlrev_b32 v6, 11, v6")
        k.e("v_lshrrev_b32 v7, 4, v2")
        k.e("v_lshl_add_u32 v6, v7, 6, v6")
        k.e("v_and_b32 v7, 3, v2")
        k.e("v_lshl_add_u32 v6, v7, 4, v6")
        k.e("s_lshl_b32 s31, s22, 8")
        k.e("v_add_u32 v%d, s31, v6" % (12 + i))
        k.e("s_lshl_b32 s%d, s25, 11" % (42 + i))
        k.e("s_add_u32 s%d, s%d, %d" % (42 + i, 42 + i, XB + 1024 * i))
        dma.append((12, 12 + i, 51, 42 + i))
    k.e("s_mov_b32 s50, 0")
    k.e("s_mov_b32 s51, 0")
    k.e("s_waitcnt lgkmcnt(0)")
    k.srd(8, 6, 2048 * KD * 2, XOFF)
    k.srd(12, 4, KD * 1024 * 2)
    sp = Spec()
    sp.NS, sp.nst, sp.stage_bytes = NS, KD // BK, SB
    sp.dma = dma
    sp.sadv = [(50, 4096), (51, BK * 2048)]
    sp.s_wr, sp.s_rd, sp.s_cnt = 52, 53, 54
    gemm_prologue(k, sp)
    for tl in range(2):
        k.e("s_xor_b32 s30, s27, %d" % tl)
        k.e("s_lshl_b32 s30, s30, 2")
        k.e("s_add_u32 s30, s30, s26")
        k.e("s_lshl_b32 s30, s30, 10")
        k.e("v_add_u32 v%d, s30, v9" % (16 + tl))
    wfrag_lanepat(k, 3, 4, 1024)
    for nl in range(2):
        k.e("s_and_b32 s30, s26, 1")
        k.e("s_xor_b32 s30, s30, %d" % nl)
        k.e("s_lshl_b32 s31, s28, 1")
        k.e("s_add_u32 s30, s30, s31")
        k.e("s_lshl_b32 s30, s30, 8")
        k.e("s_lshl_b32 s31, s26, 12")
        k.e("s_add_u32 s30, s30, s31")
        k.e("s_add_u32 s30, s30, %d" % XB)
        k.e("v_add_u32 v%d, s30, v3" % (18 + nl))
    ACC = 64
    for i in range(64):
        k.e("v_mov_b32 v%d, 0" % (ACC + i))
    F0, F1 = 128, 144
    reads = [("ds_read_b128", 0, 16, 0),
             ("ds_read_b64_tr_b16", 8, 18, 0), ("ds_read_b64_tr_b16", 10, 18, 2048),
             ("ds_read_b64_tr_b16", 12, 19, 0), ("ds_read_b64_tr_b16", 14, 19, 2048),
             ("ds_read_b128", 4, 17, 0)]
    mf = [(ACC + 0, 8, 0, 2), (ACC + 16, 12, 0, 4), (ACC + 32, 8, 4, 5), (ACC + 48, 12, 4, 5)]
    sp.addr = [16, 17, 18, 19]
    sp.early = not os.environ.get("NOEARLY")
    sp.steps = [dict(reads=reads, mfma=mf)]
    sp.fset = [F0, F1]
    k.e("s_and_b32 s31, s26, 1")
    k.e("s_lshl_b32 s32, s28, 1")
    k.e("s_add_u32 s29, s31, s32")
    k.e("s_lshl_b32 s32, s22, 2")
    k.e("s_add_u32 s33, s29, s32")
    k.e("s_lshl_b32 s30, s23, 1")
    k.e("s_add_u32 s30, s30, s27")
    k.e("s_lshl_b32 s30, s30, 6")
    k.e("s_lshl_b32 s31, s33, 1")
    k.e("s_add_u32 s30, s30, s31")
    k.e("s_lshl_b32 s30, s30, 10")
    k.e("v_add_u32 v7, s30, v9")
    k.srd(16, 60, 2048 * 1024 * 2)
    k.srd(56, 6, 2048 * 1024 * 2, WS_H)

    def resid():
        if mode == "wo":
            k.e("s_lshl_b32 s30, s27, 5")
            k.e("s_add_u32 s30, s30, s24")
            k.e("v_and_b32 v3, 31, v2")
            k.e("v_add_u32 v3, s30, v3")
            k.e("v_lshlrev_b32 v6, 11, v3")
            k.e("s_lshl_b32 s32, s33, 6")
            k.e("v_add_u32 v6, s32, v6")
            k.e("v_lshrrev_b32 v5, 5, v2")
            k.e("v_lshl_add_u32 v6, v5, 3, v6")
            for q in range(4):
                k.e("buffer_load_dwordx2 v[%d:%d], v6, s[16:19], 0 offen offset:%d" % (32 + 2 * q, 33 + 2 * q, 16 * q))
            return 4
        else:
            for s in range(2):
                k.e("buffer_load_dwordx4 v[%d:%d], v7, s[56:59], 0 offen offset:%d" % (32 + 4 * s, 35 + 4 * s, 1024 * s))
            return 2
    sp.tail_hook = resid
    gemm_main(k, sp)
    for c in range(1, 4):
        k.e("s_xor_b32 s30, s26, %d" % c)
        k.e("s_lshl_b32 s34, s28, 2")
        k.e("s_add_u32 s30, s30, s34")
        k.e("s_mul_i32 s30, s30, 3")
        k.e("s_add_u32 s30, s30, %d" % (c - 1))
        k.e("s_lshl_b32 s30, s30, 12")
        k.e("v_add_u32 v%d, s30, v9" % (20 + c))
    k.e("s_lshl_b32 s34, s28, 2")
    k.e("s_add_u32 s30, s26, s34")
    k.e("s_mul_i32 s30, s30, 12288")
    k.e("v_add_u32 v20, s30, v9")
    k.e("v_mov_b32 v60, 0xffff0000")
    k.e("s_nop 4")
    k.e("s_barrier")
    for c in range(1, 4):
        for q in range(4):
            k.e("ds_write_b128 v%d, v[%d:%d] offset:%d" % (20 + c, ACC + 16 * c + 4 * q, ACC + 16 * c + 4 * q + 3, 1024 * q))
    k.e("s_waitcnt lgkmcnt(0)")
    k.e("s_barrier")
    for c in range(3):
        for q in range(4):
            k.e("ds_read_b128 v[%d:%d], v20 offset:%d" % (ACC + 16 + 16 * c + 4 * q, ACC + 16 + 16 * c + 4 * q + 3, 4096 * c + 1024 * q))
    k.e("s_waitcnt lgkmcnt(8)")
    for i in range(0, 16, 2):
        k.e(pk("v_pk_add_f32", ACC + i, ACC + i, ACC + 16 + i))
    k.e("s_waitcnt lgkmcnt(0)")
    for i in range(0, 16, 2):
        k.e(pk("v_pk_add_f32", ACC + 32 + i, ACC + 32 + i, ACC + 48 + i))
    for i in range(0, 16, 2):
        k.e(pk("v_pk_add_f32", ACC + i, ACC + i, ACC + 32 + i))
    k.e("s_waitcnt vmcnt(0)")
    T = ACC + 16
    R = ACC + 32
    for i in range(8):
        k.e("v_cvt_pk_bf16_f32 v%d, v%d, v%d" % (40 + i, ACC + 2 * i, ACC + 2 * i + 1))
    for i in range(8):
        k.e("v_lshlrev_b32 v%d, 16, v%d" % (T + 2 * i, 40 + i))
        k.e("v_and_b32 v%d, v60, v%d" % (T + 2 * i + 1, 40 + i))
        k.e("v_lshlrev_b32 v%d, 16, v%d" % (R + 2 * i, 32 + i))
        k.e("v_and_b32 v%d, v60, v%d" % (R + 2 * i + 1, 32 + i))
    for i in range(8):
        k.e(pk("v_pk_add_f32", T + 2 * i, T + 2 * i, R + 2 * i))
    for i in range(8):
        k.e("v_cvt_pk_bf16_f32 v%d, v%d, v%d" % (48 + i, T + 2 * i, T + 2 * i + 1))
    EX = 98304
    if mode == "wo":
        for s in range(2):
            k.e("buffer_store_dwordx4 v[%d:%d], v7, s[56:59], 0 offen offset:%d%s" % (48 + 4 * s, 51 + 4 * s, 1024 * s, WT))
        for i in range(8):
            k.e("v_lshlrev_b32 v%d, 16, v%d" % (T + 2 * i, 48 + i))
            k.e("v_and_b32 v%d, v60, v%d" % (T + 2 * i + 1, 48 + i))
        for i in range(8):
            k.e(pk("v_pk_mul_f32", R + 2 * i, T + 2 * i, T + 2 * i))
        for st_ in (8, 4, 2):
            for i in range(0, st_, 2):
                k.e(pk("v_pk_add_f32", T + i, T + i, T + st_ + i))
                k.e(pk("v_pk_add_f32", R + i, R + i, R + st_ + i))
        k.e("v_add_f32 v44, v%d, v%d" % (T, T + 1))
        k.e("v_add_f32 v45, v%d, v%d" % (R, R + 1))
        k.e("v_mov_b32 v46, v44")
        k.e("v_mov_b32 v47, v45")
        k.e("s_nop 1")
        k.e("v_permlane32_swap_b32 v44, v46")
        k.e("v_permlane32_swap_b32 v45, v47")
        k.e("s_nop 1")
        k.e("v_add_f32 v44, v44, v46")
        k.e("v_add_f32 v45, v45, v47")
        k.e("s_lshl_b32 s30, s27, 2")
        k.e("s_add_u32 s30, s30, s29")
        k.e("s_lshl_b32 s30, s30, 8")
        k.e("s_add_u32 s30, s30, %d" % EX)
        k.e("v_and_b32 v3, 31, v2")
        k.e("v_lshlrev_b32 v3, 3, v3")
        k.e("v_add_u32 v4, s30, v3")
        k.e("ds_write_b64 v4, v[44:45]")
        k.srd(16, 6, 8 * 2048 * 8, WS_ST)
        k.e("s_waitcnt lgkmcnt(0)")
        k.e("s_barrier")
        L_fin = k.newlab("fin")
        k.e("s_cmp_ge_u32 s25, 2")
        k.e("s_cbranch_scc1 %s" % L_fin)
        k.e("s_lshl_b32 s30, s25, 10")
        k.e("s_add_u32 s30, s30, %d" % EX)
        k.e("v_add_u32 v4, s30, v3")
        for j in range(4):
            k.e("ds_read_b64 v[%d:%d], v4 offset:%d" % (44 + 2 * j, 45 + 2 * j, 256 * j))
        k.e("s_lshl_b32 s30, s22, 14")
        k.e("s_lshl_b32 s31, s25, 5")
        k.e("s_add_u32 s31, s31, s24")
        k.e("s_lshl_b32 s31, s31, 3")
        k.e("s_add_u32 s30, s30, s31")
        k.e("v_add_u32 v3, s30, v3")
        k.e("s_waitcnt lgkmcnt(0)")
        k.e(pk("v_pk_add_f32", 44, 44, 46))
        k.e(pk("v_pk_add_f32", 48, 48, 50))
        k.e(pk("v_pk_add_f32", 44, 44, 48))
        k.e("v_cmp_gt_u32 vcc, 32, v2")
        k.e("s_and_saveexec_b64 s[36:37], vcc")
        k.e("buffer_store_dwordx2 v[44:45], v3, s[16:19], 0 offen%s" % WT)
        k.lab(L_fin)
    else:
        k.e("s_lshl_b32 s30, s27, 5")
        k.e("v_and_b32 v3, 31, v2")
        k.e("v_add_u32 v3, s30, v3")
        k.e("v_mul_u32_u24 v3, 272, v3")
        k.e("v_lshrrev_b32 v5, 5, v2")
        k.e("v_lshl_add_u32 v3, v5, 3, v3")
        k.e("s_lshl_b32 s30, s29, 6")
        k.e("s_add_u32 s30, s30, %d" % EX)
        k.e("v_add_u32 v3, s30, v3")
        for q in range(4):
            k.e("ds_write_b64 v3, v[%d:%d] offset:%d" % (48 + 2 * q, 49 + 2 * q, 16 * q))
        k.e("v_lshrrev_b32 v4, 4, v2")
        k.e("s_lshl_b32 s30, s25, 3")
        k.e("v_add_u32 v4, s30, v4")
        k.e("v_and_b32 v5, 15, v2")
        k.e("v_mul_u32_u24 v6, 272, v4")
        k.e("v_lshl_add_u32 v6, v5, 4, v6")
        k.e("v_add_u32 v6, %d, v6" % EX)
        k.e("v_add_u32 v4, s24, v4")
        k.e("v_lshlrev_b32 v4, 11, v4")
        k.e("v_lshl_add_u32 v4, v5, 4, v4")
        k.e("s_lshl_b32 s30, s22, 8")
        k.e("v_add_u32 v4, s30, v4")
        k.e("v_add_u32 v5, 8192, v4")
        k.e("s_waitcnt lgkmcnt(0)")
        k.e("s_barrier")
        k.e("ds_read_b128 v[32:35], v6")
        k.e("ds_read_b128 v[36:39], v6 offset:1088")
        k.e("s_waitcnt lgkmcnt(1)")
        k.e("buffer_store_dwordx4 v[32:35], v4, s[16:19], 0 offen%s" % WT)
        k.e("s_waitcnt lgkmcnt(0)")
        k.e("buffer_store_dwordx4 v[36:39], v5, s[16:19], 0 offen%s" % WT)
    k.stamp_store(3 if mode == "wo" else 5)
    k.lab(L_end)
    k.e("s_endpgm")
    return k, 160, (256, 512, NS * SB)


def gen_k3():
    k = KB("k3_glu_kernel")
    L_end = k.newlab("end")
    BK, NS = 32, 5
    XB = 16384
    GB = (BK // 4) * 7 * 128
    UOFF = XB + GB + 128
    SB = XB + 14592
    CSL = NS * SB
    SCR = CSL + 1024
    k.e("s_cmp_ge_u32 s2, 256")
    k.e("s_cbranch_scc1 %s" % L_end)
    k.e("s_load_dwordx4 s[60:63], s[0:1], %d" % KA_WG)
    k.e("s_load_dwordx2 s[6:7], s[0:1], %d" % KA_WS)
    k.e("s_load_dwordx2 s[70:71], s[0:1], %d" % KA_WD)
    k.e("s_and_b32 s20, s2, 7")
    k.e("s_lshr_b32 s21, s2, 3")
    k.e("s_lshr_b32 s23, s20, 2")
    k.e("s_lshl_b32 s23, s23, 2")
    k.e("s_and_b32 s24, s21, 3")
    k.e("s_add_u32 s23, s23, s24")
    k.e("s_and_b32 s22, s20, 3")
    k.e("s_lshl_b32 s22, s22, 3")
    k.e("s_lshr_b32 s24, s21, 2")
    k.e("s_add_u32 s22, s22, s24")
    k.e("s_lshl_b32 s24, s23, 8")
    wave_and_lane(k)
    dma = []
    k.e("v_lshlrev_b32 v9, 4, v2")
    k.e("s_lshl_b32 s29, s23, 3")
    k.e("s_add_u32 s29, s29, s25")
    k.e("s_lshl_b32 s30, s29, 16")
    k.e("v_add_u32 v10, s30, v9")
    k.e("v_add_u32 v11, 1024, v10")
    for i in range(2):
        k.e("s_lshl_b32 s%d, s25, 11" % (40 + i))
        k.e("s_add_u32 s%d, s%d, %d" % (40 + i, 40 + i, 1024 * i))
        dma.append((8, 10 + i, 50, 40 + i))
    k.e("s_lshl_b32 s31, s25, 3")
    k.e("v_lshrrev_b32 v3, 3, v2")
    k.e("v_add_u32 v3, s31, v3")
    k.e("v_mul_u32_u24 v4, 37, v3")
    k.e("v_lshrrev_b32 v4, 8, v4")
    k.e("v_mul_u32_u24 v5, 7, v4")
    k.e("v_sub_u32 v5, v3, v5")
    k.e("v_bfe_u32 v6, v2, 1, 2")
    k.e("v_lshl_add_u32 v6, v4, 2, v6")
    k.e("v_mul_u32_u24 v6, 7168, v6")
    k.e("v_lshl_add_u32 v6, v5, 5, v6")
    k.e("v_and_b32 v7, 1, v2")
    k.e("v_lshl_add_u32 v6, v7, 4, v6")
    k.e("s_mul_i32 s31, s22, 224")
    k.e("v_add_u32 v12, s31, v6")
    k.e("s_mul_i32 s31, s2, 28672")
    k.e("v_add_u32 v7, s31, v9")
    k.e("s_lshl_b32 s42, s25, 10")
    k.e("s_add_u32 s43, s42, %d" % UOFF)
    k.e("s_add_u32 s42, s42, %d" % XB)
    k.e("s_mov_b32 s56, %d" % (BK * 7168))
    k.e("s_cmp_eq_u32 s25, 7")
    k.e("s_cselect_b32 s56, 1024, s56")
    k.e("s_cselect_b32 s57, 0, -1")
    k.e("s_cselect_b32 s42, %d, s42" % SCR)
    k.e("s_cselect_b32 s43, %d, s43" % (SCR + 1024))
    k.e("s_cselect_b64 vcc, -1, 0")
    k.e("s_nop 1")
    k.e("v_cndmask_b32 v12, v12, v7, vcc")
    dma.append((12, 12, 51, 42))
    dma.append((16, 12, 51, 43))
    k.e("s_mov_b32 s50, 0")
    k.e("s_mov_b32 s51, 0")
    k.e("s_waitcnt lgkmcnt(0)")
    k.srd(8, 6, 2048 * 1024 * 2, WS_H)
    k.e("s_cmp_eq_u32 s25, 7")
    k.e("s_cselect_b32 s72, s70, s60")
    k.e("s_cselect_b32 s73, s71, s61")
    k.e("s_cselect_b32 s74, s70, s62")
    k.e("s_cselect_b32 s75, s71, s63")
    k.srd(12, 72, 1024 * 3584 * 2)
    k.srd(16, 74, 1024 * 3584 * 2)
    k.e("s_cmp_eq_u32 s25, 7")
    k.e("s_cselect_b32 s14, 0, s14")
    k.e("s_cselect_b32 s18, 0, s18")
    sp = Spec()
    sp.NS, sp.nst, sp.stage_bytes = NS, 1024 // BK, SB
    sp.dma = dma
    sp.dma_abs = {2: 57, 3: 57}
    sp.sadv = [(50, 2048), (51, "s56")]
    sp.s_wr, sp.s_rd, sp.s_cnt = 52, 53, 54
    gemm_prologue(k, sp)
    if not os.environ.get("NOTOUCH"):
        k.e("s_mov_b32 s14, %d" % (1024 * 3584 * 2))
    k.e("s_cmp_eq_u32 s25, 7")
    k.e("s_cselect_b32 s51, 0, s51")
    k.e("s_lshl_b32 s30, s25, 11")
    k.e("v_add_u32 v14, s30, v9")
    k.e("v_bfe_u32 v3, v2, 2, 2")
    k.e("v_lshlrev_b32 v3, 5, v3")
    k.e("v_and_b32 v4, 3, v2")
    k.e("v_lshl_add_u32 v3, v4, 3, v3")
    k.e("v_lshrrev_b32 v4, 5, v2")
    k.e("v_mul_u32_u24 v4, %d, v4" % (7 * 128))
    k.e("v_add_u32 v3, v3, v4")
    k.e("v_bfe_u32 v4, v2, 4, 1")
    k.e("v_mul_u32_u24 v4, %d, v4" % (UOFF - XB))
    k.e("v_add_u32 v3, v3, v4")
    k.e("v_add_u32 v16, %d, v3" % XB)
    ACC = 64
    for i in range(112):
        k.e("v_mov_b32 v%d, 0" % (ACC + i))
    F0, F1 = 176, 208
    steps = []
    for jj in range(2):
        reads = [("ds_read_b128", 0, 14, 1024 * jj)]
        mf = []
        for t in range(7):
            for i in range(2):
                reads.append(("ds_read_b64_tr_b16", 4 + 4 * t + 2 * i, 16, ((4 * jj + 2 * i) * 7 + t) * 128))
            mf.append((ACC + 16 * t, 4 + 4 * t, 0, 2 * t + 2))
        steps.append(dict(reads=reads, mfma=mf))
    sp.addr = [14, 16]
    sp.steps = steps
    sp.fset = [F0, F1]
    k.srd(64, 6, 8 * 2048 * 8, WS_ST)
    k.srd(76, 6, 2048 * 3584 * 2, WS_HH)
    k.srd(68, 6, 2 * 3584 * 4, WS_CS2)
    S0 = 24

    def early():
        k.e("s_lshl_b32 s30, s25, 5")
        k.e("s_add_u32 s30, s30, s24")
        k.e("v_and_b32 v3, 31, v2")
        k.e("v_add_u32 v3, s30, v3")
        k.e("v_lshlrev_b32 v4, 3, v3")
        k.e("v_lshrrev_b32 v5, 5, v2")
        k.e("v_lshl_add_u32 v4, v5, 16, v4")
        k.e("s_mov_b32 s31, 0")
        for i in range(4):
            k.e("buffer_load_dwordx2 v[%d:%d], v4, s[64:67], s31 offen" % (S0 + 2 * i, S0 + 2 * i + 1))
            k.e("s_add_u32 s31, s31, 16384")
        k.e("v_cmp_gt_u32 vcc, 28, v2")
        k.e("v_subrev_u32 v6, 28, v2")
        k.e("s_nop 1")
        k.e("v_cndmask_b32 v6, v6, v2, vcc")
        k.e("v_lshlrev_b32 v6, 4, v6")
        k.e("v_mov_b32 v7, %d" % (3584 * 4))
        k.e("v_mov_b32 v8, 0")
        k.e("v_cndmask_b32 v7, v7, v8, vcc")
        k.e("v_add_u32 v6, v6, v7")
        k.e("s_mul_i32 s31, s22, 448")
        k.e("v_add_u32 v6, s31, v6")
        k.e("buffer_load_dwordx4 v[32:35], v6, s[68:71], 0 offen")
        return 5
    sp.tail_hook = early
    gemm_main(k, sp)
    k.e("s_waitcnt vmcnt(0)")
    k.e("v_add_u32 v6, %d, v9" % CSL)
    k.e("v_cmp_gt_u32 vcc, 56, v2")
    k.e("s_and_saveexec_b64 s[36:37], vcc")
    k.e("ds_write_b128 v6, v[32:35]")
    k.e("s_mov_b64 exec, s[36:37]")
    k.e(pk("v_pk_add_f32", S0, S0, S0 + 2))
    k.e(pk("v_pk_add_f32", S0 + 4, S0 + 4, S0 + 6))
    k.e(pk("v_pk_add_f32", S0, S0, S0 + 4))
    k.e("v_mov_b32 v8, v%d" % S0)
    k.e("v_mov_b32 v7, v%d" % (S0 + 1))
    k.e("v_mov_b32 v6, v8")
    k.e("v_mov_b32 v10, v7")
    k.e("s_nop 1")
    k.e("v_permlane32_swap_b32 v8, v6")
    k.e("v_permlane32_swap_b32 v7, v10")
    k.e("s_nop 1")
    k.e("v_add_f32 v8, v8, v6")
    k.e("v_add_f32 v7, v7, v10")
    k.e("s_waitcnt lgkmcnt(0)")
    k.e("s_barrier")
    k.e("v_lshrrev_b32 v6, 5, v2")
    k.e("v_lshlrev_b32 v5, 4, v6")
    k.e("v_add_u32 v5, %d, v5" % CSL)
    C0 = 176
    T = 208

    def csread(tt):
        cbb = C0 + (tt & 1) * 16
        for q in range(2):
            k.e("ds_read_b128 v[%d:%d], v5 offset:%d" % (cbb + 4 * q, cbb + 4 * q + 3, tt * 64 + q * 32))
            k.e("ds_read_b128 v[%d:%d], v5 offset:%d" % (cbb + 8 + 4 * q, cbb + 8 + 4 * q + 3, 448 + tt * 64 + q * 32))
    csread(0)
    csread(1)
    k.e("v_mul_f32 v8, 0x3a800000, v8")
    k.e("v_mul_f32 v7, 0x3a800000, v7")
    k.e("v_fma_f32 v7, -v8, v8, v7")
    k.e("v_max_f32 v7, 0, v7")
    round_bf16(k, 8, 8)
    round_bf16(k, 7, 7)
    k.e("v_add_f32 v7, 0x3727c5ac, v7")
    round_bf16(k, 7, 7)
    k.e("v_sqrt_f32 v7, v7")
    k.e("s_nop 0")
    round_bf16(k, 7, 7)
    k.e("v_rcp_f32 v54, v7")
    k.e("s_nop 0")
    k.e("v_mov_b32 v55, v54")
    k.e("v_mul_f32 v8, v8, v54")
    k.e("v_sub_f32 v52, 0, v8")
    k.e("v_mov_b32 v53, v52")
    k.e("s_mul_i32 s31, s29, 224")
    k.e("s_mul_i32 s30, s22, 7")
    k.e("s_add_u32 s31, s31, s30")
    k.e("s_lshl_b32 s31, s31, 10")
    k.e("v_add_u32 v57, s31, v9")
    k.e("v_add_u32 v56, 4096, v57")
    c1 = -2.0 * math.log2(math.e) * math.sqrt(2.0 / math.pi)
    c2 = c1 * 0.044715
    k.e("v_mov_b32 v60, 0x%08x" % f2u(c1))
    k.e("v_mov_b32 v61, 0x%08x" % f2u(c1))
    k.e("v_mov_b32 v62, 0x%08x" % f2u(c2))
    k.e("v_mov_b32 v63, 0x%08x" % f2u(c2))
    k.e("v_mov_b32 v58, 1.0")
    k.e("v_mov_b32 v59, 1.0")
    for t in range(7):
        cb = C0 + (t & 1) * 16
        k.e("s_waitcnt lgkmcnt(%d)" % (4 if t < 6 else 0))
        A = ACC + 16 * t
        for j in range(8):
            k.e(pk("v_pk_mul_f32", T + 2 * j, cb + 2 * j, 52))
        for j in range(8):
            k.e(pk("v_pk_fma_f32", A + 2 * j, A + 2 * j, 54, T + 2 * j))
        if t + 2 < 7:
            csread(t + 2)
        for j in range(4):
            k.e(pk("v_pk_mul_f32", T + 2 * j, A + 2 * j, A + 2 * j))
        for j in range(4):
            k.e(pk("v_pk_fma_f32", T + 2 * j, T + 2 * j, 62, 60))
        for j in range(4):
            k.e(pk("v_pk_mul_f32", T + 2 * j, T + 2 * j, A + 2 * j))
        for j in range(8):
            k.e("v_exp_f32 v%d, v%d" % (T + j, T + j))
        for j in range(4):
            k.e(pk("v_pk_mul_f32", A + 2 * j, A + 2 * j, A + 8 + 2 * j))
        for j in range(4):
            k.e(pk("v_pk_add_f32", T + 2 * j, T + 2 * j, 58))
        for j in range(8):
            k.e("v_rcp_f32 v%d, v%d" % (T + j, T + j))
        k.e("s_nop 0")
        for j in range(4):
            k.e(pk("v_pk_mul_f32", A + 2 * j, A + 2 * j, T + 2 * j))
        for j in range(4):
            k.e("v_cvt_pk_bf16_f32 v%d, v%d, v%d" % (40 + 4 * (t & 1) + j, A + 2 * j, A + 2 * j + 1))
        k.e("buffer_store_dwordx4 v[%d:%d], v%d, s[76:79], 0 offen offset:%d%s" % (40 + 4 * (t & 1), 43 + 4 * (t & 1), 57 if t < 4 else 56, 1024 * (t & 3), WT))
    k.stamp_store(4)
    k.lab(L_end)
    k.e("s_endpgm")
    return k, 240, (256, 512, SCR + 2048)


def gen_k3b():
    k = KB("k3_glu_kernel")
    L_end = k.newlab("end")
    BK, NS = 32, 5
    XB = 16384
    GB = (BK // 4) * 7 * 128
    UOFF = XB + GB + 128
    SB = XB + 14592
    CSL = NS * SB
    SCR = CSL + 1024
    k.e("s_cmp_ge_u32 s2, 256")
    k.e("s_cbranch_scc1 %s" % L_end)
    k.e("s_load_dwordx4 s[60:63], s[0:1], %d" % KA_WG)
    k.e("s_load_dwordx2 s[6:7], s[0:1], %d" % KA_WS)
    k.e("s_load_dwordx2 s[70:71], s[0:1], %d" % KA_WD)
    k.e("s_and_b32 s20, s2, 7")
    k.e("s_lshr_b32 s21, s2, 3")
    k.e("s_lshr_b32 s23, s20, 2")
    k.e("s_lshl_b32 s23, s23, 2")
    k.e("s_and_b32 s24, s21, 3")
    k.e("s_add_u32 s23, s23, s24")
    k.e("s_and_b32 s22, s20, 3")
    k.e("s_lshl_b32 s22, s22, 3")
    k.e("s_lshr_b32 s24, s21, 2")
    k.e("s_add_u32 s22, s22, s24")
    k.e("s_lshl_b32 s24, s23, 8")
    wave_and_lane(k)
    dma = []
    k.e("v_lshlrev_b32 v9, 4, v2")
    k.e("s_lshl_b32 s29, s23, 3")
    k.e("s_add_u32 s29, s29, s25")
    k.e("s_lshl_b32 s30, s29, 16")
    k.e("v_add_u32 v10, s30, v9")
    k.e("v_add_u32 v11, 1024, v10")
    for i in range(2):
        k.e("s_lshl_b32 s%d, s25, 11" % (40 + i))
        k.e("s_add_u32 s%d, s%d, %d" % (40 + i, 40 + i, 1024 * i))
        dma.append((8, 10 + i, 50, 40 + i))
    k.e("s_lshl_b32 s31, s25, 3")
    k.e("v_lshrrev_b32 v3, 3, v2")
    k.e("v_add_u32 v3, s31, v3")
    k.e("v_mul_u32_u24 v4, 37, v3")
    k.e("v_lshrrev_b32 v4, 8, v4")
    k.e("v_mul_u32_u24 v5, 7, v4")
    k.e("v_sub_u32 v5, v3, v5")
    k.e("v_bfe_u32 v6, v2, 1, 2")
    k.e("v_lshl_add_u32 v6, v4, 2, v6")
    k.e("v_mul_u32_u24 v6, 7168, v6")
    k.e("v_lshl_add_u32 v6, v5, 5, v6")
    k.e("v_and_b32 v7, 1, v2")
    k.e("v_lshl_add_u32 v6, v7, 4, v6")
    k.e("s_mul_i32 s31, s22, 224")
    k.e("v_add_u32 v12, s31, v6")
    k.e("s_mul_i32 s31, s2, 28672")
    k.e("v_add_u32 v7, s31, v9")
    k.e("s_lshl_b32 s42, s25, 10")
    k.e("s_add_u32 s43, s42, %d" % UOFF)
    k.e("s_add_u32 s42, s42, %d" % XB)
    k.e("s_mov_b32 s56, %d" % (BK * 7168))
    k.e("s_cmp_eq_u32 s25, 7")
    k.e("s_cselect_b32 s56, 1024, s56")
    k.e("s_cselect_b32 s57, 0, -1")
    k.e("s_cselect_b32 s42, %d, s42" % SCR)
    k.e("s_cselect_b32 s43, %d, s43" % (SCR + 1024))
    k.e("s_cselect_b64 vcc, -1, 0")
    k.e("s_nop 1")
    k.e("v_cndmask_b32 v12, v12, v7, vcc")
    dma.append((12, 12, 51, 42))
    dma.append((16, 12, 51, 43))
    k.e("s_mov_b32 s50, 0")
    k.e("s_mov_b32 s51, 0")
    k.e("s_waitcnt lgkmcnt(0)")
    k.srd(8, 6, 2048 * 1024 * 2, WS_H)
    k.e("s_cmp_eq_u32 s25, 7")
    k.e("s_cselect_b32 s72, s70, s60")
    k.e("s_cselect_b32 s73, s71, s61")
    k.e("s_cselect_b32 s74, s70, s62")
    k.e("s_cselect_b32 s75, s71, s63")
    k.srd(12, 72, 1024 * 3584 * 2)
    k.srd(16, 74, 1024 * 3584 * 2)
    k.e("s_cmp_eq_u32 s25, 7")
    k.e("s_cselect_b32 s14, 0, s14")
    k.e("s_cselect_b32 s18, 0, s18")
    sp = Spec()
    sp.NS, sp.nst, sp.stage_bytes = NS, 1024 // BK, SB
    sp.dma = dma
    sp.dma_abs = {2: 57, 3: 57}
    sp.sadv = [(50, 2048), (51, "s56")]
    sp.s_wr, sp.s_rd, sp.s_cnt = 52, 53, 54
    gemm_prologue(k, sp)
    if not os.environ.get("NOTOUCH"):
        k.e("s_mov_b32 s14, %d" % (1024 * 3584 * 2))
    k.e("s_cmp_eq_u32 s25, 7")
    k.e("s_cselect_b32 s51, 0, s51")
    k.e("s_and_b32 s26, s25, 3")
    k.e("s_lshr_b32 s27, s25, 2")
    k.e("s_lshl_b32 s30, s26, 12")
    k.e("v_add_u32 v14, s30, v9")
    k.e("v_bfe_u32 v3, v2, 2, 2")
    k.e("v_lshlrev_b32 v3, 5, v3")
    k.e("v_and_b32 v4, 3, v2")
    k.e("v_lshl_add_u32 v3, v4, 3, v3")
    k.e("v_lshrrev_b32 v4, 5, v2")
    k.e("v_mul_u32_u24 v4, %d, v4" % (7 * 128))
    k.e("v_add_u32 v3, v3, v4")
    k.e("v_bfe_u32 v4, v2, 4, 1")
    k.e("v_mul_u32_u24 v4, %d, v4" % (UOFF - XB))
    k.e("v_add_u32 v3, v3, v4")
    k.e("s_lshl_b32 s30, s27, 9")
    k.e("s_add_u32 s30, s30, %d" % XB)
    k.e("v_add_u32 v16, s30, v3")
    ACC = 64
    for i in range(128):
        k.e("v_mov_b32 v%d, 0" % (ACC + i))
    F0, F1 = 192, 216
    sp.addr = [14, 16]
    sp.fset = [F0, F1]
    k.srd(64, 6, 8 * 2048 * 8, WS_ST)
    k.srd(76, 6, 2048 * 3584 * 2, WS_HH)
    k.srd(68, 6, 4 * 2 * 3584 * 4, WS_CS)
    S0 = 24

    def early():
        k.e("s_lshl_b32 s30, s26, 6")
        k.e("s_add_u32 s30, s30, s24")
        k.e("v_and_b32 v3, 31, v2")
        k.e("v_add_u32 v3, s30, v3")
        k.e("v_lshlrev_b32 v4, 3, v3")
        k.e("v_lshrrev_b32 v5, 5, v2")
        k.e("v_lshl_add_u32 v4, v5, 16, v4")
        k.e("s_mov_b32 s31, 0")
        for i in range(4):
            k.e("buffer_load_dwordx2 v[%d:%d], v4, s[64:67], s31 offen" % (S0 + 2 * i, S0 + 2 * i + 1))
            k.e("buffer_load_dwordx2 v[%d:%d], v4, s[64:67], s31 offen offset:256" % (S0 + 8 + 2 * i, S0 + 8 + 2 * i + 1))
            k.e("s_add_u32 s31, s31, 16384")
        k.e("v_cmp_gt_u32 vcc, 28, v2")
        k.e("v_subrev_u32 v6, 28, v2")
        k.e("s_nop 1")
        k.e("v_cndmask_b32 v6, v6, v2, vcc")
        k.e("v_lshlrev_b32 v6, 4, v6")
        k.e("v_mov_b32 v7, %d" % (3584 * 4))
        k.e("v_mov_b32 v8, 0")
        k.e("v_cndmask_b32 v7, v7, v8, vcc")
        k.e("v_add_u32 v6, v6, v7")
        k.e("s_mul_i32 s31, s22, 448")
        k.e("v_add_u32 v6, s31, v6")
        k.e("s_mov_b32 s31, 0")
        for i in range(4):
            k.e("buffer_load_dwordx4 v[%d:%d], v6, s[68:71], s31 offen" % (40 + 4 * i, 43 + 4 * i))
            k.e("s_add_u32 s31, s31, %d" % (2 * 3584 * 4))
        return 12
    sp.tail_hook = early
    L_b = k.newlab("pathb")
    L_fin = k.newlab("fin")
    k.e("s_cmp_lg_u32 s27, 0")
    k.e("s_cbranch_scc1 %s" % L_b)
    nst0 = k.nstamp
    for fh in range(2):
        NF = 4 if fh == 0 else 3
        if fh == 1:
            k.lab(L_b)
            k.nstamp = nst0
        steps = []
        for jj in range(2):
            reads = [("ds_read_b128", 0, 14, 1024 * jj)]
            mf = []
            for t in range(NF):
                for i in range(2):
                    reads.append(("ds_read_b64_tr_b16", 8 + 4 * t + 2 * i, 16, ((4 * jj + 2 * i) * 7 + t) * 128))
                if t == 0:
                    reads.append(("ds_read_b128", 4, 14, 2048 + 1024 * jj))
                d = 2 * t + 2 + (1 if t > 0 else 0)
                mf.append((ACC + 16 * (2 * t), 8 + 4 * t, 0, d))
                mf.append((ACC + 16 * (2 * t + 1), 8 + 4 * t, 4, max(d, 3)))
            steps.append(dict(reads=reads, mfma=mf))
        sp.steps = steps
        gemm_main(k, sp)
        k.e("s_waitcnt vmcnt(0)")
        for i in (0, 2):
            k.e(pk("v_pk_add_f32", 40 + i, 40 + i, 44 + i))
            k.e(pk("v_pk_add_f32", 48 + i, 48 + i, 52 + i))
            k.e(pk("v_pk_add_f32", 40 + i, 40 + i, 48 + i))
        k.e("v_add_u32 v6, %d, v9" % CSL)
        k.e("v_cmp_gt_u32 vcc, 56, v2")
        k.e("s_and_saveexec_b64 s[36:37], vcc")
        k.e("ds_write_b128 v6, v[40:43]")
        k.e("s_mov_b64 exec, s[36:37]")
        for tl in range(2):
            B = S0 + 8 * tl
            k.e(pk("v_pk_add_f32", B, B, B + 2))
            k.e(pk("v_pk_add_f32", B + 4, B + 4, B + 6))
            k.e(pk("v_pk_add_f32", B, B, B + 4))
            k.e("v_mov_b32 v%d, v%d" % (B + 2, B))
            k.e("v_mov_b32 v%d, v%d" % (B + 3, B + 1))
        k.e("s_nop 1")
        for tl in range(2):
            B = S0 + 8 * tl
            k.e("v_permlane32_swap_b32 v%d, v%d" % (B, B + 2))
            k.e("v_permlane32_swap_b32 v%d, v%d" % (B + 1, B + 3))
        k.e("s_nop 1")
        for tl in range(2):
            B = S0 + 8 * tl
            k.e(pk("v_pk_add_f32", B, B, B + 2))
        k.e("s_waitcnt lgkmcnt(0)")
        k.e("s_barrier")
        k.e("v_lshrrev_b32 v6, 5, v2")
        k.e("v_lshlrev_b32 v5, 4, v6")
        k.e("v_add_u32 v5, %d, v5" % (CSL + 256 * fh))
        C0 = 192
        T = 224

        def csread(tt):
            cbb = C0 + (tt & 1) * 16
            for q in range(2):
                k.e("ds_read_b128 v[%d:%d], v5 offset:%d" % (cbb + 4 * q, cbb + 4 * q + 3, tt * 64 + q * 32))
                k.e("ds_read_b128 v[%d:%d], v5 offset:%d" % (cbb + 8 + 4 * q, cbb + 8 + 4 * q + 3, 448 + tt * 64 + q * 32))
        csread(0)
        csread(1)
        for tl in range(2):
            B = S0 + 8 * tl
            m, v = B, B + 1
            k.e("v_mul_f32 v%d, 0x3a800000, v%d" % (m, m))
            k.e("v_mul_f32 v%d, 0x3a800000, v%d" % (v, v))
            k.e("v_fma_f32 v%d, -v%d, v%d, v%d" % (v, m, m, v))
            k.e("v_max_f32 v%d, 0, v%d" % (v, v))
            round_bf16(k, m, m)
            round_bf16(k, v, v)
            k.e("v_add_f32 v%d, 0x3727c5ac, v%d" % (v, v))
            round_bf16(k, v, v)
            k.e("v_sqrt_f32 v%d, v%d" % (v, v))
            k.e("s_nop 0")
            round_bf16(k, v, v)
            k.e("v_rcp_f32 v%d, v%d" % (B + 4, v))
            k.e("s_nop 0")
            k.e("v_mov_b32 v%d, v%d" % (B + 5, B + 4))
            k.e("v_mul_f32 v%d, v%d, v%d" % (m, m, B + 4))
            k.e("v_sub_f32 v%d, 0, v%d" % (B + 6, m))
            k.e("v_mov_b32 v%d, v%d" % (B + 7, B + 6))
        k.e("s_lshl_b32 s31, s23, 3")
        k.e("s_lshl_b32 s30, s26, 1")
        k.e("s_add_u32 s31, s31, s30")
        k.e("s_mul_i32 s31, s31, 224")
        k.e("s_mul_i32 s30, s22, 7")
        k.e("s_add_u32 s31, s31, s30")
        k.e("s_add_u32 s31, s31, %d" % (4 * fh))
        k.e("s_lshl_b32 s31, s31, 10")
        k.e("v_add_u32 v56, s31, v9")
        k.e("v_add_u32 v57, %d, v56" % (224 * 1024))
        c1 = -2.0 * math.log2(math.e) * math.sqrt(2.0 / math.pi)
        c2 = c1 * 0.044715
        k.e("v_mov_b32 v60, 0x%08x" % f2u(c1))
        k.e("v_mov_b32 v61, 0x%08x" % f2u(c1))
        k.e("v_mov_b32 v62, 0x%08x" % f2u(c2))
        k.e("v_mov_b32 v63, 0x%08x" % f2u(c2))
        k.e("v_mov_b32 v58, 1.0")
        k.e("v_mov_b32 v59, 1.0")
        cnt = 0
        for t in range(NF):
            cb = C0 + (t & 1) * 16
            k.e("s_waitcnt lgkmcnt(%d)" % (4 if t < NF - 1 else 0))
            for tl in range(2):
                B = S0 + 8 * tl
                A = ACC + 16 * (2 * t + tl)
                for j in range(8):
                    k.e(pk("v_pk_mul_f32", T + 2 * j, cb + 2 * j, B + 6))
                for j in range(8):
                    k.e(pk("v_pk_fma_f32", A + 2 * j, A + 2 * j, B + 4, T + 2 * j))
                if tl == 1 and t + 2 < NF:
                    csread(t + 2)
                for j in range(4):
                    k.e(pk("v_pk_mul_f32", T + 2 * j, A + 2 * j, A + 2 * j))
                for j in range(4):
                    k.e(pk("v_pk_fma_f32", T + 2 * j, T + 2 * j, 62, 60))
                for j in range(4):
                    k.e(pk("v_pk_mul_f32", T + 2 * j, T + 2 * j, A + 2 * j))
                for j in range(8):
                    k.e("v_exp_f32 v%d, v%d" % (T + j, T + j))
                for j in range(4):
                    k.e(pk("v_pk_mul_f32", A + 2 * j, A + 2 * j, A + 8 + 2 * j))
                for j in range(4):
                    k.e(pk("v_pk_add_f32", T + 2 * j, T + 2 * j, 58))
                for j in range(8):
                    k.e("v_rcp_f32 v%d, v%d" % (T + j, T + j))
                k.e("s_nop 0")
                for j in range(4):
                    k.e(pk("v_pk_mul_f32", A + 2 * j, A + 2 * j, T + 2 * j))
                o = 44 + 4 * (cnt & 1)
                for j in range(4):
                    k.e("v_cvt_pk_bf16_f32 v%d, v%d, v%d" % (o + j, A + 2 * j, A + 2 * j + 1))
                k.e("buffer_store_dwordx4 v[%d:%d], v%d, s[76:79], 0 offen offset:%d%s" % (o, o + 3, 56 + tl, 1024 * t, WT))
                cnt += 1
        if fh == 0:
            k.e("s_branch %s" % L_fin)
    k.lab(L_fin)
    k.stamp_store(4)
    k.lab(L_end)
    k.e("s_endpgm")
    return k, 240, (256, 512, SCR + 2048)


WS_P = 40 * MB


def gen_down2():
    k = KB("k4_down_kernel")
    L_end = k.newlab("end")
    BK, NS = 64, 5
    XB = 16384
    WB = 16384
    SB = XB + WB
    k.e("s_cmp_ge_u32 s2, 256")
    k.e("s_cbranch_scc1 %s" % L_end)
    k.e("s_load_dwordx2 s[4:5], s[0:1], %d" % KA_WD)
    k.e("s_load_dwordx2 s[6:7], s[0:1], %d" % KA_WS)
    k.e("s_load_dwordx4 s[60:63], s[0:1], %d" % KA_OUT)
    k.e("s_and_b32 s20, s2, 7")
    k.e("s_lshr_b32 s21, s2, 3")
    k.e("s_and_b32 s38, s21, 1")
    k.e("s_lshr_b32 s21, s21, 1")
    k.e("s_and_b32 s22, s20, 1")
    k.e("s_lshl_b32 s22, s22, 2")
    k.e("s_and_b32 s23, s21, 3")
    k.e("s_add_u32 s22, s22, s23")
    k.e("s_lshr_b32 s23, s20, 1")
    k.e("s_lshl_b32 s23, s23, 2")
    k.e("s_lshr_b32 s24, s21, 2")
    k.e("s_add_u32 s23, s23, s24")
    k.e("s_lshl_b32 s24, s23, 7")
    wave_and_lane(k)
    k.e("s_lshr_b32 s26, s25, 2")
    k.e("s_bfe_u32 s27, s25, 0x10001")
    k.e("s_and_b32 s28, s25, 1")
    dma = []
    k.e("v_lshlrev_b32 v9, 4, v2")
    k.e("s_lshl_b32 s30, s23, 2")
    k.e("s_lshr_b32 s31, s25, 1")
    k.e("s_add_u32 s30, s30, s31")
    k.e("s_mul_i32 s30, s30, 224")
    k.e("s_mul_i32 s31, s38, 112")
    k.e("s_add_u32 s30, s30, s31")
    k.e("s_lshl_b32 s31, s28, 1")
    k.e("s_add_u32 s30, s30, s31")
    k.e("s_lshl_b32 s30, s30, 10")
    k.e("v_add_u32 v10, s30, v9")
    k.e("v_add_u32 v11, 1024, v10")
    for i in range(2):
        k.e("s_lshl_b32 s%d, s25, 11" % (40 + i))
        k.e("s_add_u32 s%d, s%d, %d" % (40 + i, 40 + i, 1024 * i))
        dma.append((8, 10 + i, 50, 40 + i))
    for i in range(2):
        k.e("s_lshl_b32 s30, s25, 3")
        k.e("s_add_u32 s30, s30, %d" % (4 * i))
        k.e("v_bfe_u32 v6, v2, 2, 2")
        k.e("v_add_u32 v6, s30, v6")
        k.e("v_lshlrev_b32 v6, 11, v6")
        k.e("v_lshrrev_b32 v7, 4, v2")
        k.e("v_lshl_add_u32 v6, v7, 6, v6")
        k.e("v_and_b32 v7, 3, v2")
        k.e("v_lshl_add_u32 v6, v7, 4, v6")
        k.e("s_lshl_b32 s31, s22, 8")
        k.e("v_add_u32 v%d, s31, v6" % (12 + i))
        k.e("s_lshl_b32 s%d, s25, 11" % (42 + i))
        k.e("s_add_u32 s%d, s%d, %d" % (42 + i, 42 + i, XB + 1024 * i))
        dma.append((12, 12 + i, 51, 42 + i))
    k.e("s_mov_b32 s50, 0")
    k.e("s_mul_i32 s51, s38, %d" % (1792 * 2048))
    k.e("s_waitcnt lgkmcnt(0)")
    k.srd(8, 6, 2048 * 3584 * 2, WS_HH)
    k.srd(12, 4, 3584 * 1024 * 2)
    sp = Spec()
    sp.NS, sp.nst, sp.stage_bytes = NS, 1792 // BK, SB
    sp.dma = dma
    sp.sadv = [(50, 4096), (51, BK * 2048)]
    sp.s_wr, sp.s_rd, sp.s_cnt = 52, 53, 54
    k.srd(64, 6, 32768, WS_FLAG)
    k.e("s_lshl_b32 s33, s23, 3")
    k.e("s_add_u32 s33, s33, s22")
    k.e("s_lshl_b32 s34, s33, 8")
    k.e("v_mov_b32 v20, s34")
    k.e("v_mov_b32 v21, 1")
    L_na0 = k.newlab("noarr0")
    k.e("s_cmp_lg_u32 s25, 0")
    k.e("s_cbranch_scc1 %s" % L_na0)
    k.e("s_mov_b64 exec, 1")
    k.e("buffer_atomic_add v21, v20, s[64:67], 0 offen sc0 sc1")
    k.e("s_mov_b64 exec, -1")
    k.lab(L_na0)
    gemm_prologue(k, sp)
    for tl in range(2):
        k.e("s_xor_b32 s30, s26, %d" % tl)
        k.e("s_lshl_b32 s31, s27, 1")
        k.e("s_add_u32 s30, s30, s31")
        k.e("s_lshl_b32 s30, s30, 2")
        k.e("s_lshl_b32 s31, s26, 1")
        k.e("s_add_u32 s30, s30, s31")
        k.e("s_lshl_b32 s30, s30, 10")
        k.e("v_add_u32 v%d, s30, v9" % (16 + tl))
    wfrag_lanepat(k, 3, 4, 1024)
    k.e("s_lshl_b32 s30, s26, 13")
    k.e("s_lshl_b32 s31, s28, 9")
    k.e("s_add_u32 s30, s30, s31")
    k.e("s_add_u32 s30, s30, %d" % XB)
    k.e("v_add_u32 v18, s30, v3")
    ACC = 64
    for i in range(64):
        k.e("v_mov_b32 v%d, 0" % (ACC + i))
    F0, F1 = 128, 144
    steps = []
    for jj in range(2):
        reads = [("ds_read_b128", 0, 16, 1024 * jj),
                 ("ds_read_b64_tr_b16", 8, 18, 4096 * jj), ("ds_read_b64_tr_b16", 10, 18, 4096 * jj + 2048),
                 ("ds_read_b64_tr_b16", 12, 18, 4096 * jj + 256), ("ds_read_b64_tr_b16", 14, 18, 4096 * jj + 2048 + 256),
                 ("ds_read_b128", 4, 17, 1024 * jj)]
        mf = [(ACC + 0, 8, 0, 2), (ACC + 16, 12, 0, 4), (ACC + 32, 8, 4, 5), (ACC + 48, 12, 4, 5)]
        steps.append(dict(reads=reads, mfma=mf))
    sp.addr = [16, 17, 18]
    sp.steps = steps
    sp.fset = [F0, F1]
    k.e("s_lshl_b32 s29, s27, 1")
    k.e("s_add_u32 s29, s29, s26")
    k.e("s_lshl_b32 s30, s23, 2")
    k.e("s_add_u32 s30, s30, s29")
    k.e("s_lshl_b32 s30, s30, 6")
    k.e("s_lshl_b32 s31, s22, 3")
    k.e("s_add_u32 s30, s30, s31")
    k.e("s_lshl_b32 s31, s28, 2")
    k.e("s_add_u32 s30, s30, s31")
    k.e("s_lshl_b32 s30, s30, 10")
    k.e("v_add_u32 v7, s30, v9")
    k.srd(16, 60, 2048 * 1024 * 2)
    k.srd(56, 6, 2048 * 1024 * 2, WS_H)
    k.srd(68, 6, 128 * 65536, WS_P)

    def resid():
        for s_ in range(4):
            k.e("buffer_load_dwordx4 v[%d:%d], v7, s[56:59], 0 offen offset:%d" % (32 + 4 * s_, 35 + 4 * s_, 1024 * s_))
        return 4
    sp.tail_hook = resid
    gemm_main(k, sp)
    k.e("s_lshl_b32 s30, s25, 13")
    k.e("v_add_u32 v4, s30, v9")
    k.e("s_xor_b32 s31, s25, 4")
    k.e("s_lshl_b32 s31, s31, 13")
    k.e("v_add_u32 v5, s31, v9")
    k.e("v_mov_b32 v60, 0xffff0000")
    k.e("s_mov_b32 s35, 0")
    k.e("s_mov_b32 s36, 1")
    k.e("s_lshl_b32 s30, s33, 16")
    k.e("s_lshl_b32 s31, s25, 13")
    k.e("s_add_u32 s30, s30, s31")
    k.e("v_add_u32 v22, s30, v9")
    k.e("v_add_u32 v23, 4096, v22")
    k.e("s_barrier")
    for q in range(8):
        k.e("ds_write_b128 v4, v[%d:%d] offset:%d" % (ACC + 32 + 4 * q, ACC + 35 + 4 * q, 1024 * q))
    L_na = k.newlab("noarr")
    k.e("s_cmp_lg_u32 s25, 0")
    k.e("s_cbranch_scc1 %s" % L_na)
    k.e("s_mov_b64 exec, 1")
    k.e("v_mov_b32 v24, %d" % 131072)
    k.e("ds_write_b32 v24, v21")
    k.e("s_mov_b64 exec, -1")
    k.lab(L_na)
    k.e("s_waitcnt lgkmcnt(0)")
    k.e("s_barrier")
    for q in range(8):
        k.e("ds_read_b128 v[%d:%d], v5 offset:%d" % (ACC + 32 + 4 * q, ACC + 35 + 4 * q, 1024 * q))
    k.e("v_mov_b32 v24, %d" % 131072)
    k.e("ds_read_b32 v25, v24")
    k.e("s_waitcnt lgkmcnt(0)")
    for i in range(0, 32, 2):
        k.e(pk("v_pk_add_f32", ACC + i, ACC + i, ACC + 32 + i))
    k.e("v_readfirstlane_b32 s37, v25")
    k.e("s_nop 3")
    k.e("s_lshr_b32 s37, s37, s35")
    k.e("s_and_b32 s37, s37, 0xff")
    L_second = k.newlab("second")
    k.e("s_cmp_lg_u32 s37, 0")
    k.e("s_cbranch_scc1 %s" % L_second)
    for q in range(8):
        k.e("buffer_store_dwordx4 v[%d:%d], v%d, s[68:71], 0 offen offset:%d sc1" % (ACC + 4 * q, ACC + 4 * q + 3, 22 if q < 4 else 23, 1024 * (q & 3)))
    k.e("s_waitcnt vmcnt(0)")
    k.e("s_barrier")
    L_fin = k.newlab("fin")
    k.e("s_cmp_lg_u32 s25, 0")
    k.e("s_cbranch_scc1 %s" % L_fin)
    k.e("s_mov_b64 exec, 1")
    k.e("v_mov_b32 v21, s36")
    k.e("buffer_atomic_add v21, v20, s[64:67], 0 offen offset:128 sc1")
    k.e("s_mov_b64 exec, -1")
    k.e("s_branch %s" % L_fin)
    k.lab(L_second)
    L_wait = k.newlab("wait")
    L_go = k.newlab("go")
    k.e("s_cmp_lg_u32 s25, 0")
    k.e("s_cbranch_scc1 %s" % L_go)
    k.lab(L_wait)
    k.e("buffer_load_dword v25, v20, s[64:67], 0 offen offset:128 sc1")
    k.e("s_waitcnt vmcnt(0)")
    k.e("v_readfirstlane_b32 s37, v25")
    k.e("s_nop 3")
    k.e("s_and_b32 s37, s37, s36")
    k.e("s_cmp_lg_u32 s37, 0")
    k.e("s_cbranch_scc1 %s" % L_go)
    k.e("s_sleep 2")
    k.e("s_branch %s" % L_wait)
    k.lab(L_go)
    k.e("s_barrier")
    for q in range(8):
        k.e("buffer_load_dwordx4 v[%d:%d], v%d, s[68:71], 0 offen offset:%d sc1" % (ACC + 32 + 4 * q, ACC + 35 + 4 * q, 22 if q < 4 else 23, 1024 * (q & 3)))
    EX = 65536
    k.e("s_lshl_b32 s30, s29, 5")
    k.e("v_and_b32 v3, 31, v2")
    k.e("v_add_u32 v3, s30, v3")
    k.e("v_mul_u32_u24 v3, 272, v3")
    k.e("v_lshrrev_b32 v5, 5, v2")
    k.e("v_lshl_add_u32 v3, v5, 3, v3")
    k.e("s_lshl_b32 s30, s28, 7")
    k.e("s_add_u32 s30, s30, %d" % EX)
    k.e("v_add_u32 v3, s30, v3")
    k.e("v_lshrrev_b32 v4, 4, v2")
    k.e("s_lshl_b32 s30, s25, 4")
    k.e("v_add_u32 v4, s30, v4")
    k.e("v_and_b32 v5, 15, v2")
    k.e("v_mul_u32_u24 v6, 272, v4")
    k.e("v_lshl_add_u32 v6, v5, 4, v6")
    k.e("v_add_u32 v6, %d, v6" % EX)
    k.e("v_add_u32 v4, s24, v4")
    k.e("v_lshlrev_b32 v4, 11, v4")
    k.e("v_lshl_add_u32 v4, v5, 4, v4")
    k.e("s_lshl_b32 s30, s22, 8")
    k.e("v_add_u32 v4, s30, v4")
    T = 128
    R = 144
    for nl in range(2):
        k.e("s_waitcnt vmcnt(%d)" % (4 - 4 * nl))
        A = ACC + 16 * nl
        for i in range(0, 16, 2):
            k.e(pk("v_pk_add_f32", A + i, A + i, A + 32 + i))
        for i in range(8):
            k.e("v_cvt_pk_bf16_f32 v%d, v%d, v%d" % (48 + i, A + 2 * i, A + 2 * i + 1))
        for i in range(8):
            k.e("v_lshlrev_b32 v%d, 16, v%d" % (T + 2 * i, 48 + i))
            k.e("v_and_b32 v%d, v60, v%d" % (T + 2 * i + 1, 48 + i))
            k.e("v_lshlrev_b32 v%d, 16, v%d" % (R + 2 * i, 32 + 8 * nl + i))
            k.e("v_and_b32 v%d, v60, v%d" % (R + 2 * i + 1, 32 + 8 * nl + i))
        for i in range(8):
            k.e(pk("v_pk_add_f32", T + 2 * i, T + 2 * i, R + 2 * i))
        for i in range(8):
            k.e("v_cvt_pk_bf16_f32 v%d, v%d, v%d" % (48 + i, T + 2 * i, T + 2 * i + 1))
        for q in range(4):
            k.e("ds_write_b64 v3, v[%d:%d] offset:%d" % (48 + 2 * q, 49 + 2 * q, 64 * nl + 16 * q))
        if nl == 0:
            k.e("s_nop 1")
    k.e("s_waitcnt lgkmcnt(0)")
    k.e("s_barrier")
    for i in range(4):
        k.e("ds_read_b128 v[%d:%d], v6 offset:%d" % (32 + 4 * i, 35 + 4 * i, 1088 * i))
    k.e("s_mov_b32 s30, 0")
    for i in range(4):
        k.e("s_waitcnt lgkmcnt(%d)" % (3 - i))
        k.e("buffer_store_dwordx4 v[%d:%d], v4, s[16:19], s30 offen%s" % (32 + 4 * i, 35 + 4 * i, WT))
        k.e("s_add_u32 s30, s30, 8192")
    k.lab(L_fin)
    k.stamp_store(5)
    k.lab(L_end)
    k.e("s_endpgm")
    return k, 160, (256, 512, NS * SB)


def main():
    kernels = [gen_k0(), gen_k1() if os.environ.get('K1A') else gen_k1b(), gen_k15(), gen_proj("k2_wo_kernel", "wo"), gen_k3() if os.environ.get("K3A") else gen_k3b(),
               gen_down2() if os.environ.get("NEWK4") else gen_proj("k4_down_kernel", "down")]
    hdr = open(REF).read().split("\n")
    out = []
    for ln in hdr:
        if ln.startswith("; @launch"):
            break
        out.append(ln)
    for k, vg, (g, b, lds) in kernels:
        out.append("; @launch kernel=%s grid=(%d,1,1) block=(%d,1,1) lds=%d" % (k.name, g, b, lds))
    out.append('.amdgcn_target "amdgcn-amd-amdhsa--gfx950"')
    out.append(".text")
    descs = []
    for k, vg, _ in kernels:
        t, d = k.text(vg)
        out.append(t)
        descs.append(d)
    out.append('.section .rodata,"a"')
    for d in descs:
        out.append(".p2align 6")
        out.append(d)
    dst = os.environ.get("DST", "stamp.s" if STAMP else OUT)
    open(dst, "w").write("\n".join(out) + "\n")
    print("wrote", dst, sum(len(k.lines) for k, _, _ in kernels), "lines")


if __name__ == "__main__":
    main()
```

```python
import os, math, struct

NAME = "sequential_preLN__linear_attn_block__glu_gated_geglu__prompt"
OUT = "cdna_kernels/%s.s" % NAME
REF = OUT + ".ref"

MB = 1 << 20
WS_XN = 0 * MB
WS_PQ = 4 * MB
WS_KVP = 8 * MB
WS_ZP = 10 * MB
WS_CS = 11 * MB
WS_CS2 = 11 * MB + 512 * 1024
WS_ST = 12 * MB
WS_O = 16 * MB
WS_H = 20 * MB
WS_HH = 24 * MB
WS_FLAG = 13 * MB
WS_SIZE = 268435456

KA_X, KA_WQKV, KA_WO, KA_BX, KA_WG, KA_WU, KA_WD, KA_OUT, KA_DBG, KA_WS = [8 * i for i in range(10)]

STAMP = bool(os.environ.get("STAMP"))
WT = os.environ.get("WT", " sc1")
WS_STAMP = 128 * MB
CODE_BYTES = int(os.environ.get("CODEB", "32768"))
f2u = lambda f: struct.unpack("<I", struct.pack("<f", f))[0]


class KB:
    def __init__(self, name):
        self.name = name
        self.lines = []
        self.nlab = 0
        self.nstamp = 0

    def stamp(self):
        if not STAMP:
            return
        i = self.nstamp
        self.nstamp += 1
        self.e("s_memtime s[%d:%d]" % (80 + 2 * i, 81 + 2 * i))
        if i == 0:
            self.e("s_memrealtime s[92:93]")
        self.e("s_waitcnt lgkmcnt(0)")

    def stamp_store(self, kidx):
        if not STAMP:
            return
        self.stamp()
        self.e("s_memrealtime s[94:95]")
        self.e("s_waitcnt lgkmcnt(0)")
        self.e("s_mov_b64 exec, -1")
        self.srd(76, 6, 1 << 20, WS_STAMP)
        self.e("s_lshl_b32 s98, s2, 8")
        self.e("s_lshl_b32 s97, s25, 5")
        self.e("s_add_u32 s98, s98, s97")
        self.e("s_add_u32 s98, s98, %d" % (kidx * 65536))
        self.e("v_mov_b32 v1, s98")
        for i in range(self.nstamp):
            self.e("v_mov_b32 v2, s%d" % (80 + 2 * i))
            self.e("buffer_store_dword v2, v1, s[76:79], 0 offen offset:%d" % (4 * i))
        for i, sr in enumerate((92, 94)):
            self.e("v_mov_b32 v2, s%d" % sr)
            self.e("buffer_store_dword v2, v1, s[76:79], 0 offen offset:%d" % (16 + 4 * i))

    def e(self, s):
        self.lines.append("    " + s)

    def lab(self, s):
        self.lines.append(s + ":")

    def newlab(self, s):
        self.nlab += 1
        return "L_%s_%s_%d" % (self.name, s, self.nlab)

    def srd(self, sd, sbase, nbytes, off=0):
        if off:
            self.e("s_add_u32 s%d, s%d, 0x%x" % (sd, sbase, off))
            self.e("s_addc_u32 s%d, s%d, 0" % (sd + 1, sbase + 1))
            self.e("s_and_b32 s%d, s%d, 0xffff" % (sd + 1, sd + 1))
        else:
            self.e("s_mov_b32 s%d, s%d" % (sd, sbase))
            self.e("s_and_b32 s%d, s%d, 0xffff" % (sd + 1, sbase + 1))
        self.e("s_mov_b32 s%d, 0x%x" % (sd + 2, nbytes))
        self.e("s_mov_b32 s%d, 0x00020000" % (sd + 3))

    def text(self, vgprs, sgprs=102):
        acc = (vgprs + 3) // 4 * 4
        out = [".globl %s" % self.name, ".p2align 8", ".type %s,@function" % self.name, "%s:" % self.name]
        out += self.lines
        return "\n".join(out), """.amdhsa_kernel %s
  .amdhsa_next_free_vgpr %d
  .amdhsa_next_free_sgpr %d
  .amdhsa_accum_offset %d
  .amdhsa_group_segment_fixed_size 0
  .amdhsa_kernarg_size 80
  .amdhsa_user_sgpr_count 2
  .amdhsa_user_sgpr_kernarg_segment_ptr 1
  .amdhsa_system_sgpr_workgroup_id_x 1
.end_amdhsa_kernel""" % (self.name, vgprs, sgprs, acc)


def wave_reduce_sum(k, v, stmp):
    k.e("s_nop 1")
    k.e("v_add_f32_dpp v%d, v%d, v%d quad_perm:[1,0,3,2] row_mask:0xf bank_mask:0xf" % (v, v, v))
    k.e("s_nop 1")
    k.e("v_add_f32_dpp v%d, v%d, v%d quad_perm:[2,3,0,1] row_mask:0xf bank_mask:0xf" % (v, v, v))
    k.e("s_nop 1")
    k.e("v_add_f32_dpp v%d, v%d, v%d row_half_mirror row_mask:0xf bank_mask:0xf" % (v, v, v))
    k.e("s_nop 1")
    k.e("v_add_f32_dpp v%d, v%d, v%d row_mirror row_mask:0xf bank_mask:0xf" % (v, v, v))
    k.e("s_nop 1")
    for i in range(4):
        k.e("v_readlane_b32 s%d, v%d, %d" % (stmp + i, v, 16 * i))
    k.e("s_nop 1")
    k.e("v_mov_b32 v%d, s%d" % (v, stmp))
    k.e("v_add_f32 v%d, s%d, v%d" % (v, stmp + 1, v))
    k.e("v_add_f32 v%d, s%d, v%d" % (v, stmp + 2, v))
    k.e("v_add_f32 v%d, s%d, v%d" % (v, stmp + 3, v))


def round_bf16(k, vd, vs):
    k.e("v_cvt_pk_bf16_f32 v%d, v%d, v%d" % (vd, vs, vs))
    k.e("v_lshlrev_b32 v%d, 16, v%d" % (vd, vd))


def pk(op, d, a, b, c=None):
    s = "%s v[%d:%d], v[%d:%d], v[%d:%d]" % (op, d, d + 1, a, a + 1, b, b + 1)
    if c is not None:
        s += ", v[%d:%d]" % (c, c + 1)
    return s


def wave_and_lane(k):
    k.e("v_lshrrev_b32 v1, 6, v0")
    k.e("v_and_b32 v2, 63, v0")
    k.e("s_nop 0")
    k.e("v_readfirstlane_b32 s25, v1")


def wfrag_lanepat(k, vd, vt, hh_stride):
    k.e("v_bfe_u32 v%d, v2, 2, 2" % vd)
    k.e("v_lshlrev_b32 v%d, 6, v%d" % (vd, vd))
    k.e("v_bfe_u32 v%d, v2, 4, 1" % vt)
    k.e("v_lshl_add_u32 v%d, v%d, 5, v%d" % (vd, vt, vd))
    k.e("v_and_b32 v%d, 3, v2" % vt)
    k.e("v_lshl_add_u32 v%d, v%d, 3, v%d" % (vd, vt, vd))
    k.e("v_lshrrev_b32 v%d, 5, v2" % vt)
    k.e("v_mul_u32_u24 v%d, %d, v%d" % (vt, hh_stride, vt))
    k.e("v_add_u32 v%d, v%d, v%d" % (vd, vd, vt))


def emit_colsum(k, L_end, sidx):
    k.e("s_cmp_ge_u32 s%d, 112" % sidx)
    k.e("s_cselect_b32 s28, s62, s60")
    k.e("s_cselect_b32 s29, s63, s61")
    k.e("s_cselect_b32 s30, 112, 0")
    k.e("s_cselect_b32 s38, %d, 0" % (3584 * 4))
    k.e("s_sub_u32 s31, s%d, s30" % sidx)
    k.e("s_mul_i32 s32, s31, 2341")
    k.e("s_lshr_b32 s32, s32, 16")
    k.e("s_mul_i32 s33, s32, 28")
    k.e("s_sub_u32 s33, s31, s33")
    k.srd(8, 28, 1024 * 3584 * 2)
    k.srd(12, 6, 4 * 2 * 3584 * 4, WS_CS)
    k.e("v_and_b32 v1, 15, v0")
    k.e("v_lshrrev_b32 v2, 4, v0")
    k.e("s_lshl_b32 s34, s33, 8")
    k.e("s_mul_i32 s35, s32, %d" % (256 * 7168))
    k.e("s_add_u32 s34, s34, s35")
    k.e("s_movk_i32 s35, 7168")
    k.e("v_mul_lo_u32 v3, v2, s35")
    k.e("v_lshl_add_u32 v3, v1, 4, v3")
    k.e("v_add_u32 v3, s34, v3")
    k.e("s_mov_b32 s34, 0")
    for it in range(16):
        k.e("buffer_load_dwordx4 v[%d:%d], v3, s[8:11], s34 offen" % (16 + 4 * it, 19 + 4 * it))
        if it != 15:
            k.e("s_add_u32 s34, s34, %d" % (16 * 7168))
    k.e("v_mov_b32 v4, 0xffff0000")
    for i in range(8):
        k.e("v_mov_b32 v%d, 0" % (8 + i))
    for it in range(16):
        k.e("s_waitcnt vmcnt(%d)" % (15 - it))
        for i in range(4):
            s_ = 16 + 4 * it + i
            k.e("v_lshlrev_b32 v5, 16, v%d" % s_)
            k.e("v_and_b32 v6, v4, v%d" % s_)
            k.e("v_add_f32 v%d, v%d, v5" % (8 + 2 * i, 8 + 2 * i))
            k.e("v_add_f32 v%d, v%d, v6" % (9 + 2 * i, 9 + 2 * i))
    k.e("v_lshlrev_b32 v5, 5, v0")
    k.e("ds_write_b128 v5, v[8:11]")
    k.e("ds_write_b128 v5, v[12:15] offset:16")
    k.e("s_waitcnt lgkmcnt(0)")
    k.e("s_barrier")
    k.e("v_cmp_gt_u32 vcc, 128, v0")
    k.e("s_and_saveexec_b64 s[36:37], vcc")
    k.e("s_cbranch_execz %s" % L_end)
    k.e("v_lshlrev_b32 v5, 2, v0")
    for rg in range(16):
        k.e("ds_read_b32 v%d, v5 offset:%d" % (16 + rg, rg * 512))
    k.e("s_waitcnt lgkmcnt(0)")
    for rg in range(1, 16):
        k.e("v_add_f32 v16, v16, v%d" % (16 + rg))
    k.e("s_mul_i32 s35, s32, %d" % (2 * 3584 * 4))
    k.e("s_add_u32 s35, s35, s38")
    k.e("s_lshl_b32 s36, s33, 9")
    k.e("s_add_u32 s35, s35, s36")
    k.e("v_add_u32 v5, s35, v5")
    k.e("buffer_store_dword v16, v5, s[12:15], 0 offen")
    k.e("s_branch %s" % L_end)


def gen_k0():
    k = KB("k0_ln_kernel")
    L_end = k.newlab("end")
    L_ln = k.newlab("ln")
    NCS0 = int(os.environ.get("CSK0", "224"))
    k.e("s_cmp_ge_u32 s2, %d" % (256 + NCS0))
    k.e("s_cbranch_scc1 %s" % L_end)
    k.e("s_load_dwordx4 s[4:7], s[0:1], %d" % KA_X)
    k.e("s_load_dwordx2 s[20:21], s[0:1], %d" % KA_WS)
    k.e("s_load_dwordx4 s[60:63], s[0:1], %d" % KA_WG)
    k.e("s_load_dwordx2 s[64:65], s[0:1], %d" % KA_WO)
    k.e("s_load_dwordx2 s[66:67], s[0:1], %d" % KA_WD)
    k.e("s_waitcnt lgkmcnt(0)")
    if NCS0:
        k.e("s_cmp_lt_u32 s2, 256")
        k.e("s_cbranch_scc1 %s" % L_ln)
        k.e("s_sub_u32 s3, s2, 256")
        k.e("s_mov_b32 s6, s20")
        k.e("s_mov_b32 s7, s21")
        emit_colsum(k, L_end, 3)
        k.lab(L_ln)
    k.srd(8, 4, 2048 * 1024 * 2)
    k.srd(12, 20, 2048 * 1024 * 2, WS_XN)
    k.srd(24, 6, 1024 * 3072 * 2)
    k.srd(28, 64, 1024 * 1024 * 2)
    k.e("v_lshrrev_b32 v62, 6, v0")
    k.e("v_and_b32 v2, 63, v0")
    k.e("s_lshl_b32 s3, s2, 3")
    k.e("v_lshlrev_b32 v3, 1, v62")
    k.e("v_add_u32 v3, s3, v3")
    k.e("v_lshlrev_b32 v3, 11, v3")
    k.e("v_lshl_add_u32 v1, v2, 4, v3")
    for r in range(2):
        k.e("buffer_load_dwordx4 v[%d:%d], v1, s[8:11], 0 offen offset:%d" % (4 + 8 * r, 7 + 8 * r, 2048 * r))
        k.e("buffer_load_dwordx4 v[%d:%d], v1, s[8:11], 0 offen offset:%d" % (8 + 8 * r, 11 + 8 * r, 2048 * r + 1024))
    k.e("v_lshrrev_b32 v61, 1, v3")
    k.e("v_mul_u32_u24 v3, 3, v61")
    k.e("v_lshl_add_u32 v3, v2, 7, v3")
    k.e("buffer_load_dword v64, v3, s[24:27], 0 offen" if not os.environ.get("NOTOUCH") else "buffer_load_dword v64, v1, s[8:11], 0 offen")
    k.e("v_lshl_add_u32 v3, v2, 5, v61")
    k.e("buffer_load_dword v65, v3, s[28:31], 0 offen" if not os.environ.get("NOTOUCH") else "buffer_load_dword v65, v1, s[8:11], 0 offen")
    k.e("v_mov_b32 v60, 0xffff0000")
    k.e("v_and_b32 v63, 7, v2")
    for r in range(2):
        k.e("s_waitcnt vmcnt(%d)" % (4 - 2 * r))
        src = 4 + 8 * r
        f = 24
        for i in range(8):
            k.e("v_lshlrev_b32 v%d, 16, v%d" % (f + 2 * i, src + i))
            k.e("v_and_b32 v%d, v60, v%d" % (f + 2 * i + 1, src + i))
        k.e("v_add_f32 v40, v%d, v%d" % (f, f + 1))
        for i in range(2, 16):
            k.e("v_add_f32 v40, v40, v%d" % (f + i))
        wave_reduce_sum(k, 40, 16)
        k.e("v_mul_f32 v40, 0x3a800000, v40")
        k.e("v_mov_b32 v41, 0")
        for i in range(16):
            k.e("v_sub_f32 v42, v%d, v40" % (f + i))
            k.e("v_fmac_f32 v41, v42, v42")
        wave_reduce_sum(k, 41, 16)
        k.e("v_mul_f32 v41, 0x3a800000, v41")
        round_bf16(k, 40, 40)
        round_bf16(k, 41, 41)
        k.e("v_add_f32 v41, 0x3727c5ac, v41")
        round_bf16(k, 41, 41)
        k.e("v_sqrt_f32 v41, v41")
        k.e("s_nop 0")
        round_bf16(k, 41, 41)
        k.e("v_rcp_f32 v41, v41")
        k.e("s_nop 0")
        for i in range(8):
            k.e("v_sub_f32 v42, v%d, v40" % (f + 2 * i))
            k.e("v_sub_f32 v43, v%d, v40" % (f + 2 * i + 1))
            k.e("v_cvt_pk_bf16_f32 v42, v42, v43")
            k.e("v_and_b32 v43, v60, v42")
            k.e("v_lshlrev_b32 v42, 16, v42")
            k.e("v_mul_f32 v42, v42, v41")
            k.e("v_mul_f32 v43, v43, v41")
            k.e("v_cvt_pk_bf16_f32 v%d, v42, v43" % (44 + 8 * r + i))
        k.e("v_lshl_add_u32 v42, v62, 1, %d" % r)
        k.e("v_xor_b32 v42, v42, v63")
        k.e("v_lshlrev_b32 v42, 4, v42")
        k.e("v_lshl_add_u32 v42, v2, 7, v42")
        k.e("ds_write_b128 v42, v[%d:%d]" % (44 + 8 * r, 47 + 8 * r))
        k.e("ds_write_b128 v42, v[%d:%d] offset:8192" % (48 + 8 * r, 51 + 8 * r))
    k.e("s_waitcnt lgkmcnt(0)")
    k.e("s_barrier")
    k.e("v_and_b32 v4, 7, v0")
    k.e("v_lshrrev_b32 v5, 3, v0")
    k.e("v_and_b32 v6, 7, v5")
    k.e("v_xor_b32 v6, v6, v4")
    k.e("v_lshlrev_b32 v6, 4, v6")
    k.e("v_lshl_add_u32 v6, v5, 7, v6")
    for i in range(4):
        k.e("ds_read_b128 v[%d:%d], v6 offset:%d" % (8 + 4 * i, 11 + 4 * i, 4096 * i))
    k.e("s_lshr_b32 s16, s2, 2")
    k.e("s_lshl_b32 s16, s16, 16")
    k.e("s_and_b32 s17, s2, 3")
    k.e("s_lshl_b32 s17, s17, 7")
    k.e("s_add_u32 s16, s16, s17")
    k.e("v_lshlrev_b32 v7, 9, v5")
    k.e("v_lshl_add_u32 v7, v4, 4, v7")
    k.e("v_add_u32 v7, s16, v7")
    k.e("s_mov_b32 s17, 0")
    for i in range(4):
        k.e("s_waitcnt lgkmcnt(%d)" % (3 - i))
        k.e("buffer_store_dwordx4 v[%d:%d], v7, s[12:15], s17 offen%s" % (8 + 4 * i, 11 + 4 * i, WT))
        k.e("s_add_u32 s17, s17, 16384")
    if os.environ.get("WDK0"):
        k.srd(32, 66, 3584 * 1024 * 2)
        k.e("v_lshrrev_b32 v61, 1, v61")
        k.e("v_mul_u32_u24 v3, 7, v61")
        k.e("v_lshl_add_u32 v3, v2, 7, v3")
        k.e("buffer_load_dword v66, v3, s[32:35], 0 offen")
    if os.environ.get("CODEPF"):
        Lc = k.newlab("nocode")
        k.e("s_cmp_ge_u32 s2, 16")
        k.e("s_cbranch_scc1 %s" % Lc)
        k.e("s_getpc_b64 s[40:41]")
        k.e("s_mov_b32 s44, s40")
        k.e("s_and_b32 s45, s41, 0xffff")
        k.e("s_mov_b32 s46, %d" % CODE_BYTES)
        k.e("s_mov_b32 s47, 0x00020000")
        k.e("v_lshlrev_b32 v3, 6, v0")
        for i in range((CODE_BYTES + 16383) // 16384):
            k.e("s_mov_b32 s48, %d" % (16384 * i))
            k.e("buffer_load_dword v%d, v3, s[44:47], s48 offen" % (66 + i))
        k.lab(Lc)
    k.lab(L_end)
    k.e("s_endpgm")
    return k, 80, (256 + NCS0, 256, 16384)


class Spec:
    pass


def gemm_dma_issue(k, sp, i):
    srd, voff, soff, sl = sp.dma[i]
    if i in getattr(sp, "dma_abs", {}):
        k.e("s_and_b32 s95, s%d, s%d" % (sp.s_wr, sp.dma_abs[i]))
        k.e("s_add_u32 m0, s95, s%d" % sl)
    else:
        k.e("s_add_u32 m0, s%d, s%d" % (sp.s_wr, sl))
    k.e("s_nop 0")
    k.e("buffer_load_dwordx4 v%d, s[%d:%d], s%d offen lds" % (voff, srd, srd + 3, soff))


def gemm_dma_advance(k, sp):
    for s, inc in sp.sadv:
        if isinstance(inc, str):
            k.e("s_add_u32 s%d, s%d, %s" % (s, s, inc))
        else:
            k.e("s_add_u32 s%d, s%d, 0x%x" % (s, s, inc))
    k.e("s_add_u32 s%d, s%d, %d" % (sp.s_wr, sp.s_wr, sp.stage_bytes))
    k.e("s_cmp_ge_u32 s%d, %d" % (sp.s_wr, sp.stage_bytes * sp.NS))
    k.e("s_cselect_b32 s%d, 0, s%d" % (sp.s_wr, sp.s_wr))


def gemm_prologue(k, sp):
    k.stamp()
    k.e("s_mov_b32 s%d, 0" % sp.s_wr)
    k.e("s_mov_b32 s%d, 0" % sp.s_rd)
    for s in range(sp.NS - 1):
        for i in range(len(sp.dma)):
            gemm_dma_issue(k, sp, i)
        gemm_dma_advance(k, sp)


def gemm_main(k, sp):
    NS, nst, SB = sp.NS, sp.nst, sp.stage_bytes
    nd = len(sp.dma)
    nsteps = len(sp.steps)

    def addr_next():
        k.e("s_add_u32 s%d, s%d, %d" % (sp.s_rd, sp.s_rd, SB))
        k.e("s_cmp_ge_u32 s%d, %d" % (sp.s_rd, SB * NS))
        k.e("s_cselect_b32 s%d, 0, s%d" % (sp.s_rd, sp.s_rd))
        k.e("s_cselect_b32 s96, s97, %d" % SB)
        for vc in sp.addr:
            k.e("v_add_u32 v%d, s96, v%d" % (vc, vc))

    def read_instr(rd, base):
        op, reg, addr, imm = rd
        n = 4 if op == "ds_read_b128" else 2
        if os.environ.get("NOLDS"):
            return
        if os.environ.get("HALFLDS") and k.name.startswith("k3") and op != "ds_read_b128" and ((reg - 4) // 4) % 2 == 1:
            k.e("s_nop 0")
            return
        k.e("%s v[%d:%d], v%d offset:%d" % (op, base + reg, base + reg + n - 1, addr, imm))

    k.e("s_mov_b32 s97, %d" % (-(NS - 1) * SB))
    if os.environ.get("PRIO"):
        Lp = k.newlab("prio")
        k.e("s_cmp_lt_u32 s25, 4")
        k.e("s_cbranch_scc1 %s" % Lp)
        k.e("s_setprio 1")
        k.lab(Lp)
    early = getattr(sp, "early", True)
    if early:
        k.e("s_waitcnt vmcnt(%d)" % ((NS - 2) * nd))
        k.e("s_barrier")
        k.stamp()
        for rd in sp.steps[0]["reads"]:
            read_instr(rd, sp.fset[0])
    else:
        k.stamp()
    gstep = [0]

    def stage(do_dma, last, vm):
        k.e("s_waitcnt vmcnt(%d)" % vm)
        k.e("s_barrier")
        dma_todo = list(range(nd)) if do_dma else []
        if not early:
            for rd in sp.steps[0]["reads"]:
                read_instr(rd, sp.fset[gstep[0] & 1])
            while dma_todo:
                gemm_dma_issue(k, sp, dma_todo.pop(0))
            if do_dma:
                gemm_dma_advance(k, sp)
        for j, st in enumerate(sp.steps):
            cur = sp.fset[gstep[0] & 1]
            nxt = sp.fset[(gstep[0] + 1) & 1]
            lastj = (j == nsteps - 1)
            nreads = [] if (lastj and (last or not early)) else sp.steps[(j + 1) % nsteps]["reads"]
            R = len(st["reads"])
            M = len(st["mfma"])
            issued = 0
            waited = -1
            if lastj and not last and early:
                addr_next()
            for i, (acc, a, b, dep) in enumerate(st["mfma"]):
                if dep > waited:
                    n = (R - 1 - dep) + issued
                    k.e("s_waitcnt lgkmcnt(%d)" % min(n, 15))
                    waited = dep
                if not os.environ.get("NOMFMA"):
                    k.e("v_mfma_f32_32x32x16_bf16 v[%d:%d], v[%d:%d], v[%d:%d], v[%d:%d]" % (
                        acc, acc + 15, cur + a, cur + a + 3, cur + b, cur + b + 3, acc, acc + 15))
                tgt = (len(nreads) * (i + 1) + M - 1) // M
                while issued < tgt:
                    read_instr(nreads[issued], nxt)
                    issued += 1
                if dma_todo:
                    per = (nd + M * nsteps - 1) // (M * nsteps)
                    for _ in range(max(per, 1)):
                        if dma_todo:
                            gemm_dma_issue(k, sp, dma_todo.pop(0))
                    if not dma_todo:
                        gemm_dma_advance(k, sp)
            gstep[0] += 1
        assert not dma_todo
        if not early and not last:
            addr_next()

    U = 1 if nsteps % 2 == 0 else 2
    nmain = nst - (NS - 1)
    nloop = (nmain // U) * U
    L = k.newlab("loop")
    if nloop > 0:
        k.e("s_mov_b32 s%d, %d" % (sp.s_cnt, nloop // U))
        k.lab(L)
        for u in range(U):
            stage(True, False, (NS - (3 if early else 2)) * nd)
        k.e("s_sub_u32 s%d, s%d, 1" % (sp.s_cnt, sp.s_cnt))
        k.e("s_cmp_lg_u32 s%d, 0" % sp.s_cnt)
        k.e("s_cbranch_scc1 %s" % L)
    textra = 0
    for s in range(nloop, nst):
        do_dma = (s + NS - 1) < nst
        issued_upto = min(s + NS - 2, nst - 1)
        need = min(s + 1, nst - 1) if early else s
        vm = (issued_upto - need) * nd + textra
        stage(do_dma, s == nst - 1, min(vm, 63))
        if (not do_dma) and getattr(sp, "tail_hook", None) and textra == 0:
            textra = sp.tail_hook()
    k.stamp()


def phi16(k, A, T, dst, vmask, vc):
    for i in range(8):
        k.e("v_cvt_pk_bf16_f32 v%d, v%d, v%d" % (T + i, A + 2 * i, A + 2 * i + 1))
    for i in range(8):
        k.e("v_lshlrev_b32 v%d, 16, v%d" % (A + 2 * i, T + i))
        k.e("v_and_b32 v%d, v%d, v%d" % (A + 2 * i + 1, vmask, T + i))
    for i in range(8):
        k.e(pk("v_pk_mul_f32", T + 2 * i, A + 2 * i, vc))
    for i in range(16):
        k.e("v_min_f32 v%d, 0, v%d" % (T + i, T + i))
    for i in range(16):
        k.e("v_exp_f32 v%d, v%d" % (T + i, T + i))
    for i in range(16):
        k.e("v_max_f32 v%d, 0, v%d" % (A + i, A + i))
    for i in range(8):
        k.e(pk("v_pk_add_f32", T + 2 * i, T + 2 * i, vc + 2))
    for i in range(8):
        k.e(pk("v_pk_add_f32", A + 2 * i, A + 2 * i, T + 2 * i))
    for i in range(8):
        k.e("v_cvt_pk_bf16_f32 v%d, v%d, v%d" % (dst + i, A + 2 * i, A + 2 * i + 1))


def gen_k1():
    k = KB("k1_qkv_kernel")
    L_end = k.newlab("end")
    BK, NS = 64, 4
    XB = 16384
    WB = (BK // 4) * 6 * 256
    SB = XB + WB
    k.e("s_cmp_ge_u32 s2, 256")
    k.e("s_cbranch_scc1 %s" % L_end)
    k.e("s_load_dwordx2 s[4:5], s[0:1], %d" % KA_WQKV)
    k.e("s_load_dwordx2 s[6:7], s[0:1], %d" % KA_WS)
    k.e("s_and_b32 s20, s2, 7")
    k.e("s_lshr_b32 s21, s2, 3")
    k.e("s_and_b32 s22, s20, 3")
    k.e("s_lshl_b32 s22, s22, 2")
    k.e("s_and_b32 s23, s21, 3")
    k.e("s_add_u32 s22, s22, s23")
    k.e("s_lshr_b32 s23, s20, 2")
    k.e("s_lshl_b32 s23, s23, 3")
    k.e("s_lshr_b32 s24, s21, 2")
    k.e("s_add_u32 s23, s23, s24")
    wave_and_lane(k)
    k.e("s_lshr_b32 s26, s25, 2")
    k.e("s_bfe_u32 s27, s25, 0x10001")
    k.e("s_and_b32 s28, s25, 1")
    dma = []
    k.e("v_lshlrev_b32 v9, 4, v2")
    k.e("s_lshl_b32 s30, s23, 2")
    k.e("s_lshr_b32 s31, s25, 1")
    k.e("s_add_u32 s30, s30, s31")
    k.e("s_lshl_b32 s30, s30, 6")
    k.e("s_lshl_b32 s31, s28, 1")
    k.e("s_add_u32 s30, s30, s31")
    k.e("s_lshl_b32 s30, s30, 10")
    k.e("v_add_u32 v10, s30, v9")
    k.e("v_add_u32 v11, 1024, v10")
    for i in range(2):
        k.e("s_lshl_b32 s%d, s25, 11" % (40 + i))
        k.e("s_add_u32 s%d, s%d, %d" % (40 + i, 40 + i, 1024 * i))
        dma.append((8, 10 + i, 50, 40 + i))
    for i in range(3):
        k.e("s_mul_i32 s30, s25, 12")
        k.e("s_add_u32 s30, s30, %d" % (4 * i))
        k.e("v_lshrrev_b32 v3, 4, v2")
        k.e("v_add_u32 v3, s30, v3")
        k.e("v_mul_u32_u24 v4, 43, v3")
        k.e("v_lshrrev_b32 v4, 8, v4")
        k.e("v_mul_u32_u24 v5, 6, v4")
        k.e("v_sub_u32 v5, v3, v5")
        k.e("v_bfe_u32 v6, v2, 2, 2")
        k.e("v_lshl_add_u32 v6, v4, 2, v6")
        k.e("v_mul_u32_u24 v6, 6144, v6")
        k.e("v_lshrrev_b32 v7, 1, v5")
        k.e("v_lshl_add_u32 v6, v7, 11, v6")
        k.e("v_and_b32 v7, 1, v5")
        k.e("v_lshl_add_u32 v6, v7, 6, v6")
        k.e("v_and_b32 v7, 3, v2")
        k.e("v_lshl_add_u32 v6, v7, 4, v6")
        k.e("s_lshl_b32 s31, s22, 7")
        k.e("v_add_u32 v%d, s31, v6" % (12 + i))
        k.e("s_mul_i32 s%d, s25, 3072" % (42 + i))
        k.e("s_add_u32 s%d, s%d, %d" % (42 + i, 42 + i, XB + 1024 * i))
        dma.append((12, 12 + i, 51, 42 + i))
    k.e("s_mov_b32 s50, 0")
    k.e("s_mov_b32 s51, 0")
    k.e("s_waitcnt lgkmcnt(0)")
    k.srd(8, 6, 2048 * 1024 * 2, WS_XN)
    k.srd(12, 4, 1024 * 3072 * 2)
    sp = Spec()
    sp.NS, sp.nst, sp.stage_bytes = NS, 1024 // BK, SB
    sp.dma = dma
    sp.sadv = [(50, 4096), (51, BK * 6144)]
    sp.s_wr, sp.s_rd, sp.s_cnt = 52, 53, 54
    gemm_prologue(k, sp)
    for tl in range(2):
        k.e("s_xor_b32 s30, s26, %d" % tl)
        k.e("s_lshl_b32 s31, s27, 1")
        k.e("s_add_u32 s30, s30, s31")
        k.e("s_lshl_b32 s30, s30, 2")
        k.e("s_lshl_b32 s31, s26, 1")
        k.e("s_add_u32 s30, s30, s31")
        k.e("s_lshl_b32 s30, s30, 10")
        k.e("v_add_u32 v%d, s30, v9" % (16 + tl))
    wfrag_lanepat(k, 3, 4, 2 * 6 * 256)
    k.e("s_mul_i32 s30, s26, %d" % (8 * 6 * 256))
    k.e("s_lshl_b32 s31, s28, 8")
    k.e("s_add_u32 s30, s30, s31")
    k.e("s_add_u32 s30, s30, %d" % XB)
    k.e("v_add_u32 v18, s30, v3")
    ACC = 32
    for i in range(96):
        k.e("v_mov_b32 v%d, 0" % (ACC + i))
    F0, F1 = 128, 148
    steps = []
    for jj in range(2):
        reads = [("ds_read_b128", 0, 16, 1024 * jj)]
        for p in range(3):
            for i in range(2):
                reads.append(("ds_read_b64_tr_b16", 8 + 4 * p + 2 * i, 18, ((4 * jj + i) * 6 + 2 * p) * 256))
            if p == 0:
                reads.append(("ds_read_b128", 4, 17, 1024 * jj))
        mf = [(ACC + 0 * 16, 8, 0, 2), (ACC + 3 * 16, 8, 4, 3), (ACC + 1 * 16, 0, 12, 5),
              (ACC + 4 * 16, 4, 12, 5), (ACC + 2 * 16, 0, 16, 7), (ACC + 5 * 16, 4, 16, 7)]
        steps.append(dict(reads=reads, mfma=mf))
    sp.addr = [16, 17, 18]
    sp.steps = steps
    sp.fset = [F0, F1]
    gemm_main(k, sp)
    k.e("s_mul_i32 s30, s25, 12288")
    k.e("v_add_u32 v4, s30, v9")
    k.e("s_xor_b32 s31, s25, 4")
    k.e("s_mul_i32 s31, s31, 12288")
    k.e("v_add_u32 v5, s31, v9")
    k.e("v_mov_b32 v20, 0x3fb8aa3b")
    k.e("v_mov_b32 v21, 0x3fb8aa3b")
    k.e("v_mov_b32 v22, 0x358637bd")
    k.e("v_mov_b32 v23, 0x358637bd")
    k.e("v_mov_b32 v24, 0xffff0000")
    k.srd(16, 6, 2048 * 1024 * 2, WS_PQ)
    k.srd(60, 6, 16 * 32 * 4096, WS_KVP)
    k.srd(56, 6, 16 * 32 * 128, WS_ZP)
    k.e("s_barrier")
    for q in range(12):
        k.e("ds_write_b128 v4, v[%d:%d] offset:%d" % (ACC + 48 + 4 * q, ACC + 51 + 4 * q, 1024 * q))
    k.e("s_waitcnt lgkmcnt(0)")
    k.e("s_barrier")
    for q in range(12):
        k.e("ds_read_b128 v[%d:%d], v5 offset:%d" % (ACC + 48 + 4 * q, ACC + 51 + 4 * q, 1024 * q))
    PQ, PK, PV = 128, 136, 144
    T = 152
    for grp in (1, 2, 0):
        k.e("s_waitcnt lgkmcnt(%d)" % {1: 4, 2: 0, 0: 0}[grp])
        for q in range(4 * grp, 4 * grp + 4):
            for i in range(0, 4, 2):
                k.e(pk("v_pk_add_f32", ACC + 4 * q + i, ACC + 4 * q + i, ACC + 48 + 4 * q + i))
        if grp == 1:
            phi16(k, ACC + 16, T, PK, 24, 20)
        elif grp == 2:
            for i in range(8):
                k.e("v_cvt_pk_bf16_f32 v%d, v%d, v%d" % (PV + i, ACC + 32 + 2 * i, ACC + 33 + 2 * i))
            KV = ACC + 64
            k.e("s_nop 1")
            k.e("v_mfma_f32_32x32x16_bf16 v[%d:%d], v[%d:%d], v[%d:%d], 0" % (KV, KV + 15, PK, PK + 3, PV, PV + 3))
            k.e("v_mfma_f32_32x32x16_bf16 v[%d:%d], v[%d:%d], v[%d:%d], v[%d:%d]" % (KV, KV + 15, PK + 4, PK + 7, PV + 4, PV + 7, KV, KV + 15))
            for i in range(8):
                k.e("v_lshlrev_b32 v%d, 16, v%d" % (T + 2 * i, PK + i))
                k.e("v_and_b32 v%d, v24, v%d" % (T + 2 * i + 1, PK + i))
            for st_ in (8, 4, 2):
                for i in range(0, st_, 2):
                    k.e(pk("v_pk_add_f32", T + i, T + i, T + st_ + i))
            k.e("v_add_f32 v25, v%d, v%d" % (T, T + 1))
        else:
            phi16(k, ACC, T, PQ, 24, 20)
    k.e("s_lshl_b32 s30, s23, 2")
    k.e("s_lshl_b32 s31, s27, 1")
    k.e("s_add_u32 s30, s30, s31")
    k.e("s_add_u32 s30, s30, s26")
    k.e("s_lshl_b32 s30, s30, 6")
    k.e("s_lshl_b32 s31, s22, 1")
    k.e("s_add_u32 s31, s31, s28")
    k.e("s_lshl_b32 s32, s31, 1")
    k.e("s_add_u32 s30, s30, s32")
    k.e("s_lshl_b32 s30, s30, 10")
    k.e("v_add_u32 v3, s30, v9")
    k.e("buffer_store_dwordx4 v[%d:%d], v3, s[16:19], 0 offen%s" % (PQ, PQ + 3, WT))
    k.e("buffer_store_dwordx4 v[%d:%d], v3, s[16:19], 0 offen offset:1024%s" % (PQ + 4, PQ + 7, WT))
    KVL = 98304
    ZL = KVL + 32768
    k.e("s_lshl_b32 s30, s25, 12")
    k.e("s_add_u32 s30, s30, %d" % KVL)
    k.e("v_add_u32 v4, s30, v9")
    k.e("s_lshl_b32 s30, s25, 8")
    k.e("s_add_u32 s30, s30, %d" % ZL)
    k.e("v_lshlrev_b32 v5, 2, v2")
    k.e("v_add_u32 v5, s30, v5")
    k.e("ds_write_b32 v5, v25")
    for q in range(4):
        k.e("ds_write_b128 v4, v[%d:%d] offset:%d" % (KV + 4 * q, KV + 4 * q + 3, 1024 * q))
    k.e("s_lshr_b32 s30, s25, 1")
    k.e("s_lshl_b32 s31, s30, 10")
    k.e("s_lshl_b32 s32, s28, 12")
    k.e("s_add_u32 s31, s31, s32")
    k.e("s_add_u32 s31, s31, %d" % KVL)
    k.e("v_add_u32 v4, s31, v9")
    k.e("s_lshl_b32 s32, s28, 8")
    k.e("s_add_u32 s32, s32, %d" % ZL)
    k.e("v_and_b32 v6, 31, v2")
    k.e("v_lshlrev_b32 v6, 2, v6")
    k.e("v_add_u32 v6, s32, v6")
    k.e("s_waitcnt lgkmcnt(0)")
    k.e("s_barrier")
    for j in range(4):
        k.e("ds_read_b128 v[%d:%d], v4 offset:%d" % (ACC + 4 * j, ACC + 4 * j + 3, 8192 * j))
    for j in range(4):
        k.e("ds_read_b32 v%d, v6 offset:%d" % (ACC + 16 + 2 * j, 512 * j))
        k.e("ds_read_b32 v%d, v6 offset:%d" % (ACC + 17 + 2 * j, 512 * j + 128))
    k.e("s_lshl_b32 s33, s23, 5")
    k.e("s_lshl_b32 s34, s22, 1")
    k.e("s_add_u32 s33, s33, s34")
    k.e("s_add_u32 s33, s33, s28")
    k.e("s_lshl_b32 s34, s33, 12")
    k.e("s_lshl_b32 s35, s30, 10")
    k.e("s_add_u32 s34, s34, s35")
    k.e("v_add_u32 v4, s34, v9")
    k.e("s_waitcnt lgkmcnt(8)")
    for i in range(0, 4, 2):
        k.e(pk("v_pk_add_f32", ACC + i, ACC + i, ACC + 4 + i))
        k.e(pk("v_pk_add_f32", ACC + 8 + i, ACC + 8 + i, ACC + 12 + i))
        k.e(pk("v_pk_add_f32", ACC + i, ACC + i, ACC + 8 + i))
    k.e("buffer_store_dwordx4 v[%d:%d], v4, s[60:63], 0 offen%s" % (ACC, ACC + 3, WT))
    L_fin = k.newlab("fin")
    k.e("s_cmp_lg_u32 s30, 0")
    k.e("s_cbranch_scc1 %s" % L_fin)
    k.e("s_waitcnt lgkmcnt(0)")
    for i in range(1, 8):
        k.e("v_add_f32 v%d, v%d, v%d" % (ACC + 16, ACC + 16, ACC + 16 + i))
    k.e("v_cmp_gt_u32 vcc, 32, v2")
    k.e("s_and_saveexec_b64 s[36:37], vcc")
    k.e("s_lshl_b32 s34, s33, 7")
    k.e("v_lshlrev_b32 v6, 2, v2")
    k.e("v_add_u32 v6, s34, v6")
    k.e("buffer_store_dword v%d, v6, s[56:59], 0 offen%s" % (ACC + 16, WT))
    k.lab(L_fin)
    k.stamp_store(1)
    k.lab(L_end)
    k.e("s_endpgm")
    return k, 168, (256, 512, NS * SB)


def gen_k1b():
    k = KB("k1_qkv_kernel")
    L_end = k.newlab("end")
    BK, NS = 64, 4
    XB = 16384
    WB = (BK // 4) * 6 * 256
    SB = XB + WB
    k.e("s_cmp_ge_u32 s2, 256")
    k.e("s_cbranch_scc1 %s" % L_end)
    k.e("s_load_dwordx2 s[4:5], s[0:1], %d" % KA_WQKV)
    k.e("s_load_dwordx2 s[6:7], s[0:1], %d" % KA_WS)
    k.e("s_and_b32 s20, s2, 7")
    k.e("s_lshr_b32 s21, s2, 3")
    k.e("s_and_b32 s22, s20, 3")
    k.e("s_lshl_b32 s22, s22, 2")
    k.e("s_and_b32 s23, s21, 3")
    k.e("s_add_u32 s22, s22, s23")
    k.e("s_lshr_b32 s23, s20, 2")
    k.e("s_lshl_b32 s23, s23, 3")
    k.e("s_lshr_b32 s24, s21, 2")
    k.e("s_add_u32 s23, s23, s24")
    wave_and_lane(k)
    k.e("s_lshr_b32 s27, s25, 1")
    k.e("s_and_b32 s28, s25, 1")
    dma = []
    k.e("v_lshlrev_b32 v9, 4, v2")
    k.e("s_lshl_b32 s30, s23, 2")
    k.e("s_lshr_b32 s31, s25, 1")
    k.e("s_add_u32 s30, s30, s31")
    k.e("s_lshl_b32 s30, s30, 6")
    k.e("s_lshl_b32 s31, s28, 1")
    k.e("s_add_u32 s30, s30, s31")
    k.e("s_lshl_b32 s30, s30, 10")
    k.e("v_add_u32 v10, s30, v9")
    k.e("v_add_u32 v11, 1024, v10")
    for i in range(2):
        k.e("s_lshl_b32 s%d, s25, 11" % (40 + i))
        k.e("s_add_u32 s%d, s%d, %d" % (40 + i, 40 + i, 1024 * i))
        dma.append((8, 10 + i, 50, 40 + i))
    for i in range(3):
        k.e("s_mul_i32 s30, s25, 12")
        k.e("s_add_u32 s30, s30, %d" % (4 * i))
        k.e("v_lshrrev_b32 v3, 4, v2")
        k.e("v_add_u32 v3, s30, v3")
        k.e("v_mul_u32_u24 v4, 43, v3")
        k.e("v_lshrrev_b32 v4, 8, v4")
        k.e("v_mul_u32_u24 v5, 6, v4")
        k.e("v_sub_u32 v5, v3, v5")
        k.e("v_bfe_u32 v6, v2, 2, 2")
        k.e("v_lshl_add_u32 v6, v4, 2, v6")
        k.e("v_mul_u32_u24 v6, 6144, v6")
        k.e("v_lshrrev_b32 v7, 1, v5")
        k.e("v_lshl_add_u32 v6, v7, 11, v6")
        k.e("v_and_b32 v7, 1, v5")
        k.e("v_lshl_add_u32 v6, v7, 6, v6")
        k.e("v_and_b32 v7, 3, v2")
        k.e("v_lshl_add_u32 v6, v7, 4, v6")
        k.e("s_lshl_b32 s31, s22, 7")
        k.e("v_add_u32 v%d, s31, v6" % (12 + i))
        k.e("s_mul_i32 s%d, s25, 3072" % (42 + i))
        k.e("s_add_u32 s%d, s%d, %d" % (42 + i, 42 + i, XB + 1024 * i))
        dma.append((12, 12 + i, 51, 42 + i))
    k.e("s_mov_b32 s50, 0")
    k.e("s_mov_b32 s51, 0")
    k.e("s_waitcnt lgkmcnt(0)")
    k.srd(8, 6, 2048 * 1024 * 2, WS_XN)
    k.srd(12, 4, 1024 * 3072 * 2)
    sp = Spec()
    sp.NS, sp.nst, sp.stage_bytes = NS, 1024 // BK, SB
    sp.dma = dma
    sp.sadv = [(50, 4096), (51, BK * 6144)]
    sp.s_wr, sp.s_rd, sp.s_cnt = 52, 53, 54
    gemm_prologue(k, sp)
    k.e("s_lshl_b32 s30, s27, 12")
    k.e("v_add_u32 v16, s30, v9")
    wfrag_lanepat(k, 3, 4, 2 * 6 * 256)
    k.e("s_lshl_b32 s31, s28, 8")
    k.e("s_add_u32 s30, s31, %d" % XB)
    k.e("v_add_u32 v18, s30, v3")
    ACC = 32
    for i in range(48):
        k.e("v_mov_b32 v%d, 0" % (ACC + i))
    F0, F1 = 128, 148
    steps = []
    for jj in range(4):
        reads = [("ds_read_b128", 0, 16, 1024 * jj)]
        for p in range(3):
            for i in range(2):
                reads.append(("ds_read_b64_tr_b16", 8 + 4 * p + 2 * i, 18, ((4 * jj + i) * 6 + 2 * p) * 256))
        mf = [(ACC + 0 * 16, 8, 0, 2), (ACC + 1 * 16, 0, 12, 4), (ACC + 2 * 16, 0, 16, 6)]
        steps.append(dict(reads=reads, mfma=mf))
    sp.addr = [16, 18]
    sp.steps = steps
    sp.fset = [F0, F1]
    gemm_main(k, sp)
    k.e("v_mov_b32 v20, 0x3fb8aa3b")
    k.e("v_mov_b32 v21, 0x3fb8aa3b")
    k.e("v_mov_b32 v22, 0x358637bd")
    k.e("v_mov_b32 v23, 0x358637bd")
    k.e("v_mov_b32 v24, 0xffff0000")
    k.srd(16, 6, 2048 * 1024 * 2, WS_PQ)
    k.srd(60, 6, 16 * 32 * 4096, WS_KVP)
    k.srd(56, 6, 16 * 32 * 128, WS_ZP)
    k.e("s_nop 7")
    PQ, PK, PV = 128, 136, 144
    T = 152
    for grp in (1, 2, 0):
        if grp == 1:
            phi16(k, ACC + 16, T, PK, 24, 20)
        elif grp == 2:
            for i in range(8):
                k.e("v_cvt_pk_bf16_f32 v%d, v%d, v%d" % (PV + i, ACC + 32 + 2 * i, ACC + 33 + 2 * i))
            KV = ACC + 64
            k.e("s_nop 1")
            k.e("v_mfma_f32_32x32x16_bf16 v[%d:%d], v[%d:%d], v[%d:%d], 0" % (KV, KV + 15, PK, PK + 3, PV, PV + 3))
            k.e("v_mfma_f32_32x32x16_bf16 v[%d:%d], v[%d:%d], v[%d:%d], v[%d:%d]" % (KV, KV + 15, PK + 4, PK + 7, PV + 4, PV + 7, KV, KV + 15))
            for i in range(8):
                k.e("v_lshlrev_b32 v%d, 16, v%d" % (T + 2 * i, PK + i))
                k.e("v_and_b32 v%d, v24, v%d" % (T + 2 * i + 1, PK + i))
            for st_ in (8, 4, 2):
                for i in range(0, st_, 2):
                    k.e(pk("v_pk_add_f32", T + i, T + i, T + st_ + i))
            k.e("v_add_f32 v25, v%d, v%d" % (T, T + 1))
        else:
            phi16(k, ACC, T, PQ, 24, 20)
    k.e("s_lshl_b32 s30, s23, 2")
    k.e("s_add_u32 s30, s30, s27")
    k.e("s_lshl_b32 s30, s30, 6")
    k.e("s_lshl_b32 s31, s22, 1")
    k.e("s_add_u32 s31, s31, s28")
    k.e("s_lshl_b32 s32, s31, 1")
    k.e("s_add_u32 s30, s30, s32")
    k.e("s_lshl_b32 s30, s30, 10")
    k.e("v_add_u32 v3, s30, v9")
    k.e("buffer_store_dwordx4 v[%d:%d], v3, s[16:19], 0 offen%s" % (PQ, PQ + 3, WT))
    k.e("buffer_store_dwordx4 v[%d:%d], v3, s[16:19], 0 offen offset:1024%s" % (PQ + 4, PQ + 7, WT))
    KVL = 98304
    ZL = KVL + 32768
    k.e("s_lshl_b32 s30, s25, 12")
    k.e("s_add_u32 s30, s30, %d" % KVL)
    k.e("v_add_u32 v4, s30, v9")
    k.e("s_lshl_b32 s30, s25, 8")
    k.e("s_add_u32 s30, s30, %d" % ZL)
    k.e("v_lshlrev_b32 v5, 2, v2")
    k.e("v_add_u32 v5, s30, v5")
    k.e("s_barrier")
    k.e("ds_write_b32 v5, v25")
    for q in range(4):
        k.e("ds_write_b128 v4, v[%d:%d] offset:%d" % (KV + 4 * q, KV + 4 * q + 3, 1024 * q))
    k.e("s_lshr_b32 s30, s25, 1")
    k.e("s_lshl_b32 s31, s30, 10")
    k.e("s_lshl_b32 s32, s28, 12")
    k.e("s_add_u32 s31, s31, s32")
    k.e("s_add_u32 s31, s31, %d" % KVL)
    k.e("v_add_u32 v4, s31, v9")
    k.e("s_lshl_b32 s32, s28, 8")
    k.e("s_add_u32 s32, s32, %d" % ZL)
    k.e("v_and_b32 v6, 31, v2")
    k.e("v_lshlrev_b32 v6, 2, v6")
    k.e("v_add_u32 v6, s32, v6")
    k.e("s_waitcnt lgkmcnt(0)")
    k.e("s_barrier")
    for j in range(4):
        k.e("ds_read_b128 v[%d:%d], v4 offset:%d" % (ACC + 4 * j, ACC + 4 * j + 3, 8192 * j))
    for j in range(4):
        k.e("ds_read_b32 v%d, v6 offset:%d" % (ACC + 16 + 2 * j, 512 * j))
        k.e("ds_read_b32 v%d, v6 offset:%d" % (ACC + 17 + 2 * j, 512 * j + 128))
    k.e("s_lshl_b32 s33, s23, 5")
    k.e("s_lshl_b32 s34, s22, 1")
    k.e("s_add_u32 s33, s33, s34")
    k.e("s_add_u32 s33, s33, s28")
    k.e("s_lshl_b32 s34, s33, 12")
    k.e("s_lshl_b32 s35, s30, 10")
    k.e("s_add_u32 s34, s34, s35")
    k.e("v_add_u32 v4, s34, v9")
    k.e("s_waitcnt lgkmcnt(8)")
    for i in range(0, 4, 2):
        k.e(pk("v_pk_add_f32", ACC + i, ACC + i, ACC + 4 + i))
        k.e(pk("v_pk_add_f32", ACC + 8 + i, ACC + 8 + i, ACC + 12 + i))
        k.e(pk("v_pk_add_f32", ACC + i, ACC + i, ACC + 8 + i))
    k.e("buffer_store_dwordx4 v[%d:%d], v4, s[60:63], 0 offen%s" % (ACC, ACC + 3, WT))
    L_fin = k.newlab("fin")
    k.e("s_cmp_lg_u32 s30, 0")
    k.e("s_cbranch_scc1 %s" % L_fin)
    k.e("s_waitcnt lgkmcnt(0)")
    for i in range(1, 8):
        k.e("v_add_f32 v%d, v%d, v%d" % (ACC + 16, ACC + 16, ACC + 16 + i))
    k.e("v_cmp_gt_u32 vcc, 32, v2")
    k.e("s_and_saveexec_b64 s[36:37], vcc")
    k.e("s_lshl_b32 s34, s33, 7")
    k.e("v_lshlrev_b32 v6, 2, v2")
    k.e("v_add_u32 v6, s34, v6")
    k.e("buffer_store_dword v%d, v6, s[56:59], 0 offen%s" % (ACC + 16, WT))
    k.lab(L_fin)
    k.stamp_store(1)
    k.lab(L_end)
    k.e("s_endpgm")
    return k, 168, (256, 512, NS * SB)


def gen_k15():
    k = KB("k15_o_kernel")
    L_end = k.newlab("end")
    L_o = k.newlab("o")
    NCS0 = int(os.environ.get("CSK0", "224"))
    k.e("s_cmp_ge_u32 s2, %d" % (480 - NCS0))
    k.e("s_cbranch_scc1 %s" % L_end)
    k.e("s_load_dwordx2 s[6:7], s[0:1], %d" % KA_WS)
    k.e("s_load_dwordx4 s[60:63], s[0:1], %d" % KA_WG)
    k.e("s_cmp_lt_u32 s2, 256")
    k.e("s_cbranch_scc1 %s" % L_o)
    k.e("s_waitcnt lgkmcnt(0)")
    k.e("s_sub_u32 s3, s2, %d" % (256 - NCS0))
    emit_colsum(k, L_end, 3)
    k.lab(L_o)
    k.e("s_and_b32 s20, s2, 31")
    k.e("s_lshr_b32 s21, s2, 5")
    wave_and_lane(k)
    k.e("s_waitcnt lgkmcnt(0)")
    k.srd(8, 6, 2048 * 1024 * 2, WS_PQ)
    k.srd(12, 6, 16 * 32 * 4096, WS_KVP)
    k.srd(16, 6, 16 * 32 * 128, WS_ZP)
    k.srd(28, 6, 2048 * 1024 * 2, WS_O)
    k.e("v_lshlrev_b32 v6, 4, v2")
    k.e("s_lshl_b32 s23, s20, 12")
    k.e("s_lshl_b32 s24, s25, 10")
    k.e("s_add_u32 s23, s23, s24")
    k.e("v_add_u32 v7, s23, v6")
    k.e("s_mov_b32 s24, 0")
    for mb in range(16):
        k.e("buffer_load_dwordx4 v[%d:%d], v7, s[12:15], s24 offen" % (64 + 4 * mb, 67 + 4 * mb))
        if mb != 15:
            k.e("s_add_u32 s24, s24, %d" % (32 * 4096))
    k.e("s_lshl_b32 s23, s20, 7")
    k.e("v_and_b32 v8, 31, v2")
    k.e("v_lshlrev_b32 v8, 2, v8")
    k.e("v_add_u32 v8, s23, v8")
    k.e("v_lshrrev_b32 v9, 5, v2")
    k.e("v_lshl_add_u32 v8, v9, 15, v8")
    k.e("s_mov_b32 s24, 0")
    for mb in range(8):
        k.e("buffer_load_dword v%d, v8, s[16:19], s24 offen" % (128 + mb))
        if mb != 7:
            k.e("s_add_u32 s24, s24, 4096")
    k.e("s_lshl_b32 s22, s21, 3")
    k.e("s_lshl_b32 s23, s25, 1")
    k.e("s_add_u32 s22, s22, s23")
    k.e("s_lshl_b32 s22, s22, 6")
    k.e("s_lshl_b32 s23, s20, 1")
    k.e("s_add_u32 s22, s22, s23")
    k.e("s_lshl_b32 s22, s22, 10")
    k.e("v_add_u32 v3, s22, v6")
    k.e("v_add_u32 v5, 0x10000, v3")
    for t in range(2):
        for s in range(2):
            k.e("buffer_load_dwordx4 v[%d:%d], v%d, s[8:11], 0 offen offset:%d" % (16 + 8 * t + 4 * s, 19 + 8 * t + 4 * s, 3 + 2 * t, 1024 * s))
    k.e("s_waitcnt vmcnt(12)")
    for st_ in (32, 16, 8, 4):
        for i in range(0, st_, 2):
            k.e(pk("v_pk_add_f32", 64 + i, 64 + i, 64 + st_ + i))
    k.e("s_lshl_b32 s23, s25, 10")
    k.e("v_add_u32 v7, s23, v6")
    k.e("ds_write_b128 v7, v[64:67]")
    k.e("s_waitcnt vmcnt(4)")
    for st_ in (4, 2):
        for i in range(0, st_, 2):
            k.e(pk("v_pk_add_f32", 128 + i, 128 + i, 128 + st_ + i))
    k.e("v_add_f32 v128, v128, v129")
    k.e("v_mov_b32 v129, v128")
    k.e("s_nop 1")
    k.e("v_permlane32_swap_b32 v128, v129")
    k.e("s_nop 1")
    k.e("v_add_f32 v128, v128, v129")
    k.e("v_and_b32 v8, 31, v2")
    k.e("v_lshlrev_b32 v8, 2, v8")
    k.e("ds_write_b32 v8, v128 offset:4096")
    k.e("s_waitcnt lgkmcnt(0)")
    k.e("s_barrier")
    for q in range(4):
        k.e("ds_read_b128 v[%d:%d], v6 offset:%d" % (64 + 4 * q, 67 + 4 * q, 1024 * q))
    k.e("v_lshlrev_b32 v9, 4, v9")
    for q in range(4):
        k.e("ds_read_b128 v[%d:%d], v9 offset:%d" % (80 + 4 * q, 83 + 4 * q, 4096 + 32 * q))
    k.e("v_and_b32 v10, 27, v2")
    k.e("v_cmp_eq_u32 vcc, 0, v10")
    k.e("s_waitcnt lgkmcnt(4)")
    KVA, ZA = 96, 104
    for i in range(8):
        k.e("v_cvt_pk_bf16_f32 v%d, v%d, v%d" % (KVA + i, 64 + 2 * i, 65 + 2 * i))
    k.e("s_waitcnt lgkmcnt(0)")
    for i in range(8):
        k.e("v_cvt_pk_bf16_f32 v%d, v%d, v%d" % (ZA + i, 80 + 2 * i, 81 + 2 * i))
    for i in range(8):
        k.e("v_cndmask_b32 v%d, 0, v%d, vcc" % (ZA + i, ZA + i))
    k.e("s_waitcnt vmcnt(0)")
    k.e("s_nop 0")
    for t in range(2):
        N, D = 112 + 32 * t, 128 + 32 * t
        k.e("v_mfma_f32_32x32x16_bf16 v[%d:%d], v[%d:%d], v[%d:%d], 0" % (D, D + 15, ZA, ZA + 3, 16 + 8 * t, 19 + 8 * t))
        k.e("v_mfma_f32_32x32x16_bf16 v[%d:%d], v[%d:%d], v[%d:%d], v[%d:%d]" % (D, D + 15, ZA + 4, ZA + 7, 20 + 8 * t, 23 + 8 * t, D, D + 15))
        k.e("v_mfma_f32_32x32x16_bf16 v[%d:%d], v[%d:%d], v[%d:%d], 0" % (N, N + 15, KVA, KVA + 3, 16 + 8 * t, 19 + 8 * t))
        k.e("v_mfma_f32_32x32x16_bf16 v[%d:%d], v[%d:%d], v[%d:%d], v[%d:%d]" % (N, N + 15, KVA + 4, KVA + 7, 20 + 8 * t, 23 + 8 * t, N, N + 15))
    k.e("s_nop 7")
    for t in range(2):
        D = 128 + 32 * t
        round_bf16(k, 12 + 2 * t, D)
        k.e("v_add_f32 v%d, 0x358637bd, v%d" % (12 + 2 * t, 12 + 2 * t))
        round_bf16(k, 12 + 2 * t, 12 + 2 * t)
        k.e("v_rcp_f32 v%d, v%d" % (12 + 2 * t, 12 + 2 * t))
        k.e("s_nop 0")
        k.e("v_mov_b32 v%d, v%d" % (13 + 2 * t, 12 + 2 * t))
    k.e("s_nop 7")
    for t in range(2):
        N = 112 + 32 * t
        for i in range(8):
            k.e(pk("v_pk_mul_f32", N + 2 * i, N + 2 * i, 12 + 2 * t))
        for i in range(8):
            k.e("v_cvt_pk_bf16_f32 v%d, v%d, v%d" % (32 + 8 * t + i, N + 2 * i, N + 2 * i + 1))
        k.e("buffer_store_dwordx4 v[%d:%d], v%d, s[28:31], 0 offen%s" % (32 + 8 * t, 35 + 8 * t, 3 + 2 * t, WT))
        k.e("buffer_store_dwordx4 v[%d:%d], v%d, s[28:31], 0 offen offset:1024%s" % (36 + 8 * t, 39 + 8 * t, 3 + 2 * t, WT))
    k.lab(L_end)
    k.e("s_endpgm")
    return k, 176, (480 - NCS0, 256, 8192)


def gen_proj(name, mode):
    k = KB(name)
    L_end = k.newlab("end")
    BK, NS = 64, 6
    KD = 1024 if mode == "wo" else 3584
    NBLK = KD // 16
    XOFF = WS_O if mode == "wo" else WS_HH
    XB = 8192
    WB = (BK // 4) * 4 * 256
    SB = XB + WB
    k.e("s_cmp_ge_u32 s2, 256")
    k.e("s_cbranch_scc1 %s" % L_end)
    k.e("s_load_dwordx2 s[4:5], s[0:1], %d" % (KA_WO if mode == "wo" else KA_WD))
    k.e("s_load_dwordx2 s[6:7], s[0:1], %d" % KA_WS)
    k.e("s_load_dwordx2 s[60:61], s[0:1], %d" % (KA_X if mode == "wo" else KA_OUT))
    k.e("s_and_b32 s20, s2, 7")
    k.e("s_lshr_b32 s21, s2, 3")
    k.e("s_and_b32 s22, s20, 1")
    k.e("s_lshl_b32 s22, s22, 2")
    k.e("s_and_b32 s23, s21, 3")
    k.e("s_add_u32 s22, s22, s23")
    k.e("s_lshr_b32 s23, s20, 1")
    k.e("s_lshl_b32 s23, s23, 3")
    k.e("s_lshr_b32 s24, s21, 2")
    k.e("s_add_u32 s23, s23, s24")
    k.e("s_lshl_b32 s24, s23, 6")
    wave_and_lane(k)
    k.e("s_lshr_b32 s26, s25, 1")
    k.e("s_and_b32 s28, s25, 1")
    k.e("s_lshr_b32 s27, s26, 1")
    dma = []
    k.e("v_lshlrev_b32 v9, 4, v2")
    k.e("s_lshl_b32 s30, s23, 1")
    k.e("s_lshr_b32 s31, s25, 2")
    k.e("s_add_u32 s30, s30, s31")
    k.e("s_mul_i32 s30, s30, %d" % NBLK)
    k.e("s_and_b32 s31, s25, 3")
    k.e("s_add_u32 s30, s30, s31")
    k.e("s_lshl_b32 s30, s30, 10")
    k.e("v_add_u32 v10, s30, v9")
    k.e("s_lshl_b32 s40, s25, 10")
    dma.append((8, 10, 50, 40))
    for i in range(2):
        k.e("s_lshl_b32 s30, s25, 3")
        k.e("s_add_u32 s30, s30, %d" % (4 * i))
        k.e("v_bfe_u32 v6, v2, 2, 2")
        k.e("v_add_u32 v6, s30, v6")
        k.e("v_lshlrev_b32 v6, 11, v6")
        k.e("v_lshrrev_b32 v7, 4, v2")
        k.e("v_lshl_add_u32 v6, v7, 6, v6")
        k.e("v_and_b32 v7, 3, v2")
        k.e("v_lshl_add_u32 v6, v7, 4, v6")
        k.e("s_lshl_b32 s31, s22, 8")
        k.e("v_add_u32 v%d, s31, v6" % (12 + i))
        k.e("s_lshl_b32 s%d, s25, 11" % (42 + i))
        k.e("s_add_u32 s%d, s%d, %d" % (42 + i, 42 + i, XB + 1024 * i))
        dma.append((12, 12 + i, 51, 42 + i))
    k.e("s_mov_b32 s50, 0")
    k.e("s_mov_b32 s51, 0")
    k.e("s_waitcnt lgkmcnt(0)")
    k.srd(8, 6, 2048 * KD * 2, XOFF)
    k.srd(12, 4, KD * 1024 * 2)
    sp = Spec()
    sp.NS, sp.nst, sp.stage_bytes = NS, KD // BK, SB
    sp.dma = dma
    sp.sadv = [(50, 4096), (51, BK * 2048)]
    sp.s_wr, sp.s_rd, sp.s_cnt = 52, 53, 54
    gemm_prologue(k, sp)
    for tl in range(2):
        k.e("s_xor_b32 s30, s27, %d" % tl)
        k.e("s_lshl_b32 s30, s30, 2")
        k.e("s_add_u32 s30, s30, s26")
        k.e("s_lshl_b32 s30, s30, 10")
        k.e("v_add_u32 v%d, s30, v9" % (16 + tl))
    wfrag_lanepat(k, 3, 4, 1024)
    for nl in range(2):
        k.e("s_and_b32 s30, s26, 1")
        k.e("s_xor_b32 s30, s30, %d" % nl)
        k.e("s_lshl_b32 s31, s28, 1")
        k.e("s_add_u32 s30, s30, s31")
        k.e("s_lshl_b32 s30, s30, 8")
        k.e("s_lshl_b32 s31, s26, 12")
        k.e("s_add_u32 s30, s30, s31")
        k.e("s_add_u32 s30, s30, %d" % XB)
        k.e("v_add_u32 v%d, s30, v3" % (18 + nl))
    ACC = 64
    for i in range(64):
        k.e("v_mov_b32 v%d, 0" % (ACC + i))
    F0, F1 = 128, 144
    reads = [("ds_read_b128", 0, 16, 0),
             ("ds_read_b64_tr_b16", 8, 18, 0), ("ds_read_b64_tr_b16", 10, 18, 2048),
             ("ds_read_b64_tr_b16", 12, 19, 0), ("ds_read_b64_tr_b16", 14, 19, 2048),
             ("ds_read_b128", 4, 17, 0)]
    mf = [(ACC + 0, 8, 0, 2), (ACC + 16, 12, 0, 4), (ACC + 32, 8, 4, 5), (ACC + 48, 12, 4, 5)]
    sp.addr = [16, 17, 18, 19]
    sp.early = not os.environ.get("NOEARLY")
    sp.steps = [dict(reads=reads, mfma=mf)]
    sp.fset = [F0, F1]
    k.e("s_and_b32 s31, s26, 1")
    k.e("s_lshl_b32 s32, s28, 1")
    k.e("s_add_u32 s29, s31, s32")
    k.e("s_lshl_b32 s32, s22, 2")
    k.e("s_add_u32 s33, s29, s32")
    k.e("s_lshl_b32 s30, s23, 1")
    k.e("s_add_u32 s30, s30, s27")
    k.e("s_lshl_b32 s30, s30, 6")
    k.e("s_lshl_b32 s31, s33, 1")
    k.e("s_add_u32 s30, s30, s31")
    k.e("s_lshl_b32 s30, s30, 10")
    k.e("v_add_u32 v7, s30, v9")
    k.srd(16, 60, 2048 * 1024 * 2)
    k.srd(56, 6, 2048 * 1024 * 2, WS_H)

    def resid():
        if mode == "wo":
            k.e("s_lshl_b32 s30, s27, 5")
            k.e("s_add_u32 s30, s30, s24")
            k.e("v_and_b32 v3, 31, v2")
            k.e("v_add_u32 v3, s30, v3")
            k.e("v_lshlrev_b32 v6, 11, v3")
            k.e("s_lshl_b32 s32, s33, 6")
            k.e("v_add_u32 v6, s32, v6")
            k.e("v_lshrrev_b32 v5, 5, v2")
            k.e("v_lshl_add_u32 v6, v5, 3, v6")
            for q in range(4):
                k.e("buffer_load_dwordx2 v[%d:%d], v6, s[16:19], 0 offen offset:%d" % (32 + 2 * q, 33 + 2 * q, 16 * q))
            return 4
        else:
            for s in range(2):
                k.e("buffer_load_dwordx4 v[%d:%d], v7, s[56:59], 0 offen offset:%d" % (32 + 4 * s, 35 + 4 * s, 1024 * s))
            return 2
    sp.tail_hook = resid
    gemm_main(k, sp)
    for c in range(1, 4):
        k.e("s_xor_b32 s30, s26, %d" % c)
        k.e("s_lshl_b32 s34, s28, 2")
        k.e("s_add_u32 s30, s30, s34")
        k.e("s_mul_i32 s30, s30, 3")
        k.e("s_add_u32 s30, s30, %d" % (c - 1))
        k.e("s_lshl_b32 s30, s30, 12")
        k.e("v_add_u32 v%d, s30, v9" % (20 + c))
    k.e("s_lshl_b32 s34, s28, 2")
    k.e("s_add_u32 s30, s26, s34")
    k.e("s_mul_i32 s30, s30, 12288")
    k.e("v_add_u32 v20, s30, v9")
    k.e("v_mov_b32 v60, 0xffff0000")
    k.e("s_nop 4")
    k.e("s_barrier")
    for c in range(1, 4):
        for q in range(4):
            k.e("ds_write_b128 v%d, v[%d:%d] offset:%d" % (20 + c, ACC + 16 * c + 4 * q, ACC + 16 * c + 4 * q + 3, 1024 * q))
    k.e("s_waitcnt lgkmcnt(0)")
    k.e("s_barrier")
    for c in range(3):
        for q in range(4):
            k.e("ds_read_b128 v[%d:%d], v20 offset:%d" % (ACC + 16 + 16 * c + 4 * q, ACC + 16 + 16 * c + 4 * q + 3, 4096 * c + 1024 * q))
    k.e("s_waitcnt lgkmcnt(8)")
    for i in range(0, 16, 2):
        k.e(pk("v_pk_add_f32", ACC + i, ACC + i, ACC + 16 + i))
    k.e("s_waitcnt lgkmcnt(0)")
    for i in range(0, 16, 2):
        k.e(pk("v_pk_add_f32", ACC + 32 + i, ACC + 32 + i, ACC + 48 + i))
    for i in range(0, 16, 2):
        k.e(pk("v_pk_add_f32", ACC + i, ACC + i, ACC + 32 + i))
    k.e("s_waitcnt vmcnt(0)")
    T = ACC + 16
    R = ACC + 32
    for i in range(8):
        k.e("v_cvt_pk_bf16_f32 v%d, v%d, v%d" % (40 + i, ACC + 2 * i, ACC + 2 * i + 1))
    for i in range(8):
        k.e("v_lshlrev_b32 v%d, 16, v%d" % (T + 2 * i, 40 + i))
        k.e("v_and_b32 v%d, v60, v%d" % (T + 2 * i + 1, 40 + i))
        k.e("v_lshlrev_b32 v%d, 16, v%d" % (R + 2 * i, 32 + i))
        k.e("v_and_b32 v%d, v60, v%d" % (R + 2 * i + 1, 32 + i))
    for i in range(8):
        k.e(pk("v_pk_add_f32", T + 2 * i, T + 2 * i, R + 2 * i))
    for i in range(8):
        k.e("v_cvt_pk_bf16_f32 v%d, v%d, v%d" % (48 + i, T + 2 * i, T + 2 * i + 1))
    EX = 98304
    if mode == "wo":
        for s in range(2):
            k.e("buffer_store_dwordx4 v[%d:%d], v7, s[56:59], 0 offen offset:%d%s" % (48 + 4 * s, 51 + 4 * s, 1024 * s, WT))
        for i in range(8):
            k.e("v_lshlrev_b32 v%d, 16, v%d" % (T + 2 * i, 48 + i))
            k.e("v_and_b32 v%d, v60, v%d" % (T + 2 * i + 1, 48 + i))
        for i in range(8):
            k.e(pk("v_pk_mul_f32", R + 2 * i, T + 2 * i, T + 2 * i))
        for st_ in (8, 4, 2):
            for i in range(0, st_, 2):
                k.e(pk("v_pk_add_f32", T + i, T + i, T + st_ + i))
                k.e(pk("v_pk_add_f32", R + i, R + i, R + st_ + i))
        k.e("v_add_f32 v44, v%d, v%d" % (T, T + 1))
        k.e("v_add_f32 v45, v%d, v%d" % (R, R + 1))
        k.e("v_mov_b32 v46, v44")
        k.e("v_mov_b32 v47, v45")
        k.e("s_nop 1")
        k.e("v_permlane32_swap_b32 v44, v46")
        k.e("v_permlane32_swap_b32 v45, v47")
        k.e("s_nop 1")
        k.e("v_add_f32 v44, v44, v46")
        k.e("v_add_f32 v45, v45, v47")
        k.e("s_lshl_b32 s30, s27, 2")
        k.e("s_add_u32 s30, s30, s29")
        k.e("s_lshl_b32 s30, s30, 8")
        k.e("s_add_u32 s30, s30, %d" % EX)
        k.e("v_and_b32 v3, 31, v2")
        k.e("v_lshlrev_b32 v3, 3, v3")
        k.e("v_add_u32 v4, s30, v3")
        k.e("ds_write_b64 v4, v[44:45]")
        k.srd(16, 6, 8 * 2048 * 8, WS_ST)
        k.e("s_waitcnt lgkmcnt(0)")
        k.e("s_barrier")
        L_fin = k.newlab("fin")
        k.e("s_cmp_ge_u32 s25, 2")
        k.e("s_cbranch_scc1 %s" % L_fin)
        k.e("s_lshl_b32 s30, s25, 10")
        k.e("s_add_u32 s30, s30, %d" % EX)
        k.e("v_add_u32 v4, s30, v3")
        for j in range(4):
            k.e("ds_read_b64 v[%d:%d], v4 offset:%d" % (44 + 2 * j, 45 + 2 * j, 256 * j))
        k.e("s_lshl_b32 s30, s22, 14")
        k.e("s_lshl_b32 s31, s25, 5")
        k.e("s_add_u32 s31, s31, s24")
        k.e("s_lshl_b32 s31, s31, 3")
        k.e("s_add_u32 s30, s30, s31")
        k.e("v_add_u32 v3, s30, v3")
        k.e("s_waitcnt lgkmcnt(0)")
        k.e(pk("v_pk_add_f32", 44, 44, 46))
        k.e(pk("v_pk_add_f32", 48, 48, 50))
        k.e(pk("v_pk_add_f32", 44, 44, 48))
        k.e("v_cmp_gt_u32 vcc, 32, v2")
        k.e("s_and_saveexec_b64 s[36:37], vcc")
        k.e("buffer_store_dwordx2 v[44:45], v3, s[16:19], 0 offen%s" % WT)
        k.lab(L_fin)
    else:
        k.e("s_lshl_b32 s30, s27, 5")
        k.e("v_and_b32 v3, 31, v2")
        k.e("v_add_u32 v3, s30, v3")
        k.e("v_mul_u32_u24 v3, 272, v3")
        k.e("v_lshrrev_b32 v5, 5, v2")
        k.e("v_lshl_add_u32 v3, v5, 3, v3")
        k.e("s_lshl_b32 s30, s29, 6")
        k.e("s_add_u32 s30, s30, %d" % EX)
        k.e("v_add_u32 v3, s30, v3")
        for q in range(4):
            k.e("ds_write_b64 v3, v[%d:%d] offset:%d" % (48 + 2 * q, 49 + 2 * q, 16 * q))
        k.e("v_lshrrev_b32 v4, 4, v2")
        k.e("s_lshl_b32 s30, s25, 3")
        k.e("v_add_u32 v4, s30, v4")
        k.e("v_and_b32 v5, 15, v2")
        k.e("v_mul_u32_u24 v6, 272, v4")
        k.e("v_lshl_add_u32 v6, v5, 4, v6")
        k.e("v_add_u32 v6, %d, v6" % EX)
        k.e("v_add_u32 v4, s24, v4")
        k.e("v_lshlrev_b32 v4, 11, v4")
        k.e("v_lshl_add_u32 v4, v5, 4, v4")
        k.e("s_lshl_b32 s30, s22, 8")
        k.e("v_add_u32 v4, s30, v4")
        k.e("v_add_u32 v5, 8192, v4")
        k.e("s_waitcnt lgkmcnt(0)")
        k.e("s_barrier")
        k.e("ds_read_b128 v[32:35], v6")
        k.e("ds_read_b128 v[36:39], v6 offset:1088")
        k.e("s_waitcnt lgkmcnt(1)")
        k.e("buffer_store_dwordx4 v[32:35], v4, s[16:19], 0 offen%s" % WT)
        k.e("s_waitcnt lgkmcnt(0)")
        k.e("buffer_store_dwordx4 v[36:39], v5, s[16:19], 0 offen%s" % WT)
    k.stamp_store(3 if mode == "wo" else 5)
    k.lab(L_end)
    k.e("s_endpgm")
    return k, 160, (256, 512, NS * SB)


def gen_k3():
    k = KB("k3_glu_kernel")
    L_end = k.newlab("end")
    BK, NS = 32, 5
    XB = 16384
    GB = (BK // 4) * 7 * 128
    UOFF = XB + GB + 128
    SB = XB + 14592
    CSL = NS * SB
    SCR = CSL + 1024
    k.e("s_cmp_ge_u32 s2, 256")
    k.e("s_cbranch_scc1 %s" % L_end)
    k.e("s_load_dwordx4 s[60:63], s[0:1], %d" % KA_WG)
    k.e("s_load_dwordx2 s[6:7], s[0:1], %d" % KA_WS)
    k.e("s_load_dwordx2 s[70:71], s[0:1], %d" % KA_WD)
    k.e("s_and_b32 s20, s2, 7")
    k.e("s_lshr_b32 s21, s2, 3")
    k.e("s_lshr_b32 s23, s20, 2")
    k.e("s_lshl_b32 s23, s23, 2")
    k.e("s_and_b32 s24, s21, 3")
    k.e("s_add_u32 s23, s23, s24")
    k.e("s_and_b32 s22, s20, 3")
    k.e("s_lshl_b32 s22, s22, 3")
    k.e("s_lshr_b32 s24, s21, 2")
    k.e("s_add_u32 s22, s22, s24")
    k.e("s_lshl_b32 s24, s23, 8")
    wave_and_lane(k)
    dma = []
    k.e("v_lshlrev_b32 v9, 4, v2")
    k.e("s_lshl_b32 s29, s23, 3")
    k.e("s_add_u32 s29, s29, s25")
    k.e("s_lshl_b32 s30, s29, 16")
    k.e("v_add_u32 v10, s30, v9")
    k.e("v_add_u32 v11, 1024, v10")
    for i in range(2):
        k.e("s_lshl_b32 s%d, s25, 11" % (40 + i))
        k.e("s_add_u32 s%d, s%d, %d" % (40 + i, 40 + i, 1024 * i))
        dma.append((8, 10 + i, 50, 40 + i))
    k.e("s_lshl_b32 s31, s25, 3")
    k.e("v_lshrrev_b32 v3, 3, v2")
    k.e("v_add_u32 v3, s31, v3")
    k.e("v_mul_u32_u24 v4, 37, v3")
    k.e("v_lshrrev_b32 v4, 8, v4")
    k.e("v_mul_u32_u24 v5, 7, v4")
    k.e("v_sub_u32 v5, v3, v5")
    k.e("v_bfe_u32 v6, v2, 1, 2")
    k.e("v_lshl_add_u32 v6, v4, 2, v6")
    k.e("v_mul_u32_u24 v6, 7168, v6")
    k.e("v_lshl_add_u32 v6, v5, 5, v6")
    k.e("v_and_b32 v7, 1, v2")
    k.e("v_lshl_add_u32 v6, v7, 4, v6")
    k.e("s_mul_i32 s31, s22, 224")
    k.e("v_add_u32 v12, s31, v6")
    k.e("s_mul_i32 s31, s2, 28672")
    k.e("v_add_u32 v7, s31, v9")
    k.e("s_lshl_b32 s42, s25, 10")
    k.e("s_add_u32 s43, s42, %d" % UOFF)
    k.e("s_add_u32 s42, s42, %d" % XB)
    k.e("s_mov_b32 s56, %d" % (BK * 7168))
    k.e("s_cmp_eq_u32 s25, 7")
    k.e("s_cselect_b32 s56, 1024, s56")
    k.e("s_cselect_b32 s57, 0, -1")
    k.e("s_cselect_b32 s42, %d, s42" % SCR)
    k.e("s_cselect_b32 s43, %d, s43" % (SCR + 1024))
    k.e("s_cselect_b64 vcc, -1, 0")
    k.e("s_nop 1")
    k.e("v_cndmask_b32 v12, v12, v7, vcc")
    dma.append((12, 12, 51, 42))
    dma.append((16, 12, 51, 43))
    k.e("s_mov_b32 s50, 0")
    k.e("s_mov_b32 s51, 0")
    k.e("s_waitcnt lgkmcnt(0)")
    k.srd(8, 6, 2048 * 1024 * 2, WS_H)
    k.e("s_cmp_eq_u32 s25, 7")
    k.e("s_cselect_b32 s72, s70, s60")
    k.e("s_cselect_b32 s73, s71, s61")
    k.e("s_cselect_b32 s74, s70, s62")
    k.e("s_cselect_b32 s75, s71, s63")
    k.srd(12, 72, 1024 * 3584 * 2)
    k.srd(16, 74, 1024 * 3584 * 2)
    k.e("s_cmp_eq_u32 s25, 7")
    k.e("s_cselect_b32 s14, 0, s14")
    k.e("s_cselect_b32 s18, 0, s18")
    sp = Spec()
    sp.NS, sp.nst, sp.stage_bytes = NS, 1024 // BK, SB
    sp.dma = dma
    sp.dma_abs = {2: 57, 3: 57}
    sp.sadv = [(50, 2048), (51, "s56")]
    sp.s_wr, sp.s_rd, sp.s_cnt = 52, 53, 54
    gemm_prologue(k, sp)
    if not (os.environ.get("NOTOUCH") or os.environ.get("WDK0")):
        k.e("s_mov_b32 s14, %d" % (1024 * 3584 * 2))
    k.e("s_cmp_eq_u32 s25, 7")
    k.e("s_cselect_b32 s51, 0, s51")
    k.e("s_lshl_b32 s30, s25, 11")
    k.e("v_add_u32 v14, s30, v9")
    k.e("v_bfe_u32 v3, v2, 2, 2")
    k.e("v_lshlrev_b32 v3, 5, v3")
    k.e("v_and_b32 v4, 3, v2")
    k.e("v_lshl_add_u32 v3, v4, 3, v3")
    k.e("v_lshrrev_b32 v4, 5, v2")
    k.e("v_mul_u32_u24 v4, %d, v4" % (7 * 128))
    k.e("v_add_u32 v3, v3, v4")
    k.e("v_bfe_u32 v4, v2, 4, 1")
    k.e("v_mul_u32_u24 v4, %d, v4" % (UOFF - XB))
    k.e("v_add_u32 v3, v3, v4")
    k.e("v_add_u32 v16, %d, v3" % XB)
    ACC = 64
    for i in range(112):
        k.e("v_mov_b32 v%d, 0" % (ACC + i))
    F0, F1 = 176, 208
    steps = []
    for jj in range(2):
        reads = [("ds_read_b128", 0, 14, 1024 * jj)]
        mf = []
        for t in range(7):
            for i in range(2):
                reads.append(("ds_read_b64_tr_b16", 4 + 4 * t + 2 * i, 16, ((4 * jj + 2 * i) * 7 + t) * 128))
            mf.append((ACC + 16 * t, 4 + 4 * t, 0, 2 * t + 2))
        steps.append(dict(reads=reads, mfma=mf))
    sp.addr = [14, 16]
    sp.steps = steps
    sp.fset = [F0, F1]
    k.srd(64, 6, 8 * 2048 * 8, WS_ST)
    k.srd(76, 6, 2048 * 3584 * 2, WS_HH)
    k.srd(68, 6, 2 * 3584 * 4, WS_CS2)
    S0 = 24

    def early():
        k.e("s_lshl_b32 s30, s25, 5")
        k.e("s_add_u32 s30, s30, s24")
        k.e("v_and_b32 v3, 31, v2")
        k.e("v_add_u32 v3, s30, v3")
        k.e("v_lshlrev_b32 v4, 3, v3")
        k.e("v_lshrrev_b32 v5, 5, v2")
        k.e("v_lshl_add_u32 v4, v5, 16, v4")
        k.e("s_mov_b32 s31, 0")
        for i in range(4):
            k.e("buffer_load_dwordx2 v[%d:%d], v4, s[64:67], s31 offen" % (S0 + 2 * i, S0 + 2 * i + 1))
            k.e("s_add_u32 s31, s31, 16384")
        k.e("v_cmp_gt_u32 vcc, 28, v2")
        k.e("v_subrev_u32 v6, 28, v2")
        k.e("s_nop 1")
        k.e("v_cndmask_b32 v6, v6, v2, vcc")
        k.e("v_lshlrev_b32 v6, 4, v6")
        k.e("v_mov_b32 v7, %d" % (3584 * 4))
        k.e("v_mov_b32 v8, 0")
        k.e("v_cndmask_b32 v7, v7, v8, vcc")
        k.e("v_add_u32 v6, v6, v7")
        k.e("s_mul_i32 s31, s22, 448")
        k.e("v_add_u32 v6, s31, v6")
        k.e("buffer_load_dwordx4 v[32:35], v6, s[68:71], 0 offen")
        return 5
    sp.tail_hook = early
    gemm_main(k, sp)
    k.e("s_waitcnt vmcnt(0)")
    k.e("v_add_u32 v6, %d, v9" % CSL)
    k.e("v_cmp_gt_u32 vcc, 56, v2")
    k.e("s_and_saveexec_b64 s[36:37], vcc")
    k.e("ds_write_b128 v6, v[32:35]")
    k.e("s_mov_b64 exec, s[36:37]")
    k.e(pk("v_pk_add_f32", S0, S0, S0 + 2))
    k.e(pk("v_pk_add_f32", S0 + 4, S0 + 4, S0 + 6))
    k.e(pk("v_pk_add_f32", S0, S0, S0 + 4))
    k.e("v_mov_b32 v8, v%d" % S0)
    k.e("v_mov_b32 v7, v%d" % (S0 + 1))
    k.e("v_mov_b32 v6, v8")
    k.e("v_mov_b32 v10, v7")
    k.e("s_nop 1")
    k.e("v_permlane32_swap_b32 v8, v6")
    k.e("v_permlane32_swap_b32 v7, v10")
    k.e("s_nop 1")
    k.e("v_add_f32 v8, v8, v6")
    k.e("v_add_f32 v7, v7, v10")
    k.e("s_waitcnt lgkmcnt(0)")
    k.e("s_barrier")
    k.e("v_lshrrev_b32 v6, 5, v2")
    k.e("v_lshlrev_b32 v5, 4, v6")
    k.e("v_add_u32 v5, %d, v5" % CSL)
    C0 = 176
    T = 208

    def csread(tt):
        cbb = C0 + (tt & 1) * 16
        for q in range(2):
            k.e("ds_read_b128 v[%d:%d], v5 offset:%d" % (cbb + 4 * q, cbb + 4 * q + 3, tt * 64 + q * 32))
            k.e("ds_read_b128 v[%d:%d], v5 offset:%d" % (cbb + 8 + 4 * q, cbb + 8 + 4 * q + 3, 448 + tt * 64 + q * 32))
    csread(0)
    csread(1)
    k.e("v_mul_f32 v8, 0x3a800000, v8")
    k.e("v_mul_f32 v7, 0x3a800000, v7")
    k.e("v_fma_f32 v7, -v8, v8, v7")
    k.e("v_max_f32 v7, 0, v7")
    round_bf16(k, 8, 8)
    round_bf16(k, 7, 7)
    k.e("v_add_f32 v7, 0x3727c5ac, v7")
    round_bf16(k, 7, 7)
    k.e("v_sqrt_f32 v7, v7")
    k.e("s_nop 0")
    round_bf16(k, 7, 7)
    k.e("v_rcp_f32 v54, v7")
    k.e("s_nop 0")
    k.e("v_mov_b32 v55, v54")
    k.e("v_mul_f32 v8, v8, v54")
    k.e("v_sub_f32 v52, 0, v8")
    k.e("v_mov_b32 v53, v52")
    k.e("s_mul_i32 s31, s29, 224")
    k.e("s_mul_i32 s30, s22, 7")
    k.e("s_add_u32 s31, s31, s30")
    k.e("s_lshl_b32 s31, s31, 10")
    k.e("v_add_u32 v57, s31, v9")
    k.e("v_add_u32 v56, 4096, v57")
    c1 = -2.0 * math.log2(math.e) * math.sqrt(2.0 / math.pi)
    c2 = c1 * 0.044715
    k.e("v_mov_b32 v60, 0x%08x" % f2u(c1))
    k.e("v_mov_b32 v61, 0x%08x" % f2u(c1))
    k.e("v_mov_b32 v62, 0x%08x" % f2u(c2))
    k.e("v_mov_b32 v63, 0x%08x" % f2u(c2))
    k.e("v_mov_b32 v58, 1.0")
    k.e("v_mov_b32 v59, 1.0")
    for t in range(7):
        cb = C0 + (t & 1) * 16
        k.e("s_waitcnt lgkmcnt(%d)" % (4 if t < 6 else 0))
        A = ACC + 16 * t
        for j in range(8):
            k.e(pk("v_pk_mul_f32", T + 2 * j, cb + 2 * j, 52))
        for j in range(8):
            k.e(pk("v_pk_fma_f32", A + 2 * j, A + 2 * j, 54, T + 2 * j))
        if t + 2 < 7:
            csread(t + 2)
        for j in range(4):
            k.e(pk("v_pk_mul_f32", T + 2 * j, A + 2 * j, A + 2 * j))
        for j in range(4):
            k.e(pk("v_pk_fma_f32", T + 2 * j, T + 2 * j, 62, 60))
        for j in range(4):
            k.e(pk("v_pk_mul_f32", T + 2 * j, T + 2 * j, A + 2 * j))
        for j in range(8):
            k.e("v_exp_f32 v%d, v%d" % (T + j, T + j))
        for j in range(4):
            k.e(pk("v_pk_mul_f32", A + 2 * j, A + 2 * j, A + 8 + 2 * j))
        for j in range(4):
            k.e(pk("v_pk_add_f32", T + 2 * j, T + 2 * j, 58))
        for j in range(8):
            k.e("v_rcp_f32 v%d, v%d" % (T + j, T + j))
        k.e("s_nop 0")
        for j in range(4):
            k.e(pk("v_pk_mul_f32", A + 2 * j, A + 2 * j, T + 2 * j))
        for j in range(4):
            k.e("v_cvt_pk_bf16_f32 v%d, v%d, v%d" % (40 + 4 * (t & 1) + j, A + 2 * j, A + 2 * j + 1))
        k.e("buffer_store_dwordx4 v[%d:%d], v%d, s[76:79], 0 offen offset:%d%s" % (40 + 4 * (t & 1), 43 + 4 * (t & 1), 57 if t < 4 else 56, 1024 * (t & 3), WT))
    k.stamp_store(4)
    k.lab(L_end)
    k.e("s_endpgm")
    return k, 240, (256, 512, SCR + 2048)


def gen_k3b():
    k = KB("k3_glu_kernel")
    L_end = k.newlab("end")
    BK, NS = 32, 5
    XB = 16384
    GB = (BK // 4) * 7 * 128
    UOFF = XB + GB + 128
    SB = XB + 14592
    CSL = NS * SB
    SCR = CSL + 1024
    k.e("s_cmp_ge_u32 s2, 256")
    k.e("s_cbranch_scc1 %s" % L_end)
    k.e("s_load_dwordx4 s[60:63], s[0:1], %d" % KA_WG)
    k.e("s_load_dwordx2 s[6:7], s[0:1], %d" % KA_WS)
    k.e("s_load_dwordx2 s[70:71], s[0:1], %d" % KA_WD)
    k.e("s_and_b32 s20, s2, 7")
    k.e("s_lshr_b32 s21, s2, 3")
    k.e("s_lshr_b32 s23, s20, 2")
    k.e("s_lshl_b32 s23, s23, 2")
    k.e("s_and_b32 s24, s21, 3")
    k.e("s_add_u32 s23, s23, s24")
    k.e("s_and_b32 s22, s20, 3")
    k.e("s_lshl_b32 s22, s22, 3")
    k.e("s_lshr_b32 s24, s21, 2")
    k.e("s_add_u32 s22, s22, s24")
    k.e("s_lshl_b32 s24, s23, 8")
    wave_and_lane(k)
    dma = []
    k.e("v_lshlrev_b32 v9, 4, v2")
    k.e("s_lshl_b32 s29, s23, 3")
    k.e("s_add_u32 s29, s29, s25")
    k.e("s_lshl_b32 s30, s29, 16")
    k.e("v_add_u32 v10, s30, v9")
    k.e("v_add_u32 v11, 1024, v10")
    for i in range(2):
        k.e("s_lshl_b32 s%d, s25, 11" % (40 + i))
        k.e("s_add_u32 s%d, s%d, %d" % (40 + i, 40 + i, 1024 * i))
        dma.append((8, 10 + i, 50, 40 + i))
    k.e("s_lshl_b32 s31, s25, 3")
    k.e("v_lshrrev_b32 v3, 3, v2")
    k.e("v_add_u32 v3, s31, v3")
    k.e("v_mul_u32_u24 v4, 37, v3")
    k.e("v_lshrrev_b32 v4, 8, v4")
    k.e("v_mul_u32_u24 v5, 7, v4")
    k.e("v_sub_u32 v5, v3, v5")
    k.e("v_bfe_u32 v6, v2, 1, 2")
    k.e("v_lshl_add_u32 v6, v4, 2, v6")
    k.e("v_mul_u32_u24 v6, 7168, v6")
    k.e("v_lshl_add_u32 v6, v5, 5, v6")
    k.e("v_and_b32 v7, 1, v2")
    k.e("v_lshl_add_u32 v6, v7, 4, v6")
    k.e("s_mul_i32 s31, s22, 224")
    k.e("v_add_u32 v12, s31, v6")
    k.e("s_mul_i32 s31, s2, 28672")
    k.e("v_add_u32 v7, s31, v9")
    k.e("s_lshl_b32 s42, s25, 10")
    k.e("s_add_u32 s43, s42, %d" % UOFF)
    k.e("s_add_u32 s42, s42, %d" % XB)
    k.e("s_mov_b32 s56, %d" % (BK * 7168))
    k.e("s_cmp_eq_u32 s25, 7")
    k.e("s_cselect_b32 s56, 1024, s56")
    k.e("s_cselect_b32 s57, 0, -1")
    k.e("s_cselect_b32 s42, %d, s42" % SCR)
    k.e("s_cselect_b32 s43, %d, s43" % (SCR + 1024))
    k.e("s_cselect_b64 vcc, -1, 0")
    k.e("s_nop 1")
    k.e("v_cndmask_b32 v12, v12, v7, vcc")
    dma.append((12, 12, 51, 42))
    dma.append((16, 12, 51, 43))
    k.e("s_mov_b32 s50, 0")
    k.e("s_mov_b32 s51, 0")
    k.e("s_waitcnt lgkmcnt(0)")
    k.srd(8, 6, 2048 * 1024 * 2, WS_H)
    k.e("s_cmp_eq_u32 s25, 7")
    k.e("s_cselect_b32 s72, s70, s60")
    k.e("s_cselect_b32 s73, s71, s61")
    k.e("s_cselect_b32 s74, s70, s62")
    k.e("s_cselect_b32 s75, s71, s63")
    k.srd(12, 72, 1024 * 3584 * 2)
    k.srd(16, 74, 1024 * 3584 * 2)
    k.e("s_cmp_eq_u32 s25, 7")
    k.e("s_cselect_b32 s14, 0, s14")
    k.e("s_cselect_b32 s18, 0, s18")
    sp = Spec()
    sp.NS, sp.nst, sp.stage_bytes = NS, 1024 // BK, SB
    sp.dma = dma
    sp.dma_abs = {2: 57, 3: 57}
    sp.sadv = [(50, 2048), (51, "s56")]
    sp.s_wr, sp.s_rd, sp.s_cnt = 52, 53, 54
    gemm_prologue(k, sp)
    if not (os.environ.get("NOTOUCH") or os.environ.get("WDK0")):
        k.e("s_mov_b32 s14, %d" % (1024 * 3584 * 2))
    k.e("s_cmp_eq_u32 s25, 7")
    k.e("s_cselect_b32 s51, 0, s51")
    k.e("s_and_b32 s26, s25, 3")
    k.e("s_lshr_b32 s27, s25, 2")
    k.e("s_lshl_b32 s30, s26, 12")
    k.e("v_add_u32 v14, s30, v9")
    k.e("v_bfe_u32 v3, v2, 2, 2")
    k.e("v_lshlrev_b32 v3, 5, v3")
    k.e("v_and_b32 v4, 3, v2")
    k.e("v_lshl_add_u32 v3, v4, 3, v3")
    k.e("v_lshrrev_b32 v4, 5, v2")
    k.e("v_mul_u32_u24 v4, %d, v4" % (7 * 128))
    k.e("v_add_u32 v3, v3, v4")
    k.e("v_bfe_u32 v4, v2, 4, 1")
    k.e("v_mul_u32_u24 v4, %d, v4" % (UOFF - XB))
    k.e("v_add_u32 v3, v3, v4")
    k.e("s_lshl_b32 s30, s27, 9")
    k.e("s_add_u32 s30, s30, %d" % XB)
    k.e("v_add_u32 v16, s30, v3")
    ACC = 64
    for i in range(128):
        k.e("v_mov_b32 v%d, 0" % (ACC + i))
    F0, F1 = 192, 216
    sp.addr = [14, 16]
    sp.fset = [F0, F1]
    k.srd(64, 6, 8 * 2048 * 8, WS_ST)
    k.srd(76, 6, 2048 * 3584 * 2, WS_HH)
    k.srd(68, 6, 4 * 2 * 3584 * 4, WS_CS)
    S0 = 24

    def early():
        k.e("s_lshl_b32 s30, s26, 6")
        k.e("s_add_u32 s30, s30, s24")
        k.e("v_and_b32 v3, 31, v2")
        k.e("v_add_u32 v3, s30, v3")
        k.e("v_lshlrev_b32 v4, 3, v3")
        k.e("v_lshrrev_b32 v5, 5, v2")
        k.e("v_lshl_add_u32 v4, v5, 16, v4")
        k.e("s_mov_b32 s31, 0")
        for i in range(4):
            k.e("buffer_load_dwordx2 v[%d:%d], v4, s[64:67], s31 offen" % (S0 + 2 * i, S0 + 2 * i + 1))
            k.e("buffer_load_dwordx2 v[%d:%d], v4, s[64:67], s31 offen offset:256" % (S0 + 8 + 2 * i, S0 + 8 + 2 * i + 1))
            k.e("s_add_u32 s31, s31, 16384")
        k.e("v_cmp_gt_u32 vcc, 28, v2")
        k.e("v_subrev_u32 v6, 28, v2")
        k.e("s_nop 1")
        k.e("v_cndmask_b32 v6, v6, v2, vcc")
        k.e("v_lshlrev_b32 v6, 4, v6")
        k.e("v_mov_b32 v7, %d" % (3584 * 4))
        k.e("v_mov_b32 v8, 0")
        k.e("v_cndmask_b32 v7, v7, v8, vcc")
        k.e("v_add_u32 v6, v6, v7")
        k.e("s_mul_i32 s31, s22, 448")
        k.e("v_add_u32 v6, s31, v6")
        k.e("s_mov_b32 s31, 0")
        for i in range(4):
            k.e("buffer_load_dwordx4 v[%d:%d], v6, s[68:71], s31 offen" % (40 + 4 * i, 43 + 4 * i))
            k.e("s_add_u32 s31, s31, %d" % (2 * 3584 * 4))
        return 12
    sp.tail_hook = early
    L_b = k.newlab("pathb")
    L_fin = k.newlab("fin")
    k.e("s_cmp_lg_u32 s27, 0")
    k.e("s_cbranch_scc1 %s" % L_b)
    nst0 = k.nstamp
    for fh in range(2):
        NF = 4 if fh == 0 else 3
        if fh == 1:
            k.lab(L_b)
            k.nstamp = nst0
        steps = []
        for jj in range(2):
            reads = [("ds_read_b128", 0, 14, 1024 * jj)]
            mf = []
            for t in range(NF):
                for i in range(2):
                    reads.append(("ds_read_b64_tr_b16", 8 + 4 * t + 2 * i, 16, ((4 * jj + 2 * i) * 7 + t) * 128))
                if t == 0:
                    reads.append(("ds_read_b128", 4, 14, 2048 + 1024 * jj))
                d = 2 * t + 2 + (1 if t > 0 else 0)
                mf.append((ACC + 16 * (2 * t), 8 + 4 * t, 0, d))
                mf.append((ACC + 16 * (2 * t + 1), 8 + 4 * t, 4, max(d, 3)))
            steps.append(dict(reads=reads, mfma=mf))
        sp.steps = steps
        gemm_main(k, sp)
        k.e("s_waitcnt vmcnt(0)")
        for i in (0, 2):
            k.e(pk("v_pk_add_f32", 40 + i, 40 + i, 44 + i))
            k.e(pk("v_pk_add_f32", 48 + i, 48 + i, 52 + i))
            k.e(pk("v_pk_add_f32", 40 + i, 40 + i, 48 + i))
        k.e("v_add_u32 v6, %d, v9" % CSL)
        k.e("v_cmp_gt_u32 vcc, 56, v2")
        k.e("s_and_saveexec_b64 s[36:37], vcc")
        k.e("ds_write_b128 v6, v[40:43]")
        k.e("s_mov_b64 exec, s[36:37]")
        for tl in range(2):
            B = S0 + 8 * tl
            k.e(pk("v_pk_add_f32", B, B, B + 2))
            k.e(pk("v_pk_add_f32", B + 4, B + 4, B + 6))
            k.e(pk("v_pk_add_f32", B, B, B + 4))
            k.e("v_mov_b32 v%d, v%d" % (B + 2, B))
            k.e("v_mov_b32 v%d, v%d" % (B + 3, B + 1))
        k.e("s_nop 1")
        for tl in range(2):
            B = S0 + 8 * tl
            k.e("v_permlane32_swap_b32 v%d, v%d" % (B, B + 2))
            k.e("v_permlane32_swap_b32 v%d, v%d" % (B + 1, B + 3))
        k.e("s_nop 1")
        for tl in range(2):
            B = S0 + 8 * tl
            k.e(pk("v_pk_add_f32", B, B, B + 2))
        k.e("s_waitcnt lgkmcnt(0)")
        k.e("s_barrier")
        k.e("v_lshrrev_b32 v6, 5, v2")
        k.e("v_lshlrev_b32 v5, 4, v6")
        k.e("v_add_u32 v5, %d, v5" % (CSL + 256 * fh))
        C0 = 192
        T = 224

        def csread(tt):
            cbb = C0 + (tt & 1) * 16
            for q in range(2):
                k.e("ds_read_b128 v[%d:%d], v5 offset:%d" % (cbb + 4 * q, cbb + 4 * q + 3, tt * 64 + q * 32))
                k.e("ds_read_b128 v[%d:%d], v5 offset:%d" % (cbb + 8 + 4 * q, cbb + 8 + 4 * q + 3, 448 + tt * 64 + q * 32))
        csread(0)
        csread(1)
        for tl in range(2):
            B = S0 + 8 * tl
            m, v = B, B + 1
            k.e("v_mul_f32 v%d, 0x3a800000, v%d" % (m, m))
            k.e("v_mul_f32 v%d, 0x3a800000, v%d" % (v, v))
            k.e("v_fma_f32 v%d, -v%d, v%d, v%d" % (v, m, m, v))
            k.e("v_max_f32 v%d, 0, v%d" % (v, v))
            round_bf16(k, m, m)
            round_bf16(k, v, v)
            k.e("v_add_f32 v%d, 0x3727c5ac, v%d" % (v, v))
            round_bf16(k, v, v)
            k.e("v_sqrt_f32 v%d, v%d" % (v, v))
            k.e("s_nop 0")
            round_bf16(k, v, v)
            k.e("v_rcp_f32 v%d, v%d" % (B + 4, v))
            k.e("s_nop 0")
            k.e("v_mov_b32 v%d, v%d" % (B + 5, B + 4))
            k.e("v_mul_f32 v%d, v%d, v%d" % (m, m, B + 4))
            k.e("v_sub_f32 v%d, 0, v%d" % (B + 6, m))
            k.e("v_mov_b32 v%d, v%d" % (B + 7, B + 6))
        k.e("s_lshl_b32 s31, s23, 3")
        k.e("s_lshl_b32 s30, s26, 1")
        k.e("s_add_u32 s31, s31, s30")
        k.e("s_mul_i32 s31, s31, 224")
        k.e("s_mul_i32 s30, s22, 7")
        k.e("s_add_u32 s31, s31, s30")
        k.e("s_add_u32 s31, s31, %d" % (4 * fh))
        k.e("s_lshl_b32 s31, s31, 10")
        k.e("v_add_u32 v56, s31, v9")
        k.e("v_add_u32 v57, %d, v56" % (224 * 1024))
        c1 = -2.0 * math.log2(math.e) * math.sqrt(2.0 / math.pi)
        c2 = c1 * 0.044715
        k.e("v_mov_b32 v60, 0x%08x" % f2u(c1))
        k.e("v_mov_b32 v61, 0x%08x" % f2u(c1))
        k.e("v_mov_b32 v62, 0x%08x" % f2u(c2))
        k.e("v_mov_b32 v63, 0x%08x" % f2u(c2))
        k.e("v_mov_b32 v58, 1.0")
        k.e("v_mov_b32 v59, 1.0")
        cnt = 0
        for t in range(NF):
            cb = C0 + (t & 1) * 16
            k.e("s_waitcnt lgkmcnt(%d)" % (4 if t < NF - 1 else 0))
            for tl in range(2):
                B = S0 + 8 * tl
                A = ACC + 16 * (2 * t + tl)
                for j in range(8):
                    k.e(pk("v_pk_mul_f32", T + 2 * j, cb + 2 * j, B + 6))
                for j in range(8):
                    k.e(pk("v_pk_fma_f32", A + 2 * j, A + 2 * j, B + 4, T + 2 * j))
                if tl == 1 and t + 2 < NF:
                    csread(t + 2)
                for j in range(4):
                    k.e(pk("v_pk_mul_f32", T + 2 * j, A + 2 * j, A + 2 * j))
                for j in range(4):
                    k.e(pk("v_pk_fma_f32", T + 2 * j, T + 2 * j, 62, 60))
                for j in range(4):
                    k.e(pk("v_pk_mul_f32", T + 2 * j, T + 2 * j, A + 2 * j))
                for j in range(8):
                    k.e("v_exp_f32 v%d, v%d" % (T + j, T + j))
                for j in range(4):
                    k.e(pk("v_pk_mul_f32", A + 2 * j, A + 2 * j, A + 8 + 2 * j))
                for j in range(4):
                    k.e(pk("v_pk_add_f32", T + 2 * j, T + 2 * j, 58))
                for j in range(8):
                    k.e("v_rcp_f32 v%d, v%d" % (T + j, T + j))
                k.e("s_nop 0")
                for j in range(4):
                    k.e(pk("v_pk_mul_f32", A + 2 * j, A + 2 * j, T + 2 * j))
                o = 44 + 4 * (cnt & 1)
                for j in range(4):
                    k.e("v_cvt_pk_bf16_f32 v%d, v%d, v%d" % (o + j, A + 2 * j, A + 2 * j + 1))
                k.e("buffer_store_dwordx4 v[%d:%d], v%d, s[76:79], 0 offen offset:%d%s" % (o, o + 3, 56 + tl, 1024 * t, WT))
                cnt += 1
        if fh == 0:
            k.e("s_branch %s" % L_fin)
    k.lab(L_fin)
    k.stamp_store(4)
    k.lab(L_end)
    k.e("s_endpgm")
    return k, 240, (256, 512, SCR + 2048)


WS_P = 40 * MB


def gen_down2():
    k = KB("k4_down_kernel")
    L_end = k.newlab("end")
    BK, NS = 64, 5
    XB = 16384
    WB = 16384
    SB = XB + WB
    k.e("s_cmp_ge_u32 s2, 256")
    k.e("s_cbranch_scc1 %s" % L_end)
    k.e("s_load_dwordx2 s[4:5], s[0:1], %d" % KA_WD)
    k.e("s_load_dwordx2 s[6:7], s[0:1], %d" % KA_WS)
    k.e("s_load_dwordx4 s[60:63], s[0:1], %d" % KA_OUT)
    k.e("s_and_b32 s20, s2, 7")
    k.e("s_lshr_b32 s21, s2, 3")
    k.e("s_and_b32 s38, s21, 1")
    k.e("s_lshr_b32 s21, s21, 1")
    k.e("s_and_b32 s22, s20, 1")
    k.e("s_lshl_b32 s22, s22, 2")
    k.e("s_and_b32 s23, s21, 3")
    k.e("s_add_u32 s22, s22, s23")
    k.e("s_lshr_b32 s23, s20, 1")
    k.e("s_lshl_b32 s23, s23, 2")
    k.e("s_lshr_b32 s24, s21, 2")
    k.e("s_add_u32 s23, s23, s24")
    k.e("s_lshl_b32 s24, s23, 7")
    wave_and_lane(k)
    k.e("s_lshr_b32 s26, s25, 2")
    k.e("s_bfe_u32 s27, s25, 0x10001")
    k.e("s_and_b32 s28, s25, 1")
    dma = []
    k.e("v_lshlrev_b32 v9, 4, v2")
    k.e("s_lshl_b32 s30, s23, 2")
    k.e("s_lshr_b32 s31, s25, 1")
    k.e("s_add_u32 s30, s30, s31")
    k.e("s_mul_i32 s30, s30, 224")
    k.e("s_mul_i32 s31, s38, 112")
    k.e("s_add_u32 s30, s30, s31")
    k.e("s_lshl_b32 s31, s28, 1")
    k.e("s_add_u32 s30, s30, s31")
    k.e("s_lshl_b32 s30, s30, 10")
    k.e("v_add_u32 v10, s30, v9")
    k.e("v_add_u32 v11, 1024, v10")
    for i in range(2):
        k.e("s_lshl_b32 s%d, s25, 11" % (40 + i))
        k.e("s_add_u32 s%d, s%d, %d" % (40 + i, 40 + i, 1024 * i))
        dma.append((8, 10 + i, 50, 40 + i))
    for i in range(2):
        k.e("s_lshl_b32 s30, s25, 3")
        k.e("s_add_u32 s30, s30, %d" % (4 * i))
        k.e("v_bfe_u32 v6, v2, 2, 2")
        k.e("v_add_u32 v6, s30, v6")
        k.e("v_lshlrev_b32 v6, 11, v6")
        k.e("v_lshrrev_b32 v7, 4, v2")
        k.e("v_lshl_add_u32 v6, v7, 6, v6")
        k.e("v_and_b32 v7, 3, v2")
        k.e("v_lshl_add_u32 v6, v7, 4, v6")
        k.e("s_lshl_b32 s31, s22, 8")
        k.e("v_add_u32 v%d, s31, v6" % (12 + i))
        k.e("s_lshl_b32 s%d, s25, 11" % (42 + i))
        k.e("s_add_u32 s%d, s%d, %d" % (42 + i, 42 + i, XB + 1024 * i))
        dma.append((12, 12 + i, 51, 42 + i))
    k.e("s_mov_b32 s50, 0")
    k.e("s_mul_i32 s51, s38, %d" % (1792 * 2048))
    k.e("s_waitcnt lgkmcnt(0)")
    k.srd(8, 6, 2048 * 3584 * 2, WS_HH)
    k.srd(12, 4, 3584 * 1024 * 2)
    sp = Spec()
    sp.NS, sp.nst, sp.stage_bytes = NS, 1792 // BK, SB
    sp.dma = dma
    sp.sadv = [(50, 4096), (51, BK * 2048)]
    sp.s_wr, sp.s_rd, sp.s_cnt = 52, 53, 54
    k.srd(64, 6, 32768, WS_FLAG)
    k.e("s_lshl_b32 s33, s23, 3")
    k.e("s_add_u32 s33, s33, s22")
    k.e("s_lshl_b32 s34, s33, 8")
    k.e("v_mov_b32 v20, s34")
    k.e("v_mov_b32 v21, 1")
    L_na0 = k.newlab("noarr0")
    k.e("s_cmp_lg_u32 s25, 0")
    k.e("s_cbranch_scc1 %s" % L_na0)
    k.e("s_mov_b64 exec, 1")
    k.e("buffer_atomic_add v21, v20, s[64:67], 0 offen sc0 sc1")
    k.e("s_mov_b64 exec, -1")
    k.lab(L_na0)
    gemm_prologue(k, sp)
    for tl in range(2):
        k.e("s_xor_b32 s30, s26, %d" % tl)
        k.e("s_lshl_b32 s31, s27, 1")
        k.e("s_add_u32 s30, s30, s31")
        k.e("s_lshl_b32 s30, s30, 2")
        k.e("s_lshl_b32 s31, s26, 1")
        k.e("s_add_u32 s30, s30, s31")
        k.e("s_lshl_b32 s30, s30, 10")
        k.e("v_add_u32 v%d, s30, v9" % (16 + tl))
    wfrag_lanepat(k, 3, 4, 1024)
    k.e("s_lshl_b32 s30, s26, 13")
    k.e("s_lshl_b32 s31, s28, 9")
    k.e("s_add_u32 s30, s30, s31")
    k.e("s_add_u32 s30, s30, %d" % XB)
    k.e("v_add_u32 v18, s30, v3")
    ACC = 64
    for i in range(64):
        k.e("v_mov_b32 v%d, 0" % (ACC + i))
    F0, F1 = 128, 144
    steps = []
    for jj in range(2):
        reads = [("ds_read_b128", 0, 16, 1024 * jj),
                 ("ds_read_b64_tr_b16", 8, 18, 4096 * jj), ("ds_read_b64_tr_b16", 10, 18, 4096 * jj + 2048),
                 ("ds_read_b64_tr_b16", 12, 18, 4096 * jj + 256), ("ds_read_b64_tr_b16", 14, 18, 4096 * jj + 2048 + 256),
                 ("ds_read_b128", 4, 17, 1024 * jj)]
        mf = [(ACC + 0, 8, 0, 2), (ACC + 16, 12, 0, 4), (ACC + 32, 8, 4, 5), (ACC + 48, 12, 4, 5)]
        steps.append(dict(reads=reads, mfma=mf))
    sp.addr = [16, 17, 18]
    sp.steps = steps
    sp.fset = [F0, F1]
    k.e("s_lshl_b32 s29, s27, 1")
    k.e("s_add_u32 s29, s29, s26")
    k.e("s_lshl_b32 s30, s23, 2")
    k.e("s_add_u32 s30, s30, s29")
    k.e("s_lshl_b32 s30, s30, 6")
    k.e("s_lshl_b32 s31, s22, 3")
    k.e("s_add_u32 s30, s30, s31")
    k.e("s_lshl_b32 s31, s28, 2")
    k.e("s_add_u32 s30, s30, s31")
    k.e("s_lshl_b32 s30, s30, 10")
    k.e("v_add_u32 v7, s30, v9")
    k.srd(16, 60, 2048 * 1024 * 2)
    k.srd(56, 6, 2048 * 1024 * 2, WS_H)
    k.srd(68, 6, 128 * 65536, WS_P)

    def resid():
        for s_ in range(4):
            k.e("buffer_load_dwordx4 v[%d:%d], v7, s[56:59], 0 offen offset:%d" % (32 + 4 * s_, 35 + 4 * s_, 1024 * s_))
        return 4
    sp.tail_hook = resid
    gemm_main(k, sp)
    k.e("s_lshl_b32 s30, s25, 13")
    k.e("v_add_u32 v4, s30, v9")
    k.e("s_xor_b32 s31, s25, 4")
    k.e("s_lshl_b32 s31, s31, 13")
    k.e("v_add_u32 v5, s31, v9")
    k.e("v_mov_b32 v60, 0xffff0000")
    k.e("s_mov_b32 s35, 0")
    k.e("s_mov_b32 s36, 1")
    k.e("s_lshl_b32 s30, s33, 16")
    k.e("s_lshl_b32 s31, s25, 13")
    k.e("s_add_u32 s30, s30, s31")
    k.e("v_add_u32 v22, s30, v9")
    k.e("v_add_u32 v23, 4096, v22")
    k.e("s_barrier")
    for q in range(8):
        k.e("ds_write_b128 v4, v[%d:%d] offset:%d" % (ACC + 32 + 4 * q, ACC + 35 + 4 * q, 1024 * q))
    L_na = k.newlab("noarr")
    k.e("s_cmp_lg_u32 s25, 0")
    k.e("s_cbranch_scc1 %s" % L_na)
    k.e("s_mov_b64 exec, 1")
    k.e("v_mov_b32 v24, %d" % 131072)
    k.e("ds_write_b32 v24, v21")
    k.e("s_mov_b64 exec, -1")
    k.lab(L_na)
    k.e("s_waitcnt lgkmcnt(0)")
    k.e("s_barrier")
    for q in range(8):
        k.e("ds_read_b128 v[%d:%d], v5 offset:%d" % (ACC + 32 + 4 * q, ACC + 35 + 4 * q, 1024 * q))
    k.e("v_mov_b32 v24, %d" % 131072)
    k.e("ds_read_b32 v25, v24")
    k.e("s_waitcnt lgkmcnt(0)")
    for i in range(0, 32, 2):
        k.e(pk("v_pk_add_f32", ACC + i, ACC + i, ACC + 32 + i))
    k.e("v_readfirstlane_b32 s37, v25")
    k.e("s_nop 3")
    k.e("s_lshr_b32 s37, s37, s35")
    k.e("s_and_b32 s37, s37, 0xff")
    L_second = k.newlab("second")
    k.e("s_cmp_lg_u32 s37, 0")
    k.e("s_cbranch_scc1 %s" % L_second)
    for q in range(8):
        k.e("buffer_store_dwordx4 v[%d:%d], v%d, s[68:71], 0 offen offset:%d sc1" % (ACC + 4 * q, ACC + 4 * q + 3, 22 if q < 4 else 23, 1024 * (q & 3)))
    k.e("s_waitcnt vmcnt(0)")
    k.e("s_barrier")
    L_fin = k.newlab("fin")
    k.e("s_cmp_lg_u32 s25, 0")
    k.e("s_cbranch_scc1 %s" % L_fin)
    k.e("s_mov_b64 exec, 1")
    k.e("v_mov_b32 v21, s36")
    k.e("buffer_atomic_add v21, v20, s[64:67], 0 offen offset:128 sc1")
    k.e("s_mov_b64 exec, -1")
    k.e("s_branch %s" % L_fin)
    k.lab(L_second)
    L_wait = k.newlab("wait")
    L_go = k.newlab("go")
    k.e("s_cmp_lg_u32 s25, 0")
    k.e("s_cbranch_scc1 %s" % L_go)
    k.lab(L_wait)
    k.e("buffer_load_dword v25, v20, s[64:67], 0 offen offset:128 sc1")
    k.e("s_waitcnt vmcnt(0)")
    k.e("v_readfirstlane_b32 s37, v25")
    k.e("s_nop 3")
    k.e("s_and_b32 s37, s37, s36")
    k.e("s_cmp_lg_u32 s37, 0")
    k.e("s_cbranch_scc1 %s" % L_go)
    k.e("s_sleep 2")
    k.e("s_branch %s" % L_wait)
    k.lab(L_go)
    k.e("s_barrier")
    for q in range(8):
        k.e("buffer_load_dwordx4 v[%d:%d], v%d, s[68:71], 0 offen offset:%d sc1" % (ACC + 32 + 4 * q, ACC + 35 + 4 * q, 22 if q < 4 else 23, 1024 * (q & 3)))
    EX = 65536
    k.e("s_lshl_b32 s30, s29, 5")
    k.e("v_and_b32 v3, 31, v2")
    k.e("v_add_u32 v3, s30, v3")
    k.e("v_mul_u32_u24 v3, 272, v3")
    k.e("v_lshrrev_b32 v5, 5, v2")
    k.e("v_lshl_add_u32 v3, v5, 3, v3")
    k.e("s_lshl_b32 s30, s28, 7")
    k.e("s_add_u32 s30, s30, %d" % EX)
    k.e("v_add_u32 v3, s30, v3")
    k.e("v_lshrrev_b32 v4, 4, v2")
    k.e("s_lshl_b32 s30, s25, 4")
    k.e("v_add_u32 v4, s30, v4")
    k.e("v_and_b32 v5, 15, v2")
    k.e("v_mul_u32_u24 v6, 272, v4")
    k.e("v_lshl_add_u32 v6, v5, 4, v6")
    k.e("v_add_u32 v6, %d, v6" % EX)
    k.e("v_add_u32 v4, s24, v4")
    k.e("v_lshlrev_b32 v4, 11, v4")
    k.e("v_lshl_add_u32 v4, v5, 4, v4")
    k.e("s_lshl_b32 s30, s22, 8")
    k.e("v_add_u32 v4, s30, v4")
    T = 128
    R = 144
    for nl in range(2):
        k.e("s_waitcnt vmcnt(%d)" % (4 - 4 * nl))
        A = ACC + 16 * nl
        for i in range(0, 16, 2):
            k.e(pk("v_pk_add_f32", A + i, A + i, A + 32 + i))
        for i in range(8):
            k.e("v_cvt_pk_bf16_f32 v%d, v%d, v%d" % (48 + i, A + 2 * i, A + 2 * i + 1))
        for i in range(8):
            k.e("v_lshlrev_b32 v%d, 16, v%d" % (T + 2 * i, 48 + i))
            k.e("v_and_b32 v%d, v60, v%d" % (T + 2 * i + 1, 48 + i))
            k.e("v_lshlrev_b32 v%d, 16, v%d" % (R + 2 * i, 32 + 8 * nl + i))
            k.e("v_and_b32 v%d, v60, v%d" % (R + 2 * i + 1, 32 + 8 * nl + i))
        for i in range(8):
            k.e(pk("v_pk_add_f32", T + 2 * i, T + 2 * i, R + 2 * i))
        for i in range(8):
            k.e("v_cvt_pk_bf16_f32 v%d, v%d, v%d" % (48 + i, T + 2 * i, T + 2 * i + 1))
        for q in range(4):
            k.e("ds_write_b64 v3, v[%d:%d] offset:%d" % (48 + 2 * q, 49 + 2 * q, 64 * nl + 16 * q))
        if nl == 0:
            k.e("s_nop 1")
    k.e("s_waitcnt lgkmcnt(0)")
    k.e("s_barrier")
    for i in range(4):
        k.e("ds_read_b128 v[%d:%d], v6 offset:%d" % (32 + 4 * i, 35 + 4 * i, 1088 * i))
    k.e("s_mov_b32 s30, 0")
    for i in range(4):
        k.e("s_waitcnt lgkmcnt(%d)" % (3 - i))
        k.e("buffer_store_dwordx4 v[%d:%d], v4, s[16:19], s30 offen%s" % (32 + 4 * i, 35 + 4 * i, WT))
        k.e("s_add_u32 s30, s30, 8192")
    k.lab(L_fin)
    k.stamp_store(5)
    k.lab(L_end)
    k.e("s_endpgm")
    return k, 160, (256, 512, NS * SB)


def main():
    kernels = [gen_k0(), gen_k1() if os.environ.get('K1A') else gen_k1b(), gen_k15(), gen_proj("k2_wo_kernel", "wo"), gen_k3() if os.environ.get("K3A") else gen_k3b(),
               gen_down2() if os.environ.get("NEWK4") else gen_proj("k4_down_kernel", "down")]
    hdr = open(REF).read().split("\n")
    out = []
    for ln in hdr:
        if ln.startswith("; @launch"):
            break
        out.append(ln)
    for k, vg, (g, b, lds) in kernels:
        out.append("; @launch kernel=%s grid=(%d,1,1) block=(%d,1,1) lds=%d" % (k.name, g, b, lds))
    out.append('.amdgcn_target "amdgcn-amd-amdhsa--gfx950"')
    out.append(".text")
    descs = []
    for k, vg, _ in kernels:
        t, d = k.text(vg)
        out.append(t)
        descs.append(d)
    out.append('.section .rodata,"a"')
    for d in descs:
        out.append(".p2align 6")
        out.append(d)
    dst = os.environ.get("DST", "stamp.s" if STAMP else OUT)
    open(dst, "w").write("\n".join(out) + "\n")
    print("wrote", dst, sum(len(k.lines) for k, _, _ in kernels), "lines")


if __name__ == "__main__":
    main()
```
